```python
import torch

def _softmax(x, axis=-1):
    return torch.softmax(x, dim=axis)
def _gelu(x):
    return torch.nn.functional.gelu(x, approximate="tanh")
def _silu(x):
    return torch.nn.functional.silu(x)
def _sigmoid(x):
    return torch.sigmoid(x)
def _layernorm(x, axis=-1, eps=1e-5):
    m = x.mean(dim=axis, keepdim=True)
    v = x.var(dim=axis, keepdim=True, unbiased=False)
    return (x - m) / torch.sqrt(v + eps)
def _scatter_add(tgt, idx, src, axis=0):
    return tgt.clone().index_add_(axis, idx, src)
def _segment_sum(src, seg, n):
    out = torch.zeros((n,) + src.shape[1:], dtype=src.dtype)
    return out.index_add_(0, seg, src)
def _pad(x, pw):
    flat = tuple(v for pair in reversed(pw) for v in pair)
    return torch.nn.functional.pad(x, flat)

kernel_name = 'recurrent_scan__softmax_full_mha__dense_activation_squared_relu__prompt'

def setup_inputs():

    _w = (lambda a: (lambda t: t.to(torch.bfloat16) if t.is_floating_point() else t)(torch.as_tensor(a)))
    def _A_setup():
        B, S, D = 1, 2048, 512
        return {
            "x": _w((lambda *s: torch.randn(*s, dtype=torch.bfloat16) * 0.05)(B, S, D)),
            "wqkv": _w((lambda *s: torch.randn(*s, dtype=torch.bfloat16) * 0.05)(D, 3 * D)),
            "wo": _w((lambda *s: torch.randn(*s, dtype=torch.bfloat16) * 0.05)(D, D)),
        }
    _A_in = _A_setup()

    def _B_setup():
        B, S, D, F = 1, 2048, 512, 1376
        return {
            "x": _w((lambda *s: torch.randn(*s, dtype=torch.bfloat16) * 0.05)(B, S, D)),
            "w1": _w((lambda *s: torch.randn(*s, dtype=torch.bfloat16) * 0.05)(D, F)),
            "b1": _w((lambda *s: torch.randn(*s, dtype=torch.bfloat16) * 0.8)(F)),
            "w2": _w((lambda *s: torch.randn(*s, dtype=torch.bfloat16) * 0.05)(F, D)),
            "b2": _w((lambda *s: torch.randn(*s, dtype=torch.bfloat16) * 1.6)(D)),
        }
    _B_in = _B_setup()

    return {
        "A_x": _A_in["x"],
        "A_wqkv": _A_in["wqkv"],
        "A_wo": _A_in["wo"],
        "B_x": _B_in["x"],
        "B_w1": _B_in["w1"],
        "B_b1": _B_in["b1"],
        "B_w2": _B_in["w2"],
        "B_b2": _B_in["b2"],
    }

def reference(A_x, A_wqkv, A_wo, B_x, B_w1, B_b1, B_w2, B_b2):
    def _A_ref(x, wqkv, wo):
        B, S, D = x.shape
        H = 32; Dh = D // H
        qkv = (lambda x, *d: x.permute(*d))((x @ wqkv).reshape(B, S, 3, H, Dh), 2, 0, 3, 1, 4)
        q, k, v = qkv[0], qkv[1], qkv[2]
        scale = Dh ** -0.5
        scores = torch.einsum("bhqd,bhkd->bhqk", q, k) * scale
        p = _softmax(scores, axis=-1)
        o = torch.einsum("bhqk,bhkd->bhqd", p, v)
        return (lambda x, *d: x.permute(*d))(o, 0, 2, 1, 3).reshape(B, S, D) @ wo

    def _B_ref(x, w1, b1, w2, b2):
        h = torch.einsum("bsd,df->bsf", x, w1) + b1
        zero = torch.zeros_like(h)
        r = torch.where(h > zero, h, zero)
        h = r * r
        out = torch.einsum("bsf,fd->bsd", h, w2) + b2
        return out

    x = A_x
    xn = _layernorm(x, axis=-1)
    s = _A_ref(xn, A_wqkv, A_wo)
    g = _silu(_B_ref(xn, B_w1, B_b1, B_w2, B_b2))
    return x + s * g
```

```python
import re

TRANS = ("v_exp_f32", "v_log_f32", "v_rcp_f32", "v_rsq_f32", "v_sqrt_f32", "v_sin_f32", "v_cos_f32")
_REG = re.compile(r"(?<![\w.])(-|\|)?([vsa])(?:\[(\d+):(\d+)\]|(\d+))(?![\w])")


def regs_of(tok):
    out = set()
    for m in _REG.finditer(tok):
        k = m.group(2)
        if m.group(3) is not None:
            out |= {(k, i) for i in range(int(m.group(3)), int(m.group(4)) + 1)}
        else:
            out.add((k, int(m.group(5))))
    if re.search(r"\bvcc\b", tok):
        out.add(("s", "vcc"))
    if re.search(r"\bm0\b", tok):
        out.add(("s", "m0"))
    return out


def passes(op):
    if "4x4x4" in op:
        return 2
    if "16x16" in op:
        return 4
    return 8


class Ins:
    def __init__(self, text):
        self.text = text
        t = text.split(";")[0].strip()
        self.is_ins = bool(t) and not t.endswith(":") and not t.startswith(".")
        self.op = ""
        self.kind = "other"
        self.dst = set()
        self.src = set()
        self.ab = set()
        self.c = set()
        self.data = set()
        self.states = 1
        if not self.is_ins:
            return
        parts = t.split(None, 1)
        op = self.op = parts[0]
        ops = [x.strip() for x in parts[1].split(",")] if len(parts) > 1 else []
        base = re.sub(r"_(e32|e64)$", "", op)
        self.base = base
        if op == "s_nop":
            self.states = int(ops[0], 0) + 1
        elif op.startswith("v_mfma"):
            self.kind = "mfma"
            self.dst = regs_of(ops[0])
            self.ab = regs_of(ops[1]) | regs_of(ops[2])
            self.c = regs_of(ops[3])
            self.src = self.ab | self.c
        elif op.startswith("v_smfmac"):
            self.kind = "mfma"
            self.dst = regs_of(ops[0])
            self.ab = regs_of(ops[1]) | regs_of(ops[2]) | regs_of(ops[3])
            self.c = set(self.dst)
            self.src = self.ab | self.c
        elif op.startswith("v_"):
            self.kind = "valu"
            self.dst = regs_of(ops[0])
            rest = ops[1:]
            if base in ("v_add_co_u32", "v_addc_co_u32"):
                self.dst |= regs_of(ops[1])
                rest = ops[2:]
            for o in rest:
                self.src |= regs_of(o)
            if base.startswith("v_permlane"):
                self.dst |= regs_of(ops[1])
                self.src |= regs_of(ops[0])
            if base.startswith("v_fmac") or base.startswith("v_dot2c"):
                self.src |= regs_of(ops[0])
        elif op.startswith("buffer_") or op.startswith("global_"):
            self.kind = "vmem"
            allr = set()
            for o in ops:
                allr |= regs_of(o)
            if re.search(r"\blds\b", t):
                self.src = allr | {("s", "m0")}
                self.dma = True
            elif "load" in op:
                self.dst = regs_of(ops[0])
                for o in ops[1:]:
                    self.src |= regs_of(o)
            else:
                self.src = allr
                if "x3" in op or "x4" in op:
                    self.data = regs_of(ops[0] if op.startswith("buffer_") else ops[1])
        elif op.startswith("ds_"):
            self.kind = "ds"
            if "read" in op or "rtn" in op or "permute" in op or "swizzle" in op:
                self.dst = regs_of(ops[0])
                for o in ops[1:]:
                    self.src |= regs_of(o)
            else:
                for o in ops:
                    self.src |= regs_of(o)
        elif op.startswith("s_"):
            self.kind = "salu"
            if ops and not op.startswith(("s_cmp", "s_cbranch", "s_branch", "s_waitcnt", "s_barrier", "s_setprio", "s_bitcmp")):
                self.dst = regs_of(ops[0])
                for o in ops[1:]:
                    self.src |= regs_of(o)


def need(p, c):
    n = 0
    vd = {r for r in p.dst if r[0] in "va"}
    sd = {r for r in p.dst if r[0] == "s"}
    if p.kind == "valu":
        if c.kind == "mfma" and vd & c.src:
            n = max(n, 2)
        if c.kind == "valu":
            if p.base in TRANS and c.base not in TRANS and vd & c.src:
                n = max(n, 1)
            if c.base in ("v_readfirstlane_b32", "v_readlane_b32") and vd & c.src:
                n = max(n, 1)
            if (c.base.startswith("v_permlane") or "dpp" in c.text or "row_" in c.text or "quad_perm" in c.text) and vd & c.src:
                n = max(n, 2)
            if sd & c.src:
                n = max(n, 2)
            if ("sdwa" in p.text or "op_sel" in p.text) and vd & (c.src | c.dst):
                n = max(n, 1)
        if c.kind == "vmem" and sd & c.src:
            n = max(n, 5)
        if c.kind == "salu" and sd & c.src:
            n = max(n, 1)
    if p.kind == "mfma":
        k = {2: 0, 4: 1, 8: 2}[passes(p.op)]
        if c.kind == "mfma":
            if vd & c.ab:
                n = max(n, (5, 8, 12)[k])
            if vd & c.c:
                if c.c == vd and passes(c.op) == passes(p.op):
                    n = max(n, (2, 0, 0)[k])
                else:
                    n = max(n, (4, 6, 10)[k])
            elif vd & c.dst:
                n = max(n, (4, 6, 10)[k]) if passes(c.op) < passes(p.op) else n
        elif c.kind in ("valu", "vmem", "ds"):
            if vd & (c.src | c.dst):
                n = max(n, (5, 8, 12)[k])
            if c.kind == "valu" and p.c & c.dst:
                n = max(n, (1, 3, 7)[k])
    if p.kind == "vmem" and p.data:
        if c.kind in ("valu", "mfma") and p.data & c.dst:
            n = max(n, 2)
        elif p.data & c.dst:
            n = max(n, 1)
    if p.kind == "salu" and ("s", "m0") in p.dst and ("s", "m0") in c.src and c.kind == "vmem":
        n = max(n, 1)
    return n


class Asm:
    def __init__(self):
        self.items = []
        self.vm = []
        self.lg = []
        self.pads = []

    def raw(self, text):
        self.items.append(Ins(text))

    def __call__(self, text, vm=None, lg=None):
        for line in text.strip().split("\n"):
            line = line.strip()
            if not line:
                continue
            ins = Ins(line)
            if ins.is_ins:
                self._pad(ins)
                if ins.kind == "vmem":
                    self.vm.append(vm)
                    assert len(self.vm) <= 63, ("vm overflow", line)
                if ins.kind == "ds":
                    self.lg.append(lg)
                    assert len(self.lg) <= 15, ("lgkm overflow", line)
            self.items.append(ins)

    def _pad(self, ins):
        dist = 0
        worst = 0
        for p in reversed(self.items):
            if not p.is_ins:
                continue
            if dist >= 20:
                break
            n = need(p, ins)
            if n - dist > worst:
                worst = n - dist
            dist += p.states
        if worst > 0:
            self.pads.append((len(self.items), worst, ins.text))
            while worst > 0:
                k = min(worst, 16)
                self.items.append(Ins(f"s_nop {k-1}"))
                worst -= k

    def label(self, name):
        self.items.append(Ins(name + ":"))

    def comment(self, text):
        self.items.append(Ins("; " + text))

    def _count(self, q, tags):
        idx = -1
        for i, t in enumerate(q):
            if t in tags:
                idx = i
        return None if idx < 0 else len(q) - 1 - idx

    def wait(self, vm=None, lg=None):
        parts = []
        if vm is not None:
            n = 0 if vm == "all" else self._count(self.vm, vm if isinstance(vm, (list, tuple, set)) and not isinstance(vm, tuple) else [vm])
            if n is not None:
                assert n <= 63, n
                parts.append(f"vmcnt({n})")
                self.vm = self.vm[len(self.vm) - n:] if n else []
        if lg is not None:
            n = 0 if lg == "all" else self._count(self.lg, lg if isinstance(lg, list) else [lg])
            if n is not None:
                n = min(n, 15)
                parts.append(f"lgkmcnt({n})")
                self.lg = self.lg[len(self.lg) - n:] if n else []
        if parts:
            self("s_waitcnt " + " ".join(parts))

    def reset_counts(self):
        self.vm = []
        self.lg = []

    def text(self):
        out = []
        for i in self.items:
            out.append(("    " + i.text) if i.is_ins or i.text.startswith(";") else i.text)
        return "\n".join(out) + "\n"


def vr(a, n=1):
    return f"v{a}" if n == 1 else f"v[{a}:{a+n-1}]"


def sr(a, n=1):
    return f"s{a}" if n == 1 else f"s[{a}:{a+n-1}]"
```

```python
import sys, math, struct
from asmlib import Asm, vr, sr

NAME = "recurrent_scan__softmax_full_mha__dense_activation_squared_relu__prompt"
OPT = dict(stamps=0, rot=0, force_slow=0, prio=1, spin=1 << 18)
for a in sys.argv[2:]:
    k, v = a.split("=")
    OPT[k] = int(v, 0)

WS_KV = 0
WS_H = 4 << 20
WS_O = 10 << 20
WS_FL = 12 << 20
WS_TS = 13 << 20
WS_SIZE = 14 << 20
TOP = 131072
L_G = TOP
L_STG = TOP + 16640
L_STATS = TOP + 20736
L_CSP = TOP + 22784
L_QX = TOP + 24576
L_RG = 65536
L_PB = 65536
P_X, P_WQKV, P_WO, P_W1, P_B1, P_W2, P_B2, P_OUT, P_DBG, P_WS = 4, 6, 8, 12, 14, 16, 18, 20, 22, 24
R_X, R_WQKV, R_WO, R_WSH, R_W2, R_OUT, R_WS, R_B1, R_B2, R_DBG = 28, 32, 36, 40, 44, 48, 52, 56, 60, 64
sW, sWQ, sRB, sCB, sROT = 68, 69, 70, 71, 72
sT = [73, 74, 75, 76, 77, 78, 79]
sVM = 26
sLINE = 3
sSTAMP = 80


def f32(x):
    return "0x%08x" % struct.unpack("<I", struct.pack("<f", x))[0]


a = Asm()
nstamp = [0]


def stamp(i):
    if OPT["stamps"]:
        a(f"s_memrealtime {sr(sSTAMP + 2*i, 2)}")


def mfma32(d, x, y, c):
    a(f"v_mfma_f32_32x32x16_bf16 {vr(d,16)}, {vr(x,4)}, {vr(y,4)}, {c if isinstance(c,str) else vr(c,16)}")


def mfma16(d, x, y, c):
    a(f"v_mfma_f32_16x16x32_bf16 {vr(d,4)}, {vr(x,4)}, {vr(y,4)}, {c if isinstance(c,str) else vr(c,4)}")


def mfma4(d, x, c):
    a(f"v_mfma_f32_4x4x4_16b_bf16 {vr(d,4)}, {vr(x,2)}, {vr(x,2)}, {c if isinstance(c,str) else vr(c,4)}")


def smf(d, x, y, idx):
    a(f"v_smfmac_f32_32x32x32_bf16 {vr(d,16)}, {vr(x,4)}, {vr(y,8)}, {vr(idx)}")


def srd(r, p, n):
    a(f"""s_mov_b32 {sr(r)}, {sr(p)}
          s_mov_b32 {sr(r+1)}, {sr(p+1)}
          s_mov_b32 {sr(r+2)}, {n}
          s_mov_b32 {sr(r+3)}, 0x20000""")


def dma(voff, r, soff, lds, tag):
    if isinstance(lds, tuple):
        a(f"s_add_u32 m0, {sr(lds[0])}, {lds[1]}")
    else:
        a(f"s_mov_b32 m0, {lds}")
    a(f"buffer_load_dwordx4 {vr(voff)}, {sr(r,4)}, {sr(soff)} offen lds", vm=tag)


def split3(x, bias, d0, d1, t0, t1, mask):
    a(f"""v_cvt_pk_bf16_f32 {vr(t0)}, {vr(x)}, {vr(x)}
          v_lshlrev_b32 {vr(t0)}, 16, {vr(t0)}
          v_sub_f32 {vr(t0)}, {vr(x)}, {vr(t0)}
          v_cvt_pk_bf16_f32 {vr(d0)}, {vr(x)}, {vr(t0)}
          v_and_b32 {vr(t1)}, 0xffff0000, {vr(d0)}
          v_sub_f32 {vr(t1)}, {vr(t0)}, {vr(t1)}
          v_cvt_pk_bf16_f32 {vr(d1)}, {vr(t1)}, {bias}""")
    if mask is not None:
        a(f"""v_and_b32 {vr(d0)}, {vr(d0)}, {vr(mask)}
              v_and_b32 {vr(d1)}, {vr(d1)}, {vr(mask)}""")


uid = [0]


def poll(load, nreg, reg, first_done=False):
    uid[0] += 1
    L, D, C = f"L_poll{uid[0]}", f"L_polld{uid[0]}", f"L_pollc{uid[0]}"
    a(f"s_mov_b32 {sr(sT[6])}, {OPT['spin']}")
    if first_done:
        a(f"s_branch {C}")
    a.label(L)
    a.raw(load)
    a("s_waitcnt vmcnt(0)")
    a.label(C)
    if nreg == 4:
        a(f"""v_min_u32 {vr(reg)}, {vr(reg)}, {vr(reg+1)}
              v_min3_u32 {vr(reg)}, {vr(reg)}, {vr(reg+2)}, {vr(reg+3)}""")
    a(f"""v_cmp_eq_u32 vcc, 0, {vr(reg)}
          s_nop 1
          s_cmp_eq_u64 vcc, 0
          s_cbranch_scc1 {D}
          s_sub_u32 {sr(sT[6])}, {sr(sT[6])}, 1
          s_cmp_lg_u32 {sr(sT[6])}, 0
          s_cbranch_scc1 {L}""")
    a.label(D)


def set_flag(dword_sgpr_expr_reg, tmp):
    a(f"""s_mov_b64 exec, 1
          v_mov_b32 {vr(tmp)}, 1
          buffer_store_dword {vr(tmp)}, off, {sr(R_WS,4)}, {sr(dword_sgpr_expr_reg)} sc1
          s_mov_b64 exec, -1""")


vL = 252
vHH = 253
vL31 = 254
vTR = 255


def tr_addr(dst, row_hh_mult, rowbytes, tmp):
    a(f"""v_bfe_u32 {vr(tmp)}, {vr(vL)}, 2, 2
          v_mad_u32_u24 {vr(tmp)}, {vr(vHH)}, {row_hh_mult}, {vr(tmp)}
          v_lshlrev_b32 {vr(tmp)}, {int(math.log2(rowbytes))}, {vr(tmp)}
          v_add_u32 {vr(dst)}, {vr(tmp)}, {vr(vTR)}""")


def tr_addr128(d0, d1, row_hh_mult, tmp):
    tr_addr(d0, row_hh_mult, 128, tmp)
    a(f"""v_bfe_u32 {vr(tmp)}, {vr(vL)}, 3, 1
          v_lshl_add_u32 {vr(d0)}, {vr(tmp)}, 6, {vr(d0)}
          v_xor_b32 {vr(d1)}, 64, {vr(d0)}""")


def wdma_voff(dst, stride, tmp):
    a(f"""v_bfe_u32 {vr(tmp)}, {vr(vL)}, 4, 1
          v_lshlrev_b32 {vr(tmp)}, 2, {vr(tmp)}
          v_and_b32 {vr(dst)}, 7, {vr(vL)}
          v_xor_b32 {vr(dst)}, {vr(dst)}, {vr(tmp)}
          v_lshlrev_b32 {vr(dst)}, 4, {vr(dst)}
          v_lshrrev_b32 {vr(tmp)}, 3, {vr(vL)}
          v_mul_u32_u24 {vr(tmp)}, {stride}, {vr(tmp)}
          v_add_u32 {vr(dst)}, {vr(dst)}, {vr(tmp)}""")


def x_addrs(d, tmp):
    a(f"""v_bfe_u32 {vr(tmp)}, {vr(vL)}, 1, 3
          v_xor_b32 {vr(tmp)}, {vr(tmp)}, {vr(vHH)}
          v_lshlrev_b32 {vr(tmp)}, 4, {vr(tmp)}
          v_lshl_add_u32 {vr(d)}, {vr(vL31)}, 7, {vr(tmp)}
          v_xor_b32 {vr(d+1)}, 32, {vr(d)}
          v_xor_b32 {vr(d+2)}, 64, {vr(d)}
          v_xor_b32 {vr(d+3)}, 0x60, {vr(d)}""")


def make_sel(d, tmp):
    a(f"""v_lshrrev_b32 {vr(tmp)}, 2, {vr(vL)}
          v_xor_b32 {vr(tmp)}, {vr(tmp)}, {vr(vL)}
          v_bfe_u32 {vr(tmp)}, {vr(tmp)}, 2, 1
          v_add_u32 {vr(tmp)}, -1, {vr(tmp)}
          v_and_b32 {vr(d)}, 0x3f803f80, {vr(tmp)}
          v_mov_b32 {vr(d+1)}, {vr(d)}
          v_mov_b32 {vr(d+2)}, {vr(d)}
          v_mov_b32 {vr(d+3)}, {vr(d)}""")


a.label(NAME + "_kernel")
a(f"""s_cmp_ge_u32 s2, 256
      s_cbranch_scc1 L_end
      s_load_dwordx16 s[4:19], s[0:1], 0
      s_load_dwordx4 s[20:23], s[0:1], 64
      s_load_dwordx2 s[24:25], s[0:1], 80""")
stamp(0)
a(f"""v_lshrrev_b32 v1, 6, v0
      v_and_b32 {vr(vL)}, 63, v0
      v_readfirstlane_b32 {sr(sW)}, v1
      v_bfe_u32 {vr(vHH)}, v0, 5, 1
      v_and_b32 {vr(vL31)}, 31, v0
      v_bfe_u32 v1, v0, 4, 1
      v_and_b32 v2, 3, v0
      v_lshlrev_b32 v2, 3, v2
      v_lshl_add_u32 {vr(vTR)}, v1, 5, v2
      s_and_b32 {sr(sWQ)}, {sr(sW)}, 3
      s_bfe_u32 {sr(sT[0])}, s2, 0x20001
      s_bfe_u32 {sr(sT[1])}, s2, 0x20003
      s_lshl_b32 {sr(sT[0])}, {sr(sT[0])}, 2
      s_add_u32 {sr(sRB)}, {sr(sT[0])}, {sr(sT[1])}
      s_and_b32 {sr(sT[0])}, s2, 1
      s_lshr_b32 {sr(sT[1])}, s2, 5
      s_lshl_b32 {sr(sT[0])}, {sr(sT[0])}, 3
      s_add_u32 {sr(sCB)}, {sr(sT[0])}, {sr(sT[1])}
      s_lshl_b32 {sr(sT[0])}, {sr(sRB)}, 4
      s_add_u32 {sr(sT[0])}, {sr(sT[0])}, {sr(sCB)}
      s_lshl_b32 {sr(sT[0])}, {sr(sT[0])}, 7
      s_add_u32 {sr(sLINE)}, {sr(sT[0])}, {WS_FL}
      s_mov_b32 {sr(sVM)}, 0xffff
      s_mov_b32 {sr(sVM+1)}, 0xffff""")
if OPT["rot"] == 0:
    a(f"s_mov_b32 {sr(sROT)}, 0")
elif OPT["rot"] == 1:
    a(f"""s_lshl_b32 {sr(sT[0])}, {sr(sRB)}, 1
          s_add_u32 {sr(sT[0])}, {sr(sT[0])}, {sr(sCB)}
          s_and_b32 {sr(sROT)}, {sr(sT[0])}, 7""")
elif OPT["rot"] == 2:
    a(f"""s_add_u32 {sr(sT[0])}, {sr(sRB)}, {sr(sCB)}
          s_and_b32 {sr(sT[0])}, {sr(sT[0])}, 1
          s_lshl_b32 {sr(sROT)}, {sr(sT[0])}, 2""")
elif OPT["rot"] == 3:
    a(f"""s_add_u32 {sr(sT[0])}, {sr(sRB)}, {sr(sCB)}
          s_and_b32 {sr(sT[0])}, {sr(sT[0])}, 3
          s_lshl_b32 {sr(sROT)}, {sr(sT[0])}, 1""")
a("s_waitcnt lgkmcnt(0)")
srd(R_X, P_X, 2048 * 512 * 2)
srd(R_WQKV, P_WQKV, 512 * 1536 * 2)
a(f"""s_cmp_ge_u32 {sr(sW)}, 4
      s_cbranch_scc1 L_B""")


def other_srds():
    srd(R_WO, P_WO, 512 * 512 * 2)
    srd(R_W2, P_W2, 1376 * 512 * 2)
    srd(R_OUT, P_OUT, 2048 * 512 * 2)
    srd(R_WS, P_WS, WS_SIZE)
    srd(R_B1, P_B1, 1376 * 2)
    srd(R_B2, P_B2, 512 * 2)
    srd(R_DBG, P_DBG, 256)


other_srds()
a(f"""s_cmp_lg_u32 {sr(sW)}, 0
      s_cbranch_scc1 L_A1
      s_getpc_b64 s[74:75]""")
a.label("L_pc")
a(f"""s_lshr_b32 {sr(sT[0])}, s2, 3
      s_lshl_b32 {sr(sT[0])}, {sr(sT[0])}, 10
      v_lshlrev_b32 v1, 7, {vr(vL)}
      v_add_u32 v1, {sr(sT[0])}, v1
      v_min_u32 v1, L_end-L_pc, v1
      s_mov_b64 exec, 0xff
      global_load_dword v2, v1, s[74:75]
      s_mov_b64 exec, -1
      s_cmp_lg_u32 {sr(sRB)}, {sr(sCB)}
      s_cbranch_scc1 L_A1
      s_lshl_b32 {sr(sT[0])}, {sr(sRB)}, 11
      s_add_u32 {sr(sT[0])}, {sr(sT[0])}, {WS_FL}
      v_lshrrev_b32 v1, 2, {vr(vL)}
      v_and_b32 v3, 3, {vr(vL)}
      v_lshlrev_b32 v3, 4, v3
      v_lshl_add_u32 v1, v1, 7, v3
      v_mov_b32 v4, 0
      v_mov_b32 v5, 0
      v_mov_b32 v6, 0
      v_mov_b32 v7, 0
      buffer_store_dwordx4 v[4:7], v1, {sr(R_WS,4)}, {sr(sT[0])} offen sc1
      s_lshl_b32 {sr(sT[0])}, {sr(sRB)}, 2
      s_waitcnt vmcnt(0)
      s_mov_b64 exec, 1
      v_mov_b32 v3, 1
      buffer_store_dword v3, off, {sr(R_DBG,4)}, {sr(sT[0])} sc1
      s_mov_b64 exec, -1""")
a.label("L_A1")
a.reset_counts()
aXA, aWA = 4, 8
aSET = [16 + 12 * j for j in range(4)]
aACC = [64, 80]
aDR, aSUM, aSQ, aSEL = 96, 112, [116, 120], 124
aXa, aWa, aRS, aMASK, aR = 128, [132, 136], 140, 144, 145
aCS = 148
aPK = 160
aVO = 10
aTMP = [11, 12, 13, 14, 15]
x_addrs(aXA, aTMP[0])
a(f"s_lshl_b32 {sr(sT[0])}, {sr(sWQ)}, 12")
for j in range(4):
    a(f"v_add_u32 {vr(aXA+j)}, {sr(sT[0])}, {vr(aXA+j)}")
tr_addr128(aWA, aWA + 1, 8, aTMP[0])
a(f"""v_add_u32 {vr(aWA)}, {TOP}, {vr(aWA)}
      v_add_u32 {vr(aWA+1)}, {TOP}, {vr(aWA+1)}""")
make_sel(aSEL, aTMP[0])
a(f"""v_add_u32 {vr(aMASK)}, -1, {vr(vHH)}
      v_mov_b32 {vr(aWa[0]+2)}, 0
      v_mov_b32 {vr(aWa[0]+3)}, 0
      v_mov_b32 {vr(aWa[1]+2)}, 0
      v_mov_b32 {vr(aWa[1]+3)}, 0
      v_mov_b32 {vr(aRS)}, 0
      v_mov_b32 {vr(aRS+1)}, 0
      v_and_b32 {vr(aRS+2)}, 0x3f803f80, {vr(aMASK)}
      v_and_b32 {vr(aRS+3)}, 0x3f80, {vr(aMASK)}""")
a(f"""s_lshr_b32 {sr(sT[0])}, {sr(sCB)}, 1
      s_lshl_b32 {sr(sT[0])}, {sr(sT[0])}, 19
      s_lshl_b32 {sr(sT[1])}, {sr(sRB)}, 2
      s_add_u32 {sr(sT[1])}, {sr(sT[1])}, {sr(sWQ)}
      s_lshl_b32 {sr(sT[1])}, {sr(sT[1])}, 11
      s_add_u32 {sr(sT[2])}, {sr(sT[0])}, {sr(sT[1])}
      s_bitcmp1_b32 {sr(sCB)}, 0
      s_cbranch_scc1 L_AV""")


def kv_path(isV):
    def reads(n, j):
        s = aSET[j]
        a(f"ds_read_b128 {vr(s,4)}, {vr(aXA+j)} offset:{(n&3)*16384}", lg=("r", n, j))
        for t in range(2):
            for u in range(2):
                a(f"ds_read_b64_tr_b16 {vr(s+4+4*t+2*u,2)}, {vr(aWA+t)} offset:{(n&3)*8192+j*2048+u*512}", lg=("r", n, j))

    def small(n, j):
        s = aSET[j]
        first = (n == 0 and j == 0)
        mfma16(aSUM, aSEL, s, "0" if first else aSUM)
        mfma4(aSQ[0], s, "0" if first else aSQ[0])
        mfma4(aSQ[1], s + 2, "0" if first else aSQ[1])

    def main(n, j, t):
        s = aSET[j]
        first = (n == 0 and j == 0)
        c = "0" if first else aACC[t]
        if isV:
            mfma32(aACC[t], s, s + 4 + 4 * t, c)
        else:
            mfma32(aACC[t], s + 4 + 4 * t, s, c)

    def step(n, j):
        main(n, j, 0)
        small(n, j)
        main(n, j, 1)

    if isV:
        a(f"""v_bfe_u32 {vr(aTMP[0])}, {vr(vL)}, 4, 1
              v_lshlrev_b32 {vr(aTMP[0])}, 17, {vr(aTMP[0])}
              v_lshl_add_u32 {vr(aTMP[0])}, {vr(vHH)}, 8, {vr(aTMP[0])}
              v_and_b32 {vr(aVO)}, 15, {vr(vL)}
              v_lshl_add_u32 {vr(aVO)}, {vr(aVO)}, 4, {vr(aTMP[0])}""")
    else:
        a.comment("key slot = lane with bits 2 and 3 swapped")
        a(f"""v_and_b32 {vr(aVO)}, 0x33, {vr(vL)}
              v_bfe_u32 {vr(aTMP[0])}, {vr(vL)}, 2, 1
              v_lshl_add_u32 {vr(aVO)}, {vr(aTMP[0])}, 3, {vr(aVO)}
              v_bfe_u32 {vr(aTMP[0])}, {vr(vL)}, 3, 1
              v_lshl_add_u32 {vr(aVO)}, {vr(aTMP[0])}, 2, {vr(aVO)}
              v_lshlrev_b32 {vr(aVO)}, 4, {vr(aVO)}""")
    for n in range(8):
        a("s_barrier")
        if n == 0:
            stamp(1)
        if n == 7:
            stamp(2)
        reads(n, 0)
        reads(n, 1)
        if n > 0:
            step(n - 1, 3)
        reads(n, 2)
        a.wait(lg=("r", n, 0))
        step(n, 0)
        reads(n, 3)
        if n == 3:
            for j in range(4):
                a(f"v_add_u32 {vr(aXA+j)}, 0x10000, {vr(aXA+j)}")
        a.wait(lg=("r", n, 1))
        step(n, 1)
        a.wait(lg=("r", n, 2))
        if n < 7:
            step(n, 2)
            a.wait(lg=("r", n, 3))
    small(7, 2)
    a.wait(lg=("r", 7, 3))
    small(7, 3)
    a("s_barrier")
    T = aTMP
    a(f"v_lshlrev_b32 {vr(T[0])}, 4, {vr(vL31)}")
    a(f"v_add_u32 {vr(T[0])}, {L_CSP}, {vr(T[0])}")
    a(f"ds_read_b128 {vr(aCS,4)}, {vr(T[0])}", lg="cs")
    a(f"ds_read_b128 {vr(aCS+4,4)}, {vr(T[0])} offset:512", lg="cs")
    main(7, 2, 0)
    a(f"""v_and_b32 {vr(T[1])}, 3, {vr(vL)}
          v_cmp_eq_u32 vcc, 1, {vr(T[1])}
          v_cmp_eq_u32 s[76:77], 2, {vr(T[1])}
          v_cmp_eq_u32 s[78:79], 3, {vr(T[1])}""")
    for i in range(4):
        a(f"v_add_f32 {vr(aSQ[0]+i)}, {vr(aSQ[0]+i)}, {vr(aSQ[1]+i)}")
    main(7, 2, 1)
    a(f"""v_cndmask_b32 {vr(T[1])}, {vr(aSQ[0])}, {vr(aSQ[0]+1)}, vcc
          v_cndmask_b32 {vr(T[1])}, {vr(T[1])}, {vr(aSQ[0]+2)}, s[76:77]
          v_cndmask_b32 {vr(T[1])}, {vr(T[1])}, {vr(aSQ[0]+3)}, s[78:79]
          v_mov_b32 {vr(T[2])}, {vr(T[1])}
          v_mul_f32 {vr(T[3])}, {f32(1/512)}, {vr(aSUM)}""")
    main(7, 3, 0)
    a(f"""v_permlane32_swap_b32 {vr(T[1])}, {vr(T[2])}
          v_add_f32 {vr(T[1])}, {vr(T[1])}, {vr(T[2])}
          v_mul_f32 {vr(T[1])}, {f32(1/512)}, {vr(T[1])}
          v_fma_f32 {vr(T[1])}, -{vr(T[3])}, {vr(T[3])}, {vr(T[1])}
          v_max_f32 {vr(T[1])}, 0, {vr(T[1])}
          v_cvt_pk_bf16_f32 {vr(T[1])}, {vr(T[1])}, {vr(T[1])}""")
    main(7, 3, 1)
    a(f"""v_lshlrev_b32 {vr(T[1])}, 16, {vr(T[1])}
          v_add_f32 {vr(T[1])}, {f32(1e-5)}, {vr(T[1])}
          v_cvt_pk_bf16_f32 {vr(T[1])}, {vr(T[1])}, {vr(T[1])}
          v_lshlrev_b32 {vr(T[1])}, 16, {vr(T[1])}
          v_sqrt_f32 {vr(T[1])}, {vr(T[1])}
          v_cvt_pk_bf16_f32 {vr(aXa)}, -{vr(T[3])}, -{vr(T[3])}
          v_cvt_pk_bf16_f32 {vr(aXa+1)}, -{vr(T[3])}, {vr(T[1])}
          v_and_b32 {vr(T[1])}, 0xffff0000, {vr(aXa+1)}
          v_rcp_f32 {vr(aR)}, {vr(T[1])}""")
    a.wait(lg="cs")
    for t in range(2):
        c = aCS + 4 * t
        a(f"""v_add_f32 {vr(c)}, {vr(c)}, {vr(c+1)}
              v_add_f32 {vr(c+2)}, {vr(c+2)}, {vr(c+3)}
              v_add_f32 {vr(c)}, {vr(c)}, {vr(c+2)}""")
    split3(aR, "0", aXa + 2, aXa + 3, T[1], T[2], None)
    split3(aCS, "0", aWa[0], aWa[0] + 1, T[1], T[2], aMASK)
    if isV:
        mfma32(aDR, aXa, aRS, "0")
    a(f"""s_lshl_b32 {sr(sT[0])}, {sr(sWQ)}, 9
          s_add_u32 {sr(sT[0])}, {sr(sT[0])}, {L_STATS - L_CSP}""")
    if isV:
        mfma32(aACC[0], aXa, aWa[0], aACC[0])
    else:
        mfma32(aACC[0], aWa[0], aXa, aACC[0])
    split3(aCS + 4, "0", aWa[1], aWa[1] + 1, T[1], T[2], aMASK)
    a(f"v_add_u32 {vr(T[0])}, {sr(sT[0])}, {vr(T[0])}")
    a(f"ds_write_b128 {vr(T[0])}, {vr(aXa,4)}", lg="st")
    if isV:
        mfma32(aACC[1], aXa, aWa[1], aACC[1])
    else:
        mfma32(aACC[1], aWa[1], aXa, aACC[1])
    for t in range(2):
        for u in range(2):
            b = aACC[t] + 8 * u
            for i in range(8):
                a(f"v_mul_f32 {vr(b+i)}, {vr(b+i)}, {vr(aDR+8*u+i) if isV else vr(aR)}")
            p = aPK + 8 * t + 4 * u
            for i in range(4):
                a(f"v_cvt_pk_bf16_f32 {vr(p+i)}, {vr(b+2*i)}, {vr(b+2*i+1)}")
            if isV:
                if u == 0:
                    a(f"s_add_u32 {sr(sT[3])}, {sr(sT[2])}, {2*t*131072}")
                a(f"buffer_store_dwordx4 {vr(p,4)}, {vr(aVO)}, {sr(R_WS,4)}, {sr(sT[3])} offen offset:{1024+512*u} sc1", vm="kv")
            else:
                a(f"s_add_u32 {sr(sT[3])}, {sr(sT[2])}, {(2*t+u)*131072}")
                a(f"buffer_store_dwordx4 {vr(p,4)}, {vr(aVO)}, {sr(R_WS,4)}, {sr(sT[3])} offen sc1", vm="kv")


sav = (list(a.vm), list(a.lg))
kv_path(False)
a("s_branch L_A2")
a.label("L_AV")
a.vm, a.lg = list(sav[0]), list(sav[1])
kv_path(True)
a.label("L_A2")
stamp(3)
goload = f"buffer_load_dword v20, v21, {sr(R_DBG,4)}, 0 offen sc1"
a(f"""v_and_b32 v21, 15, {vr(vL)}
      v_lshlrev_b32 v21, 2, v21""")
a(goload, vm="go")
a.wait(lg="all")
a("s_barrier")
a(f"""v_mov_b32 v24, 0
      v_mov_b32 v25, 0
      v_mov_b32 v26, 0
      v_mov_b32 v27, 0
      v_lshlrev_b32 v22, 4, v0
      v_add_u32 v22, {L_G}, v22""")
for i in range(4):
    a(f"ds_write_b128 v22, v[24:27] offset:{i*4096}", lg="g")
a(f"""v_and_b32 v23, 7, {vr(vL)}
      v_lshlrev_b32 v23, 4, v23
      v_add_u32 v23, {L_G + 16384}, v23""")
a("ds_write_b128 v23, v[24:27]", lg="g")
a(f"""s_lshl_b32 {sr(sT[0])}, {sr(sWQ)}, 2
      s_add_u32 {sr(sT[0])}, {sr(sT[0])}, {sr(sLINE)}""")
a.wait(vm="all")
poll(goload, 1, 20, first_done=True)
set_flag(sT[0], 23)
stamp(4)
a(f"""s_cmp_lg_u32 {sr(sW)}, 0
      s_cbranch_scc1 L_A3
      s_and_b32 {sr(sT[0])}, {sr(sCB)}, 14
      s_lshl_b32 {sr(sT[0])}, {sr(sT[0])}, 7
      s_add_u32 {sr(sT[0])}, {sr(sT[0])}, {WS_FL}
      v_lshrrev_b32 v21, 1, {vr(vL31)}
      v_and_b32 v22, 1, {vr(vL)}
      v_lshlrev_b32 v22, 7, v22
      v_lshl_add_u32 v21, v21, 11, v22
      s_mov_b64 exec, 0xffffffff""")
poll(f"buffer_load_dwordx4 v[28:31], v21, {sr(R_WS,4)}, {sr(sT[0])} offen sc1", 4, 28)
a("s_mov_b64 exec, -1")
a.label("L_A3")
a("s_branch L_ATT")

a.label("L_B")
a.reset_counts()
bVXE, bVXO, bVW = 12, 13, 14
bXA, bSW, bST, bVG, bBIAS = 4, 8, 9, 10, 11
bCA = 2
bACC = [64 + 16 * i for i in range(4)]
bRING, NR = 128, 12
bWF = [176, 180]
bXF = [184, 200]
bCS, bSEL = 216, 220
bKF, bKCS = 16, [24, 28]
bT = [32, 33, 34, 35, 36]
sXB, sWB, sLX, sLW = sT[0], sT[1], sT[2], sT[3]
sA, sB_ = sT[4], sT[5]
a(f"""v_lshrrev_b32 {vr(bT[0])}, 4, {vr(vL)}
      v_and_b32 {vr(bVXE)}, 7, {vr(vL)}
      v_xor_b32 {vr(bVXE)}, {vr(bVXE)}, {vr(bT[0])}
      v_lshlrev_b32 {vr(bVXE)}, 4, {vr(bVXE)}
      v_lshrrev_b32 {vr(bT[0])}, 3, {vr(vL)}
      v_lshl_add_u32 {vr(bVXE)}, {vr(bT[0])}, 10, {vr(bVXE)}
      v_xor_b32 {vr(bVXO)}, 64, {vr(bVXE)}
      s_lshl_b32 {sr(sXB)}, {sr(sRB)}, 2
      s_add_u32 {sr(sXB)}, {sr(sXB)}, {sr(sWQ)}
      s_lshl_b32 {sr(sXB)}, {sr(sXB)}, 15
      s_lshl_b32 {sr(sLX)}, {sr(sWQ)}, 12
      s_lshl_b32 {sr(sLW)}, {sr(sWQ)}, 11
      s_and_b32 {sr(sA)}, {sr(sCB)}, 1
      s_add_u32 {sr(sA)}, {sr(sA)}, 1
      s_lshl_b32 {sr(sA)}, {sr(sA)}, 10
      s_lshr_b32 {sr(sB_)}, {sr(sCB)}, 1
      s_lshl_b32 {sr(sB_)}, {sr(sB_)}, 7
      s_add_u32 {sr(sA)}, {sr(sA)}, {sr(sB_)}
      s_mul_i32 {sr(sWB)}, {sr(sWQ)}, {16*3072}
      s_add_u32 {sr(sWB)}, {sr(sWB)}, {sr(sA)}""")
wdma_voff(bVW, 3072, bT[0])


def issue_chunk(c):
    a(f"""s_add_u32 {sr(sB_)}, {sr(sROT)}, {c}
          s_and_b32 {sr(sB_)}, {sr(sB_)}, 7
          s_lshl_b32 {sr(sA)}, {sr(sB_)}, 7
          s_add_u32 {sr(sA)}, {sr(sA)}, {sr(sXB)}""")
    for i in range(4):
        dma(bVXO if i & 1 else bVXE, R_X, sA, (sLX, c * 16384 + i * 1024), ("c", c))
        if i < 3:
            a(f"s_add_u32 {sr(sA)}, {sr(sA)}, 8192")
    a(f"""s_mul_i32 {sr(sA)}, {sr(sB_)}, {64*3072}
          s_add_u32 {sr(sA)}, {sr(sA)}, {sr(sWB)}""")
    for i in range(2):
        dma(bVW, R_WQKV, sA, (sLW, TOP + (c & 3) * 8192 + i * 1024), ("c", c))
        if i < 1:
            a(f"s_add_u32 {sr(sA)}, {sr(sA)}, {8*3072}")


for c in range(4):
    issue_chunk(c)
other_srds()
sSTR, sCOL, sTILE = 10, 11, 26 - 26 + 2
a(f"""s_sub_u32 {sr(sA)}, {sr(sWQ)}, 1
      s_lshl_b32 {sr(sA)}, {sr(sA)}, 4
      s_add_u32 {sr(sA)}, {sr(sA)}, {sr(sCB)}
      s_cmp_eq_u32 {sr(sWQ)}, 0
      s_cselect_b32 {sr(sTILE)}, {sr(sCB)}, {sr(sA)}
      s_cselect_b32 {sr(R_WSH)}, {sr(P_WQKV)}, {sr(P_W1)}
      s_cselect_b32 {sr(R_WSH+1)}, {sr(P_WQKV+1)}, {sr(P_W1+1)}
      s_cselect_b32 {sr(R_WSH+2)}, {512*3072}, 0
      s_cselect_b32 {sr(sSTR)}, 3072, 0
      s_mov_b32 {sr(R_WSH+3)}, 0x20000
      s_cmp_lg_u32 {sr(sWQ)}, 0
      s_cselect_b32 {sr(R_WSH+2)}, {512*2752}, {sr(R_WSH+2)}
      s_cselect_b32 {sr(sSTR)}, 2752, {sr(sSTR)}
      s_lshl_b32 {sr(sCOL)}, {sr(sTILE)}, 6
      v_lshrrev_b32 {vr(bT[0])}, 2, {vr(vL)}
      v_mul_u32_u24 {vr(bT[0])}, {sr(sSTR)}, {vr(bT[0])}
      v_and_b32 {vr(bVG)}, 3, {vr(vL)}
      v_lshl_add_u32 {vr(bVG)}, {vr(bVG)}, 4, {vr(bT[0])}
      s_lshl_b32 {sr(sSTR)}, {sr(sSTR)}, 4""")
tr_addr128(bCA, bCA + 1, 8, bT[0])
a(f"""s_add_u32 {sr(sA)}, {sr(sLW)}, {TOP}
      v_add_u32 {vr(bCA)}, {sr(sA)}, {vr(bCA)}
      v_add_u32 {vr(bCA+1)}, {sr(sA)}, {vr(bCA+1)}""")
make_sel(bSEL, bT[0])
x_addrs(bXA, bT[0])
tr_addr(bST, 8, 64, bT[0])
a(f"""s_lshl_b32 {sr(sA)}, {sr(sWQ)}, 10
      s_add_u32 {sr(sA)}, {sr(sA)}, {L_STG}
      v_add_u32 {vr(bST)}, {sr(sA)}, {vr(bST)}
      v_lshl_add_u32 {vr(bSW)}, {vr(vL)}, 4, {sr(sA)}""")

sWO = 27 - 27 + sT[6]


def wload(s):
    if s >= 32:
        return
    if s % 4 == 0:
        a(f"""s_add_u32 {sr(sWO)}, {sr(sROT)}, {s//4}
              s_and_b32 {sr(sWO)}, {sr(sWO)}, 7
              s_lshl_b32 {sr(sWO)}, {sr(sWO)}, 2
              s_mul_i32 {sr(sWO)}, {sr(sWO)}, {sr(sSTR)}
              s_add_u32 {sr(sWO)}, {sr(sWO)}, {sr(sCOL)}""")
    else:
        a(f"s_add_u32 {sr(sWO)}, {sr(sWO)}, {sr(sSTR)}")
    a(f"buffer_load_dwordx4 {vr(bRING + 4*(s % NR),4)}, {vr(bVG)}, {sr(R_WSH,4)}, {sr(sWO)} offen", vm=("w", s))


for n in range(8):
    a.wait(vm=("c", n))
    a("s_barrier")
    for t in range(2):
        for u in range(2):
            a(f"ds_read_b64_tr_b16 {vr(bKF+4*t+2*u,2)}, {vr(bCA+t)} offset:{(n&3)*8192+u*512}", lg="k")
    if n < 7:
        if 1 <= n <= 4:
            issue_chunk(n + 3)
        elif n >= 5:
            for s in range(4 * (n - 5), 4 * (n - 5) + 4):
                wload(s)
    a.wait(lg="all")
    for t in range(2):
        mfma16(bKCS[t], bSEL, bKF + 4 * t, "0" if n == 0 else bKCS[t])
a(f"""v_lshlrev_b32 {vr(bT[0])}, 4, {vr(vL31)}
      s_lshl_b32 {sr(sA)}, {sr(sWQ)}, 2
      s_add_u32 {sr(sA)}, {sr(sA)}, {L_CSP}
      v_add_u32 {vr(bT[0])}, {sr(sA)}, {vr(bT[0])}""")
a(f"ds_write_b32 {vr(bT[0])}, {vr(bKCS[0])}", lg="k")
a(f"ds_write_b32 {vr(bT[0])}, {vr(bKCS[1])} offset:512", lg="k")
a.wait(lg="all")
a("s_barrier")
stamp(1)
a(f"""s_cmp_ge_u32 {sr(sTILE)}, 43
      s_cbranch_scc0 L_B1
      s_barrier
      s_branch L_ATT""")
a.label("L_B1")
for s in range(8, 12):
    wload(s)
a(f"""v_lshlrev_b32 {vr(bT[0])}, 1, {vr(vL31)}""")
a(f"buffer_load_ushort {vr(bBIAS)}, {vr(bT[0])}, {sr(R_B1,4)}, {sr(sCOL)} offen", vm="bias")


def stage(s):
    a.wait(vm=("w", s))
    a(f"ds_write_b128 {vr(bSW)}, {vr(bRING + 4*(s % NR),4)}", lg=("sw", s))


def rd_w(s):
    for u in range(2):
        a(f"ds_read_b64_tr_b16 {vr(bWF[s&1]+2*u,2)}, {vr(bST)} offset:{u*256}", lg=("f", s))


def rd_x(s, rt):
    n, j = s // 4, s % 4
    a(f"ds_read_b128 {vr(bXF[s&1]+4*rt,4)}, {vr(bXA+j)} offset:{(n&3)*16384+rt*4096}", lg=("f", s))


stage(0)
rd_w(0)
for rt in range(4):
    rd_x(0, rt)
stage(1)
for s in range(32):
    a.wait(lg=("f", s))
    c = lambda rt: "0" if s == 0 else bACC[rt]
    nxt = s + 1 < 32
    mfma32(bACC[0], bWF[s & 1], bXF[s & 1], c(0))
    if nxt:
        rd_w(s + 1)
    if s >= 1:
        wload(s + NR - 1)
    mfma32(bACC[1], bWF[s & 1], bXF[s & 1] + 4, c(1))
    if nxt:
        rd_x(s + 1, 0)
        rd_x(s + 1, 1)
    mfma16(bCS, bSEL, bWF[s & 1], "0" if s == 0 else bCS)
    mfma32(bACC[2], bWF[s & 1], bXF[s & 1] + 8, c(2))
    if nxt:
        rd_x(s + 1, 2)
        rd_x(s + 1, 3)
        if 12 <= s + 1 < 16:
            a(f"v_add_u32 {vr(bXA+(s+1)%4)}, 0x10000, {vr(bXA+(s+1)%4)}")
    mfma32(bACC[3], bWF[s & 1], bXF[s & 1] + 12, c(3))
    if s + 2 < 32:
        stage(s + 2)
    if s == 2:
        a("s_barrier")
stamp(2)
bXa, bWa, bMASK = 184, 176, 37
a(f"""v_lshlrev_b32 {vr(bT[0])}, 4, {vr(vL31)}
      v_add_u32 {vr(bT[0])}, {L_STATS}, {vr(bT[0])}""")
for rt in range(4):
    a(f"ds_read_b128 {vr(bXa+4*rt,4)}, {vr(bT[0])} offset:{rt*512}", lg="xa")
a.wait(vm="bias")
a(f"""v_add_u32 {vr(bMASK)}, -1, {vr(vHH)}
      v_lshlrev_b32 {vr(bBIAS)}, 16, {vr(bBIAS)}
      s_cmp_eq_u32 {sr(sWQ)}, 0
      s_cselect_b32 {sr(sA)}, 0, -1
      v_and_b32 {vr(bBIAS)}, {sr(sA)}, {vr(bBIAS)}
      v_mov_b32 {vr(bWa+2)}, 0
      v_mov_b32 {vr(bWa+3)}, 0""")
split3(bCS, vr(bBIAS), bWa, bWa + 1, bT[1], bT[2], bMASK)
a.wait(lg="xa")
for rt in range(4):
    mfma32(bACC[rt], bWa, bXa + 4 * rt, bACC[rt])
bPK = 128
a(f"""v_lshlrev_b32 {vr(bT[0])}, 4, {vr(vL)}
      s_cmp_eq_u32 {sr(sWQ)}, 0
      s_cbranch_scc1 L_BQ
      s_mul_i32 {sr(sA)}, {sr(sRB)}, {4*86*1024}
      s_lshl_b32 {sr(sB_)}, {sr(sTILE)}, 11
      s_add_u32 {sr(sA)}, {sr(sA)}, {sr(sB_)}
      s_add_u32 {sr(sA)}, {sr(sA)}, {WS_H}""")
for rt in range(4):
    for u in range(2):
        b = bACC[rt] + 8 * u
        for i in range(8):
            a(f"v_max_f32 {vr(b+i)}, 0, {vr(b+i)}")
        for i in range(8):
            a(f"v_mul_f32 {vr(b+i)}, {vr(b+i)}, {vr(b+i)}")
        p = bPK + 8 * rt + 4 * u
        for i in range(4):
            a(f"v_cvt_pk_bf16_f32 {vr(p+i)}, {vr(b+2*i)}, {vr(b+2*i+1)}")
        a(f"buffer_store_dwordx4 {vr(p,4)}, {vr(bT[0])}, {sr(R_WS,4)}, {sr(sA)} offen offset:{1024*u} sc1", vm="h")
    if rt < 3:
        a(f"s_add_u32 {sr(sA)}, {sr(sA)}, {86*1024}")
a("s_branch L_ATT")
a.label("L_BQ")
a(f"v_add_u32 {vr(bT[0])}, {L_QX}, {vr(bT[0])}")
for rt in range(4):
    a(f"v_and_b32 {vr(bT[1+rt])}, 0xffff0000, {vr(bXa+4*rt+1)}")
for rt in range(4):
    a(f"v_rcp_f32 {vr(bT[1+rt])}, {vr(bT[1+rt])}")
for rt in range(4):
    a(f"v_mul_f32 {vr(bT[1+rt])}, {f32(0.25*math.log2(math.e))}, {vr(bT[1+rt])}")
for rt in range(4):
    for u in range(2):
        b = bACC[rt] + 8 * u
        for i in range(8):
            a(f"v_mul_f32 {vr(b+i)}, {vr(b+i)}, {vr(bT[1+rt])}")
        p = bPK + 8 * rt + 4 * u
        for i in range(4):
            a(f"v_cvt_pk_bf16_f32 {vr(p+i)}, {vr(b+2*i)}, {vr(b+2*i+1)}")
        a(f"ds_write_b128 {vr(bT[0])}, {vr(p,4)} offset:{(u*4+rt)*1024}", lg="q")

a.label("L_ATT")
a.reset_counts()
O = [0, 16, 32, 48]
S = [64, 80]
Q = [96, 100, 104, 108]
KB = [112, 116, 120]
VB = [124, 132, 140]
F = [[148, 164], [180, 196]]
HB = [212, 220]
WF = 228
vIDX, vL16, vVO, vWD, vTA, vGA, vFL = 236, 237, 238, 239, 240, 242, 243
vX, vB2 = 244, 248
sKV, sIT, sH0, sH1, sW2, sRG, sKS, sO = 4, 5, 6, 7, 12, 13, 14, 15
sU, sU2 = sT[0], sT[1]
a(f"""v_lshlrev_b32 {vr(vL16)}, 4, {vr(vL)}
      v_and_b32 {vr(vVO)}, 15, {vr(vL)}
      v_lshlrev_b32 {vr(vVO)}, 4, {vr(vVO)}
      v_lshl_add_u32 {vr(vVO)}, {vr(vHH)}, 8, {vr(vVO)}
      v_mov_b32 {vr(vIDX)}, 0xdddddddd
      s_lshr_b32 {sr(sU)}, {sr(sW)}, 2
      s_lshl_b32 {sr(sU2)}, {sr(sCB)}, 1
      s_add_u32 {sr(sU2)}, {sr(sU2)}, {sr(sU)}
      s_lshl_b32 {sr(sKV)}, {sr(sU2)}, 17
      s_lshl_b32 {sr(sO)}, {sr(sU2)}, 10
      s_lshl_b32 {sr(sU2)}, {sr(sWQ)}, 11
      s_add_u32 {sr(sKV)}, {sr(sKV)}, {sr(sU2)}
      s_and_b32 {sr(sIT)}, {sr(sRB)}, 3
      s_lshl_b32 {sr(sIT)}, {sr(sIT)}, 15
      s_lshl_b32 {sr(sU)}, {sr(sU)}, 12
      s_add_u32 {sr(sU)}, {sr(sU)}, {L_QX}
      s_lshl_b32 {sr(sU2)}, {sr(sWQ)}, 10
      s_add_u32 {sr(sU)}, {sr(sU)}, {sr(sU2)}
      v_add_u32 {vr(vGA)}, {sr(sU)}, {vr(vL16)}""")
for b in range(3):
    for i in range(8):
        a(f"v_mov_b32 {vr(VB[b]+i)}, 0x3f803f80")
for j in range(4):
    for i in range(16):
        a(f"v_mov_b32 {vr(O[j]+i)}, 0")
a.wait(lg="all")
stamp(5)
a("s_barrier")
stamp(6)


def kvload(i):
    if i >= 16:
        return
    b = i % 3
    a(f"s_add_u32 {sr(sU)}, {sr(sKV)}, {sr(sIT)}")
    a(f"buffer_load_dwordx4 {vr(KB[b],4)}, {vr(vL16)}, {sr(R_WS,4)}, {sr(sU)} offen sc1", vm=("k", i))
    a(f"s_mov_b64 exec, {sr(sVM,2)}")
    a(f"buffer_load_dwordx4 {vr(VB[b],4)}, {vr(vVO)}, {sr(R_WS,4)}, {sr(sU)} offen offset:1024 sc1", vm=("v", i))
    a(f"buffer_load_dwordx4 {vr(VB[b]+4,4)}, {vr(vVO)}, {sr(R_WS,4)}, {sr(sU)} offen offset:1536 sc1", vm=("v", i))
    a(f"""s_mov_b64 exec, -1
          s_add_u32 {sr(sIT)}, {sr(sIT)}, 8192
          s_and_b32 {sr(sIT)}, {sr(sIT)}, 0x1ffff""")


kvload(0)
for j in range(4):
    a(f"v_xor_b32 {vr(vFL)}, {j*1024}, {vr(vGA)}")
    a(f"ds_read_b128 {vr(Q[j],4)}, {vr(vFL)}", lg="q")
kvload(1)
if OPT["prio"]:
    a("s_setprio 3")
wdma_voff(vWD, 1024, vFL)
tr_addr128(vTA, vTA + 1, 4, vFL)
a(f"""s_lshl_b32 {sr(sRG)}, {sr(sW)}, 13
      s_add_u32 {sr(sRG)}, {sr(sRG)}, {L_RG}
      v_add_u32 {vr(vTA)}, {sr(sRG)}, {vr(vTA)}
      v_add_u32 {vr(vTA+1)}, {sr(sRG)}, {vr(vTA+1)}
      v_lshlrev_b32 {vr(vGA)}, 2, {vr(vL31)}
      v_lshl_add_u32 {vr(vGA)}, {vr(vHH)}, 10, {vr(vGA)}
      v_add_u32 {vr(vGA)}, {L_G}, {vr(vGA)}
      s_mul_i32 {sr(sKS)}, {sr(sW)}, 11
      s_lshr_b32 {sr(sU)}, {sr(sCB)}, 1
      s_lshl_b32 {sr(sU)}, {sr(sU)}, 7
      s_lshl_b32 {sr(sW2)}, {sr(sKS)}, 14
      s_add_u32 {sr(sW2)}, {sr(sW2)}, {sr(sU)}
      s_lshl_b32 {sr(sU2)}, {sr(sW)}, 16
      s_add_u32 {sr(sT[2])}, {sr(sU2)}, {sr(sU)}
      s_lshl_b32 {sr(sT[3])}, {sr(sW)}, 13
      s_and_b32 {sr(sU)}, {sr(sCB)}, 1
      s_lshl_b32 {sr(sU)}, {sr(sU)}, 1
      s_lshl_b32 {sr(sU2)}, {sr(sRB)}, 2
      s_add_u32 {sr(sU)}, {sr(sU)}, {sr(sU2)}
      s_mul_i32 {sr(sH0)}, {sr(sU)}, {86*1024}
      s_add_u32 {sr(sH0)}, {sr(sH0)}, {WS_H}
      s_add_u32 {sr(sU2)}, {sr(sU2)}, {sr(sWQ)}
      s_lshl_b32 {sr(sU2)}, {sr(sU2)}, 15
      s_add_u32 {sr(sO)}, {sr(sO)}, {sr(sU2)}
      s_add_u32 {sr(sO)}, {sr(sO)}, {WS_O}""")
sWoS, sWoL = sT[2], sT[3]

FF0 = 4
NF = 11


def w2dma(k, p):
    if k >= NF:
        return
    dma(vWD, R_W2, sW2, (sRG, (k & 3) * 2048 + p * 1024), ("w2", k))
    a(f"s_add_u32 {sr(sW2)}, {sr(sW2)}, 8192")


def wodma(p):
    dma(vWD, R_WO, sWoS, (sWoL, p * 1024), "wo")
    a(f"s_add_u32 {sr(sWoS)}, {sr(sWoS)}, 8192")


def hload(k):
    if k >= NF:
        return
    a(f"""s_min_u32 {sr(sU)}, {sr(sKS)}, 85
          s_lshl_b32 {sr(sU)}, {sr(sU)}, 10
          s_add_u32 {sr(sU)}, {sr(sU)}, {sr(sH0)}
          s_add_u32 {sr(sU2)}, {sr(sU)}, {86*1024}""")
    a(f"buffer_load_dwordx4 {vr(HB[k&1],4)}, {vr(vL16)}, {sr(R_WS,4)}, {sr(sU)} offen sc1", vm=("h", k))
    a(f"buffer_load_dwordx4 {vr(HB[k&1]+4,4)}, {vr(vL16)}, {sr(R_WS,4)}, {sr(sU2)} offen sc1", vm=("h", k))
    a(f"s_add_u32 {sr(sKS)}, {sr(sKS)}, 1")


def w2read(k, ct):
    for u in range(2):
        a(f"ds_read_b64_tr_b16 {vr(WF+4*ct+2*u,2)}, {vr(vTA+ct)} offset:{(k&3)*2048+u*1024}", lg=("wf", k, ct))


def gadd(rt, ct, r):
    g, i = r >> 2, r & 3
    a(f"ds_add_f32 {vr(vGA)}, {vr(F[rt][ct]+r)} offset:{(32*ct+8*g+i)*256+(4*ct+g)*16+rt*128}", lg="g")


f2load = f"buffer_load_dwordx4 {vr(WF,4)}, {vr(vFL)}, {sr(R_WS,4)}, {sr(sU2)} offen offset:16 sc1"


def f2_signal():
    a(f"""s_cmp_lt_u32 {sr(sW)}, 4
          s_cbranch_scc1 L_nof2
          s_lshl_b32 {sr(sU)}, {sr(sW)}, 2
          s_add_u32 {sr(sU)}, {sr(sU)}, {sr(sLINE)}
          s_waitcnt vmcnt(0)""")
    sv = list(a.vm)
    set_flag(sU, vFL)
    a.vm = sv
    a.label("L_nof2")


def f2_check():
    a(f"""v_and_b32 {vr(vFL)}, 15, {vr(vL)}
          v_lshlrev_b32 {vr(vFL)}, 7, {vr(vFL)}
          s_and_b32 {sr(sU2)}, {sr(sLINE)}, 0xfffff800
          s_mov_b64 exec, 0xffff""")
    poll(f2load, 4, WF)
    a("s_mov_b64 exec, -1")
    a.vm = []


extras = {}


def put(it, tile, slot, fn):
    extras.setdefault((it, tile, slot), []).append(fn)


for it in range(16):
    put(it, 0, 1, lambda it=it: kvload(it + 2))
for p in range(8):
    put(p // 4, p % 4, 2, lambda p=p: wodma(p))
for k in range(3):
    for p in range(2):
        put(2, k + 1, 2 * p, lambda k=k, p=p: w2dma(k, p))
put(FF0 - 1, 0, 0, f2_check)
put(FF0 - 1, 0, 2, lambda: hload(0))
put(FF0 - 1, 3, 0, lambda: (a.wait(vm=("w2", 0)), w2read(0, 0)))
for k in range(NF):
    it = FF0 + k
    put(it, 0, 0, lambda k=k: w2read(k, 1))
    put(it, 0, 2, lambda k=k: hload(k + 1))
    put(it, 1, 0, lambda k=k: w2dma(k + 3, 0))
    put(it, 1, 2, lambda k=k: w2dma(k + 3, 1))
    if k + 1 < NF:
        put(it, 3, 0, lambda k=k: (a.wait(vm=("w2", k + 1)), w2read(k + 1, 0)))
gl = [(rt, ct, r) for ct in range(2) for rt in range(2) for r in range(16)]
gslots = [(15, t, s) for t in range(4) for s in range(3)]
for n, (rt, ct, r) in enumerate(gl):
    it, t, s = gslots[min(n // 6, len(gslots) - 1)]
    put(it, t, s, lambda rt=rt, ct=ct, r=r: gadd(rt, ct, r))


def final_loads():
    a(f"""s_lshl_b32 {sr(sU)}, {sr(sRB)}, 1
          s_and_b32 {sr(sU2)}, {sr(sCB)}, 1
          s_add_u32 {sr(sU)}, {sr(sU)}, {sr(sU2)}
          s_lshl_b32 {sr(sU)}, {sr(sU)}, 3
          s_add_u32 {sr(sU)}, {sr(sU)}, {sr(sW)}
          s_lshl_b32 {sr(sU)}, {sr(sU)}, 13
          s_lshr_b32 {sr(sU2)}, {sr(sCB)}, 1
          s_lshl_b32 {sr(sU2)}, {sr(sU2)}, 7
          s_add_u32 {sr(sH1)}, {sr(sU)}, {sr(sU2)}
          v_and_b32 {vr(vFL)}, 7, {vr(vL)}
          v_lshlrev_b32 {vr(vFL)}, 4, {vr(vFL)}""")
    a(f"buffer_load_dwordx4 {vr(vB2,4)}, {vr(vFL)}, {sr(R_B2,4)}, {sr(sU2)} offen", vm="fin")
    a(f"""v_lshrrev_b32 {vr(vWD)}, 3, {vr(vL)}
          v_lshl_add_u32 {vr(vWD)}, {vr(vWD)}, 10, {vr(vFL)}""")
    a(f"buffer_load_dwordx4 {vr(vX,4)}, {vr(vWD)}, {sr(R_X,4)}, {sr(sH1)} offen", vm="fin")


put(14, 2, 0, final_loads)
if OPT["prio"]:
    put(13, 3, 2, lambda: a("s_setprio 2"))
    put(15, 1, 2, lambda: a("s_setprio 1"))
    put(15, 3, 0, lambda: a("s_setprio 0"))


def run_extras(it, tile, slot):
    for fn in extras.get((it, tile, slot), []):
        fn()


def exps(b, lo, hi):
    for i in range(lo, hi):
        a(f"v_exp_f32 {vr(b+i)}, {vr(b+i)}")


f2_signal()
a.wait(vm=("k", 0), lg="q")
mfma32(S[0], KB[0], Q[0], "0")
for t in range(64):
    it, j = t // 4, t % 4
    X, Y = S[t & 1], S[(t + 1) & 1]
    exps(X, 0, 2)
    if t > 0:
        pit, pj = (t - 1) // 4, (t - 1) % 4
        smf(O[pj], VB[pit % 3] + 4, Y + 8, vIDX)
    run_extras(it, j, 0)
    exps(X, 2, 5)
    if t < 63:
        nit, nj = (t + 1) // 4, (t + 1) % 4
        if nj == 0:
            a.wait(vm=("k", nit))
        mfma32(Y, KB[nit % 3], Q[nj], "0")
    run_extras(it, j, 1)
    exps(X, 5, 10)
    if j == 0:
        a.wait(vm=("v", it))
    smf(O[j], VB[it % 3], X, vIDX)
    run_extras(it, j, 2)
    exps(X, 10, 14)
    k = it - FF0
    if 0 <= k < NF:
        ct, rt = j >> 1, j & 1
        if j == 0:
            a.wait(vm=("h", k), lg=("wf", k, 0))
        if j == 2:
            a.wait(lg=("wf", k, 1))
        mfma32(F[rt][ct], WF + 4 * ct, HB[k & 1] + 4 * rt, "0" if k == 0 else F[rt][ct])
    exps(X, 14, 16)
smf(O[3], VB[15 % 3] + 4, S[1] + 8, vIDX)
stamp(7)

T = [64 + i for i in range(32)]
a(f"""v_add_u32 {vr(T[0])}, {sr(sRG)}, {vr(vL16)}
      v_lshl_add_u32 {vr(T[1])}, {vr(vL)}, 2, {sr(sRG)}""")
for j in range(1, 4):
    o = (j - 1) * 2304
    a(f"ds_write_b128 {vr(T[0])}, {vr(O[j],4)} offset:{o}", lg="c")
    a(f"ds_write_b128 {vr(T[0])}, {vr(O[j]+4,4)} offset:{o+1024}", lg="c")
    a(f"ds_write_b32 {vr(T[1])}, {vr(O[j]+8)} offset:{o+2048}", lg="c")
a.wait(vm="wo", lg="all")
a("s_barrier")
for j in range(1, 4):
    o = (j - 1) * 2304
    a(f"""v_xor_b32 {vr(T[2])}, {j*8192}, {vr(T[0])}
          v_xor_b32 {vr(T[3])}, {j*8192}, {vr(T[1])}""")
    a(f"ds_read_b128 {vr(O[j],4)}, {vr(T[2])} offset:{o}", lg=("c", j))
    a(f"ds_read_b128 {vr(O[j]+4,4)}, {vr(T[2])} offset:{o+1024}", lg=("c", j))
    a(f"ds_read_b32 {vr(O[j]+8)}, {vr(T[3])} offset:{o+2048}", lg=("c", j))
for j in range(1, 4):
    a.wait(lg=("c", j))
    for i in range(9):
        a(f"v_add_f32 {vr(O[0]+i)}, {vr(O[0]+i)}, {vr(O[j]+i)}")
a(f"""v_add_f32 {vr(T[2])}, |{vr(O[0])}|, |{vr(O[0]+1)}|
      v_add_f32 {vr(T[3])}, |{vr(O[0]+2)}|, |{vr(O[0]+3)}|
      v_add_f32 {vr(T[2])}, |{vr(O[0]+4)}|, {vr(T[2])}
      v_add_f32 {vr(T[3])}, |{vr(O[0]+5)}|, {vr(T[3])}
      v_add_f32 {vr(T[2])}, |{vr(O[0]+6)}|, {vr(T[2])}
      v_add_f32 {vr(T[3])}, |{vr(O[0]+7)}|, {vr(T[3])}
      v_add_f32 {vr(T[2])}, {vr(T[2])}, {vr(T[3])}
      v_cmp_nle_f32 vcc, {f32(2.0**-64)}, {vr(O[0]+8)}
      s_mov_b64 s[76:77], vcc
      v_cmp_nge_f32 vcc, {f32(2.0**64)}, {vr(O[0]+8)}
      s_or_b64 s[76:77], s[76:77], vcc
      v_cmp_nge_f32 vcc, {f32(2.0**126)}, {vr(T[2])}
      s_or_b64 s[76:77], s[76:77], vcc""")
if OPT["force_slow"]:
    a("s_branch L_SLOW")
else:
    a("s_cbranch_scc1 L_SLOW")
a.label("L_NORM")
a(f"v_rcp_f32 {vr(T[2])}, {vr(O[0]+8)}")
for i in range(8):
    a(f"v_mul_f32 {vr(O[0]+i)}, {vr(O[0]+i)}, {vr(T[2])}")
for i in range(4):
    a(f"v_cvt_pk_bf16_f32 {vr(T[4]+i)}, {vr(O[0]+2*i)}, {vr(O[0]+2*i+1)}")
a(f"buffer_store_dwordx4 {vr(T[4],4)}, {vr(vL16)}, {sr(R_WS,4)}, {sr(sO)} offen sc1", vm="o")
G = 16
XU = 24
vRow, vCg = T[8], T[9]
a(f"""s_lshl_b32 {sr(sU)}, {sr(sW)}, 3
      v_lshrrev_b32 {vr(vRow)}, 3, {vr(vL)}
      v_add_u32 {vr(vRow)}, {sr(sU)}, {vr(vRow)}
      v_and_b32 {vr(vCg)}, 7, {vr(vL)}
      v_mul_u32_u24 {vr(T[10])}, 2064, {vr(vCg)}
      v_lshl_add_u32 {vr(T[10])}, {vr(vRow)}, 2, {vr(T[10])}
      v_add_u32 {vr(T[10])}, {L_G}, {vr(T[10])}
      s_and_b32 {sr(sU)}, {sr(sCB)}, 1
      s_lshl_b32 {sr(sU)}, {sr(sU)}, 10
      s_add_u32 {sr(sU)}, {sr(sU)}, {L_STATS}
      v_lshl_add_u32 {vr(T[11])}, {vr(vRow)}, 4, {sr(sU)}""")
a(f"ds_read_b32 {vr(T[12])}, {vr(T[11])} offset:4", lg="sd")
for i in range(8):
    a(f"ds_read_b32 {vr(G+i)}, {vr(T[10])} offset:{i*256}", lg="gr")
a.wait(vm="fin")
for i in range(4):
    a(f"""v_lshlrev_b32 {vr(XU+2*i)}, 16, {vr(vX+i)}
          v_and_b32 {vr(XU+2*i+1)}, 0xffff0000, {vr(vX+i)}
          v_lshlrev_b32 {vr(T[16]+2*i)}, 16, {vr(vB2+i)}
          v_and_b32 {vr(T[16]+2*i+1)}, 0xffff0000, {vr(vB2+i)}""")
a.wait(lg="sd")
a(f"""v_and_b32 {vr(T[12])}, 0xffff0000, {vr(T[12])}
      v_rcp_f32 {vr(T[12])}, {vr(T[12])}
      v_mul_u32_u24 {vr(T[10])}, 272, {vr(vRow)}
      v_mul_f32 {vr(T[12])}, {vr(T[12])}, {vr(T[12])}
      v_lshl_add_u32 {vr(T[10])}, {vr(vCg)}, 5, {vr(T[10])}
      v_add_u32 {vr(vGA)}, {L_PB}, {vr(T[10])}""")
a.wait(lg="all")
a("s_barrier")
for i in range(8):
    a(f"v_fma_f32 {vr(G+i)}, {vr(G+i)}, {vr(T[12])}, {vr(T[16]+i)}")
for i in range(8):
    a(f"v_mul_f32 {vr(T[16]+i)}, {f32(-math.log2(math.e))}, {vr(G+i)}")
for i in range(8):
    a(f"v_exp_f32 {vr(T[16]+i)}, {vr(T[16]+i)}")
for i in range(8):
    a(f"v_add_f32 {vr(T[16]+i)}, 1.0, {vr(T[16]+i)}")
for i in range(8):
    a(f"v_rcp_f32 {vr(T[16]+i)}, {vr(T[16]+i)}")
for i in range(8):
    a(f"v_mul_f32 {vr(G+i)}, {vr(G+i)}, {vr(T[16]+i)}")
a(f"""s_lshl_b32 {sr(sU)}, {sr(sW)}, 2
      s_add_u32 {sr(sU)}, {sr(sU)}, {sr(sLINE)}
      s_add_u32 {sr(sU)}, {sr(sU)}, 32""")
a.wait(vm="all")
set_flag(sU, T[2])
stamp(8)
a(f"""s_cmp_ge_u32 {sr(sW)}, 4
      s_cbranch_scc1 L_FIN""")

a.reset_counts()
OF = 96
WR = 160
AC = [32, 48]
vA0, vA1, vPW, vPF = 192, 193, 194, 195
tr_addr128(vA0, vA1, 4, T[2])
a(f"""s_lshr_b32 {sr(sU)}, {sr(sW)}, 1
      s_lshl_b32 {sr(sU2)}, {sr(sU)}, 15
      v_add_u32 {vr(vA0)}, {sr(sU2)}, {vr(vA0)}
      v_add_u32 {vr(vA1)}, {sr(sU2)}, {vr(vA1)}""")


def wo_read(i):
    if i >= 16:
        return
    for ct in range(2):
        for u in range(2):
            a(f"ds_read_b64_tr_b16 {vr(WR+8*(i&3)+4*ct+2*u,2)}, {vr(vA0+ct)} offset:{i*2048+u*1024}", lg=("wo", i))


for i in range(3):
    wo_read(i)
a(f"""s_and_b32 {sr(sT[2])}, {sr(sW)}, 1
      s_mul_i32 {sr(sU2)}, {sr(sU)}, 17408
      s_mul_i32 {sr(sT[3])}, {sr(sT[2])}, {32*272}
      s_add_u32 {sr(sU2)}, {sr(sU2)}, {sr(sT[3])}
      s_add_u32 {sr(sU2)}, {sr(sU2)}, {L_PB}
      v_mul_u32_u24 {vr(vPW)}, 272, {vr(vL31)}
      v_lshl_add_u32 {vr(vPW)}, {vr(vHH)}, 4, {vr(vPW)}
      v_add_u32 {vr(vPW)}, {sr(sU2)}, {vr(vPW)}
      s_and_b32 {sr(sT[3])}, {sr(sCB)}, 1
      s_lshl_b32 {sr(sT[3])}, {sr(sT[3])}, 1
      s_add_u32 {sr(sT[2])}, {sr(sT[2])}, {sr(sT[3])}
      s_and_b32 {sr(sU2)}, {sr(sLINE)}, 0xfffff800
      s_lshl_b32 {sr(sT[3])}, {sr(sU)}, 10
      s_add_u32 {sr(sU2)}, {sr(sU2)}, {sr(sT[3])}
      s_lshl_b32 {sr(sT[3])}, {sr(sT[2])}, 2
      s_add_u32 {sr(sU2)}, {sr(sU2)}, {sr(sT[3])}
      v_bfe_u32 {vr(vPF)}, {vr(vL)}, 1, 3
      v_lshlrev_b32 {vr(vPF)}, 7, {vr(vPF)}
      v_and_b32 {vr(T[2])}, 1, {vr(vL)}
      v_lshl_add_u32 {vr(vPF)}, {vr(T[2])}, 4, {vr(vPF)}
      s_lshl_b32 {sr(sT[3])}, {sr(sRB)}, 2
      s_add_u32 {sr(sT[2])}, {sr(sT[2])}, {sr(sT[3])}
      s_lshl_b32 {sr(sT[2])}, {sr(sT[2])}, 15
      s_lshl_b32 {sr(sT[3])}, {sr(sU)}, 14
      s_add_u32 {sr(sT[2])}, {sr(sT[2])}, {sr(sT[3])}
      s_add_u32 {sr(sT[2])}, {sr(sT[2])}, {WS_O}
      s_mov_b64 exec, 0xffff""")
poll(f"buffer_load_dword {vr(T[2])}, {vr(vPF)}, {sr(R_WS,4)}, {sr(sU2)} offen offset:32 sc1", 1, T[2])
a("s_mov_b64 exec, -1")
stamp(9)
for i in range(16):
    a(f"buffer_load_dwordx4 {vr(OF+4*i,4)}, {vr(vL16)}, {sr(R_WS,4)}, {sr(sT[2])} offen offset:{(i&3)*1024} sc1", vm=("of", i))
    if i & 3 == 3 and i < 15:
        a(f"s_add_u32 {sr(sT[2])}, {sr(sT[2])}, 4096")
for i in range(16):
    a.wait(vm=("of", i), lg=("wo", i))
    mfma32(AC[0], WR + 8 * (i & 3), OF + 4 * i, "0" if i == 0 else AC[0])
    wo_read(i + 3)
    mfma32(AC[1], WR + 8 * (i & 3) + 4, OF + 4 * i, "0" if i == 0 else AC[1])
for ct in range(2):
    for g in range(4):
        a(f"ds_write_b128 {vr(vPW)}, {vr(AC[ct]+4*g,4)} offset:{(32*ct+8*g)*4}", lg="p")
a.wait(lg="all")
a.label("L_FIN")
a("s_barrier")
a.reset_counts()
for kh in range(2):
    for h in range(2):
        a(f"ds_read_b128 {vr(T[0]+8*kh+4*h,4)}, {vr(vGA)} offset:{kh*17408+h*16}", lg="p")
a.wait(lg="all")
for i in range(8):
    a(f"v_add_f32 {vr(T[i])}, {vr(T[i])}, {vr(T[8+i])}")
for i in range(8):
    a(f"v_fma_f32 {vr(T[i])}, {vr(T[i])}, {vr(G+i)}, {vr(XU+i)}")
for i in range(4):
    a(f"v_cvt_pk_bf16_f32 {vr(T[16]+i)}, {vr(T[2*i])}, {vr(T[2*i+1])}")
a(f"buffer_store_dwordx4 {vr(T[16],4)}, {vr(vWD)}, {sr(R_OUT,4)}, {sr(sH1)} offen")
if OPT["stamps"]:
    stamp(10)
    a(f"""s_waitcnt lgkmcnt(0)
          s_sub_u32 {sr(sU)}, {sr(sLINE)}, {WS_FL}
          s_lshl_b32 {sr(sU)}, {sr(sU)}, 3
          s_lshl_b32 {sr(sU2)}, {sr(sW)}, 7
          s_add_u32 {sr(sU)}, {sr(sU)}, {sr(sU2)}
          s_add_u32 {sr(sU)}, {sr(sU)}, {WS_TS}
          s_mov_b64 exec, 1""")
    for i in range(11):
        a(f"v_mov_b32 {vr(i)}, {sr(sSTAMP+2*i)}")
    for i in range(3):
        a(f"buffer_store_dwordx4 {vr(4*i,4)}, off, {sr(R_WS,4)}, {sr(sU)} offset:{16*i}")
a("s_endpgm")

a.label("L_SLOW")
a.reset_counts()
C = 16
M = T[2]
a(f"""s_nop 7
      s_lshr_b32 {sr(sU)}, {sr(sKV)}, 17
      s_lshl_b32 {sr(sU)}, {sr(sU)}, 17
      s_mov_b32 {sr(sU2)}, 64
      v_mov_b32 {vr(M)}, 0xff800000""")
a.label("L_S1")
a(f"""buffer_load_dwordx4 {vr(KB[0],4)}, {vr(vL16)}, {sr(R_WS,4)}, {sr(sU)} offen sc1
      s_waitcnt vmcnt(0)""")
mfma32(S[1], KB[0], Q[0], "0")
for i in range(8):
    a(f"v_max3_f32 {vr(M)}, {vr(M)}, {vr(S[1]+2*i)}, {vr(S[1]+2*i+1)}")
a(f"""s_add_u32 {sr(sU)}, {sr(sU)}, 2048
      s_sub_u32 {sr(sU2)}, {sr(sU2)}, 1
      s_cmp_lg_u32 {sr(sU2)}, 0
      s_cbranch_scc1 L_S1
      v_mov_b32 {vr(T[3])}, {vr(M)}
      s_nop 1
      v_permlane32_swap_b32 {vr(M)}, {vr(T[3])}
      v_max_f32 {vr(M)}, {vr(M)}, {vr(T[3])}
      s_sub_u32 {sr(sU)}, {sr(sU)}, 0x20000
      s_mov_b32 {sr(sU2)}, 64""")
for i in range(16):
    a(f"v_sub_f32 {vr(C+i)}, 0, {vr(M)}")
    a(f"v_mov_b32 {vr(O[0]+i)}, 0")
a.label("L_S2")
a(f"""buffer_load_dwordx4 {vr(KB[0],4)}, {vr(vL16)}, {sr(R_WS,4)}, {sr(sU)} offen sc1
      s_mov_b64 exec, {sr(sVM,2)}
      buffer_load_dwordx4 {vr(VB[0],4)}, {vr(vVO)}, {sr(R_WS,4)}, {sr(sU)} offen offset:1024 sc1
      buffer_load_dwordx4 {vr(VB[0]+4,4)}, {vr(vVO)}, {sr(R_WS,4)}, {sr(sU)} offen offset:1536 sc1
      s_mov_b64 exec, -1
      s_waitcnt vmcnt(0)""")
mfma32(S[1], KB[0], Q[0], C)
exps(S[1], 0, 16)
smf(O[0], VB[0], S[1], vIDX)
smf(O[0], VB[0] + 4, S[1] + 8, vIDX)
a(f"""s_add_u32 {sr(sU)}, {sr(sU)}, 2048
      s_sub_u32 {sr(sU2)}, {sr(sU2)}, 1
      s_cmp_lg_u32 {sr(sU2)}, 0
      s_cbranch_scc1 L_S2
      s_nop 15
      s_branch L_NORM""")
a.label("L_end")
a("s_endpgm")

ref = open(__file__.rsplit("/", 1)[0] + "/../cdna_kernels/" + NAME + ".s.ref").read().split("\n")
head = [l for l in ref if l.startswith(";") and "@launch" not in l]
out = "\n".join(head) + f"""
; @launch grid=(256,1,1) block=(512,1,1) lds=163840
.amdgcn_target "amdgcn-amd-amdhsa--gfx950"
.text
.globl {NAME}_kernel
.p2align 8
.type {NAME}_kernel,@function
""" + a.text() + f""".section .rodata,"a"
.p2align 6
.amdhsa_kernel {NAME}_kernel
  .amdhsa_next_free_vgpr 256
  .amdhsa_next_free_sgpr 102
  .amdhsa_accum_offset 256
  .amdhsa_group_segment_fixed_size 0
  .amdhsa_kernarg_size 88
  .amdhsa_user_sgpr_count 2
  .amdhsa_user_sgpr_kernarg_segment_ptr 1
  .amdhsa_system_sgpr_workgroup_id_x 1
  .amdhsa_float_denorm_mode_32 3
.end_amdhsa_kernel
"""
open(sys.argv[1], "w").write(out)
if OPT.get("pads"):
    for p in a.pads:
        print("pad", p)
```

```python
import sys, math, struct
from asmlib import Asm, vr, sr

NAME = "recurrent_scan__softmax_full_mha__dense_activation_squared_relu__prompt"
OPT = dict(stamps=0, rot=0, force_slow=0, prio=1, spin=1 << 18)
for a in sys.argv[2:]:
    k, v = a.split("=")
    OPT[k] = int(v, 0)

WS_KV = 0
WS_H = 4 << 20
WS_O = 10 << 20
WS_FL = 12 << 20
WS_TS = 13 << 20
WS_SIZE = 14 << 20
TOP = 131072
L_G = TOP
L_STG = TOP + 16640
L_STATS = TOP + 20736
L_CSP = TOP + 22784
L_QX = TOP + 24576
L_RG = 65536
L_PB = 65536
P_X, P_WQKV, P_WO, P_W1, P_B1, P_W2, P_B2, P_OUT, P_DBG, P_WS = 4, 6, 8, 12, 14, 16, 18, 20, 22, 24
R_X, R_WQKV, R_WO, R_WSH, R_W2, R_OUT, R_WS, R_B1, R_B2, R_DBG = 28, 32, 36, 40, 44, 48, 52, 56, 60, 64
sW, sWQ, sRB, sCB, sROT = 68, 69, 70, 71, 72
sT = [73, 74, 75, 76, 77, 78, 79]
sVM = 26
sLINE = 3
sSTAMP = 80


def f32(x):
    return "0x%08x" % struct.unpack("<I", struct.pack("<f", x))[0]


a = Asm()
nstamp = [0]


def stamp(i):
    if OPT["stamps"]:
        a(f"{'s_memtime' if OPT['stamps'] == 2 else 's_memrealtime'} {sr(sSTAMP + 2*i, 2)}")


def mfma32(d, x, y, c):
    a(f"v_mfma_f32_32x32x16_bf16 {vr(d,16)}, {vr(x,4)}, {vr(y,4)}, {c if isinstance(c,str) else vr(c,16)}")


def mfma16(d, x, y, c):
    a(f"v_mfma_f32_16x16x32_bf16 {vr(d,4)}, {vr(x,4)}, {vr(y,4)}, {c if isinstance(c,str) else vr(c,4)}")


def mfma4(d, x, c):
    a(f"v_mfma_f32_4x4x4_16b_bf16 {vr(d,4)}, {vr(x,2)}, {vr(x,2)}, {c if isinstance(c,str) else vr(c,4)}")


def smf(d, x, y, idx):
    a(f"v_smfmac_f32_32x32x32_bf16 {vr(d,16)}, {vr(x,4)}, {vr(y,8)}, {vr(idx)}")


def srd(r, p, n):
    a(f"""s_mov_b32 {sr(r)}, {sr(p)}
          s_mov_b32 {sr(r+1)}, {sr(p+1)}
          s_mov_b32 {sr(r+2)}, {n}
          s_mov_b32 {sr(r+3)}, 0x20000""")


def dma(voff, r, soff, lds, tag):
    if isinstance(lds, tuple):
        a(f"s_add_u32 m0, {sr(lds[0])}, {lds[1]}")
    else:
        a(f"s_mov_b32 m0, {lds}")
    a(f"buffer_load_dwordx4 {vr(voff)}, {sr(r,4)}, {sr(soff)} offen lds", vm=tag)


def split3(x, bias, d0, d1, t0, t1, mask):
    a(f"""v_cvt_pk_bf16_f32 {vr(t0)}, {vr(x)}, {vr(x)}
          v_lshlrev_b32 {vr(t0)}, 16, {vr(t0)}
          v_sub_f32 {vr(t0)}, {vr(x)}, {vr(t0)}
          v_cvt_pk_bf16_f32 {vr(d0)}, {vr(x)}, {vr(t0)}
          v_and_b32 {vr(t1)}, 0xffff0000, {vr(d0)}
          v_sub_f32 {vr(t1)}, {vr(t0)}, {vr(t1)}
          v_cvt_pk_bf16_f32 {vr(d1)}, {vr(t1)}, {bias}""")
    if mask is not None:
        a(f"""v_and_b32 {vr(d0)}, {vr(d0)}, {vr(mask)}
              v_and_b32 {vr(d1)}, {vr(d1)}, {vr(mask)}""")


uid = [0]


def poll(load, nreg, reg, first_done=False):
    uid[0] += 1
    L, D, C = f"L_poll{uid[0]}", f"L_polld{uid[0]}", f"L_pollc{uid[0]}"
    a(f"s_mov_b32 {sr(sT[6])}, {OPT['spin']}")
    if first_done:
        a(f"s_branch {C}")
    a.label(L)
    a.raw(load)
    a("s_waitcnt vmcnt(0)")
    a.label(C)
    if nreg == 4:
        a(f"""v_min_u32 {vr(reg)}, {vr(reg)}, {vr(reg+1)}
              v_min3_u32 {vr(reg)}, {vr(reg)}, {vr(reg+2)}, {vr(reg+3)}""")
    a(f"""v_cmp_eq_u32 vcc, 0, {vr(reg)}
          s_nop 1
          s_cmp_eq_u64 vcc, 0
          s_cbranch_scc1 {D}
          s_sub_u32 {sr(sT[6])}, {sr(sT[6])}, 1
          s_cmp_lg_u32 {sr(sT[6])}, 0
          s_cbranch_scc1 {L}""")
    a.label(D)


def set_flag(dword_sgpr_expr_reg, tmp):
    a(f"""s_mov_b64 exec, 1
          v_mov_b32 {vr(tmp)}, 1
          buffer_store_dword {vr(tmp)}, off, {sr(R_WS,4)}, {sr(dword_sgpr_expr_reg)} sc1
          s_mov_b64 exec, -1""")


vL = 252
vHH = 253
vL31 = 254
vTR = 255


def tr_addr(dst, row_hh_mult, rowbytes, tmp):
    a(f"""v_bfe_u32 {vr(tmp)}, {vr(vL)}, 2, 2
          v_mad_u32_u24 {vr(tmp)}, {vr(vHH)}, {row_hh_mult}, {vr(tmp)}
          v_lshlrev_b32 {vr(tmp)}, {int(math.log2(rowbytes))}, {vr(tmp)}
          v_add_u32 {vr(dst)}, {vr(tmp)}, {vr(vTR)}""")


def tr_addr128(d0, d1, row_hh_mult, tmp):
    tr_addr(d0, row_hh_mult, 128, tmp)
    a(f"""v_bfe_u32 {vr(tmp)}, {vr(vL)}, 3, 1
          v_lshl_add_u32 {vr(d0)}, {vr(tmp)}, 6, {vr(d0)}
          v_xor_b32 {vr(d1)}, 64, {vr(d0)}""")


def wdma_voff(dst, stride, tmp):
    a(f"""v_bfe_u32 {vr(tmp)}, {vr(vL)}, 4, 1
          v_lshlrev_b32 {vr(tmp)}, 2, {vr(tmp)}
          v_and_b32 {vr(dst)}, 7, {vr(vL)}
          v_xor_b32 {vr(dst)}, {vr(dst)}, {vr(tmp)}
          v_lshlrev_b32 {vr(dst)}, 4, {vr(dst)}
          v_lshrrev_b32 {vr(tmp)}, 3, {vr(vL)}
          v_mul_u32_u24 {vr(tmp)}, {stride}, {vr(tmp)}
          v_add_u32 {vr(dst)}, {vr(dst)}, {vr(tmp)}""")


def x_addrs(d, tmp):
    a(f"""v_bfe_u32 {vr(tmp)}, {vr(vL)}, 1, 3
          v_xor_b32 {vr(tmp)}, {vr(tmp)}, {vr(vHH)}
          v_lshlrev_b32 {vr(tmp)}, 4, {vr(tmp)}
          v_lshl_add_u32 {vr(d)}, {vr(vL31)}, 7, {vr(tmp)}
          v_xor_b32 {vr(d+1)}, 32, {vr(d)}
          v_xor_b32 {vr(d+2)}, 64, {vr(d)}
          v_xor_b32 {vr(d+3)}, 0x60, {vr(d)}""")


def make_sel(d, tmp):
    a(f"""v_lshrrev_b32 {vr(tmp)}, 2, {vr(vL)}
          v_xor_b32 {vr(tmp)}, {vr(tmp)}, {vr(vL)}
          v_bfe_u32 {vr(tmp)}, {vr(tmp)}, 2, 1
          v_add_u32 {vr(tmp)}, -1, {vr(tmp)}
          v_and_b32 {vr(d)}, 0x3f803f80, {vr(tmp)}
          v_mov_b32 {vr(d+1)}, {vr(d)}
          v_mov_b32 {vr(d+2)}, {vr(d)}
          v_mov_b32 {vr(d+3)}, {vr(d)}""")


a.label(NAME + "_kernel")
a(f"""s_cmp_ge_u32 s2, 256
      s_cbranch_scc1 L_end
      s_load_dwordx16 s[4:19], s[0:1], 0
      s_load_dwordx4 s[20:23], s[0:1], 64
      s_load_dwordx2 s[24:25], s[0:1], 80""")
stamp(0)
a(f"""v_lshrrev_b32 v1, 6, v0
      v_and_b32 {vr(vL)}, 63, v0
      v_readfirstlane_b32 {sr(sW)}, v1
      v_bfe_u32 {vr(vHH)}, v0, 5, 1
      v_and_b32 {vr(vL31)}, 31, v0
      v_bfe_u32 v1, v0, 4, 1
      v_and_b32 v2, 3, v0
      v_lshlrev_b32 v2, 3, v2
      v_lshl_add_u32 {vr(vTR)}, v1, 5, v2
      s_and_b32 {sr(sWQ)}, {sr(sW)}, 3
      s_bfe_u32 {sr(sT[0])}, s2, 0x20001
      s_bfe_u32 {sr(sT[1])}, s2, 0x20003
      s_lshl_b32 {sr(sT[0])}, {sr(sT[0])}, 2
      s_add_u32 {sr(sRB)}, {sr(sT[0])}, {sr(sT[1])}
      s_and_b32 {sr(sT[0])}, s2, 1
      s_lshr_b32 {sr(sT[1])}, s2, 5
      s_lshl_b32 {sr(sT[0])}, {sr(sT[0])}, 3
      s_add_u32 {sr(sCB)}, {sr(sT[0])}, {sr(sT[1])}
      s_lshl_b32 {sr(sT[0])}, {sr(sRB)}, 4
      s_add_u32 {sr(sT[0])}, {sr(sT[0])}, {sr(sCB)}
      s_lshl_b32 {sr(sT[0])}, {sr(sT[0])}, 7
      s_add_u32 {sr(sLINE)}, {sr(sT[0])}, {WS_FL}
      s_mov_b32 {sr(sVM)}, 0xffff
      s_mov_b32 {sr(sVM+1)}, 0xffff""")
if OPT["rot"] == 0:
    a(f"s_mov_b32 {sr(sROT)}, 0")
elif OPT["rot"] == 1:
    a(f"""s_lshl_b32 {sr(sT[0])}, {sr(sRB)}, 1
          s_add_u32 {sr(sT[0])}, {sr(sT[0])}, {sr(sCB)}
          s_and_b32 {sr(sROT)}, {sr(sT[0])}, 7""")
elif OPT["rot"] == 2:
    a(f"""s_add_u32 {sr(sT[0])}, {sr(sRB)}, {sr(sCB)}
          s_and_b32 {sr(sT[0])}, {sr(sT[0])}, 1
          s_lshl_b32 {sr(sROT)}, {sr(sT[0])}, 2""")
elif OPT["rot"] == 3:
    a(f"""s_add_u32 {sr(sT[0])}, {sr(sRB)}, {sr(sCB)}
          s_and_b32 {sr(sT[0])}, {sr(sT[0])}, 3
          s_lshl_b32 {sr(sROT)}, {sr(sT[0])}, 1""")
a("s_waitcnt lgkmcnt(0)")
if OPT["stamps"]:
    a("s_memtime s[0:1]")
srd(R_X, P_X, 2048 * 512 * 2)
srd(R_WQKV, P_WQKV, 512 * 1536 * 2)
a(f"""s_cmp_ge_u32 {sr(sW)}, 4
      s_cbranch_scc1 L_B""")


def other_srds():
    srd(R_WO, P_WO, 512 * 512 * 2)
    srd(R_W2, P_W2, 1376 * 512 * 2)
    srd(R_OUT, P_OUT, 2048 * 512 * 2)
    srd(R_WS, P_WS, WS_SIZE)
    srd(R_B1, P_B1, 1376 * 2)
    srd(R_B2, P_B2, 512 * 2)
    srd(R_DBG, P_DBG, 256)


other_srds()
a(f"""s_cmp_lg_u32 {sr(sW)}, 0
      s_cbranch_scc1 L_A1
      s_getpc_b64 s[74:75]""")
a.label("L_pc")
a(f"""s_lshr_b32 {sr(sT[0])}, s2, 3
      s_lshl_b32 {sr(sT[0])}, {sr(sT[0])}, 10
      v_lshlrev_b32 v1, 7, {vr(vL)}
      v_add_u32 v1, {sr(sT[0])}, v1
      v_min_u32 v1, L_end-L_pc, v1
      s_mov_b64 exec, 0xff
      global_load_dword v2, v1, s[74:75]
      s_mov_b64 exec, -1
      s_cmp_lg_u32 {sr(sRB)}, {sr(sCB)}
      s_cbranch_scc1 L_A1
      s_lshl_b32 {sr(sT[0])}, {sr(sRB)}, 11
      s_add_u32 {sr(sT[0])}, {sr(sT[0])}, {WS_FL}
      v_lshrrev_b32 v1, 2, {vr(vL)}
      v_and_b32 v3, 3, {vr(vL)}
      v_lshlrev_b32 v3, 4, v3
      v_lshl_add_u32 v1, v1, 7, v3
      v_mov_b32 v4, 0
      v_mov_b32 v5, 0
      v_mov_b32 v6, 0
      v_mov_b32 v7, 0
      buffer_store_dwordx4 v[4:7], v1, {sr(R_WS,4)}, {sr(sT[0])} offen sc1
      s_lshl_b32 {sr(sT[0])}, {sr(sRB)}, 2
      s_waitcnt vmcnt(0)
      s_mov_b64 exec, 1
      v_mov_b32 v3, 1
      buffer_store_dword v3, off, {sr(R_DBG,4)}, {sr(sT[0])} sc1
      s_mov_b64 exec, -1""")
a.label("L_A1")
a.reset_counts()
aXA, aWA = 4, 8
aSET = [16 + 12 * j for j in range(4)]
aACC = [64, 80]
aDR, aSUM, aSQ, aSEL = 96, 112, [116, 120], 124
aXa, aWa, aRS, aMASK, aR = 128, [132, 136], 140, 144, 145
aCS = 148
aPK = 160
aVO = 10
aTMP = [11, 12, 13, 14, 15]
x_addrs(aXA, aTMP[0])
a(f"s_lshl_b32 {sr(sT[0])}, {sr(sWQ)}, 12")
for j in range(4):
    a(f"v_add_u32 {vr(aXA+j)}, {sr(sT[0])}, {vr(aXA+j)}")
tr_addr128(aWA, aWA + 1, 8, aTMP[0])
a(f"""v_add_u32 {vr(aWA)}, {TOP}, {vr(aWA)}
      v_add_u32 {vr(aWA+1)}, {TOP}, {vr(aWA+1)}""")
make_sel(aSEL, aTMP[0])
a(f"""v_add_u32 {vr(aMASK)}, -1, {vr(vHH)}
      v_mov_b32 {vr(aWa[0]+2)}, 0
      v_mov_b32 {vr(aWa[0]+3)}, 0
      v_mov_b32 {vr(aWa[1]+2)}, 0
      v_mov_b32 {vr(aWa[1]+3)}, 0
      v_mov_b32 {vr(aRS)}, 0
      v_mov_b32 {vr(aRS+1)}, 0
      v_and_b32 {vr(aRS+2)}, 0x3f803f80, {vr(aMASK)}
      v_and_b32 {vr(aRS+3)}, 0x3f80, {vr(aMASK)}""")
a(f"""s_lshr_b32 {sr(sT[0])}, {sr(sCB)}, 1
      s_lshl_b32 {sr(sT[0])}, {sr(sT[0])}, 19
      s_lshl_b32 {sr(sT[1])}, {sr(sRB)}, 2
      s_add_u32 {sr(sT[1])}, {sr(sT[1])}, {sr(sWQ)}
      s_lshl_b32 {sr(sT[1])}, {sr(sT[1])}, 11
      s_add_u32 {sr(sT[2])}, {sr(sT[0])}, {sr(sT[1])}
      s_bitcmp1_b32 {sr(sCB)}, 0
      s_cbranch_scc1 L_AV""")


def kv_path(isV):
    def reads(n, j):
        s = aSET[j]
        a(f"ds_read_b128 {vr(s,4)}, {vr(aXA+j)} offset:{(n&3)*16384}", lg=("r", n, j))
        for t in range(2):
            for u in range(2):
                a(f"ds_read_b64_tr_b16 {vr(s+4+4*t+2*u,2)}, {vr(aWA+t)} offset:{(n&3)*8192+j*2048+u*512}", lg=("r", n, j))

    def small(n, j):
        s = aSET[j]
        first = (n == 0 and j == 0)
        mfma16(aSUM, aSEL, s, "0" if first else aSUM)
        mfma4(aSQ[0], s, "0" if first else aSQ[0])
        mfma4(aSQ[1], s + 2, "0" if first else aSQ[1])

    def main(n, j, t):
        s = aSET[j]
        first = (n == 0 and j == 0)
        c = "0" if first else aACC[t]
        if isV:
            mfma32(aACC[t], s, s + 4 + 4 * t, c)
        else:
            mfma32(aACC[t], s + 4 + 4 * t, s, c)

    def step(n, j):
        main(n, j, 0)
        small(n, j)
        main(n, j, 1)

    if isV:
        a(f"""v_bfe_u32 {vr(aTMP[0])}, {vr(vL)}, 4, 1
              v_lshlrev_b32 {vr(aTMP[0])}, 17, {vr(aTMP[0])}
              v_lshl_add_u32 {vr(aTMP[0])}, {vr(vHH)}, 8, {vr(aTMP[0])}
              v_and_b32 {vr(aVO)}, 15, {vr(vL)}
              v_lshl_add_u32 {vr(aVO)}, {vr(aVO)}, 4, {vr(aTMP[0])}""")
    else:
        a.comment("key slot = lane with bits 2 and 3 swapped")
        a(f"""v_and_b32 {vr(aVO)}, 0x33, {vr(vL)}
              v_bfe_u32 {vr(aTMP[0])}, {vr(vL)}, 2, 1
              v_lshl_add_u32 {vr(aVO)}, {vr(aTMP[0])}, 3, {vr(aVO)}
              v_bfe_u32 {vr(aTMP[0])}, {vr(vL)}, 3, 1
              v_lshl_add_u32 {vr(aVO)}, {vr(aTMP[0])}, 2, {vr(aVO)}
              v_lshlrev_b32 {vr(aVO)}, 4, {vr(aVO)}""")
    for n in range(8):
        a("s_barrier")
        if n == 0:
            stamp(1)
        if n == 7:
            stamp(2)
        reads(n, 0)
        reads(n, 1)
        if n > 0:
            step(n - 1, 3)
        reads(n, 2)
        a.wait(lg=("r", n, 0))
        step(n, 0)
        reads(n, 3)
        if n == 3:
            for j in range(4):
                a(f"v_add_u32 {vr(aXA+j)}, 0x10000, {vr(aXA+j)}")
        a.wait(lg=("r", n, 1))
        step(n, 1)
        a.wait(lg=("r", n, 2))
        if n < 7:
            step(n, 2)
            a.wait(lg=("r", n, 3))
    small(7, 2)
    a.wait(lg=("r", 7, 3))
    small(7, 3)
    a("s_barrier")
    T = aTMP
    a(f"v_lshlrev_b32 {vr(T[0])}, 4, {vr(vL31)}")
    a(f"v_add_u32 {vr(T[0])}, {L_CSP}, {vr(T[0])}")
    a(f"ds_read_b128 {vr(aCS,4)}, {vr(T[0])}", lg="cs")
    a(f"ds_read_b128 {vr(aCS+4,4)}, {vr(T[0])} offset:512", lg="cs")
    main(7, 2, 0)
    a(f"""v_and_b32 {vr(T[1])}, 3, {vr(vL)}
          v_cmp_eq_u32 vcc, 1, {vr(T[1])}
          v_cmp_eq_u32 s[76:77], 2, {vr(T[1])}
          v_cmp_eq_u32 s[78:79], 3, {vr(T[1])}""")
    for i in range(4):
        a(f"v_add_f32 {vr(aSQ[0]+i)}, {vr(aSQ[0]+i)}, {vr(aSQ[1]+i)}")
    main(7, 2, 1)
    a(f"""v_cndmask_b32 {vr(T[1])}, {vr(aSQ[0])}, {vr(aSQ[0]+1)}, vcc
          v_cndmask_b32 {vr(T[1])}, {vr(T[1])}, {vr(aSQ[0]+2)}, s[76:77]
          v_cndmask_b32 {vr(T[1])}, {vr(T[1])}, {vr(aSQ[0]+3)}, s[78:79]
          v_mov_b32 {vr(T[2])}, {vr(T[1])}
          v_mul_f32 {vr(T[3])}, {f32(1/512)}, {vr(aSUM)}""")
    main(7, 3, 0)
    a(f"""v_permlane32_swap_b32 {vr(T[1])}, {vr(T[2])}
          v_add_f32 {vr(T[1])}, {vr(T[1])}, {vr(T[2])}
          v_mul_f32 {vr(T[1])}, {f32(1/512)}, {vr(T[1])}
          v_fma_f32 {vr(T[1])}, -{vr(T[3])}, {vr(T[3])}, {vr(T[1])}
          v_max_f32 {vr(T[1])}, 0, {vr(T[1])}
          v_cvt_pk_bf16_f32 {vr(T[1])}, {vr(T[1])}, {vr(T[1])}""")
    main(7, 3, 1)
    a(f"""v_lshlrev_b32 {vr(T[1])}, 16, {vr(T[1])}
          v_add_f32 {vr(T[1])}, {f32(1e-5)}, {vr(T[1])}
          v_cvt_pk_bf16_f32 {vr(T[1])}, {vr(T[1])}, {vr(T[1])}
          v_lshlrev_b32 {vr(T[1])}, 16, {vr(T[1])}
          v_sqrt_f32 {vr(T[1])}, {vr(T[1])}
          v_cvt_pk_bf16_f32 {vr(aXa)}, -{vr(T[3])}, -{vr(T[3])}
          v_cvt_pk_bf16_f32 {vr(aXa+1)}, -{vr(T[3])}, {vr(T[1])}
          v_and_b32 {vr(T[1])}, 0xffff0000, {vr(aXa+1)}
          v_rcp_f32 {vr(aR)}, {vr(T[1])}""")
    a.wait(lg="cs")
    for t in range(2):
        c = aCS + 4 * t
        a(f"""v_add_f32 {vr(c)}, {vr(c)}, {vr(c+1)}
              v_add_f32 {vr(c+2)}, {vr(c+2)}, {vr(c+3)}
              v_add_f32 {vr(c)}, {vr(c)}, {vr(c+2)}""")
    split3(aR, "0", aXa + 2, aXa + 3, T[1], T[2], None)
    split3(aCS, "0", aWa[0], aWa[0] + 1, T[1], T[2], aMASK)
    if isV:
        mfma32(aDR, aXa, aRS, "0")
    a(f"""s_lshl_b32 {sr(sT[0])}, {sr(sWQ)}, 9
          s_add_u32 {sr(sT[0])}, {sr(sT[0])}, {L_STATS - L_CSP}""")
    if isV:
        mfma32(aACC[0], aXa, aWa[0], aACC[0])
    else:
        mfma32(aACC[0], aWa[0], aXa, aACC[0])
    split3(aCS + 4, "0", aWa[1], aWa[1] + 1, T[1], T[2], aMASK)
    a(f"v_add_u32 {vr(T[0])}, {sr(sT[0])}, {vr(T[0])}")
    a(f"ds_write_b128 {vr(T[0])}, {vr(aXa,4)}", lg="st")
    if isV:
        mfma32(aACC[1], aXa, aWa[1], aACC[1])
    else:
        mfma32(aACC[1], aWa[1], aXa, aACC[1])
    for t in range(2):
        for u in range(2):
            b = aACC[t] + 8 * u
            for i in range(8):
                a(f"v_mul_f32 {vr(b+i)}, {vr(b+i)}, {vr(aDR+8*u+i) if isV else vr(aR)}")
            p = aPK + 8 * t + 4 * u
            for i in range(4):
                a(f"v_cvt_pk_bf16_f32 {vr(p+i)}, {vr(b+2*i)}, {vr(b+2*i+1)}")
            if isV:
                if u == 0:
                    a(f"s_add_u32 {sr(sT[3])}, {sr(sT[2])}, {2*t*131072}")
                a(f"buffer_store_dwordx4 {vr(p,4)}, {vr(aVO)}, {sr(R_WS,4)}, {sr(sT[3])} offen offset:{1024+512*u} sc1", vm="kv")
            else:
                a(f"s_add_u32 {sr(sT[3])}, {sr(sT[2])}, {(2*t+u)*131072}")
                a(f"buffer_store_dwordx4 {vr(p,4)}, {vr(aVO)}, {sr(R_WS,4)}, {sr(sT[3])} offen sc1", vm="kv")


sav = (list(a.vm), list(a.lg))
kv_path(False)
a("s_branch L_A2")
a.label("L_AV")
a.vm, a.lg = list(sav[0]), list(sav[1])
kv_path(True)
a.label("L_A2")
stamp(3)
goload = f"buffer_load_dword v20, v21, {sr(R_DBG,4)}, 0 offen sc1"
a(f"""v_and_b32 v21, 15, {vr(vL)}
      v_lshlrev_b32 v21, 2, v21""")
a(goload, vm="go")
a.wait(lg="all")
a("s_barrier")
a(f"""s_lshl_b32 {sr(sT[0])}, {sr(sWQ)}, 2
      s_add_u32 {sr(sT[0])}, {sr(sT[0])}, {sr(sLINE)}""")
a.wait(vm="all")
poll(goload, 1, 20, first_done=True)
set_flag(sT[0], 23)
stamp(4)
a(f"""s_cmp_lg_u32 {sr(sW)}, 0
      s_cbranch_scc1 L_A3
      s_and_b32 {sr(sT[0])}, {sr(sCB)}, 14
      s_lshl_b32 {sr(sT[0])}, {sr(sT[0])}, 7
      s_add_u32 {sr(sT[0])}, {sr(sT[0])}, {WS_FL}
      v_lshrrev_b32 v21, 1, {vr(vL31)}
      v_and_b32 v22, 1, {vr(vL)}
      v_lshlrev_b32 v22, 7, v22
      v_lshl_add_u32 v21, v21, 11, v22
      s_mov_b64 exec, 0xffffffff""")
poll(f"buffer_load_dwordx4 v[28:31], v21, {sr(R_WS,4)}, {sr(sT[0])} offen sc1", 4, 28)
a("s_mov_b64 exec, -1")
a.label("L_A3")
a("s_branch L_ATT")

a.label("L_B")
a.reset_counts()
bVXE, bVXO, bVW = 12, 13, 14
bXA, bSW, bST, bVG, bBIAS = 4, 8, 9, 10, 11
bCA = 2
bACC = [64 + 16 * i for i in range(4)]
bRING, NR = 128, 12
bWF = [176, 180]
bXF = [184, 200]
bCS, bSEL = 216, 220
bKF, bKCS = 16, [24, 28]
bT = [32, 33, 34, 35, 36]
sXB, sWB, sLX, sLW = sT[0], sT[1], sT[2], sT[3]
sA, sB_ = sT[4], sT[5]
a(f"""v_lshrrev_b32 {vr(bT[0])}, 4, {vr(vL)}
      v_and_b32 {vr(bVXE)}, 7, {vr(vL)}
      v_xor_b32 {vr(bVXE)}, {vr(bVXE)}, {vr(bT[0])}
      v_lshlrev_b32 {vr(bVXE)}, 4, {vr(bVXE)}
      v_lshrrev_b32 {vr(bT[0])}, 3, {vr(vL)}
      v_lshl_add_u32 {vr(bVXE)}, {vr(bT[0])}, 10, {vr(bVXE)}
      v_xor_b32 {vr(bVXO)}, 64, {vr(bVXE)}
      s_lshl_b32 {sr(sXB)}, {sr(sRB)}, 2
      s_add_u32 {sr(sXB)}, {sr(sXB)}, {sr(sWQ)}
      s_lshl_b32 {sr(sXB)}, {sr(sXB)}, 15
      s_lshl_b32 {sr(sLX)}, {sr(sWQ)}, 12
      s_lshl_b32 {sr(sLW)}, {sr(sWQ)}, 11
      s_and_b32 {sr(sA)}, {sr(sCB)}, 1
      s_add_u32 {sr(sA)}, {sr(sA)}, 1
      s_lshl_b32 {sr(sA)}, {sr(sA)}, 10
      s_lshr_b32 {sr(sB_)}, {sr(sCB)}, 1
      s_lshl_b32 {sr(sB_)}, {sr(sB_)}, 7
      s_add_u32 {sr(sA)}, {sr(sA)}, {sr(sB_)}
      s_mul_i32 {sr(sWB)}, {sr(sWQ)}, {16*3072}
      s_add_u32 {sr(sWB)}, {sr(sWB)}, {sr(sA)}""")
wdma_voff(bVW, 3072, bT[0])


def issue_chunk(c):
    a(f"""s_add_u32 {sr(sB_)}, {sr(sROT)}, {c}
          s_and_b32 {sr(sB_)}, {sr(sB_)}, 7
          s_lshl_b32 {sr(sA)}, {sr(sB_)}, 7
          s_add_u32 {sr(sA)}, {sr(sA)}, {sr(sXB)}""")
    for i in range(4):
        dma(bVXO if i & 1 else bVXE, R_X, sA, (sLX, c * 16384 + i * 1024), ("c", c))
        if i < 3:
            a(f"s_add_u32 {sr(sA)}, {sr(sA)}, 8192")
    a(f"""s_mul_i32 {sr(sA)}, {sr(sB_)}, {64*3072}
          s_add_u32 {sr(sA)}, {sr(sA)}, {sr(sWB)}""")
    for i in range(2):
        dma(bVW, R_WQKV, sA, (sLW, TOP + (c & 3) * 8192 + i * 1024), ("c", c))
        if i < 1:
            a(f"s_add_u32 {sr(sA)}, {sr(sA)}, {8*3072}")


for c in range(4):
    issue_chunk(c)
other_srds()
sSTR, sCOL, sTILE = 10, 11, 26 - 26 + 2
a(f"""s_sub_u32 {sr(sA)}, {sr(sWQ)}, 1
      s_lshl_b32 {sr(sA)}, {sr(sA)}, 4
      s_add_u32 {sr(sA)}, {sr(sA)}, {sr(sCB)}
      s_cmp_eq_u32 {sr(sWQ)}, 0
      s_cselect_b32 {sr(sTILE)}, {sr(sCB)}, {sr(sA)}
      s_cselect_b32 {sr(R_WSH)}, {sr(P_WQKV)}, {sr(P_W1)}
      s_cselect_b32 {sr(R_WSH+1)}, {sr(P_WQKV+1)}, {sr(P_W1+1)}
      s_cselect_b32 {sr(R_WSH+2)}, {512*3072}, 0
      s_cselect_b32 {sr(sSTR)}, 3072, 0
      s_mov_b32 {sr(R_WSH+3)}, 0x20000
      s_cmp_lg_u32 {sr(sWQ)}, 0
      s_cselect_b32 {sr(R_WSH+2)}, {512*2752}, {sr(R_WSH+2)}
      s_cselect_b32 {sr(sSTR)}, 2752, {sr(sSTR)}
      s_lshl_b32 {sr(sCOL)}, {sr(sTILE)}, 6
      v_lshrrev_b32 {vr(bT[0])}, 2, {vr(vL)}
      v_mul_u32_u24 {vr(bT[0])}, {sr(sSTR)}, {vr(bT[0])}
      v_and_b32 {vr(bVG)}, 3, {vr(vL)}
      v_lshl_add_u32 {vr(bVG)}, {vr(bVG)}, 4, {vr(bT[0])}
      s_lshl_b32 {sr(sSTR)}, {sr(sSTR)}, 4""")
tr_addr128(bCA, bCA + 1, 8, bT[0])
a(f"""s_add_u32 {sr(sA)}, {sr(sLW)}, {TOP}
      v_add_u32 {vr(bCA)}, {sr(sA)}, {vr(bCA)}
      v_add_u32 {vr(bCA+1)}, {sr(sA)}, {vr(bCA+1)}""")
make_sel(bSEL, bT[0])
x_addrs(bXA, bT[0])
tr_addr(bST, 8, 64, bT[0])
a(f"""s_lshl_b32 {sr(sA)}, {sr(sWQ)}, 10
      s_add_u32 {sr(sA)}, {sr(sA)}, {L_STG}
      v_add_u32 {vr(bST)}, {sr(sA)}, {vr(bST)}
      v_lshl_add_u32 {vr(bSW)}, {vr(vL)}, 4, {sr(sA)}""")

sWO = 27 - 27 + sT[6]


def wload(s):
    if s >= 32:
        return
    if s % 4 == 0:
        a(f"""s_add_u32 {sr(sWO)}, {sr(sROT)}, {s//4}
              s_and_b32 {sr(sWO)}, {sr(sWO)}, 7
              s_lshl_b32 {sr(sWO)}, {sr(sWO)}, 2
              s_mul_i32 {sr(sWO)}, {sr(sWO)}, {sr(sSTR)}
              s_add_u32 {sr(sWO)}, {sr(sWO)}, {sr(sCOL)}""")
    else:
        a(f"s_add_u32 {sr(sWO)}, {sr(sWO)}, {sr(sSTR)}")
    a(f"buffer_load_dwordx4 {vr(bRING + 4*(s % NR),4)}, {vr(bVG)}, {sr(R_WSH,4)}, {sr(sWO)} offen", vm=("w", s))


for n in range(8):
    a.wait(vm=("c", n))
    a("s_barrier")
    for t in range(2):
        for u in range(2):
            a(f"ds_read_b64_tr_b16 {vr(bKF+4*t+2*u,2)}, {vr(bCA+t)} offset:{(n&3)*8192+u*512}", lg="k")
    if n < 7:
        if 1 <= n <= 4:
            issue_chunk(n + 3)
        elif n >= 5:
            for s in range(4 * (n - 5), 4 * (n - 5) + 4):
                wload(s)
    a.wait(lg="all")
    for t in range(2):
        mfma16(bKCS[t], bSEL, bKF + 4 * t, "0" if n == 0 else bKCS[t])
a(f"""v_lshlrev_b32 {vr(bT[0])}, 4, {vr(vL31)}
      s_lshl_b32 {sr(sA)}, {sr(sWQ)}, 2
      s_add_u32 {sr(sA)}, {sr(sA)}, {L_CSP}
      v_add_u32 {vr(bT[0])}, {sr(sA)}, {vr(bT[0])}""")
a(f"ds_write_b32 {vr(bT[0])}, {vr(bKCS[0])}", lg="k")
a(f"ds_write_b32 {vr(bT[0])}, {vr(bKCS[1])} offset:512", lg="k")
a.wait(lg="all")
a("s_barrier")
stamp(1)
a(f"""s_cmp_ge_u32 {sr(sTILE)}, 43
      s_cbranch_scc0 L_B1
      s_barrier
      s_branch L_ATT""")
a.label("L_B1")
for s in range(8, 12):
    wload(s)
a(f"""v_lshlrev_b32 {vr(bT[0])}, 1, {vr(vL31)}""")
a(f"buffer_load_ushort {vr(bBIAS)}, {vr(bT[0])}, {sr(R_B1,4)}, {sr(sCOL)} offen", vm="bias")


def stage(s):
    a.wait(vm=("w", s))
    a(f"ds_write_b128 {vr(bSW)}, {vr(bRING + 4*(s % NR),4)}", lg=("sw", s))


def rd_w(s):
    for u in range(2):
        a(f"ds_read_b64_tr_b16 {vr(bWF[s&1]+2*u,2)}, {vr(bST)} offset:{u*256}", lg=("f", s))


def rd_x(s, rt):
    n, j = s // 4, s % 4
    a(f"ds_read_b128 {vr(bXF[s&1]+4*rt,4)}, {vr(bXA+j)} offset:{(n&3)*16384+rt*4096}", lg=("f", s))


stage(0)
rd_w(0)
for rt in range(4):
    rd_x(0, rt)
stage(1)
for s in range(32):
    a.wait(lg=("f", s))
    c = lambda rt: "0" if s == 0 else bACC[rt]
    nxt = s + 1 < 32
    mfma32(bACC[0], bWF[s & 1], bXF[s & 1], c(0))
    if nxt:
        rd_w(s + 1)
    if s >= 1:
        wload(s + NR - 1)
    mfma32(bACC[1], bWF[s & 1], bXF[s & 1] + 4, c(1))
    if nxt:
        rd_x(s + 1, 0)
        rd_x(s + 1, 1)
    mfma16(bCS, bSEL, bWF[s & 1], "0" if s == 0 else bCS)
    mfma32(bACC[2], bWF[s & 1], bXF[s & 1] + 8, c(2))
    if nxt:
        rd_x(s + 1, 2)
        rd_x(s + 1, 3)
        if 12 <= s + 1 < 16:
            a(f"v_add_u32 {vr(bXA+(s+1)%4)}, 0x10000, {vr(bXA+(s+1)%4)}")
    mfma32(bACC[3], bWF[s & 1], bXF[s & 1] + 12, c(3))
    if s + 2 < 32:
        stage(s + 2)
    if s == 2:
        a("s_barrier")
stamp(2)
bXa, bWa, bMASK = 184, 176, 37
a(f"""v_lshlrev_b32 {vr(bT[0])}, 4, {vr(vL31)}
      v_add_u32 {vr(bT[0])}, {L_STATS}, {vr(bT[0])}""")
for rt in range(4):
    a(f"ds_read_b128 {vr(bXa+4*rt,4)}, {vr(bT[0])} offset:{rt*512}", lg="xa")
a.wait(vm="bias")
a(f"""v_add_u32 {vr(bMASK)}, -1, {vr(vHH)}
      v_lshlrev_b32 {vr(bBIAS)}, 16, {vr(bBIAS)}
      s_cmp_eq_u32 {sr(sWQ)}, 0
      s_cselect_b32 {sr(sA)}, 0, -1
      v_and_b32 {vr(bBIAS)}, {sr(sA)}, {vr(bBIAS)}
      v_mov_b32 {vr(bWa+2)}, 0
      v_mov_b32 {vr(bWa+3)}, 0""")
split3(bCS, vr(bBIAS), bWa, bWa + 1, bT[1], bT[2], bMASK)
a.wait(lg="xa")
for rt in range(4):
    mfma32(bACC[rt], bWa, bXa + 4 * rt, bACC[rt])
bPK = 128
a(f"""v_lshlrev_b32 {vr(bT[0])}, 4, {vr(vL)}
      s_cmp_eq_u32 {sr(sWQ)}, 0
      s_cbranch_scc1 L_BQ
      s_mul_i32 {sr(sA)}, {sr(sRB)}, {4*86*1024}
      s_lshl_b32 {sr(sB_)}, {sr(sTILE)}, 11
      s_add_u32 {sr(sA)}, {sr(sA)}, {sr(sB_)}
      s_add_u32 {sr(sA)}, {sr(sA)}, {WS_H}""")
for rt in range(4):
    for u in range(2):
        b = bACC[rt] + 8 * u
        for i in range(8):
            a(f"v_max_f32 {vr(b+i)}, 0, {vr(b+i)}")
        for i in range(8):
            a(f"v_mul_f32 {vr(b+i)}, {vr(b+i)}, {vr(b+i)}")
        p = bPK + 8 * rt + 4 * u
        for i in range(4):
            a(f"v_cvt_pk_bf16_f32 {vr(p+i)}, {vr(b+2*i)}, {vr(b+2*i+1)}")
        a(f"buffer_store_dwordx4 {vr(p,4)}, {vr(bT[0])}, {sr(R_WS,4)}, {sr(sA)} offen offset:{1024*u} sc1", vm="h")
    if rt < 3:
        a(f"s_add_u32 {sr(sA)}, {sr(sA)}, {86*1024}")
a("s_branch L_ATT")
a.label("L_BQ")
a(f"v_add_u32 {vr(bT[0])}, {L_QX}, {vr(bT[0])}")
for rt in range(4):
    a(f"v_and_b32 {vr(bT[1+rt])}, 0xffff0000, {vr(bXa+4*rt+1)}")
for rt in range(4):
    a(f"v_rcp_f32 {vr(bT[1+rt])}, {vr(bT[1+rt])}")
for rt in range(4):
    a(f"v_mul_f32 {vr(bT[1+rt])}, {f32(0.25*math.log2(math.e))}, {vr(bT[1+rt])}")
for rt in range(4):
    for u in range(2):
        b = bACC[rt] + 8 * u
        for i in range(8):
            a(f"v_mul_f32 {vr(b+i)}, {vr(b+i)}, {vr(bT[1+rt])}")
        p = bPK + 8 * rt + 4 * u
        for i in range(4):
            a(f"v_cvt_pk_bf16_f32 {vr(p+i)}, {vr(b+2*i)}, {vr(b+2*i+1)}")
        a(f"ds_write_b128 {vr(bT[0])}, {vr(p,4)} offset:{(u*4+rt)*1024}", lg="q")

a.label("L_ATT")
a.reset_counts()
O = [0, 16, 32, 48]
S = [64, 80]
Q = [96, 100, 104, 108]
KB = [112, 116, 120]
VB = [124, 132, 140]
F = [[148, 164], [180, 196]]
HB = [212, 220]
WF = 228
vIDX, vL16, vVO, vWD, vTA, vGA, vFL = 236, 237, 238, 239, 240, 242, 243
vX, vB2 = 244, 248
sKV, sIT, sH0, sH1, sW2, sRG, sKS, sO = 4, 5, 6, 7, 12, 13, 14, 15
sU, sU2 = sT[0], sT[1]
a(f"""v_lshlrev_b32 {vr(vL16)}, 4, {vr(vL)}
      v_and_b32 {vr(vVO)}, 15, {vr(vL)}
      v_lshlrev_b32 {vr(vVO)}, 4, {vr(vVO)}
      v_lshl_add_u32 {vr(vVO)}, {vr(vHH)}, 8, {vr(vVO)}
      v_mov_b32 {vr(vIDX)}, 0xdddddddd
      s_lshr_b32 {sr(sU)}, {sr(sW)}, 2
      s_lshl_b32 {sr(sU2)}, {sr(sCB)}, 1
      s_add_u32 {sr(sU2)}, {sr(sU2)}, {sr(sU)}
      s_lshl_b32 {sr(sKV)}, {sr(sU2)}, 17
      s_lshl_b32 {sr(sO)}, {sr(sU2)}, 10
      s_lshl_b32 {sr(sU2)}, {sr(sWQ)}, 11
      s_add_u32 {sr(sKV)}, {sr(sKV)}, {sr(sU2)}
      s_and_b32 {sr(sIT)}, {sr(sRB)}, 3
      s_lshl_b32 {sr(sIT)}, {sr(sIT)}, 15
      s_lshl_b32 {sr(sU)}, {sr(sU)}, 12
      s_add_u32 {sr(sU)}, {sr(sU)}, {L_QX}
      s_lshl_b32 {sr(sU2)}, {sr(sWQ)}, 10
      s_add_u32 {sr(sU)}, {sr(sU)}, {sr(sU2)}
      v_add_u32 {vr(vGA)}, {sr(sU)}, {vr(vL16)}""")
for b in range(3):
    for i in range(8):
        a(f"v_mov_b32 {vr(VB[b]+i)}, 0x3f803f80")
for j in range(4):
    for i in range(16):
        a(f"v_mov_b32 {vr(O[j]+i)}, 0")
a.wait(lg="all")
stamp(5)
a("s_barrier")
stamp(6)


def kvload(i):
    if i >= 16:
        return
    b = i % 3
    a(f"s_add_u32 {sr(sU)}, {sr(sKV)}, {sr(sIT)}")
    a(f"buffer_load_dwordx4 {vr(KB[b],4)}, {vr(vL16)}, {sr(R_WS,4)}, {sr(sU)} offen sc1", vm=("k", i))
    a(f"s_mov_b64 exec, {sr(sVM,2)}")
    a(f"buffer_load_dwordx4 {vr(VB[b],4)}, {vr(vVO)}, {sr(R_WS,4)}, {sr(sU)} offen offset:1024 sc1", vm=("v", i))
    a(f"buffer_load_dwordx4 {vr(VB[b]+4,4)}, {vr(vVO)}, {sr(R_WS,4)}, {sr(sU)} offen offset:1536 sc1", vm=("v", i))
    a(f"""s_mov_b64 exec, -1
          s_add_u32 {sr(sIT)}, {sr(sIT)}, 8192
          s_and_b32 {sr(sIT)}, {sr(sIT)}, 0x1ffff""")


kvload(0)
for j in range(4):
    a(f"v_xor_b32 {vr(vFL)}, {j*1024}, {vr(vGA)}")
    a(f"ds_read_b128 {vr(Q[j],4)}, {vr(vFL)}", lg="q")
kvload(1)
if OPT["prio"]:
    a("s_setprio 3")
wdma_voff(vWD, 1024, vFL)
tr_addr128(vTA, vTA + 1, 4, vFL)
a(f"""s_lshl_b32 {sr(sRG)}, {sr(sW)}, 13
      s_add_u32 {sr(sRG)}, {sr(sRG)}, {L_RG}
      v_add_u32 {vr(vTA)}, {sr(sRG)}, {vr(vTA)}
      v_add_u32 {vr(vTA+1)}, {sr(sRG)}, {vr(vTA+1)}
      s_mul_i32 {sr(sKS)}, {sr(sW)}, 11
      s_lshr_b32 {sr(sU)}, {sr(sCB)}, 1
      s_lshl_b32 {sr(sU)}, {sr(sU)}, 7
      s_lshl_b32 {sr(sW2)}, {sr(sKS)}, 14
      s_add_u32 {sr(sW2)}, {sr(sW2)}, {sr(sU)}
      s_lshl_b32 {sr(sU2)}, {sr(sW)}, 16
      s_add_u32 {sr(sT[2])}, {sr(sU2)}, {sr(sU)}
      s_lshl_b32 {sr(sT[3])}, {sr(sW)}, 13
      s_and_b32 {sr(sU)}, {sr(sCB)}, 1
      s_lshl_b32 {sr(sU)}, {sr(sU)}, 1
      s_lshl_b32 {sr(sU2)}, {sr(sRB)}, 2
      s_add_u32 {sr(sU)}, {sr(sU)}, {sr(sU2)}
      s_mul_i32 {sr(sH0)}, {sr(sU)}, {86*1024}
      s_add_u32 {sr(sH0)}, {sr(sH0)}, {WS_H}
      s_add_u32 {sr(sU2)}, {sr(sU2)}, {sr(sWQ)}
      s_lshl_b32 {sr(sU2)}, {sr(sU2)}, 15
      s_add_u32 {sr(sO)}, {sr(sO)}, {sr(sU2)}
      s_add_u32 {sr(sO)}, {sr(sO)}, {WS_O}""")
sWoS, sWoL = sT[2], sT[3]

FF0 = 4
NF = 11


def w2dma(k, p):
    if k >= NF:
        return
    dma(vWD, R_W2, sW2, (sRG, (k & 3) * 2048 + p * 1024), ("w2", k))
    a(f"s_add_u32 {sr(sW2)}, {sr(sW2)}, 8192")


def wodma(p):
    dma(vWD, R_WO, sWoS, (sWoL, p * 1024), "wo")
    a(f"s_add_u32 {sr(sWoS)}, {sr(sWoS)}, 8192")


def hload(k):
    if k >= NF:
        return
    a(f"""s_min_u32 {sr(sU)}, {sr(sKS)}, 85
          s_lshl_b32 {sr(sU)}, {sr(sU)}, 10
          s_add_u32 {sr(sU)}, {sr(sU)}, {sr(sH0)}
          s_add_u32 {sr(sU2)}, {sr(sU)}, {86*1024}""")
    a(f"buffer_load_dwordx4 {vr(HB[k&1],4)}, {vr(vL16)}, {sr(R_WS,4)}, {sr(sU)} offen sc1", vm=("h", k))
    a(f"buffer_load_dwordx4 {vr(HB[k&1]+4,4)}, {vr(vL16)}, {sr(R_WS,4)}, {sr(sU2)} offen sc1", vm=("h", k))
    a(f"s_add_u32 {sr(sKS)}, {sr(sKS)}, 1")


def w2read(k, ct):
    for u in range(2):
        a(f"ds_read_b64_tr_b16 {vr(WF+4*ct+2*u,2)}, {vr(vTA+ct)} offset:{(k&3)*2048+u*1024}", lg=("wf", k, ct))


f2load = f"buffer_load_dwordx4 {vr(WF,4)}, {vr(vFL)}, {sr(R_WS,4)}, {sr(sU2)} offen offset:16 sc1"


def f2_signal():
    a(f"""s_cmp_lt_u32 {sr(sW)}, 4
          s_cbranch_scc1 L_nof2
          s_lshl_b32 {sr(sU)}, {sr(sW)}, 2
          s_add_u32 {sr(sU)}, {sr(sU)}, {sr(sLINE)}
          s_waitcnt vmcnt(0)""")
    sv = list(a.vm)
    set_flag(sU, vFL)
    a.vm = sv
    a.label("L_nof2")


def f2_check():
    a(f"""v_and_b32 {vr(vFL)}, 15, {vr(vL)}
          v_lshlrev_b32 {vr(vFL)}, 7, {vr(vFL)}
          s_and_b32 {sr(sU2)}, {sr(sLINE)}, 0xfffff800
          s_mov_b64 exec, 0xffff""")
    poll(f2load, 4, WF)
    a("s_mov_b64 exec, -1")
    a.vm = []


extras = {}


def put(it, tile, slot, fn):
    extras.setdefault((it, tile, slot), []).append(fn)


for it in range(16):
    put(it, 0, 1, lambda it=it: kvload(it + 2))
for p in range(8):
    put(p // 4, p % 4, 2, lambda p=p: wodma(p))
for k in range(3):
    for p in range(2):
        put(2, k + 1, 2 * p, lambda k=k, p=p: w2dma(k, p))
put(FF0 - 1, 0, 0, f2_check)
put(FF0 - 1, 0, 2, lambda: hload(0))
put(FF0 - 1, 3, 0, lambda: (a.wait(vm=("w2", 0)), w2read(0, 0)))
for k in range(NF):
    it = FF0 + k
    put(it, 0, 0, lambda k=k: w2read(k, 1))
    put(it, 0, 2, lambda k=k: hload(k + 1))
    put(it, 1, 0, lambda k=k: w2dma(k + 3, 0))
    put(it, 1, 2, lambda k=k: w2dma(k + 3, 1))
    if k + 1 < NF:
        put(it, 3, 0, lambda k=k: (a.wait(vm=("w2", k + 1)), w2read(k + 1, 0)))


def final_loads():
    a(f"""s_lshl_b32 {sr(sU)}, {sr(sRB)}, 1
          s_and_b32 {sr(sU2)}, {sr(sCB)}, 1
          s_add_u32 {sr(sU)}, {sr(sU)}, {sr(sU2)}
          s_lshl_b32 {sr(sU)}, {sr(sU)}, 3
          s_add_u32 {sr(sU)}, {sr(sU)}, {sr(sW)}
          s_lshl_b32 {sr(sU)}, {sr(sU)}, 13
          s_lshr_b32 {sr(sU2)}, {sr(sCB)}, 1
          s_lshl_b32 {sr(sU2)}, {sr(sU2)}, 7
          s_add_u32 {sr(sH1)}, {sr(sU)}, {sr(sU2)}
          v_and_b32 {vr(vFL)}, 7, {vr(vL)}
          v_lshlrev_b32 {vr(vFL)}, 4, {vr(vFL)}""")
    a(f"buffer_load_dwordx4 {vr(vB2,4)}, {vr(vFL)}, {sr(R_B2,4)}, {sr(sU2)} offen", vm="fin")
    a(f"""v_lshrrev_b32 {vr(vWD)}, 3, {vr(vL)}
          v_lshl_add_u32 {vr(vWD)}, {vr(vWD)}, 10, {vr(vFL)}""")
    a(f"buffer_load_dwordx4 {vr(vX,4)}, {vr(vWD)}, {sr(R_X,4)}, {sr(sH1)} offen", vm="fin")


put(14, 2, 0, final_loads)
if OPT["prio"]:
    put(13, 3, 2, lambda: a("s_setprio 2"))
    put(15, 1, 2, lambda: a("s_setprio 1"))
    put(15, 3, 0, lambda: a("s_setprio 0"))


def run_extras(it, tile, slot):
    for fn in extras.get((it, tile, slot), []):
        fn()


def exps(b, lo, hi):
    for i in range(lo, hi):
        a(f"v_exp_f32 {vr(b+i)}, {vr(b+i)}")


f2_signal()
a.wait(vm=("k", 0), lg="q")
mfma32(S[0], KB[0], Q[0], "0")
for t in range(64):
    it, j = t // 4, t % 4
    X, Y = S[t & 1], S[(t + 1) & 1]
    exps(X, 0, 2)
    if t > 0:
        pit, pj = (t - 1) // 4, (t - 1) % 4
        smf(O[pj], VB[pit % 3] + 4, Y + 8, vIDX)
    run_extras(it, j, 0)
    exps(X, 2, 5)
    if t < 63:
        nit, nj = (t + 1) // 4, (t + 1) % 4
        if nj == 0:
            a.wait(vm=("k", nit))
        mfma32(Y, KB[nit % 3], Q[nj], "0")
    run_extras(it, j, 1)
    exps(X, 5, 10)
    if j == 0:
        a.wait(vm=("v", it))
    smf(O[j], VB[it % 3], X, vIDX)
    run_extras(it, j, 2)
    exps(X, 10, 14)
    k = it - FF0
    if 0 <= k < NF:
        ct, rt = j >> 1, j & 1
        if j == 0:
            a.wait(vm=("h", k), lg=("wf", k, 0))
        if j == 2:
            a.wait(lg=("wf", k, 1))
        mfma32(F[rt][ct], WF + 4 * ct, HB[k & 1] + 4 * rt, "0" if k == 0 else F[rt][ct])
    exps(X, 14, 16)
smf(O[3], VB[15 % 3] + 4, S[1] + 8, vIDX)
stamp(7)

T = [64 + i for i in range(32)]
a(f"""v_add_u32 {vr(T[0])}, {sr(sRG)}, {vr(vL16)}
      v_lshl_add_u32 {vr(T[1])}, {vr(vL)}, 2, {sr(sRG)}""")
for j in range(1, 4):
    o = (j - 1) * 2304
    a(f"ds_write_b128 {vr(T[0])}, {vr(O[j],4)} offset:{o}", lg="c")
    a(f"ds_write_b128 {vr(T[0])}, {vr(O[j]+4,4)} offset:{o+1024}", lg="c")
    a(f"ds_write_b32 {vr(T[1])}, {vr(O[j]+8)} offset:{o+2048}", lg="c")
a.wait(vm="wo", lg="all")
a("s_barrier")
for j in range(1, 4):
    o = (j - 1) * 2304
    a(f"""v_xor_b32 {vr(T[2])}, {j*8192}, {vr(T[0])}
          v_xor_b32 {vr(T[3])}, {j*8192}, {vr(T[1])}""")
    a(f"ds_read_b128 {vr(O[j],4)}, {vr(T[2])} offset:{o}", lg=("c", j))
    a(f"ds_read_b128 {vr(O[j]+4,4)}, {vr(T[2])} offset:{o+1024}", lg=("c", j))
    a(f"ds_read_b32 {vr(O[j]+8)}, {vr(T[3])} offset:{o+2048}", lg=("c", j))
for j in range(1, 4):
    a.wait(lg=("c", j))
    for i in range(9):
        a(f"v_add_f32 {vr(O[0]+i)}, {vr(O[0]+i)}, {vr(O[j]+i)}")
a(f"""v_add_f32 {vr(T[2])}, |{vr(O[0])}|, |{vr(O[0]+1)}|
      v_add_f32 {vr(T[3])}, |{vr(O[0]+2)}|, |{vr(O[0]+3)}|
      v_add_f32 {vr(T[2])}, |{vr(O[0]+4)}|, {vr(T[2])}
      v_add_f32 {vr(T[3])}, |{vr(O[0]+5)}|, {vr(T[3])}
      v_add_f32 {vr(T[2])}, |{vr(O[0]+6)}|, {vr(T[2])}
      v_add_f32 {vr(T[3])}, |{vr(O[0]+7)}|, {vr(T[3])}
      v_add_f32 {vr(T[2])}, {vr(T[2])}, {vr(T[3])}
      v_cmp_nle_f32 vcc, {f32(2.0**-64)}, {vr(O[0]+8)}
      s_mov_b64 s[76:77], vcc
      v_cmp_nge_f32 vcc, {f32(2.0**64)}, {vr(O[0]+8)}
      s_or_b64 s[76:77], s[76:77], vcc
      v_cmp_nge_f32 vcc, {f32(2.0**126)}, {vr(T[2])}
      s_or_b64 s[76:77], s[76:77], vcc""")
if OPT["force_slow"]:
    a("s_branch L_SLOW")
else:
    a("s_cbranch_scc1 L_SLOW")
a.label("L_NORM")
a(f"v_rcp_f32 {vr(T[2])}, {vr(O[0]+8)}")
for i in range(8):
    a(f"v_mul_f32 {vr(O[0]+i)}, {vr(O[0]+i)}, {vr(T[2])}")
for i in range(4):
    a(f"v_cvt_pk_bf16_f32 {vr(T[4]+i)}, {vr(O[0]+2*i)}, {vr(O[0]+2*i+1)}")
a(f"buffer_store_dwordx4 {vr(T[4],4)}, {vr(vL16)}, {sr(R_WS,4)}, {sr(sO)} offen sc1", vm="o")
G = 16
XU = 24
PR = 96
vRow, vCg, vPA, vPR = T[8], T[9], T[13], T[14]
a(f"""s_lshl_b32 {sr(sU)}, {sr(sW)}, 3
      v_lshrrev_b32 {vr(vRow)}, 3, {vr(vL)}
      v_add_u32 {vr(vRow)}, {sr(sU)}, {vr(vRow)}
      v_and_b32 {vr(vCg)}, 7, {vr(vL)}
      s_and_b32 {sr(sU)}, {sr(sCB)}, 1
      s_lshl_b32 {sr(sU)}, {sr(sU)}, 10
      s_add_u32 {sr(sU)}, {sr(sU)}, {L_STATS}
      v_lshl_add_u32 {vr(T[11])}, {vr(vRow)}, 4, {sr(sU)}""")
a(f"ds_read_b32 {vr(T[12])}, {vr(T[11])} offset:4", lg="sd")
a(f"""s_mul_i32 {sr(sU)}, {sr(sW)}, 8704
      s_add_u32 {sr(sU)}, {sr(sU)}, {L_PB}
      v_mul_u32_u24 {vr(vPA)}, 272, {vr(vL31)}
      v_lshl_add_u32 {vr(vPA)}, {vr(vHH)}, 4, {vr(vPA)}
      v_add_u32 {vr(vPA)}, {sr(sU)}, {vr(vPA)}
      s_barrier""")


def fwrite(rt):
    for ct in range(2):
        for g in range(4):
            a(f"ds_write_b128 {vr(vPA)}, {vr(F[rt][ct]+4*g,4)} offset:{(32*ct+8*g)*4}", lg="p")


def fread_gate():
    for w in range(6):
        for h in range(2):
            d = G + 4 * h if w == 0 else PR + 8 * (w - 1) + 4 * h
            a(f"ds_read_b128 {vr(d,4)}, {vr(vPR)} offset:{w*8704+h*16}", lg=("p", w))
    for w in range(1, 8):
        a.wait(lg=("p", w))
        b = PR + 8 * ((w - 1) % 5)
        for i in range(8):
            a(f"v_add_f32 {vr(G+i)}, {vr(G+i)}, {vr(b+i)}")
        if w + 5 < 8:
            for h in range(2):
                a(f"ds_read_b128 {vr(b+4*h,4)}, {vr(vPR)} offset:{(w+5)*8704+h*16}", lg=("p", w + 5))


def gate():
    for i in range(8):
        a(f"v_fma_f32 {vr(G+i)}, {vr(G+i)}, {vr(T[12])}, {vr(T[16]+i)}")
    for i in range(8):
        a(f"v_mul_f32 {vr(T[16]+i)}, {f32(-math.log2(math.e))}, {vr(G+i)}")
    for i in range(8):
        a(f"v_exp_f32 {vr(T[16]+i)}, {vr(T[16]+i)}")
    for i in range(8):
        a(f"v_add_f32 {vr(T[16]+i)}, 1.0, {vr(T[16]+i)}")
    for i in range(8):
        a(f"v_rcp_f32 {vr(T[16]+i)}, {vr(T[16]+i)}")
    for i in range(8):
        a(f"v_mul_f32 {vr(G+i)}, {vr(G+i)}, {vr(T[16]+i)}")


fwrite(0)
a.wait(vm="fin")
for i in range(4):
    a(f"""v_lshlrev_b32 {vr(XU+2*i)}, 16, {vr(vX+i)}
          v_and_b32 {vr(XU+2*i+1)}, 0xffff0000, {vr(vX+i)}
          v_lshlrev_b32 {vr(T[16]+2*i)}, 16, {vr(vB2+i)}
          v_and_b32 {vr(T[16]+2*i+1)}, 0xffff0000, {vr(vB2+i)}""")
a.wait(lg="sd")
a(f"""v_and_b32 {vr(T[12])}, 0xffff0000, {vr(T[12])}
      v_rcp_f32 {vr(T[12])}, {vr(T[12])}
      v_mul_u32_u24 {vr(T[10])}, 272, {vr(vRow)}
      v_mul_f32 {vr(T[12])}, {vr(T[12])}, {vr(T[12])}
      v_lshl_add_u32 {vr(T[10])}, {vr(vCg)}, 5, {vr(T[10])}
      v_add_u32 {vr(vGA)}, {L_PB}, {vr(T[10])}
      s_lshr_b32 {sr(sU2)}, {sr(sW)}, 2
      s_mul_i32 {sr(sU2)}, {sr(sU2)}, 8704
      v_subrev_u32 {vr(vPR)}, {sr(sU2)}, {vr(vGA)}
      s_lshl_b32 {sr(sU)}, {sr(sW)}, 2
      s_add_u32 {sr(sU)}, {sr(sU)}, {sr(sLINE)}
      s_add_u32 {sr(sU)}, {sr(sU)}, 32""")
a.wait(lg="all")
a(f"""s_barrier
      s_cmp_ge_u32 {sr(sW)}, 4
      s_cbranch_scc1 L_R1""")
fread_gate()
a.label("L_R1")
a("s_barrier")
fwrite(1)
a.wait(vm="all")
set_flag(sU, T[2])
stamp(8)
a.wait(lg="all")
a(f"""s_barrier
      s_cmp_lt_u32 {sr(sW)}, 4
      s_cbranch_scc1 L_R2""")
fread_gate()
a("s_barrier")
gate()
a("s_branch L_FIN")
a.label("L_R2")
gate()
a("s_barrier")

a.reset_counts()
OF = 96
WR = 160
AC = [32, 48]
vA0, vA1, vPW, vPF = 192, 193, 194, 195
tr_addr128(vA0, vA1, 4, T[2])
a(f"""s_lshr_b32 {sr(sU)}, {sr(sW)}, 1
      s_lshl_b32 {sr(sU2)}, {sr(sU)}, 15
      v_add_u32 {vr(vA0)}, {sr(sU2)}, {vr(vA0)}
      v_add_u32 {vr(vA1)}, {sr(sU2)}, {vr(vA1)}""")


def wo_read(i):
    if i >= 16:
        return
    for ct in range(2):
        for u in range(2):
            a(f"ds_read_b64_tr_b16 {vr(WR+8*(i&3)+4*ct+2*u,2)}, {vr(vA0+ct)} offset:{i*2048+u*1024}", lg=("wo", i))


for i in range(3):
    wo_read(i)
a(f"""s_and_b32 {sr(sT[2])}, {sr(sW)}, 1
      s_mul_i32 {sr(sU2)}, {sr(sU)}, 17408
      s_mul_i32 {sr(sT[3])}, {sr(sT[2])}, {32*272}
      s_add_u32 {sr(sU2)}, {sr(sU2)}, {sr(sT[3])}
      s_add_u32 {sr(sU2)}, {sr(sU2)}, {L_PB}
      v_mul_u32_u24 {vr(vPW)}, 272, {vr(vL31)}
      v_lshl_add_u32 {vr(vPW)}, {vr(vHH)}, 4, {vr(vPW)}
      v_add_u32 {vr(vPW)}, {sr(sU2)}, {vr(vPW)}
      s_and_b32 {sr(sT[3])}, {sr(sCB)}, 1
      s_lshl_b32 {sr(sT[3])}, {sr(sT[3])}, 1
      s_add_u32 {sr(sT[2])}, {sr(sT[2])}, {sr(sT[3])}
      s_and_b32 {sr(sU2)}, {sr(sLINE)}, 0xfffff800
      s_lshl_b32 {sr(sT[3])}, {sr(sU)}, 10
      s_add_u32 {sr(sU2)}, {sr(sU2)}, {sr(sT[3])}
      s_lshl_b32 {sr(sT[3])}, {sr(sT[2])}, 2
      s_add_u32 {sr(sU2)}, {sr(sU2)}, {sr(sT[3])}
      v_bfe_u32 {vr(vPF)}, {vr(vL)}, 1, 3
      v_lshlrev_b32 {vr(vPF)}, 7, {vr(vPF)}
      v_and_b32 {vr(T[2])}, 1, {vr(vL)}
      v_lshl_add_u32 {vr(vPF)}, {vr(T[2])}, 4, {vr(vPF)}
      s_lshl_b32 {sr(sT[3])}, {sr(sRB)}, 2
      s_add_u32 {sr(sT[2])}, {sr(sT[2])}, {sr(sT[3])}
      s_lshl_b32 {sr(sT[2])}, {sr(sT[2])}, 15
      s_lshl_b32 {sr(sT[3])}, {sr(sU)}, 14
      s_add_u32 {sr(sT[2])}, {sr(sT[2])}, {sr(sT[3])}
      s_add_u32 {sr(sT[2])}, {sr(sT[2])}, {WS_O}
      s_mov_b64 exec, 0xffff""")
poll(f"buffer_load_dword {vr(T[2])}, {vr(vPF)}, {sr(R_WS,4)}, {sr(sU2)} offen offset:32 sc1", 1, T[2])
a("s_mov_b64 exec, -1")
stamp(9)
for i in range(16):
    a(f"buffer_load_dwordx4 {vr(OF+4*i,4)}, {vr(vL16)}, {sr(R_WS,4)}, {sr(sT[2])} offen offset:{(i&3)*1024} sc1", vm=("of", i))
    if i & 3 == 3 and i < 15:
        a(f"s_add_u32 {sr(sT[2])}, {sr(sT[2])}, 4096")
for i in range(16):
    a.wait(vm=("of", i), lg=("wo", i))
    mfma32(AC[0], WR + 8 * (i & 3), OF + 4 * i, "0" if i == 0 else AC[0])
    wo_read(i + 3)
    mfma32(AC[1], WR + 8 * (i & 3) + 4, OF + 4 * i, "0" if i == 0 else AC[1])
for ct in range(2):
    for g in range(4):
        a(f"ds_write_b128 {vr(vPW)}, {vr(AC[ct]+4*g,4)} offset:{(32*ct+8*g)*4}", lg="p")
a.wait(lg="all")
a.label("L_FIN")
a("s_barrier")
a.reset_counts()
for kh in range(2):
    for h in range(2):
        a(f"ds_read_b128 {vr(T[0]+8*kh+4*h,4)}, {vr(vGA)} offset:{kh*17408+h*16}", lg="p")
a.wait(lg="all")
for i in range(8):
    a(f"v_add_f32 {vr(T[i])}, {vr(T[i])}, {vr(T[8+i])}")
for i in range(8):
    a(f"v_fma_f32 {vr(T[i])}, {vr(T[i])}, {vr(G+i)}, {vr(XU+i)}")
for i in range(4):
    a(f"v_cvt_pk_bf16_f32 {vr(T[16]+i)}, {vr(T[2*i])}, {vr(T[2*i+1])}")
a(f"buffer_store_dwordx4 {vr(T[16],4)}, {vr(vWD)}, {sr(R_OUT,4)}, {sr(sH1)} offen")
if OPT["stamps"]:
    stamp(10)
    a("s_memtime s[8:9]")
    a(f"""s_waitcnt lgkmcnt(0)
          s_sub_u32 s0, s8, s0
          s_sub_u32 {sr(sU)}, {sr(sLINE)}, {WS_FL}
          s_lshl_b32 {sr(sU)}, {sr(sU)}, 3
          s_lshl_b32 {sr(sU2)}, {sr(sW)}, 7
          s_add_u32 {sr(sU)}, {sr(sU)}, {sr(sU2)}
          s_add_u32 {sr(sU)}, {sr(sU)}, {WS_TS}
          s_mov_b64 exec, 1""")
    for i in range(11):
        a(f"v_mov_b32 {vr(i)}, {sr(sSTAMP+2*i)}")
    a("v_mov_b32 v11, s0")
    for i in range(3):
        a(f"buffer_store_dwordx4 {vr(4*i,4)}, off, {sr(R_WS,4)}, {sr(sU)} offset:{16*i}")
a("s_endpgm")

a.label("L_SLOW")
a.reset_counts()
C = 16
M = T[2]
a(f"""s_nop 7
      s_lshr_b32 {sr(sU)}, {sr(sKV)}, 17
      s_lshl_b32 {sr(sU)}, {sr(sU)}, 17
      s_mov_b32 {sr(sU2)}, 64
      v_mov_b32 {vr(M)}, 0xff800000""")
a.label("L_S1")
a(f"""buffer_load_dwordx4 {vr(KB[0],4)}, {vr(vL16)}, {sr(R_WS,4)}, {sr(sU)} offen sc1
      s_waitcnt vmcnt(0)""")
mfma32(S[1], KB[0], Q[0], "0")
for i in range(8):
    a(f"v_max3_f32 {vr(M)}, {vr(M)}, {vr(S[1]+2*i)}, {vr(S[1]+2*i+1)}")
a(f"""s_add_u32 {sr(sU)}, {sr(sU)}, 2048
      s_sub_u32 {sr(sU2)}, {sr(sU2)}, 1
      s_cmp_lg_u32 {sr(sU2)}, 0
      s_cbranch_scc1 L_S1
      v_mov_b32 {vr(T[3])}, {vr(M)}
      s_nop 1
      v_permlane32_swap_b32 {vr(M)}, {vr(T[3])}
      v_max_f32 {vr(M)}, {vr(M)}, {vr(T[3])}
      s_sub_u32 {sr(sU)}, {sr(sU)}, 0x20000
      s_mov_b32 {sr(sU2)}, 64""")
for i in range(16):
    a(f"v_sub_f32 {vr(C+i)}, 0, {vr(M)}")
    a(f"v_mov_b32 {vr(O[0]+i)}, 0")
a.label("L_S2")
a(f"""buffer_load_dwordx4 {vr(KB[0],4)}, {vr(vL16)}, {sr(R_WS,4)}, {sr(sU)} offen sc1
      s_mov_b64 exec, {sr(sVM,2)}
      buffer_load_dwordx4 {vr(VB[0],4)}, {vr(vVO)}, {sr(R_WS,4)}, {sr(sU)} offen offset:1024 sc1
      buffer_load_dwordx4 {vr(VB[0]+4,4)}, {vr(vVO)}, {sr(R_WS,4)}, {sr(sU)} offen offset:1536 sc1
      s_mov_b64 exec, -1
      s_waitcnt vmcnt(0)""")
mfma32(S[1], KB[0], Q[0], C)
exps(S[1], 0, 16)
smf(O[0], VB[0], S[1], vIDX)
smf(O[0], VB[0] + 4, S[1] + 8, vIDX)
a(f"""s_add_u32 {sr(sU)}, {sr(sU)}, 2048
      s_sub_u32 {sr(sU2)}, {sr(sU2)}, 1
      s_cmp_lg_u32 {sr(sU2)}, 0
      s_cbranch_scc1 L_S2
      s_nop 15
      s_branch L_NORM""")
a.label("L_end")
a("s_endpgm")

ref = open(__file__.rsplit("/", 1)[0] + "/../cdna_kernels/" + NAME + ".s.ref").read().split("\n")
head = [l for l in ref if l.startswith(";") and "@launch" not in l]
out = "\n".join(head) + f"""
; @launch grid=(256,1,1) block=(512,1,1) lds=163840
.amdgcn_target "amdgcn-amd-amdhsa--gfx950"
.text
.globl {NAME}_kernel
.p2align 8
.type {NAME}_kernel,@function
""" + a.text() + f""".section .rodata,"a"
.p2align 6
.amdhsa_kernel {NAME}_kernel
  .amdhsa_next_free_vgpr 256
  .amdhsa_next_free_sgpr 102
  .amdhsa_accum_offset 256
  .amdhsa_group_segment_fixed_size 0
  .amdhsa_kernarg_size 88
  .amdhsa_user_sgpr_count 2
  .amdhsa_user_sgpr_kernarg_segment_ptr 1
  .amdhsa_system_sgpr_workgroup_id_x 1
  .amdhsa_float_denorm_mode_32 3
.end_amdhsa_kernel
"""
open(sys.argv[1], "w").write(out)
if OPT.get("pads"):
    for p in a.pads:
        print("pad", p)
```

```python
import sys, math, struct
from asmlib import Asm, vr, sr

NAME = "recurrent_scan__softmax_full_mha__dense_activation_squared_relu__prompt"
OPT = dict(stamps=0, rot=0, force_slow=0, prio=1, spin=1 << 18)
for a in sys.argv[2:]:
    k, v = a.split("=")
    OPT[k] = int(v, 0)

WS_KV = 0
WS_H = 4 << 20
WS_O = 10 << 20
WS_FL = 12 << 20
WS_TS = 13 << 20
WS_SIZE = 14 << 20
TOP = 131072
L_G = TOP
L_STG = TOP + 16640
L_STATS = TOP + 20736
L_CSP = TOP + 22784
L_QX = TOP + 24576
L_RG = 65536
L_PB = 65536
P_X, P_WQKV, P_WO, P_W1, P_B1, P_W2, P_B2, P_OUT, P_DBG, P_WS = 4, 6, 8, 12, 14, 16, 18, 20, 22, 24
R_X, R_WQKV, R_WO, R_WSH, R_W2, R_OUT, R_WS, R_B1, R_B2, R_DBG = 28, 32, 36, 40, 44, 48, 52, 56, 60, 64
sW, sWQ, sRB, sCB, sROT = 68, 69, 70, 71, 72
sT = [73, 74, 75, 76, 77, 78, 79]
sVM = 26
sLINE = 3
sSTAMP = 80


def f32(x):
    return "0x%08x" % struct.unpack("<I", struct.pack("<f", x))[0]


a = Asm()
nstamp = [0]


def stamp(i):
    if OPT["stamps"]:
        a(f"{'s_memtime' if OPT['stamps'] == 2 else 's_memrealtime'} {sr(sSTAMP + 2*i, 2)}")


def mfma32(d, x, y, c):
    a(f"v_mfma_f32_32x32x16_bf16 {vr(d,16)}, {vr(x,4)}, {vr(y,4)}, {c if isinstance(c,str) else vr(c,16)}")


def mfma16(d, x, y, c):
    a(f"v_mfma_f32_16x16x32_bf16 {vr(d,4)}, {vr(x,4)}, {vr(y,4)}, {c if isinstance(c,str) else vr(c,4)}")


def mfma4(d, x, c):
    a(f"v_mfma_f32_4x4x4_16b_bf16 {vr(d,4)}, {vr(x,2)}, {vr(x,2)}, {c if isinstance(c,str) else vr(c,4)}")


def smf(d, x, y, idx):
    a(f"v_smfmac_f32_32x32x32_bf16 {vr(d,16)}, {vr(x,4)}, {vr(y,8)}, {vr(idx)}")


def srd(r, p, n):
    a(f"""s_mov_b32 {sr(r)}, {sr(p)}
          s_mov_b32 {sr(r+1)}, {sr(p+1)}
          s_mov_b32 {sr(r+2)}, {n}
          s_mov_b32 {sr(r+3)}, 0x20000""")


def dma(voff, r, soff, lds, tag):
    if isinstance(lds, tuple):
        a(f"s_add_u32 m0, {sr(lds[0])}, {lds[1]}")
    else:
        a(f"s_mov_b32 m0, {lds}")
    a(f"buffer_load_dwordx4 {vr(voff)}, {sr(r,4)}, {sr(soff)} offen lds", vm=tag)


def split3(x, bias, d0, d1, t0, t1, mask):
    a(f"""v_cvt_pk_bf16_f32 {vr(t0)}, {vr(x)}, {vr(x)}
          v_lshlrev_b32 {vr(t0)}, 16, {vr(t0)}
          v_sub_f32 {vr(t0)}, {vr(x)}, {vr(t0)}
          v_cvt_pk_bf16_f32 {vr(d0)}, {vr(x)}, {vr(t0)}
          v_and_b32 {vr(t1)}, 0xffff0000, {vr(d0)}
          v_sub_f32 {vr(t1)}, {vr(t0)}, {vr(t1)}
          v_cvt_pk_bf16_f32 {vr(d1)}, {vr(t1)}, {bias}""")
    if mask is not None:
        a(f"""v_and_b32 {vr(d0)}, {vr(d0)}, {vr(mask)}
              v_and_b32 {vr(d1)}, {vr(d1)}, {vr(mask)}""")


uid = [0]


def poll(load, nreg, reg, first_done=False):
    uid[0] += 1
    L, D, C = f"L_poll{uid[0]}", f"L_polld{uid[0]}", f"L_pollc{uid[0]}"
    a(f"s_mov_b32 {sr(sT[6])}, {OPT['spin']}")
    if first_done:
        a(f"s_branch {C}")
    a.label(L)
    a.raw(load)
    a("s_waitcnt vmcnt(0)")
    a.label(C)
    if nreg == 4:
        a(f"""v_min_u32 {vr(reg)}, {vr(reg)}, {vr(reg+1)}
              v_min3_u32 {vr(reg)}, {vr(reg)}, {vr(reg+2)}, {vr(reg+3)}""")
    a(f"""v_cmp_eq_u32 vcc, 0, {vr(reg)}
          s_nop 1
          s_cmp_eq_u64 vcc, 0
          s_cbranch_scc1 {D}
          s_sub_u32 {sr(sT[6])}, {sr(sT[6])}, 1
          s_cmp_lg_u32 {sr(sT[6])}, 0
          s_cbranch_scc1 {L}""")
    a.label(D)


def set_flag(dword_sgpr_expr_reg, tmp):
    a(f"""s_mov_b64 exec, 1
          v_mov_b32 {vr(tmp)}, 1
          buffer_store_dword {vr(tmp)}, off, {sr(R_WS,4)}, {sr(dword_sgpr_expr_reg)} sc1
          s_mov_b64 exec, -1""")


vL = 252
vHH = 253
vL31 = 254
vTR = 255


def tr_addr(dst, row_hh_mult, rowbytes, tmp):
    a(f"""v_bfe_u32 {vr(tmp)}, {vr(vL)}, 2, 2
          v_mad_u32_u24 {vr(tmp)}, {vr(vHH)}, {row_hh_mult}, {vr(tmp)}
          v_lshlrev_b32 {vr(tmp)}, {int(math.log2(rowbytes))}, {vr(tmp)}
          v_add_u32 {vr(dst)}, {vr(tmp)}, {vr(vTR)}""")


def tr_addr128(d0, d1, row_hh_mult, tmp):
    tr_addr(d0, row_hh_mult, 128, tmp)
    a(f"""v_bfe_u32 {vr(tmp)}, {vr(vL)}, 3, 1
          v_lshl_add_u32 {vr(d0)}, {vr(tmp)}, 6, {vr(d0)}
          v_xor_b32 {vr(d1)}, 64, {vr(d0)}""")


def wdma_voff(dst, stride, tmp):
    a(f"""v_bfe_u32 {vr(tmp)}, {vr(vL)}, 4, 1
          v_lshlrev_b32 {vr(tmp)}, 2, {vr(tmp)}
          v_and_b32 {vr(dst)}, 7, {vr(vL)}
          v_xor_b32 {vr(dst)}, {vr(dst)}, {vr(tmp)}
          v_lshlrev_b32 {vr(dst)}, 4, {vr(dst)}
          v_lshrrev_b32 {vr(tmp)}, 3, {vr(vL)}
          v_mul_u32_u24 {vr(tmp)}, {stride}, {vr(tmp)}
          v_add_u32 {vr(dst)}, {vr(dst)}, {vr(tmp)}""")


def x_addrs(d, tmp):
    a(f"""v_bfe_u32 {vr(tmp)}, {vr(vL)}, 1, 3
          v_xor_b32 {vr(tmp)}, {vr(tmp)}, {vr(vHH)}
          v_lshlrev_b32 {vr(tmp)}, 4, {vr(tmp)}
          v_lshl_add_u32 {vr(d)}, {vr(vL31)}, 7, {vr(tmp)}
          v_xor_b32 {vr(d+1)}, 32, {vr(d)}
          v_xor_b32 {vr(d+2)}, 64, {vr(d)}
          v_xor_b32 {vr(d+3)}, 0x60, {vr(d)}""")


def make_sel(d, tmp):
    a(f"""v_lshrrev_b32 {vr(tmp)}, 2, {vr(vL)}
          v_xor_b32 {vr(tmp)}, {vr(tmp)}, {vr(vL)}
          v_bfe_u32 {vr(tmp)}, {vr(tmp)}, 2, 1
          v_add_u32 {vr(tmp)}, -1, {vr(tmp)}
          v_and_b32 {vr(d)}, 0x3f803f80, {vr(tmp)}
          v_mov_b32 {vr(d+1)}, {vr(d)}
          v_mov_b32 {vr(d+2)}, {vr(d)}
          v_mov_b32 {vr(d+3)}, {vr(d)}""")


a.label(NAME + "_kernel")
a(f"""s_cmp_ge_u32 s2, 256
      s_cbranch_scc1 L_end
      s_load_dwordx16 s[4:19], s[0:1], 0
      s_load_dwordx4 s[20:23], s[0:1], 64
      s_load_dwordx2 s[24:25], s[0:1], 80""")
stamp(0)
a(f"""v_lshrrev_b32 v1, 6, v0
      v_and_b32 {vr(vL)}, 63, v0
      v_readfirstlane_b32 {sr(sW)}, v1
      v_bfe_u32 {vr(vHH)}, v0, 5, 1
      v_and_b32 {vr(vL31)}, 31, v0
      v_bfe_u32 v1, v0, 4, 1
      v_and_b32 v2, 3, v0
      v_lshlrev_b32 v2, 3, v2
      v_lshl_add_u32 {vr(vTR)}, v1, 5, v2
      s_and_b32 {sr(sWQ)}, {sr(sW)}, 3
      s_bfe_u32 {sr(sT[0])}, s2, 0x20001
      s_bfe_u32 {sr(sT[1])}, s2, 0x20003
      s_lshl_b32 {sr(sT[0])}, {sr(sT[0])}, 2
      s_add_u32 {sr(sRB)}, {sr(sT[0])}, {sr(sT[1])}
      s_and_b32 {sr(sT[0])}, s2, 1
      s_lshr_b32 {sr(sT[1])}, s2, 5
      s_lshl_b32 {sr(sT[0])}, {sr(sT[0])}, 3
      s_add_u32 {sr(sCB)}, {sr(sT[0])}, {sr(sT[1])}
      s_lshl_b32 {sr(sT[0])}, {sr(sRB)}, 4
      s_add_u32 {sr(sT[0])}, {sr(sT[0])}, {sr(sCB)}
      s_lshl_b32 {sr(sT[0])}, {sr(sT[0])}, 7
      s_add_u32 {sr(sLINE)}, {sr(sT[0])}, {WS_FL}
      s_mov_b32 {sr(sVM)}, 0xffff
      s_mov_b32 {sr(sVM+1)}, 0xffff""")
if OPT["rot"] == 0:
    a(f"s_mov_b32 {sr(sROT)}, 0")
elif OPT["rot"] == 1:
    a(f"""s_lshl_b32 {sr(sT[0])}, {sr(sRB)}, 1
          s_add_u32 {sr(sT[0])}, {sr(sT[0])}, {sr(sCB)}
          s_and_b32 {sr(sROT)}, {sr(sT[0])}, 7""")
elif OPT["rot"] == 2:
    a(f"""s_add_u32 {sr(sT[0])}, {sr(sRB)}, {sr(sCB)}
          s_and_b32 {sr(sT[0])}, {sr(sT[0])}, 1
          s_lshl_b32 {sr(sROT)}, {sr(sT[0])}, 2""")
elif OPT["rot"] == 3:
    a(f"""s_add_u32 {sr(sT[0])}, {sr(sRB)}, {sr(sCB)}
          s_and_b32 {sr(sT[0])}, {sr(sT[0])}, 3
          s_lshl_b32 {sr(sROT)}, {sr(sT[0])}, 1""")
a("s_waitcnt lgkmcnt(0)")
if OPT["stamps"]:
    a("s_memtime s[0:1]")
srd(R_X, P_X, 2048 * 512 * 2)
srd(R_WQKV, P_WQKV, 512 * 1536 * 2)
a(f"""s_cmp_ge_u32 {sr(sW)}, 4
      s_cbranch_scc1 L_B""")


def other_srds():
    srd(R_WO, P_WO, 512 * 512 * 2)
    srd(R_W2, P_W2, 1376 * 512 * 2)
    srd(R_OUT, P_OUT, 2048 * 512 * 2)
    srd(R_WS, P_WS, WS_SIZE)
    srd(R_B1, P_B1, 1376 * 2)
    srd(R_B2, P_B2, 512 * 2)
    srd(R_DBG, P_DBG, 256)


other_srds()
a(f"""s_cmp_lg_u32 {sr(sW)}, 0
      s_cbranch_scc1 L_A1
      s_getpc_b64 s[74:75]""")
a.label("L_pc")
a(f"""s_lshr_b32 {sr(sT[0])}, s2, 3
      s_lshl_b32 {sr(sT[0])}, {sr(sT[0])}, 10
      v_lshlrev_b32 v1, 7, {vr(vL)}
      v_add_u32 v1, {sr(sT[0])}, v1
      v_min_u32 v1, L_end-L_pc, v1
      s_mov_b64 exec, 0xff
      global_load_dword v2, v1, s[74:75]
      s_mov_b64 exec, -1
      s_cmp_lg_u32 {sr(sRB)}, {sr(sCB)}
      s_cbranch_scc1 L_A1
      s_lshl_b32 {sr(sT[0])}, {sr(sRB)}, 11
      s_add_u32 {sr(sT[0])}, {sr(sT[0])}, {WS_FL}
      v_lshrrev_b32 v1, 2, {vr(vL)}
      v_and_b32 v3, 3, {vr(vL)}
      v_lshlrev_b32 v3, 4, v3
      v_lshl_add_u32 v1, v1, 7, v3
      v_mov_b32 v4, 0
      v_mov_b32 v5, 0
      v_mov_b32 v6, 0
      v_mov_b32 v7, 0
      buffer_store_dwordx4 v[4:7], v1, {sr(R_WS,4)}, {sr(sT[0])} offen sc1
      s_lshl_b32 {sr(sT[0])}, {sr(sRB)}, 2
      s_waitcnt vmcnt(0)
      s_mov_b64 exec, 1
      v_mov_b32 v3, 1
      buffer_store_dword v3, off, {sr(R_DBG,4)}, {sr(sT[0])} sc1
      s_mov_b64 exec, -1""")
a.label("L_A1")
a.reset_counts()
aXA, aWA = 4, 8
aSET = [16 + 12 * j for j in range(4)]
aACC = [64, 80]
aDR, aSUM, aSQ, aSEL = 96, 112, [116, 120], 124
aXa, aWa, aRS, aMASK, aR = 128, [132, 136], 140, 144, 145
aCS = 148
aPK = 160
aVO = 10
aTMP = [11, 12, 13, 14, 15]
x_addrs(aXA, aTMP[0])
a(f"s_lshl_b32 {sr(sT[0])}, {sr(sWQ)}, 12")
for j in range(4):
    a(f"v_add_u32 {vr(aXA+j)}, {sr(sT[0])}, {vr(aXA+j)}")
tr_addr128(aWA, aWA + 1, 8, aTMP[0])
a(f"""v_add_u32 {vr(aWA)}, {TOP}, {vr(aWA)}
      v_add_u32 {vr(aWA+1)}, {TOP}, {vr(aWA+1)}""")
make_sel(aSEL, aTMP[0])
a(f"""v_add_u32 {vr(aMASK)}, -1, {vr(vHH)}
      v_mov_b32 {vr(aWa[0]+2)}, 0
      v_mov_b32 {vr(aWa[0]+3)}, 0
      v_mov_b32 {vr(aWa[1]+2)}, 0
      v_mov_b32 {vr(aWa[1]+3)}, 0
      v_mov_b32 {vr(aRS)}, 0
      v_mov_b32 {vr(aRS+1)}, 0
      v_and_b32 {vr(aRS+2)}, 0x3f803f80, {vr(aMASK)}
      v_and_b32 {vr(aRS+3)}, 0x3f80, {vr(aMASK)}""")
a(f"""s_lshr_b32 {sr(sT[0])}, {sr(sCB)}, 1
      s_lshl_b32 {sr(sT[0])}, {sr(sT[0])}, 19
      s_lshl_b32 {sr(sT[1])}, {sr(sRB)}, 2
      s_add_u32 {sr(sT[1])}, {sr(sT[1])}, {sr(sWQ)}
      s_lshl_b32 {sr(sT[1])}, {sr(sT[1])}, 11
      s_add_u32 {sr(sT[2])}, {sr(sT[0])}, {sr(sT[1])}
      s_bitcmp1_b32 {sr(sCB)}, 0
      s_cbranch_scc1 L_AV""")


def kv_path(isV):
    def reads(n, j):
        s = aSET[j]
        a(f"ds_read_b128 {vr(s,4)}, {vr(aXA+j)} offset:{(n&3)*16384}", lg=("r", n, j))
        for t in range(2):
            for u in range(2):
                a(f"ds_read_b64_tr_b16 {vr(s+4+4*t+2*u,2)}, {vr(aWA+t)} offset:{(n&3)*8192+j*2048+u*512}", lg=("r", n, j))

    def small(n, j):
        s = aSET[j]
        first = (n == 0 and j == 0)
        mfma16(aSUM, aSEL, s, "0" if first else aSUM)
        mfma4(aSQ[0], s, "0" if first else aSQ[0])
        mfma4(aSQ[1], s + 2, "0" if first else aSQ[1])

    def main(n, j, t):
        s = aSET[j]
        first = (n == 0 and j == 0)
        c = "0" if first else aACC[t]
        if isV:
            mfma32(aACC[t], s, s + 4 + 4 * t, c)
        else:
            mfma32(aACC[t], s + 4 + 4 * t, s, c)

    def step(n, j):
        main(n, j, 0)
        small(n, j)
        main(n, j, 1)

    if isV:
        a(f"""v_bfe_u32 {vr(aTMP[0])}, {vr(vL)}, 4, 1
              v_lshlrev_b32 {vr(aTMP[0])}, 17, {vr(aTMP[0])}
              v_lshl_add_u32 {vr(aTMP[0])}, {vr(vHH)}, 8, {vr(aTMP[0])}
              v_and_b32 {vr(aVO)}, 15, {vr(vL)}
              v_lshl_add_u32 {vr(aVO)}, {vr(aVO)}, 4, {vr(aTMP[0])}""")
    else:
        a.comment("key slot = lane with bits 2 and 3 swapped")
        a(f"""v_and_b32 {vr(aVO)}, 0x33, {vr(vL)}
              v_bfe_u32 {vr(aTMP[0])}, {vr(vL)}, 2, 1
              v_lshl_add_u32 {vr(aVO)}, {vr(aTMP[0])}, 3, {vr(aVO)}
              v_bfe_u32 {vr(aTMP[0])}, {vr(vL)}, 3, 1
              v_lshl_add_u32 {vr(aVO)}, {vr(aTMP[0])}, 2, {vr(aVO)}
              v_lshlrev_b32 {vr(aVO)}, 4, {vr(aVO)}""")
    for n in range(8):
        a("s_barrier")
        if n == 0:
            stamp(1)
        if n == 7:
            stamp(2)
        reads(n, 0)
        reads(n, 1)
        if n > 0:
            step(n - 1, 3)
        reads(n, 2)
        a.wait(lg=("r", n, 0))
        step(n, 0)
        reads(n, 3)
        if n == 3:
            for j in range(4):
                a(f"v_add_u32 {vr(aXA+j)}, 0x10000, {vr(aXA+j)}")
        a.wait(lg=("r", n, 1))
        step(n, 1)
        a.wait(lg=("r", n, 2))
        if n < 7:
            step(n, 2)
            a.wait(lg=("r", n, 3))
    small(7, 2)
    a.wait(lg=("r", 7, 3))
    small(7, 3)
    a("s_barrier")
    T = aTMP
    a(f"v_lshlrev_b32 {vr(T[0])}, 4, {vr(vL31)}")
    a(f"v_add_u32 {vr(T[0])}, {L_CSP}, {vr(T[0])}")
    a(f"ds_read_b128 {vr(aCS,4)}, {vr(T[0])}", lg="cs")
    a(f"ds_read_b128 {vr(aCS+4,4)}, {vr(T[0])} offset:512", lg="cs")
    main(7, 2, 0)
    a(f"""v_and_b32 {vr(T[1])}, 3, {vr(vL)}
          v_cmp_eq_u32 vcc, 1, {vr(T[1])}
          v_cmp_eq_u32 s[76:77], 2, {vr(T[1])}
          v_cmp_eq_u32 s[78:79], 3, {vr(T[1])}""")
    for i in range(4):
        a(f"v_add_f32 {vr(aSQ[0]+i)}, {vr(aSQ[0]+i)}, {vr(aSQ[1]+i)}")
    main(7, 2, 1)
    a(f"""v_cndmask_b32 {vr(T[1])}, {vr(aSQ[0])}, {vr(aSQ[0]+1)}, vcc
          v_cndmask_b32 {vr(T[1])}, {vr(T[1])}, {vr(aSQ[0]+2)}, s[76:77]
          v_cndmask_b32 {vr(T[1])}, {vr(T[1])}, {vr(aSQ[0]+3)}, s[78:79]
          v_mov_b32 {vr(T[2])}, {vr(T[1])}
          v_mul_f32 {vr(T[3])}, {f32(1/512)}, {vr(aSUM)}""")
    main(7, 3, 0)
    a(f"""v_permlane32_swap_b32 {vr(T[1])}, {vr(T[2])}
          v_add_f32 {vr(T[1])}, {vr(T[1])}, {vr(T[2])}
          v_mul_f32 {vr(T[1])}, {f32(1/512)}, {vr(T[1])}
          v_fma_f32 {vr(T[1])}, -{vr(T[3])}, {vr(T[3])}, {vr(T[1])}
          v_max_f32 {vr(T[1])}, 0, {vr(T[1])}
          v_cvt_pk_bf16_f32 {vr(T[1])}, {vr(T[1])}, {vr(T[1])}""")
    main(7, 3, 1)
    a(f"""v_lshlrev_b32 {vr(T[1])}, 16, {vr(T[1])}
          v_add_f32 {vr(T[1])}, {f32(1e-5)}, {vr(T[1])}
          v_cvt_pk_bf16_f32 {vr(T[1])}, {vr(T[1])}, {vr(T[1])}
          v_lshlrev_b32 {vr(T[1])}, 16, {vr(T[1])}
          v_sqrt_f32 {vr(T[1])}, {vr(T[1])}
          v_cvt_pk_bf16_f32 {vr(aXa)}, -{vr(T[3])}, -{vr(T[3])}
          v_cvt_pk_bf16_f32 {vr(aXa+1)}, -{vr(T[3])}, {vr(T[1])}
          v_and_b32 {vr(T[1])}, 0xffff0000, {vr(aXa+1)}
          v_rcp_f32 {vr(aR)}, {vr(T[1])}""")
    a.wait(lg="cs")
    for t in range(2):
        c = aCS + 4 * t
        a(f"""v_add_f32 {vr(c)}, {vr(c)}, {vr(c+1)}
              v_add_f32 {vr(c+2)}, {vr(c+2)}, {vr(c+3)}
              v_add_f32 {vr(c)}, {vr(c)}, {vr(c+2)}""")
    split3(aR, "0", aXa + 2, aXa + 3, T[1], T[2], None)
    split3(aCS, "0", aWa[0], aWa[0] + 1, T[1], T[2], aMASK)
    if isV:
        mfma32(aDR, aXa, aRS, "0")
    a(f"""s_lshl_b32 {sr(sT[0])}, {sr(sWQ)}, 9
          s_add_u32 {sr(sT[0])}, {sr(sT[0])}, {L_STATS - L_CSP}""")
    if isV:
        mfma32(aACC[0], aXa, aWa[0], aACC[0])
    else:
        mfma32(aACC[0], aWa[0], aXa, aACC[0])
    split3(aCS + 4, "0", aWa[1], aWa[1] + 1, T[1], T[2], aMASK)
    a(f"v_add_u32 {vr(T[0])}, {sr(sT[0])}, {vr(T[0])}")
    a(f"ds_write_b128 {vr(T[0])}, {vr(aXa,4)}", lg="st")
    if isV:
        mfma32(aACC[1], aXa, aWa[1], aACC[1])
    else:
        mfma32(aACC[1], aWa[1], aXa, aACC[1])
    for t in range(2):
        for u in range(2):
            b = aACC[t] + 8 * u
            for i in range(8):
                a(f"v_mul_f32 {vr(b+i)}, {vr(b+i)}, {vr(aDR+8*u+i) if isV else vr(aR)}")
            p = aPK + 8 * t + 4 * u
            for i in range(4):
                a(f"v_cvt_pk_bf16_f32 {vr(p+i)}, {vr(b+2*i)}, {vr(b+2*i+1)}")
            if isV:
                if u == 0:
                    a(f"s_add_u32 {sr(sT[3])}, {sr(sT[2])}, {2*t*131072}")
                a(f"buffer_store_dwordx4 {vr(p,4)}, {vr(aVO)}, {sr(R_WS,4)}, {sr(sT[3])} offen offset:{1024+512*u} sc1", vm="kv")
            else:
                a(f"s_add_u32 {sr(sT[3])}, {sr(sT[2])}, {(2*t+u)*131072}")
                a(f"buffer_store_dwordx4 {vr(p,4)}, {vr(aVO)}, {sr(R_WS,4)}, {sr(sT[3])} offen sc1", vm="kv")


sav = (list(a.vm), list(a.lg))
kv_path(False)
a("s_branch L_A2")
a.label("L_AV")
a.vm, a.lg = list(sav[0]), list(sav[1])
kv_path(True)
a.label("L_A2")
stamp(3)
goload = f"buffer_load_dword v20, v21, {sr(R_DBG,4)}, 0 offen sc1"
a(f"""v_and_b32 v21, 15, {vr(vL)}
      v_lshlrev_b32 v21, 2, v21""")
a(goload, vm="go")
a.wait(lg="all")
a("s_barrier")
a(f"""s_lshl_b32 {sr(sT[0])}, {sr(sWQ)}, 2
      s_add_u32 {sr(sT[0])}, {sr(sT[0])}, {sr(sLINE)}""")
a.wait(vm="all")
poll(goload, 1, 20, first_done=True)
set_flag(sT[0], 23)
stamp(4)
a(f"""s_cmp_lg_u32 {sr(sW)}, 0
      s_cbranch_scc1 L_A3
      s_and_b32 {sr(sT[0])}, {sr(sCB)}, 14
      s_lshl_b32 {sr(sT[0])}, {sr(sT[0])}, 7
      s_add_u32 {sr(sT[0])}, {sr(sT[0])}, {WS_FL}
      v_lshrrev_b32 v21, 1, {vr(vL31)}
      v_and_b32 v22, 1, {vr(vL)}
      v_lshlrev_b32 v22, 7, v22
      v_lshl_add_u32 v21, v21, 11, v22
      s_mov_b64 exec, 0xffffffff""")
poll(f"buffer_load_dwordx4 v[28:31], v21, {sr(R_WS,4)}, {sr(sT[0])} offen sc1", 4, 28)
a("s_mov_b64 exec, -1")
a.label("L_A3")
a("s_branch L_ATT")

a.label("L_B")
a.reset_counts()
bVXE, bVXO, bVW = 12, 13, 14
bXA, bSW, bST, bVG, bBIAS = 4, 8, 9, 10, 11
bCA = 2
bACC = [64 + 16 * i for i in range(4)]
bRING, NR = 128, 12
bWF = [176, 180]
bXF = [184, 200]
bCS, bSEL = 216, 220
bKF, bKCS = 16, [24, 28]
bT = [32, 33, 34, 35, 36]
sXB, sWB, sLX, sLW = sT[0], sT[1], sT[2], sT[3]
sA, sB_ = sT[4], sT[5]
a(f"""v_lshrrev_b32 {vr(bT[0])}, 4, {vr(vL)}
      v_and_b32 {vr(bVXE)}, 7, {vr(vL)}
      v_xor_b32 {vr(bVXE)}, {vr(bVXE)}, {vr(bT[0])}
      v_lshlrev_b32 {vr(bVXE)}, 4, {vr(bVXE)}
      v_lshrrev_b32 {vr(bT[0])}, 3, {vr(vL)}
      v_lshl_add_u32 {vr(bVXE)}, {vr(bT[0])}, 10, {vr(bVXE)}
      v_xor_b32 {vr(bVXO)}, 64, {vr(bVXE)}
      s_lshl_b32 {sr(sXB)}, {sr(sRB)}, 2
      s_add_u32 {sr(sXB)}, {sr(sXB)}, {sr(sWQ)}
      s_lshl_b32 {sr(sXB)}, {sr(sXB)}, 15
      s_lshl_b32 {sr(sLX)}, {sr(sWQ)}, 12
      s_lshl_b32 {sr(sLW)}, {sr(sWQ)}, 11
      s_and_b32 {sr(sA)}, {sr(sCB)}, 1
      s_add_u32 {sr(sA)}, {sr(sA)}, 1
      s_lshl_b32 {sr(sA)}, {sr(sA)}, 10
      s_lshr_b32 {sr(sB_)}, {sr(sCB)}, 1
      s_lshl_b32 {sr(sB_)}, {sr(sB_)}, 7
      s_add_u32 {sr(sA)}, {sr(sA)}, {sr(sB_)}
      s_mul_i32 {sr(sWB)}, {sr(sWQ)}, {16*3072}
      s_add_u32 {sr(sWB)}, {sr(sWB)}, {sr(sA)}""")
wdma_voff(bVW, 3072, bT[0])


def issue_chunk(c):
    a(f"""s_add_u32 {sr(sB_)}, {sr(sROT)}, {c}
          s_and_b32 {sr(sB_)}, {sr(sB_)}, 7
          s_lshl_b32 {sr(sA)}, {sr(sB_)}, 7
          s_add_u32 {sr(sA)}, {sr(sA)}, {sr(sXB)}""")
    for i in range(4):
        dma(bVXO if i & 1 else bVXE, R_X, sA, (sLX, c * 16384 + i * 1024), ("c", c))
        if i < 3:
            a(f"s_add_u32 {sr(sA)}, {sr(sA)}, 8192")
    a(f"""s_mul_i32 {sr(sA)}, {sr(sB_)}, {64*3072}
          s_add_u32 {sr(sA)}, {sr(sA)}, {sr(sWB)}""")
    for i in range(2):
        dma(bVW, R_WQKV, sA, (sLW, TOP + (c & 3) * 8192 + i * 1024), ("c", c))
        if i < 1:
            a(f"s_add_u32 {sr(sA)}, {sr(sA)}, {8*3072}")


for c in range(4):
    issue_chunk(c)
other_srds()
sSTR, sCOL, sTILE = 10, 11, 26 - 26 + 2
a(f"""s_sub_u32 {sr(sA)}, {sr(sWQ)}, 1
      s_lshl_b32 {sr(sA)}, {sr(sA)}, 4
      s_add_u32 {sr(sA)}, {sr(sA)}, {sr(sCB)}
      s_cmp_eq_u32 {sr(sWQ)}, 0
      s_cselect_b32 {sr(sTILE)}, {sr(sCB)}, {sr(sA)}
      s_cselect_b32 {sr(R_WSH)}, {sr(P_WQKV)}, {sr(P_W1)}
      s_cselect_b32 {sr(R_WSH+1)}, {sr(P_WQKV+1)}, {sr(P_W1+1)}
      s_cselect_b32 {sr(R_WSH+2)}, {512*3072}, 0
      s_cselect_b32 {sr(sSTR)}, 3072, 0
      s_mov_b32 {sr(R_WSH+3)}, 0x20000
      s_cmp_lg_u32 {sr(sWQ)}, 0
      s_cselect_b32 {sr(R_WSH+2)}, {512*2752}, {sr(R_WSH+2)}
      s_cselect_b32 {sr(sSTR)}, 2752, {sr(sSTR)}
      s_lshl_b32 {sr(sCOL)}, {sr(sTILE)}, 6
      v_lshrrev_b32 {vr(bT[0])}, 2, {vr(vL)}
      v_mul_u32_u24 {vr(bT[0])}, {sr(sSTR)}, {vr(bT[0])}
      v_and_b32 {vr(bVG)}, 3, {vr(vL)}
      v_lshl_add_u32 {vr(bVG)}, {vr(bVG)}, 4, {vr(bT[0])}
      s_lshl_b32 {sr(sSTR)}, {sr(sSTR)}, 4""")
tr_addr128(bCA, bCA + 1, 8, bT[0])
a(f"""s_add_u32 {sr(sA)}, {sr(sLW)}, {TOP}
      v_add_u32 {vr(bCA)}, {sr(sA)}, {vr(bCA)}
      v_add_u32 {vr(bCA+1)}, {sr(sA)}, {vr(bCA+1)}""")
make_sel(bSEL, bT[0])
x_addrs(bXA, bT[0])
tr_addr(bST, 8, 64, bT[0])
a(f"""s_lshl_b32 {sr(sA)}, {sr(sWQ)}, 10
      s_add_u32 {sr(sA)}, {sr(sA)}, {L_STG}
      v_add_u32 {vr(bST)}, {sr(sA)}, {vr(bST)}
      v_lshl_add_u32 {vr(bSW)}, {vr(vL)}, 4, {sr(sA)}""")

sWO = 27 - 27 + sT[6]


def wload(s):
    if s >= 32:
        return
    if s % 4 == 0:
        a(f"""s_add_u32 {sr(sWO)}, {sr(sROT)}, {s//4}
              s_and_b32 {sr(sWO)}, {sr(sWO)}, 7
              s_lshl_b32 {sr(sWO)}, {sr(sWO)}, 2
              s_mul_i32 {sr(sWO)}, {sr(sWO)}, {sr(sSTR)}
              s_add_u32 {sr(sWO)}, {sr(sWO)}, {sr(sCOL)}""")
    else:
        a(f"s_add_u32 {sr(sWO)}, {sr(sWO)}, {sr(sSTR)}")
    a(f"buffer_load_dwordx4 {vr(bRING + 4*(s % NR),4)}, {vr(bVG)}, {sr(R_WSH,4)}, {sr(sWO)} offen", vm=("w", s))


for n in range(8):
    a.wait(vm=("c", n))
    a("s_barrier")
    for t in range(2):
        for u in range(2):
            a(f"ds_read_b64_tr_b16 {vr(bKF+4*t+2*u,2)}, {vr(bCA+t)} offset:{(n&3)*8192+u*512}", lg="k")
    if n < 7:
        if 1 <= n <= 4:
            issue_chunk(n + 3)
        elif n >= 5:
            for s in range(4 * (n - 5), 4 * (n - 5) + 4):
                wload(s)
    a.wait(lg="all")
    for t in range(2):
        mfma16(bKCS[t], bSEL, bKF + 4 * t, "0" if n == 0 else bKCS[t])
a(f"""v_lshlrev_b32 {vr(bT[0])}, 4, {vr(vL31)}
      s_lshl_b32 {sr(sA)}, {sr(sWQ)}, 2
      s_add_u32 {sr(sA)}, {sr(sA)}, {L_CSP}
      v_add_u32 {vr(bT[0])}, {sr(sA)}, {vr(bT[0])}""")
a(f"ds_write_b32 {vr(bT[0])}, {vr(bKCS[0])}", lg="k")
a(f"ds_write_b32 {vr(bT[0])}, {vr(bKCS[1])} offset:512", lg="k")
a.wait(lg="all")
a("s_barrier")
stamp(1)
a(f"""s_cmp_ge_u32 {sr(sTILE)}, 43
      s_cbranch_scc0 L_B1
      s_barrier
      s_branch L_ATT""")
a.label("L_B1")
for s in range(8, 12):
    wload(s)
a(f"""v_lshlrev_b32 {vr(bT[0])}, 1, {vr(vL31)}""")
a(f"buffer_load_ushort {vr(bBIAS)}, {vr(bT[0])}, {sr(R_B1,4)}, {sr(sCOL)} offen", vm="bias")


def stage(s):
    a.wait(vm=("w", s))
    a(f"ds_write_b128 {vr(bSW)}, {vr(bRING + 4*(s % NR),4)}", lg=("sw", s))


def rd_w(s):
    for u in range(2):
        a(f"ds_read_b64_tr_b16 {vr(bWF[s&1]+2*u,2)}, {vr(bST)} offset:{u*256}", lg=("f", s))


def rd_x(s, rt):
    n, j = s // 4, s % 4
    a(f"ds_read_b128 {vr(bXF[s&1]+4*rt,4)}, {vr(bXA+j)} offset:{(n&3)*16384+rt*4096}", lg=("f", s))


stage(0)
rd_w(0)
for rt in range(4):
    rd_x(0, rt)
stage(1)
for s in range(32):
    a.wait(lg=("f", s))
    c = lambda rt: "0" if s == 0 else bACC[rt]
    nxt = s + 1 < 32
    mfma32(bACC[0], bWF[s & 1], bXF[s & 1], c(0))
    if nxt:
        rd_w(s + 1)
    if s >= 1:
        wload(s + NR - 1)
    mfma32(bACC[1], bWF[s & 1], bXF[s & 1] + 4, c(1))
    if nxt:
        rd_x(s + 1, 0)
        rd_x(s + 1, 1)
    mfma16(bCS, bSEL, bWF[s & 1], "0" if s == 0 else bCS)
    mfma32(bACC[2], bWF[s & 1], bXF[s & 1] + 8, c(2))
    if nxt:
        rd_x(s + 1, 2)
        rd_x(s + 1, 3)
        if 12 <= s + 1 < 16:
            a(f"v_add_u32 {vr(bXA+(s+1)%4)}, 0x10000, {vr(bXA+(s+1)%4)}")
    mfma32(bACC[3], bWF[s & 1], bXF[s & 1] + 12, c(3))
    if s + 2 < 32:
        stage(s + 2)
    if s == 2:
        a("s_barrier")
stamp(2)
bXa, bWa, bMASK = 184, 176, 37
a(f"""v_lshlrev_b32 {vr(bT[0])}, 4, {vr(vL31)}
      v_add_u32 {vr(bT[0])}, {L_STATS}, {vr(bT[0])}""")
for rt in range(4):
    a(f"ds_read_b128 {vr(bXa+4*rt,4)}, {vr(bT[0])} offset:{rt*512}", lg="xa")
a.wait(vm="bias")
a(f"""v_add_u32 {vr(bMASK)}, -1, {vr(vHH)}
      v_lshlrev_b32 {vr(bBIAS)}, 16, {vr(bBIAS)}
      s_cmp_eq_u32 {sr(sWQ)}, 0
      s_cselect_b32 {sr(sA)}, 0, -1
      v_and_b32 {vr(bBIAS)}, {sr(sA)}, {vr(bBIAS)}
      v_mov_b32 {vr(bWa+2)}, 0
      v_mov_b32 {vr(bWa+3)}, 0""")
split3(bCS, vr(bBIAS), bWa, bWa + 1, bT[1], bT[2], bMASK)
a.wait(lg="xa")
for rt in range(4):
    mfma32(bACC[rt], bWa, bXa + 4 * rt, bACC[rt])
bPK = 128
a(f"""v_lshlrev_b32 {vr(bT[0])}, 4, {vr(vL)}
      s_cmp_eq_u32 {sr(sWQ)}, 0
      s_cbranch_scc1 L_BQ
      s_mul_i32 {sr(sA)}, {sr(sRB)}, {4*86*1024}
      s_lshl_b32 {sr(sB_)}, {sr(sTILE)}, 11
      s_add_u32 {sr(sA)}, {sr(sA)}, {sr(sB_)}
      s_add_u32 {sr(sA)}, {sr(sA)}, {WS_H}""")
for rt in range(4):
    for u in range(2):
        b = bACC[rt] + 8 * u
        for i in range(8):
            a(f"v_max_f32 {vr(b+i)}, 0, {vr(b+i)}")
        for i in range(8):
            a(f"v_mul_f32 {vr(b+i)}, {vr(b+i)}, {vr(b+i)}")
        p = bPK + 8 * rt + 4 * u
        for i in range(4):
            a(f"v_cvt_pk_bf16_f32 {vr(p+i)}, {vr(b+2*i)}, {vr(b+2*i+1)}")
        a(f"buffer_store_dwordx4 {vr(p,4)}, {vr(bT[0])}, {sr(R_WS,4)}, {sr(sA)} offen offset:{1024*u} sc1", vm="h")
    if rt < 3:
        a(f"s_add_u32 {sr(sA)}, {sr(sA)}, {86*1024}")
a("s_branch L_ATT")
a.label("L_BQ")
a(f"v_add_u32 {vr(bT[0])}, {L_QX}, {vr(bT[0])}")
for rt in range(4):
    a(f"v_and_b32 {vr(bT[1+rt])}, 0xffff0000, {vr(bXa+4*rt+1)}")
for rt in range(4):
    a(f"v_rcp_f32 {vr(bT[1+rt])}, {vr(bT[1+rt])}")
for rt in range(4):
    a(f"v_mul_f32 {vr(bT[1+rt])}, {f32(0.25*math.log2(math.e))}, {vr(bT[1+rt])}")
for rt in range(4):
    for u in range(2):
        b = bACC[rt] + 8 * u
        for i in range(8):
            a(f"v_mul_f32 {vr(b+i)}, {vr(b+i)}, {vr(bT[1+rt])}")
        p = bPK + 8 * rt + 4 * u
        for i in range(4):
            a(f"v_cvt_pk_bf16_f32 {vr(p+i)}, {vr(b+2*i)}, {vr(b+2*i+1)}")
        a(f"ds_write_b128 {vr(bT[0])}, {vr(p,4)} offset:{(u*4+rt)*1024}", lg="q")

a.label("L_ATT")
a.reset_counts()
O = [0, 16, 32, 48]
S = [64, 80]
Q = [96, 100, 104, 108]
KB = [112, 116, 120]
VB = [124, 132, 140]
F = [[148, 164], [180, 196]]
HB = [212, 220]
WF = 228
vIDX, vL16, vVO, vWD, vTA, vGA, vFL = 236, 237, 238, 239, 240, 242, 243
vX, vB2 = 244, 248
sKV, sIT, sH0, sH1, sW2, sRG, sKS, sO = 4, 5, 6, 7, 12, 13, 14, 15
sU, sU2 = sT[0], sT[1]
a(f"""v_lshlrev_b32 {vr(vL16)}, 4, {vr(vL)}
      v_and_b32 {vr(vVO)}, 15, {vr(vL)}
      v_lshlrev_b32 {vr(vVO)}, 4, {vr(vVO)}
      v_lshl_add_u32 {vr(vVO)}, {vr(vHH)}, 8, {vr(vVO)}
      v_mov_b32 {vr(vIDX)}, 0xdddddddd
      s_lshr_b32 {sr(sU)}, {sr(sW)}, 2
      s_lshl_b32 {sr(sU2)}, {sr(sCB)}, 1
      s_add_u32 {sr(sU2)}, {sr(sU2)}, {sr(sU)}
      s_lshl_b32 {sr(sKV)}, {sr(sU2)}, 17
      s_lshl_b32 {sr(sO)}, {sr(sU2)}, 10
      s_lshl_b32 {sr(sU2)}, {sr(sWQ)}, 11
      s_add_u32 {sr(sKV)}, {sr(sKV)}, {sr(sU2)}
      s_and_b32 {sr(sIT)}, {sr(sRB)}, 3
      s_lshl_b32 {sr(sIT)}, {sr(sIT)}, 15
      s_lshl_b32 {sr(sU)}, {sr(sU)}, 12
      s_add_u32 {sr(sU)}, {sr(sU)}, {L_QX}
      s_lshl_b32 {sr(sU2)}, {sr(sWQ)}, 10
      s_add_u32 {sr(sU)}, {sr(sU)}, {sr(sU2)}
      v_add_u32 {vr(vGA)}, {sr(sU)}, {vr(vL16)}""")
for b in range(3):
    for i in range(8):
        a(f"v_mov_b32 {vr(VB[b]+i)}, 0x3f803f80")
for j in range(4):
    for i in range(16):
        a(f"v_mov_b32 {vr(O[j]+i)}, 0")
a.wait(lg="all")
stamp(5)
a("s_barrier")
stamp(6)


def kvload(i):
    if i >= 16:
        return
    b = i % 3
    a(f"s_add_u32 {sr(sU)}, {sr(sKV)}, {sr(sIT)}")
    a(f"buffer_load_dwordx4 {vr(KB[b],4)}, {vr(vL16)}, {sr(R_WS,4)}, {sr(sU)} offen sc1", vm=("k", i))
    a(f"s_mov_b64 exec, {sr(sVM,2)}")
    a(f"buffer_load_dwordx4 {vr(VB[b],4)}, {vr(vVO)}, {sr(R_WS,4)}, {sr(sU)} offen offset:1024 sc1", vm=("v", i))
    a(f"buffer_load_dwordx4 {vr(VB[b]+4,4)}, {vr(vVO)}, {sr(R_WS,4)}, {sr(sU)} offen offset:1536 sc1", vm=("v", i))
    a(f"""s_mov_b64 exec, -1
          s_add_u32 {sr(sIT)}, {sr(sIT)}, 8192
          s_and_b32 {sr(sIT)}, {sr(sIT)}, 0x1ffff""")


kvload(0)
for j in range(4):
    a(f"v_xor_b32 {vr(vFL)}, {j*1024}, {vr(vGA)}")
    a(f"ds_read_b128 {vr(Q[j],4)}, {vr(vFL)}", lg="q")
kvload(1)
if OPT["prio"]:
    a("s_setprio 3")
wdma_voff(vWD, 1024, vFL)
tr_addr128(vTA, vTA + 1, 4, vFL)
a(f"""s_lshl_b32 {sr(sRG)}, {sr(sW)}, 13
      s_add_u32 {sr(sRG)}, {sr(sRG)}, {L_RG}
      v_add_u32 {vr(vTA)}, {sr(sRG)}, {vr(vTA)}
      v_add_u32 {vr(vTA+1)}, {sr(sRG)}, {vr(vTA+1)}
      s_mul_i32 {sr(sKS)}, {sr(sW)}, 11
      s_lshr_b32 {sr(sU)}, {sr(sCB)}, 1
      s_lshl_b32 {sr(sU)}, {sr(sU)}, 7
      s_lshl_b32 {sr(sW2)}, {sr(sKS)}, 14
      s_add_u32 {sr(sW2)}, {sr(sW2)}, {sr(sU)}
      s_lshl_b32 {sr(sU2)}, {sr(sW)}, 16
      s_add_u32 {sr(sT[2])}, {sr(sU2)}, {sr(sU)}
      s_lshl_b32 {sr(sT[3])}, {sr(sW)}, 13
      s_and_b32 {sr(sU)}, {sr(sCB)}, 1
      s_lshl_b32 {sr(sU)}, {sr(sU)}, 1
      s_lshl_b32 {sr(sU2)}, {sr(sRB)}, 2
      s_add_u32 {sr(sU)}, {sr(sU)}, {sr(sU2)}
      s_mul_i32 {sr(sH0)}, {sr(sU)}, {86*1024}
      s_add_u32 {sr(sH0)}, {sr(sH0)}, {WS_H}
      s_add_u32 {sr(sU2)}, {sr(sU2)}, {sr(sWQ)}
      s_lshl_b32 {sr(sU2)}, {sr(sU2)}, 15
      s_add_u32 {sr(sO)}, {sr(sO)}, {sr(sU2)}
      s_add_u32 {sr(sO)}, {sr(sO)}, {WS_O}""")
sWoS, sWoL = sT[2], sT[3]

FF0 = 4
NF = 11


def w2dma(k, p):
    if k >= NF:
        return
    dma(vWD, R_W2, sW2, (sRG, (k & 3) * 2048 + p * 1024), ("w2", k))
    a(f"s_add_u32 {sr(sW2)}, {sr(sW2)}, 8192")


def wodma(p):
    dma(vWD, R_WO, sWoS, (sWoL, p * 1024), "wo")
    a(f"s_add_u32 {sr(sWoS)}, {sr(sWoS)}, 8192")


def hload(k):
    if k >= NF:
        return
    a(f"""s_min_u32 {sr(sU)}, {sr(sKS)}, 85
          s_lshl_b32 {sr(sU)}, {sr(sU)}, 10
          s_add_u32 {sr(sU)}, {sr(sU)}, {sr(sH0)}
          s_add_u32 {sr(sU2)}, {sr(sU)}, {86*1024}""")
    a(f"buffer_load_dwordx4 {vr(HB[k&1],4)}, {vr(vL16)}, {sr(R_WS,4)}, {sr(sU)} offen sc1", vm=("h", k))
    a(f"buffer_load_dwordx4 {vr(HB[k&1]+4,4)}, {vr(vL16)}, {sr(R_WS,4)}, {sr(sU2)} offen sc1", vm=("h", k))
    a(f"s_add_u32 {sr(sKS)}, {sr(sKS)}, 1")


def w2read(k, ct):
    for u in range(2):
        a(f"ds_read_b64_tr_b16 {vr(WF+4*ct+2*u,2)}, {vr(vTA+ct)} offset:{(k&3)*2048+u*1024}", lg=("wf", k, ct))


f2load = f"buffer_load_dwordx4 {vr(WF,4)}, {vr(vFL)}, {sr(R_WS,4)}, {sr(sU2)} offen offset:16 sc1"


def f2_signal():
    a(f"""s_cmp_lt_u32 {sr(sW)}, 4
          s_cbranch_scc1 L_nof2
          s_lshl_b32 {sr(sU)}, {sr(sW)}, 2
          s_add_u32 {sr(sU)}, {sr(sU)}, {sr(sLINE)}
          s_waitcnt vmcnt(0)""")
    sv = list(a.vm)
    set_flag(sU, vFL)
    a.vm = sv
    a.label("L_nof2")


def f2_check():
    a(f"""v_and_b32 {vr(vFL)}, 15, {vr(vL)}
          v_lshlrev_b32 {vr(vFL)}, 7, {vr(vFL)}
          s_and_b32 {sr(sU2)}, {sr(sLINE)}, 0xfffff800
          s_mov_b64 exec, 0xffff""")
    poll(f2load, 4, WF)
    a("s_mov_b64 exec, -1")
    a.vm = []


extras = {}


def put(it, tile, slot, fn):
    extras.setdefault((it, tile, slot), []).append(fn)


for it in range(16):
    put(it, 0, 1, lambda it=it: kvload(it + 2))
for p in range(8):
    put(p // 4, p % 4, 2, lambda p=p: wodma(p))
for k in range(3):
    for p in range(2):
        put(2, k + 1, 2 * p, lambda k=k, p=p: w2dma(k, p))
put(FF0 - 1, 0, 0, f2_check)
put(FF0 - 1, 0, 2, lambda: hload(0))
put(FF0 - 1, 3, 0, lambda: (a.wait(vm=("w2", 0)), w2read(0, 0)))
for k in range(NF):
    it = FF0 + k
    put(it, 0, 0, lambda k=k: w2read(k, 1))
    put(it, 0, 2, lambda k=k: hload(k + 1))
    put(it, 1, 0, lambda k=k: w2dma(k + 3, 0))
    put(it, 1, 2, lambda k=k: w2dma(k + 3, 1))
    if k + 1 < NF:
        put(it, 3, 0, lambda k=k: (a.wait(vm=("w2", k + 1)), w2read(k + 1, 0)))


def final_loads():
    a(f"""s_lshl_b32 {sr(sU)}, {sr(sRB)}, 1
          s_and_b32 {sr(sU2)}, {sr(sCB)}, 1
          s_add_u32 {sr(sU)}, {sr(sU)}, {sr(sU2)}
          s_lshl_b32 {sr(sU)}, {sr(sU)}, 3
          s_add_u32 {sr(sU)}, {sr(sU)}, {sr(sW)}
          s_lshl_b32 {sr(sU)}, {sr(sU)}, 13
          s_lshr_b32 {sr(sU2)}, {sr(sCB)}, 1
          s_lshl_b32 {sr(sU2)}, {sr(sU2)}, 7
          s_add_u32 {sr(sH1)}, {sr(sU)}, {sr(sU2)}
          v_and_b32 {vr(vFL)}, 7, {vr(vL)}
          v_lshlrev_b32 {vr(vFL)}, 4, {vr(vFL)}""")
    a(f"buffer_load_dwordx4 {vr(vB2,4)}, {vr(vFL)}, {sr(R_B2,4)}, {sr(sU2)} offen", vm="fin")
    a(f"""v_lshrrev_b32 {vr(vWD)}, 3, {vr(vL)}
          v_lshl_add_u32 {vr(vWD)}, {vr(vWD)}, 10, {vr(vFL)}""")
    a(f"buffer_load_dwordx4 {vr(vX,4)}, {vr(vWD)}, {sr(R_X,4)}, {sr(sH1)} offen", vm="fin")


put(14, 2, 0, final_loads)
if OPT["prio"]:
    put(13, 3, 2, lambda: a("s_setprio 2"))
    put(15, 1, 2, lambda: a("s_setprio 1"))
    put(15, 3, 0, lambda: a("s_setprio 0"))


def run_extras(it, tile, slot):
    for fn in extras.get((it, tile, slot), []):
        fn()


def exps(b, lo, hi):
    for i in range(lo, hi):
        a(f"v_exp_f32 {vr(b+i)}, {vr(b+i)}")


f2_signal()
a.wait(vm=("k", 0), lg="q")
mfma32(S[0], KB[0], Q[0], "0")
for t in range(64):
    it, j = t // 4, t % 4
    X, Y = S[t & 1], S[(t + 1) & 1]
    exps(X, 0, 2)
    if t > 0:
        pit, pj = (t - 1) // 4, (t - 1) % 4
        smf(O[pj], VB[pit % 3] + 4, Y + 8, vIDX)
    run_extras(it, j, 0)
    exps(X, 2, 5)
    if t < 63:
        nit, nj = (t + 1) // 4, (t + 1) % 4
        if nj == 0:
            a.wait(vm=("k", nit))
        mfma32(Y, KB[nit % 3], Q[nj], "0")
    run_extras(it, j, 1)
    exps(X, 5, 10)
    if j == 0:
        a.wait(vm=("v", it))
    smf(O[j], VB[it % 3], X, vIDX)
    run_extras(it, j, 2)
    exps(X, 10, 14)
    k = it - FF0
    if 0 <= k < NF:
        ct, rt = j >> 1, j & 1
        if j == 0:
            a.wait(vm=("h", k), lg=("wf", k, 0))
        if j == 2:
            a.wait(lg=("wf", k, 1))
        mfma32(F[rt][ct], WF + 4 * ct, HB[k & 1] + 4 * rt, "0" if k == 0 else F[rt][ct])
    exps(X, 14, 16)
smf(O[3], VB[15 % 3] + 4, S[1] + 8, vIDX)
stamp(7)

T = [64 + i for i in range(32)]
a(f"""v_add_u32 {vr(T[0])}, {sr(sRG)}, {vr(vL16)}
      v_lshl_add_u32 {vr(T[1])}, {vr(vL)}, 2, {sr(sRG)}""")
for j in range(1, 4):
    o = (j - 1) * 2304
    a(f"ds_write_b128 {vr(T[0])}, {vr(O[j],4)} offset:{o}", lg="c")
    a(f"ds_write_b128 {vr(T[0])}, {vr(O[j]+4,4)} offset:{o+1024}", lg="c")
    a(f"ds_write_b32 {vr(T[1])}, {vr(O[j]+8)} offset:{o+2048}", lg="c")
a.wait(vm="wo", lg="all")
a("s_barrier")
for j in range(1, 4):
    o = (j - 1) * 2304
    a(f"""v_xor_b32 {vr(T[2])}, {j*8192}, {vr(T[0])}
          v_xor_b32 {vr(T[3])}, {j*8192}, {vr(T[1])}""")
    a(f"ds_read_b128 {vr(O[j],4)}, {vr(T[2])} offset:{o}", lg=("c", j))
    a(f"ds_read_b128 {vr(O[j]+4,4)}, {vr(T[2])} offset:{o+1024}", lg=("c", j))
    a(f"ds_read_b32 {vr(O[j]+8)}, {vr(T[3])} offset:{o+2048}", lg=("c", j))
for j in range(1, 4):
    a.wait(lg=("c", j))
    for i in range(9):
        a(f"v_add_f32 {vr(O[0]+i)}, {vr(O[0]+i)}, {vr(O[j]+i)}")
a(f"""v_add_f32 {vr(T[2])}, |{vr(O[0])}|, |{vr(O[0]+1)}|
      v_add_f32 {vr(T[3])}, |{vr(O[0]+2)}|, |{vr(O[0]+3)}|
      v_add_f32 {vr(T[2])}, |{vr(O[0]+4)}|, {vr(T[2])}
      v_add_f32 {vr(T[3])}, |{vr(O[0]+5)}|, {vr(T[3])}
      v_add_f32 {vr(T[2])}, |{vr(O[0]+6)}|, {vr(T[2])}
      v_add_f32 {vr(T[3])}, |{vr(O[0]+7)}|, {vr(T[3])}
      v_add_f32 {vr(T[2])}, {vr(T[2])}, {vr(T[3])}
      v_cmp_nle_f32 vcc, {f32(2.0**-64)}, {vr(O[0]+8)}
      s_mov_b64 s[76:77], vcc
      v_cmp_nge_f32 vcc, {f32(2.0**64)}, {vr(O[0]+8)}
      s_or_b64 s[76:77], s[76:77], vcc
      v_cmp_nge_f32 vcc, {f32(2.0**126)}, {vr(T[2])}
      s_or_b64 s[76:77], s[76:77], vcc""")
if OPT["force_slow"]:
    a("s_branch L_SLOW")
else:
    a("s_cbranch_scc1 L_SLOW")
a.label("L_NORM")
a(f"v_rcp_f32 {vr(T[2])}, {vr(O[0]+8)}")
for i in range(8):
    a(f"v_mul_f32 {vr(O[0]+i)}, {vr(O[0]+i)}, {vr(T[2])}")
for i in range(4):
    a(f"v_cvt_pk_bf16_f32 {vr(T[4]+i)}, {vr(O[0]+2*i)}, {vr(O[0]+2*i+1)}")
a(f"buffer_store_dwordx4 {vr(T[4],4)}, {vr(vL16)}, {sr(R_WS,4)}, {sr(sO)} offen sc1", vm="o")
G = 16
XU = 24
PR = 96
vRow, vCg, vPA, vPR = T[8], T[9], T[13], T[14]
a(f"""s_lshl_b32 {sr(sU)}, {sr(sW)}, 3
      v_lshrrev_b32 {vr(vRow)}, 3, {vr(vL)}
      v_add_u32 {vr(vRow)}, {sr(sU)}, {vr(vRow)}
      v_and_b32 {vr(vCg)}, 7, {vr(vL)}
      s_and_b32 {sr(sU)}, {sr(sCB)}, 1
      s_lshl_b32 {sr(sU)}, {sr(sU)}, 10
      s_add_u32 {sr(sU)}, {sr(sU)}, {L_STATS}
      v_lshl_add_u32 {vr(T[11])}, {vr(vRow)}, 4, {sr(sU)}""")
a(f"ds_read_b32 {vr(T[12])}, {vr(T[11])} offset:4", lg="sd")
a(f"""s_mul_i32 {sr(sU)}, {sr(sW)}, 8704
      s_add_u32 {sr(sU)}, {sr(sU)}, {L_PB}
      v_mul_u32_u24 {vr(vPA)}, 272, {vr(vL31)}
      v_lshl_add_u32 {vr(vPA)}, {vr(vHH)}, 4, {vr(vPA)}
      v_add_u32 {vr(vPA)}, {sr(sU)}, {vr(vPA)}
      s_barrier""")


def fwrite(rt):
    for ct in range(2):
        for g in range(4):
            a(f"ds_write_b128 {vr(vPA)}, {vr(F[rt][ct]+4*g,4)} offset:{(32*ct+8*g)*4}", lg="p")


def fread_gate():
    for w in range(6):
        for h in range(2):
            d = G + 4 * h if w == 0 else PR + 8 * (w - 1) + 4 * h
            a(f"ds_read_b128 {vr(d,4)}, {vr(vPR)} offset:{w*8704+h*16}", lg=("p", w))
    for w in range(1, 8):
        a.wait(lg=("p", w))
        b = PR + 8 * ((w - 1) % 5)
        for i in range(8):
            a(f"v_add_f32 {vr(G+i)}, {vr(G+i)}, {vr(b+i)}")
        if w + 5 < 8:
            for h in range(2):
                a(f"ds_read_b128 {vr(b+4*h,4)}, {vr(vPR)} offset:{(w+5)*8704+h*16}", lg=("p", w + 5))


def gate():
    for i in range(8):
        a(f"v_fma_f32 {vr(G+i)}, {vr(G+i)}, {vr(T[12])}, {vr(T[16]+i)}")
    for i in range(8):
        a(f"v_mul_f32 {vr(T[16]+i)}, {f32(-math.log2(math.e))}, {vr(G+i)}")
    for i in range(8):
        a(f"v_exp_f32 {vr(T[16]+i)}, {vr(T[16]+i)}")
    for i in range(8):
        a(f"v_add_f32 {vr(T[16]+i)}, 1.0, {vr(T[16]+i)}")
    for i in range(8):
        a(f"v_rcp_f32 {vr(T[16]+i)}, {vr(T[16]+i)}")
    for i in range(8):
        a(f"v_mul_f32 {vr(G+i)}, {vr(G+i)}, {vr(T[16]+i)}")


fwrite(0)
a.wait(vm="fin")
for i in range(4):
    a(f"""v_lshlrev_b32 {vr(XU+2*i)}, 16, {vr(vX+i)}
          v_and_b32 {vr(XU+2*i+1)}, 0xffff0000, {vr(vX+i)}
          v_lshlrev_b32 {vr(T[16]+2*i)}, 16, {vr(vB2+i)}
          v_and_b32 {vr(T[16]+2*i+1)}, 0xffff0000, {vr(vB2+i)}""")
a.wait(lg="sd")
a(f"""v_and_b32 {vr(T[12])}, 0xffff0000, {vr(T[12])}
      v_rcp_f32 {vr(T[12])}, {vr(T[12])}
      v_mul_u32_u24 {vr(T[10])}, 272, {vr(vRow)}
      v_mul_f32 {vr(T[12])}, {vr(T[12])}, {vr(T[12])}
      v_lshl_add_u32 {vr(T[10])}, {vr(vCg)}, 5, {vr(T[10])}
      v_add_u32 {vr(vGA)}, {L_PB}, {vr(T[10])}
      s_lshr_b32 {sr(sU2)}, {sr(sW)}, 2
      s_mul_i32 {sr(sU2)}, {sr(sU2)}, 8704
      v_subrev_u32 {vr(vPR)}, {sr(sU2)}, {vr(vGA)}
      s_lshl_b32 {sr(sU)}, {sr(sW)}, 2
      s_add_u32 {sr(sU)}, {sr(sU)}, {sr(sLINE)}
      s_add_u32 {sr(sU)}, {sr(sU)}, 32""")
a.wait(lg="all")
a(f"""s_barrier
      s_cmp_ge_u32 {sr(sW)}, 4
      s_cbranch_scc1 L_R1""")
fread_gate()
a.label("L_R1")
a("s_barrier")
fwrite(1)
a.wait(vm="all")
set_flag(sU, T[2])
stamp(8)
a.wait(lg="all")
a(f"""s_barrier
      s_cmp_lt_u32 {sr(sW)}, 4
      s_cbranch_scc1 L_R2""")
fread_gate()
a("s_barrier")
gate()
a("s_branch L_FIN")
a.label("L_R2")
gate()
a("s_barrier")

a.reset_counts()
OF = 96
WR = 160
AC = [32, 48]
vA0, vA1, vPW, vPF = 192, 193, 194, 195
tr_addr128(vA0, vA1, 4, T[2])
a(f"""s_lshr_b32 {sr(sU)}, {sr(sW)}, 1
      s_lshl_b32 {sr(sU2)}, {sr(sU)}, 15
      v_add_u32 {vr(vA0)}, {sr(sU2)}, {vr(vA0)}
      v_add_u32 {vr(vA1)}, {sr(sU2)}, {vr(vA1)}""")


def wo_read(i):
    if i >= 16:
        return
    for ct in range(2):
        for u in range(2):
            a(f"ds_read_b64_tr_b16 {vr(WR+8*(i&3)+4*ct+2*u,2)}, {vr(vA0+ct)} offset:{i*2048+u*1024}", lg=("wo", i))


for i in range(3):
    wo_read(i)
a(f"""s_and_b32 {sr(sT[2])}, {sr(sW)}, 1
      s_mul_i32 {sr(sU2)}, {sr(sU)}, 17408
      s_mul_i32 {sr(sT[3])}, {sr(sT[2])}, {32*272}
      s_add_u32 {sr(sU2)}, {sr(sU2)}, {sr(sT[3])}
      s_add_u32 {sr(sU2)}, {sr(sU2)}, {L_PB}
      v_mul_u32_u24 {vr(vPW)}, 272, {vr(vL31)}
      v_lshl_add_u32 {vr(vPW)}, {vr(vHH)}, 4, {vr(vPW)}
      v_add_u32 {vr(vPW)}, {sr(sU2)}, {vr(vPW)}
      s_and_b32 {sr(sT[3])}, {sr(sCB)}, 1
      s_lshl_b32 {sr(sT[3])}, {sr(sT[3])}, 1
      s_add_u32 {sr(sT[2])}, {sr(sT[2])}, {sr(sT[3])}
      s_and_b32 {sr(sU2)}, {sr(sLINE)}, 0xfffff800
      s_lshl_b32 {sr(sT[3])}, {sr(sU)}, 10
      s_add_u32 {sr(sU2)}, {sr(sU2)}, {sr(sT[3])}
      s_lshl_b32 {sr(sT[3])}, {sr(sT[2])}, 2
      s_add_u32 {sr(sU2)}, {sr(sU2)}, {sr(sT[3])}
      v_bfe_u32 {vr(vPF)}, {vr(vL)}, 1, 3
      v_lshlrev_b32 {vr(vPF)}, 7, {vr(vPF)}
      v_and_b32 {vr(T[2])}, 1, {vr(vL)}
      v_lshl_add_u32 {vr(vPF)}, {vr(T[2])}, 4, {vr(vPF)}
      s_lshl_b32 {sr(sT[3])}, {sr(sRB)}, 2
      s_add_u32 {sr(sT[2])}, {sr(sT[2])}, {sr(sT[3])}
      s_lshl_b32 {sr(sT[2])}, {sr(sT[2])}, 15
      s_lshl_b32 {sr(sT[3])}, {sr(sU)}, 14
      s_add_u32 {sr(sT[2])}, {sr(sT[2])}, {sr(sT[3])}
      s_add_u32 {sr(sT[2])}, {sr(sT[2])}, {WS_O}
      s_mov_b64 exec, 0xffff""")
poll(f"buffer_load_dword {vr(T[2])}, {vr(vPF)}, {sr(R_WS,4)}, {sr(sU2)} offen offset:32 sc1", 1, T[2])
a("s_mov_b64 exec, -1")
stamp(9)
for i in range(16):
    a(f"buffer_load_dwordx4 {vr(OF+4*i,4)}, {vr(vL16)}, {sr(R_WS,4)}, {sr(sT[2])} offen offset:{(i&3)*1024} sc1", vm=("of", i))
    if i & 3 == 3 and i < 15:
        a(f"s_add_u32 {sr(sT[2])}, {sr(sT[2])}, 4096")
for i in range(16):
    a.wait(vm=("of", i), lg=("wo", i))
    mfma32(AC[0], WR + 8 * (i & 3), OF + 4 * i, "0" if i == 0 else AC[0])
    wo_read(i + 3)
    mfma32(AC[1], WR + 8 * (i & 3) + 4, OF + 4 * i, "0" if i == 0 else AC[1])
for ct in range(2):
    for g in range(4):
        a(f"ds_write_b128 {vr(vPW)}, {vr(AC[ct]+4*g,4)} offset:{(32*ct+8*g)*4}", lg="p")
a.wait(lg="all")
a.label("L_FIN")
a("s_barrier")
a.reset_counts()
for kh in range(2):
    for h in range(2):
        a(f"ds_read_b128 {vr(T[0]+8*kh+4*h,4)}, {vr(vGA)} offset:{kh*17408+h*16}", lg="p")
a.wait(lg="all")
for i in range(8):
    a(f"v_add_f32 {vr(T[i])}, {vr(T[i])}, {vr(T[8+i])}")
for i in range(8):
    a(f"v_fma_f32 {vr(T[i])}, {vr(T[i])}, {vr(G+i)}, {vr(XU+i)}")
for i in range(4):
    a(f"v_cvt_pk_bf16_f32 {vr(T[16]+i)}, {vr(T[2*i])}, {vr(T[2*i+1])}")
a(f"buffer_store_dwordx4 {vr(T[16],4)}, {vr(vWD)}, {sr(R_OUT,4)}, {sr(sH1)} offen")
if OPT["stamps"]:
    stamp(10)
    a("s_memtime s[8:9]")
    a(f"""s_waitcnt lgkmcnt(0)
          s_sub_u32 s0, s8, s0
          s_sub_u32 {sr(sU)}, {sr(sLINE)}, {WS_FL}
          s_lshl_b32 {sr(sU)}, {sr(sU)}, 3
          s_lshl_b32 {sr(sU2)}, {sr(sW)}, 7
          s_add_u32 {sr(sU)}, {sr(sU)}, {sr(sU2)}
          s_add_u32 {sr(sU)}, {sr(sU)}, {WS_TS}
          s_mov_b64 exec, 1""")
    for i in range(11):
        a(f"v_mov_b32 {vr(i)}, {sr(sSTAMP+2*i)}")
    a("v_mov_b32 v11, s0")
    for i in range(3):
        a(f"buffer_store_dwordx4 {vr(4*i,4)}, off, {sr(R_WS,4)}, {sr(sU)} offset:{16*i}")
if OPT.get("amp") is not None:
    i = OPT["amp"]
    a(f"""s_cmp_lg_u32 {sr(sW)}, {OPT.get('ampw', 0)}
          s_cbranch_scc1 L_end
          s_sub_u32 s4, {sr(sSTAMP+2*i)}, {sr(sSTAMP)}
          s_lshl_b32 s4, s4, 2
          s_min_u32 s4, s4, 100000""")
    a.label("L_amp")
    a(f"""s_memrealtime s[6:7]
          s_waitcnt lgkmcnt(0)
          s_sub_u32 s6, s6, {sr(sSTAMP+20)}
          s_cmp_lt_u32 s6, s4
          s_cbranch_scc1 L_amp""")
a("s_endpgm")

a.label("L_SLOW")
a.reset_counts()
C = 16
M = T[2]
a(f"""s_nop 7
      s_lshr_b32 {sr(sU)}, {sr(sKV)}, 17
      s_lshl_b32 {sr(sU)}, {sr(sU)}, 17
      s_mov_b32 {sr(sU2)}, 64
      v_mov_b32 {vr(M)}, 0xff800000""")
a.label("L_S1")
a(f"""buffer_load_dwordx4 {vr(KB[0],4)}, {vr(vL16)}, {sr(R_WS,4)}, {sr(sU)} offen sc1
      s_waitcnt vmcnt(0)""")
mfma32(S[1], KB[0], Q[0], "0")
for i in range(8):
    a(f"v_max3_f32 {vr(M)}, {vr(M)}, {vr(S[1]+2*i)}, {vr(S[1]+2*i+1)}")
a(f"""s_add_u32 {sr(sU)}, {sr(sU)}, 2048
      s_sub_u32 {sr(sU2)}, {sr(sU2)}, 1
      s_cmp_lg_u32 {sr(sU2)}, 0
      s_cbranch_scc1 L_S1
      v_mov_b32 {vr(T[3])}, {vr(M)}
      s_nop 1
      v_permlane32_swap_b32 {vr(M)}, {vr(T[3])}
      v_max_f32 {vr(M)}, {vr(M)}, {vr(T[3])}
      s_sub_u32 {sr(sU)}, {sr(sU)}, 0x20000
      s_mov_b32 {sr(sU2)}, 64""")
for i in range(16):
    a(f"v_sub_f32 {vr(C+i)}, 0, {vr(M)}")
    a(f"v_mov_b32 {vr(O[0]+i)}, 0")
a.label("L_S2")
a(f"""buffer_load_dwordx4 {vr(KB[0],4)}, {vr(vL16)}, {sr(R_WS,4)}, {sr(sU)} offen sc1
      s_mov_b64 exec, {sr(sVM,2)}
      buffer_load_dwordx4 {vr(VB[0],4)}, {vr(vVO)}, {sr(R_WS,4)}, {sr(sU)} offen offset:1024 sc1
      buffer_load_dwordx4 {vr(VB[0]+4,4)}, {vr(vVO)}, {sr(R_WS,4)}, {sr(sU)} offen offset:1536 sc1
      s_mov_b64 exec, -1
      s_waitcnt vmcnt(0)""")
mfma32(S[1], KB[0], Q[0], C)
exps(S[1], 0, 16)
smf(O[0], VB[0], S[1], vIDX)
smf(O[0], VB[0] + 4, S[1] + 8, vIDX)
a(f"""s_add_u32 {sr(sU)}, {sr(sU)}, 2048
      s_sub_u32 {sr(sU2)}, {sr(sU2)}, 1
      s_cmp_lg_u32 {sr(sU2)}, 0
      s_cbranch_scc1 L_S2
      s_nop 15
      s_branch L_NORM""")
a.label("L_end")
a("s_endpgm")

ref = open(__file__.rsplit("/", 1)[0] + "/../cdna_kernels/" + NAME + ".s.ref").read().split("\n")
head = [l for l in ref if l.startswith(";") and "@launch" not in l]
out = "\n".join(head) + f"""
; @launch grid=(256,1,1) block=(512,1,1) lds=163840
.amdgcn_target "amdgcn-amd-amdhsa--gfx950"
.text
.globl {NAME}_kernel
.p2align 8
.type {NAME}_kernel,@function
""" + a.text() + f""".section .rodata,"a"
.p2align 6
.amdhsa_kernel {NAME}_kernel
  .amdhsa_next_free_vgpr 256
  .amdhsa_next_free_sgpr 102
  .amdhsa_accum_offset 256
  .amdhsa_group_segment_fixed_size 0
  .amdhsa_kernarg_size 88
  .amdhsa_user_sgpr_count 2
  .amdhsa_user_sgpr_kernarg_segment_ptr 1
  .amdhsa_system_sgpr_workgroup_id_x 1
  .amdhsa_float_denorm_mode_32 3
.end_amdhsa_kernel
"""
open(sys.argv[1], "w").write(out)
if OPT.get("pads"):
    for p in a.pads:
        print("pad", p)
```

```python
import sys, math, struct
from asmlib import Asm, vr, sr

NAME = "recurrent_scan__softmax_full_mha__dense_activation_squared_relu__prompt"
OPT = dict(stamps=0, rot=4, force_slow=0, prio=1, spin=1 << 18, up=3, touch=1, f2it=7)
for arg in sys.argv[2:]:
    k, v = arg.split("=")
    OPT[k] = int(v, 0)

WS_KV = 0
WS_H = 4 << 20
WS_O = WS_H + 64 * 86 * 1024
WS_FL = WS_O + (2 << 20)
WS_TS = 13 << 20
WS_SIZE = 14 << 20
SLOT = 24576
L_WQ = 49152
L_QX = 147456
L_STATS = 155648
L_CSP = 157696
L_FLG = 160768
L_W1 = [81920 + 12288 * i for i in range(5)] + [12288 * i for i in range(3)]
L_CMB = 98304
L_B2 = 0
L_WO = 24576
L_PART = 90112
P_X, P_WQKV, P_WO, P_W1, P_B1, P_W2, P_B2, P_OUT, P_DBG, P_WS = 4, 6, 8, 12, 14, 16, 18, 20, 22, 24
R_X, R_WQKV, R_WO, R_W1, R_W2, R_OUT, R_WS, R_B1, R_B2, R_DBG = 28, 32, 36, 40, 44, 48, 52, 56, 60, 64
sW, sWQ, sRB, sCB, sROT = 68, 69, 70, 71, 72
sT = [73, 74, 75, 76, 77, 78, 79]
sVM = 26
sLINE = 3
sT0 = 10
sSTAMP = 80
vL, vHH, vL31, vTR = 252, 253, 254, 255


def f32(x):
    return "0x%08x" % struct.unpack("<I", struct.pack("<f", x))[0]


a = Asm()


STSETS = {
    0: dict(H=["start", "bar8", "x", "f1seen", "bar11", "x", "attst", "attend", "g1", "f3seen", "end"],
            C=["start", "c0", "c7", "kvst", "f1sent", "ffnend", "attst", "attend", "g1", "x", "end"]),
    1: dict(H=["start", "bar8", "h8b", "h9", "h10", "h11", "bar11", "x", "f1seen", "attst", "end"],
            C=["start", "c0", "c7", "kvst", "c8b", "c9", "f1sent", "c10", "c11", "attst", "end"]),
    2: dict(H=["start", "attend", "barc", "ost", "a6", "g1", "g2", "f3seen", "g3", "wost", "end"],
            C=["start", "attend", "barc", "ost", "a6", "g1", "g2", "pw", "g3", "fin", "end"]),
    3: dict(H=["start", "hk", "hi2", "hw3", "ha3", "hi3", "hw4", "ha4", "hi4", "hup", "end"],
            C=["start", "c0", "ca3", "cp3", "ca4", "cp4", "ca5", "cp5", "cp2", "c7", "end"]),
    4: dict(H=["start", "h9", "h9a", "h9b", "h9c", "h10", "h10a", "h10b", "h10c", "h11", "end"],
            C=["start", "i27", "i33", "i39", "i45", "i49", "i57", "i65", "i73", "i90", "end"]),
}
role = ["HC"]


def stamp(name):
    if not OPT["stamps"]:
        return
    st = STSETS[OPT.get("st", 0)]
    idx = {st[r].index(name) for r in role[0] if name in st[r]}
    for i in idx:
        a(f"{'s_memtime' if OPT['stamps'] == 2 else 's_memrealtime'} {sr(sSTAMP + 2*i, 2)}")


def cop(c, n):
    return c if isinstance(c, str) else vr(c, n)


def mfma32(d, x, y, c):
    a(f"v_mfma_f32_32x32x16_bf16 {vr(d,16)}, {vr(x,4)}, {vr(y,4)}, {cop(c,16)}")


def mfma16(d, x, y, c):
    a(f"v_mfma_f32_16x16x32_bf16 {vr(d,4)}, {vr(x,4)}, {vr(y,4)}, {cop(c,4)}")


def mfma4(d, x, c):
    a(f"v_mfma_f32_4x4x4_16b_bf16 {vr(d,4)}, {vr(x,2)}, {vr(x,2)}, {cop(c,4)}")


def smf(d, x, y, idx):
    a(f"v_smfmac_f32_32x32x32_bf16 {vr(d,16)}, {vr(x,4)}, {vr(y,8)}, {vr(idx)}")


def srd(r, p, n):
    a(f"""s_mov_b32 {sr(r)}, {sr(p)}
          s_mov_b32 {sr(r+1)}, {sr(p+1)}
          s_mov_b32 {sr(r+2)}, {n}
          s_mov_b32 {sr(r+3)}, 0x20000""")


filler, fill = [], [0]


def dma(voff, r, soff, lds, tag, pre=None):
    a(f"s_add_u32 m0, {sr(lds[0])}, {lds[1]}")
    if pre:
        a(pre)
    a(f"buffer_load_dwordx4 {vr(voff)}, {sr(r,4)}, {sr(soff)} offen lds", vm=tag)
    for _ in range(fill[0]):
        if filler:
            a(filler.pop(0))


class Ptr:
    def __init__(self, reg, base=0):
        self.reg, self.base = reg, base

    def off(self, addr):
        if not 0 <= addr - self.base <= 65535:
            a(f"v_add_u32 {vr(self.reg)}, {(addr - self.base) & 0xffffffff}, {vr(self.reg)}")
            self.base = addr
        return addr - self.base


def tr(dst, p, addr, tag):
    o = p.off(addr)
    a(f"ds_read_b64_tr_b16 {vr(dst,2)}, {vr(p.reg)} offset:{o}", lg=tag)


def rd128(dst, p, addr, tag):
    o = p.off(addr)
    a(f"ds_read_b128 {vr(dst,4)}, {vr(p.reg)} offset:{o}", lg=tag)


def split3_ops(x, bias, d0, d1, t0, t1, mask):
    l = [f"v_cvt_pk_bf16_f32 {vr(t0)}, {vr(x)}, {vr(x)}",
         f"v_lshlrev_b32 {vr(t0)}, 16, {vr(t0)}",
         f"v_sub_f32 {vr(t0)}, {vr(x)}, {vr(t0)}",
         f"v_cvt_pk_bf16_f32 {vr(d0)}, {vr(x)}, {vr(t0)}",
         f"v_and_b32 {vr(t1)}, 0xffff0000, {vr(d0)}",
         f"v_sub_f32 {vr(t1)}, {vr(t0)}, {vr(t1)}",
         f"v_cvt_pk_bf16_f32 {vr(d1)}, {vr(t1)}, {bias}"]
    if mask is not None:
        l += [f"v_and_b32 {vr(d0)}, {vr(d0)}, {vr(mask)}", f"v_and_b32 {vr(d1)}, {vr(d1)}, {vr(mask)}"]
    return l


def emit(l):
    for x in l:
        a(x)


uid = [0]


def poll(load, nreg, reg, first_done=False):
    uid[0] += 1
    L, D, C = f"L_poll{uid[0]}", f"L_polld{uid[0]}", f"L_pollc{uid[0]}"
    a(f"s_mov_b32 {sr(sT[6])}, {OPT['spin']}")
    if first_done:
        a(f"s_branch {C}")
    a.label(L)
    a.raw(load)
    a("s_waitcnt vmcnt(0)")
    a.label(C)
    if nreg == 4:
        a(f"""v_min_u32 {vr(reg)}, {vr(reg)}, {vr(reg+1)}
              v_min3_u32 {vr(reg)}, {vr(reg)}, {vr(reg+2)}, {vr(reg+3)}""")
    a(f"""v_cmp_eq_u32 vcc, 0, {vr(reg)}
          s_nop 1
          s_cmp_eq_u64 vcc, 0
          s_cbranch_scc1 {D}
          s_sub_u32 {sr(sT[6])}, {sr(sT[6])}, 1
          s_cmp_lg_u32 {sr(sT[6])}, 0
          s_cbranch_scc1 {L}""")
    a.label(D)


def set_flag(soff, tmp, imm=0):
    sv = list(a.vm)
    a(f"""s_mov_b64 exec, 1
          v_mov_b32 {vr(tmp)}, 1
          buffer_store_dword {vr(tmp)}, off, {sr(R_WS,4)}, {sr(soff)} offset:{imm} sc1
          s_mov_b64 exec, -1""")
    a.vm = sv


def tr_addr(dst, hmul, rowbytes, tmp):
    a(f"""v_bfe_u32 {vr(tmp)}, {vr(vL)}, 2, 2
          v_mad_u32_u24 {vr(tmp)}, {vr(vHH)}, {hmul}, {vr(tmp)}
          v_mul_u32_u24 {vr(tmp)}, {rowbytes}, {vr(tmp)}
          v_add_u32 {vr(dst)}, {vr(tmp)}, {vr(vTR)}""")


def tr_addr128(d0, d1, hmul, tmp):
    tr_addr(d0, hmul, 128, tmp)
    a(f"""v_bfe_u32 {vr(tmp)}, {vr(vL)}, 3, 1
          v_lshl_add_u32 {vr(d0)}, {vr(tmp)}, 6, {vr(d0)}
          v_xor_b32 {vr(d1)}, 64, {vr(d0)}""")


def wdma_voff(dst, stride, tmp):
    a(f"""v_bfe_u32 {vr(tmp)}, {vr(vL)}, 4, 1
          v_lshlrev_b32 {vr(tmp)}, 2, {vr(tmp)}
          v_and_b32 {vr(dst)}, 7, {vr(vL)}
          v_xor_b32 {vr(dst)}, {vr(dst)}, {vr(tmp)}
          v_lshlrev_b32 {vr(dst)}, 4, {vr(dst)}
          v_lshrrev_b32 {vr(tmp)}, 3, {vr(vL)}
          v_mul_u32_u24 {vr(tmp)}, {stride}, {vr(tmp)}
          v_add_u32 {vr(dst)}, {vr(dst)}, {vr(tmp)}""")


def make_sel(d, tmp):
    a(f"""v_lshrrev_b32 {vr(tmp)}, 2, {vr(vL)}
          v_xor_b32 {vr(tmp)}, {vr(tmp)}, {vr(vL)}
          v_bfe_u32 {vr(tmp)}, {vr(tmp)}, 2, 1
          v_add_u32 {vr(tmp)}, -1, {vr(tmp)}
          v_and_b32 {vr(d)}, 0x3f803f80, {vr(tmp)}
          v_mov_b32 {vr(d+1)}, {vr(d)}
          v_mov_b32 {vr(d+2)}, {vr(d)}
          v_mov_b32 {vr(d+3)}, {vr(d)}""")


def other_srds():
    srd(R_WO, P_WO, 512 * 512 * 2)
    srd(R_W1, P_W1, 512 * 1376 * 2)
    srd(R_W2, P_W2, 1376 * 512 * 2)
    srd(R_OUT, P_OUT, 2048 * 512 * 2)
    srd(R_WS, P_WS, WS_SIZE)
    srd(R_B1, P_B1, 1376 * 2)
    srd(R_B2, P_B2, 512 * 2)
    srd(R_DBG, P_DBG, 256)
    a(f"""s_mul_i32 {sr(sT0)}, {sr(sCB)}, 3
          s_min_u32 {sr(sT0)}, {sr(sT0)}, 40
          s_lshl_b32 {sr(sLINE)}, {sr(sRB)}, 4
          s_add_u32 {sr(sLINE)}, {sr(sLINE)}, {sr(sCB)}
          s_lshl_b32 {sr(sLINE)}, {sr(sLINE)}, 7
          s_add_u32 {sr(sLINE)}, {sr(sLINE)}, {WS_FL}
          s_mov_b32 {sr(sVM)}, 0xffff
          s_mov_b32 {sr(sVM+1)}, 0xffff""")


class Rec:
    def __init__(self):
        self.l = []

    def __call__(self, text, vm=None, lg=None):
        assert vm is None and lg is None
        self.l += [x.strip() for x in text.strip().split("\n") if x.strip()]

    def comment(self, t):
        pass


def record(fn):
    global a
    keep, a = a, Rec()
    fn()
    l, a = a.l, keep
    return l


O = [0, 16, 32, 48]
S = [64, 80]
Q = [96, 100, 104, 108]
KB = [112, 116, 120]
VB = [124, 132, 140]
HF = 148
vIDX, vL16, vVO, vWD, vFL, vDUM = 236, 237, 238, 239, 240, 251
vFP = 244
sKV, sIT, sH0, sW2, sLA, sKS, sO, sOUT, sF1, sHS = 4, 5, 6, 7, 12, 13, 14, 15, 16, 17
sU, sU2 = sT[0], sT[1]


def att_addr_v(tmp):
    a(f"""v_lshlrev_b32 {vr(vL16)}, 4, {vr(vL)}
          v_and_b32 {vr(vVO)}, 15, {vr(vL)}
          v_lshlrev_b32 {vr(vVO)}, 4, {vr(vVO)}
          v_lshl_add_u32 {vr(vVO)}, {vr(vHH)}, 8, {vr(vVO)}
          v_mov_b32 {vr(vIDX)}, 0xdddddddd""")
    wdma_voff(vWD, 1024, tmp)


def att_addr_s(u, u2):
    a(f"""s_lshr_b32 {sr(u)}, {sr(sW)}, 2
          s_lshl_b32 {sr(u2)}, {sr(sCB)}, 1
          s_add_u32 {sr(u2)}, {sr(u2)}, {sr(u)}
          s_lshl_b32 {sr(sKV)}, {sr(u2)}, 17
          s_lshl_b32 {sr(sO)}, {sr(u2)}, 10
          s_lshl_b32 {sr(u2)}, {sr(sWQ)}, 11
          s_add_u32 {sr(sKV)}, {sr(sKV)}, {sr(u2)}
          s_and_b32 {sr(sIT)}, {sr(sRB)}, 3
          s_lshl_b32 {sr(sIT)}, {sr(sIT)}, 15
          s_lshl_b32 {sr(u2)}, {sr(sRB)}, 2
          s_add_u32 {sr(u2)}, {sr(u2)}, {sr(sWQ)}
          s_lshl_b32 {sr(u2)}, {sr(u2)}, 15
          s_add_u32 {sr(sO)}, {sr(sO)}, {sr(u2)}
          s_add_u32 {sr(sO)}, {sr(sO)}, {WS_O}""")
    a(f"""s_lshr_b32 {sr(u)}, {sr(sW)}, 1
          s_mul_i32 {sr(sKS)}, {sr(u)}, 22
          s_lshl_b32 {sr(sLA)}, {sr(sW)}, 10
          s_and_b32 {sr(u)}, {sr(sW)}, 1
          s_lshl_b32 {sr(sW2)}, {sr(sKS)}, 1
          s_add_u32 {sr(sW2)}, {sr(sW2)}, {sr(u)}
          s_lshl_b32 {sr(sW2)}, {sr(sW2)}, 13
          s_lshr_b32 {sr(u2)}, {sr(sCB)}, 1
          s_lshl_b32 {sr(u2)}, {sr(u2)}, 7
          s_add_u32 {sr(sW2)}, {sr(sW2)}, {sr(u2)}
          s_sub_u32 {sr(sW2)}, {sr(sW2)}, 16384
          s_and_b32 {sr(sH0)}, {sr(sCB)}, 1
          s_lshl_b32 {sr(sOUT)}, {sr(sRB)}, 1
          s_add_u32 {sr(sOUT)}, {sr(sOUT)}, {sr(sH0)}
          s_lshl_b32 {sr(sH0)}, {sr(sOUT)}, 1
          s_add_u32 {sr(sH0)}, {sr(sH0)}, {sr(u)}
          s_mul_i32 {sr(sH0)}, {sr(sH0)}, {86*1024}
          s_add_u32 {sr(sH0)}, {sr(sH0)}, {WS_H}
          s_lshl_b32 {sr(sOUT)}, {sr(sOUT)}, 3
          s_add_u32 {sr(sOUT)}, {sr(sOUT)}, {sr(sWQ)}
          s_lshl_b32 {sr(sOUT)}, {sr(sOUT)}, 13
          s_add_u32 {sr(sOUT)}, {sr(sOUT)}, {sr(u2)}
          s_and_b32 {sr(sF1)}, {sr(sCB)}, 14
          s_lshl_b32 {sr(sF1)}, {sr(sF1)}, 7
          s_add_u32 {sr(sF1)}, {sr(sF1)}, {WS_FL}""")


def q_reads():
    a(f"""s_lshl_b32 {sr(sU)}, {sr(sW)}, 10
          s_add_u32 {sr(sU)}, {sr(sU)}, {L_QX}
          v_lshl_add_u32 {vr(vFP)}, {vr(vL)}, 4, {sr(sU)}""")
    for j in range(4):
        if j:
            a(f"v_xor_b32 {vr(vFP+j)}, {j*1024}, {vr(vFP)}")
        a(f"ds_read_b128 {vr(Q[j],4)}, {vr(vFP+j)}", lg="q")


def att_init():
    a.comment("rows 16 and 20 of the V operand are ones (row sums), the other spare rows are zero")
    a(f"""v_and_b32 {vr(VB[0])}, 27, {vr(vL)}
          v_cmp_eq_u32 vcc, 16, {vr(VB[0])}
          v_mov_b32 {vr(VB[0]+1)}, 0x3f803f80
          v_cndmask_b32 {vr(VB[0])}, 0, {vr(VB[0]+1)}, vcc
          v_cndmask_b32 {vr(VB[0]+1)}, 0, {vr(VB[0]+1)}, vcc""")
    for i in range(2, 24, 2):
        a(f"v_mov_b64 {vr(VB[0]+i,2)}, {vr(VB[0],2)}")


def o_zero():
    for j in range(4):
        for i in range(0, 16, 2):
            a(f"v_mov_b64 {vr(O[j]+i,2)}, 0")


def kvload(i):
    if i >= 16:
        return
    b = i % 3
    a(f"s_add_u32 {sr(sU)}, {sr(sKV)}, {sr(sIT)}")
    a(f"buffer_load_dwordx4 {vr(KB[b],4)}, {vr(vL16)}, {sr(R_WS,4)}, {sr(sU)} offen sc1", vm=("k", i))
    a(f"s_mov_b64 exec, {sr(sVM,2)}")
    a(f"buffer_load_dwordx4 {vr(VB[b],4)}, {vr(vVO)}, {sr(R_WS,4)}, {sr(sU)} offen offset:1024 sc1", vm=("v", i))
    a(f"buffer_load_dwordx4 {vr(VB[b]+4,4)}, {vr(vVO)}, {sr(R_WS,4)}, {sr(sU)} offen offset:1536 sc1", vm=("v", i))
    a(f"""s_mov_b64 exec, -1
          s_add_u32 {sr(sIT)}, {sr(sIT)}, 8192
          s_and_b32 {sr(sIT)}, {sr(sIT)}, 0x1ffff""")


def f1_addr(d, tmp):
    a(f"""v_lshrrev_b32 {vr(d)}, 1, {vr(vL31)}
          v_and_b32 {vr(tmp)}, 1, {vr(vL)}
          v_lshlrev_b32 {vr(tmp)}, 7, {vr(tmp)}
          v_lshl_add_u32 {vr(d)}, {vr(d)}, 11, {vr(tmp)}""")


def f1_load(d, ad):
    return f"buffer_load_dwordx4 {vr(d,4)}, {vr(ad)}, {sr(R_WS,4)}, {sr(sF1)} offen sc1"


a.label(NAME + "_kernel")
a(f"""s_cmp_ge_u32 s2, 256
      s_cbranch_scc1 L_end
      s_load_dwordx16 s[4:19], s[0:1], 0
      s_load_dwordx4 s[20:23], s[0:1], 64
      s_load_dwordx2 s[24:25], s[0:1], 80""")
stamp("start")
a(f"""v_lshrrev_b32 v1, 6, v0
      v_and_b32 {vr(vL)}, 63, v0
      v_readfirstlane_b32 {sr(sW)}, v1
      v_bfe_u32 {vr(vHH)}, v0, 5, 1
      v_and_b32 {vr(vL31)}, 31, v0
      v_bfe_u32 v1, v0, 4, 1
      v_and_b32 v2, 3, v0
      v_lshlrev_b32 v2, 3, v2
      v_lshl_add_u32 {vr(vTR)}, v1, 5, v2
      s_and_b32 {sr(sWQ)}, {sr(sW)}, 3
      s_bfe_u32 {sr(sT[0])}, s2, 0x20001
      s_bfe_u32 {sr(sT[1])}, s2, 0x20003
      s_lshl_b32 {sr(sT[0])}, {sr(sT[0])}, 2
      s_add_u32 {sr(sRB)}, {sr(sT[0])}, {sr(sT[1])}
      s_and_b32 {sr(sT[0])}, s2, 1
      s_lshr_b32 {sr(sT[1])}, s2, 5
      s_lshl_b32 {sr(sT[0])}, {sr(sT[0])}, 3
      s_add_u32 {sr(sCB)}, {sr(sT[0])}, {sr(sT[1])}
      s_cmp_ge_u32 {sr(sW)}, 4
      s_cbranch_scc1 L_C""")

role[0] = "H"
hVXE, hVXO, hVW, hVQ, hV1 = 150, 151, 152, 153, 154
hGO, hF1 = 158, 159
hT = [162, 163, 164, 165]
hP = 168
sXB, sWB, sLX, sLW, sA, sB_ = sT[0], sT[1], sT[2], sT[3], sT[4], sT[5]
if OPT["rot"] == 0:
    a(f"s_mov_b32 {sr(sROT)}, 0")
elif OPT["rot"] == 1:
    a(f"""s_lshl_b32 {sr(sA)}, {sr(sRB)}, 1
          s_add_u32 {sr(sA)}, {sr(sA)}, {sr(sCB)}
          s_and_b32 {sr(sROT)}, {sr(sA)}, 7""")
elif OPT["rot"] == 2:
    a(f"""s_add_u32 {sr(sA)}, {sr(sRB)}, {sr(sCB)}
          s_and_b32 {sr(sA)}, {sr(sA)}, 1
          s_lshl_b32 {sr(sROT)}, {sr(sA)}, 2""")
elif OPT["rot"] == 4:
    a(f"s_and_b32 {sr(sROT)}, s2, 7")
elif OPT["rot"] == 5:
    a(f"s_and_b32 {sr(sROT)}, s2, 6")
elif OPT["rot"] == 3:
    a(f"""s_add_u32 {sr(sA)}, {sr(sRB)}, {sr(sCB)}
          s_and_b32 {sr(sA)}, {sr(sA)}, 3
          s_lshl_b32 {sr(sROT)}, {sr(sA)}, 1""")
a(f"""v_lshrrev_b32 {vr(hT[0])}, 4, {vr(vL)}
      v_and_b32 {vr(hVXE)}, 7, {vr(vL)}
      v_xor_b32 {vr(hVXE)}, {vr(hVXE)}, {vr(hT[0])}
      v_lshlrev_b32 {vr(hVXE)}, 4, {vr(hVXE)}
      v_lshrrev_b32 {vr(hT[0])}, 3, {vr(vL)}
      v_lshl_add_u32 {vr(hVXE)}, {vr(hT[0])}, 10, {vr(hVXE)}
      v_xor_b32 {vr(hVXO)}, 64, {vr(hVXE)}
      s_lshl_b32 {sr(sXB)}, {sr(sRB)}, 2
      s_add_u32 {sr(sXB)}, {sr(sXB)}, {sr(sWQ)}
      s_lshl_b32 {sr(sXB)}, {sr(sXB)}, 15
      s_lshl_b32 {sr(sLX)}, {sr(sWQ)}, 12
      s_lshl_b32 {sr(sLW)}, {sr(sWQ)}, 11
      s_and_b32 {sr(sA)}, {sr(sCB)}, 1
      s_add_u32 {sr(sA)}, {sr(sA)}, 1
      s_lshl_b32 {sr(sA)}, {sr(sA)}, 10
      s_lshr_b32 {sr(sB_)}, {sr(sCB)}, 1
      s_lshl_b32 {sr(sB_)}, {sr(sB_)}, 7
      s_add_u32 {sr(sA)}, {sr(sA)}, {sr(sB_)}
      s_mul_i32 {sr(sWB)}, {sr(sWQ)}, {16*3072}
      s_add_u32 {sr(sWB)}, {sr(sWB)}, {sr(sA)}""")
wdma_voff(hVW, 3072, hT[0])
a(f"""s_mov_b32 {sr(R_X+2)}, {2048*512*2}
      s_mov_b32 {sr(R_X+3)}, 0x20000
      s_mov_b32 {sr(R_WQKV+2)}, {512*1536*2}
      s_mov_b32 {sr(R_WQKV+3)}, 0x20000
      s_waitcnt lgkmcnt(0)
      s_mov_b64 {sr(R_X,2)}, {sr(P_X,2)}
      s_mov_b64 {sr(R_WQKV,2)}, {sr(P_WQKV,2)}""")
if OPT["stamps"]:
    a("s_memtime s[0:1]")


def rotc(c):
    a(f"""s_add_u32 {sr(sB_)}, {sr(sROT)}, {c}
          s_and_b32 {sr(sB_)}, {sr(sB_)}, 7""")


def issue_chunk(c):
    base = (c % 6) * SLOT
    rotc(c)
    a(f"s_lshl_b32 {sr(sA)}, {sr(sB_)}, 7")
    for i in range(4):
        pre = f"s_add_u32 {sr(sA)}, {sr(sA)}, {sr(sXB) if i == 0 else 8192}"
        dma(hVXO if i & 1 else hVXE, R_X, sA, (sLX, base + i * 1024), ("c", c), pre)
    a(f"s_mul_i32 {sr(sA)}, {sr(sB_)}, {64*3072}")
    for i in range(2):
        pre = f"s_add_u32 {sr(sA)}, {sr(sA)}, {sr(sWB) if i == 0 else 8*3072}"
        dma(hVW, R_WQKV, sA, (sLW, base + 16384 + i * 1024), ("c", c), pre)


sQB, s1B, sLQ, sL1 = 2, 11, 8, 9


def issue_wq(half):
    for c in range(4 * half, 4 * half + 4):
        rotc(c)
        a(f"s_mul_i32 {sr(sA)}, {sr(sB_)}, {64*3072}")
        dma(hVQ, R_WQKV, sA, (sLQ, L_WQ + c * 4096), "wq", f"s_add_u32 {sr(sA)}, {sr(sA)}, {sr(sQB)}")


def issue_w1(c):
    rotc(c)
    a(f"s_mul_i32 {sr(sA)}, {sr(sB_)}, {64*2752}")
    for p in range(3):
        dma(hV1 + p, R_W1, sA, (sL1, L_W1[c] + p * 1024), ("w1", c), f"s_add_u32 {sr(sA)}, {sr(sA)}, {sr(s1B)}" if p == 0 else None)


def h_setup():
    u = sT[6]
    other_srds()
    a(f"""s_mul_i32 {sr(sQB)}, {sr(sWQ)}, {16*3072}
          s_lshl_b32 {sr(u)}, {sr(sCB)}, 6
          s_add_u32 {sr(sQB)}, {sr(sQB)}, {sr(u)}
          s_mul_i32 {sr(s1B)}, {sr(sWQ)}, {16*2752}
          s_lshl_b32 {sr(u)}, {sr(sT0)}, 6
          s_add_u32 {sr(s1B)}, {sr(s1B)}, {sr(u)}
          s_lshl_b32 {sr(sLQ)}, {sr(sWQ)}, 10
          s_mul_i32 {sr(sL1)}, {sr(sWQ)}, 3072
          v_lshrrev_b32 {vr(hT[0])}, 2, {vr(vL)}
          v_mul_u32_u24 {vr(hT[0])}, 3072, {vr(hT[0])}
          v_and_b32 {vr(hVQ)}, 3, {vr(vL)}
          v_lshl_add_u32 {vr(hVQ)}, {vr(hVQ)}, 4, {vr(hT[0])}""")
    for p in range(3):
        a(f"""v_add_u32 {vr(hT[0])}, {64*p}, {vr(vL)}
              v_mul_u32_u24 {vr(hT[1])}, 171, {vr(hT[0])}
              v_lshrrev_b32 {vr(hT[1])}, 11, {vr(hT[1])}
              v_mul_u32_u24 {vr(hT[2])}, {2752 - 192}, {vr(hT[1])}
              v_lshl_add_u32 {vr(hV1+p)}, {vr(hT[0])}, 4, {vr(hT[2])}""")
    att_addr_s(18, 19)
    att_addr_v(hT[0])
    att_init()
    o_zero()
    f1_addr(hF1, hT[0])
    a(f"""v_and_b32 {vr(hGO)}, 15, {vr(vL)}
          v_lshlrev_b32 {vr(hGO)}, 2, {vr(hGO)}""")


UP = OPT["up"]
filler += record(h_setup)
stamp("hk")
issue_chunk(0)
fill[0] = OPT.get("fill", 12)
for c in range(1, UP):
    issue_chunk(c)
emit(filler)
filler.clear()
stamp("hup")
jobs = [(max(0, c - 5), ("c", c), lambda c=c: issue_chunk(c)) for c in range(UP, 8)]
jobs += [(3, ("q", 0), lambda: issue_wq(0)), (4, ("q", 1), lambda: issue_wq(1))]
jobs += [(g, ("w", c), lambda c=c: issue_w1(c)) for c, g in enumerate([4, 5, 5, 6, 6, 7, 7, 8])]


def run_jobs(upto):
    while any(j[1] == upto for j in jobs):
        jobs.pop(0)[2]()


goload = f"buffer_load_dword {vr(hP)}, {vr(hGO)}, {sr(R_DBG,4)}, 0 offen sc1"
for n in range(8):
    stamp(f"hw{n}")
    a.wait(vm=("c", n))
    stamp(f"ha{n}")
    a("s_barrier")
    if n == 7:
        a("s_mov_b64 exec, 0xffff")
        a(goload, vm="go")
        a("s_mov_b64 exec, -1")
    if jobs[0][0] <= n:
        jobs.pop(0)[2]()
    stamp(f"hi{n}")
a("s_barrier")
stamp("bar8")
run_jobs(("q", 1))
run_jobs(("w", 1))
a.wait(vm=["wq", "go"])
a("s_mov_b64 exec, 0xffff")
poll(goload, 1, hP, first_done=True)
a("s_mov_b64 exec, -1")
stamp("h8b")
a("s_barrier")
run_jobs(("w", OPT.get("j8", 3)))
a.wait(vm=("w1", 1))
stamp("h9")
a("s_barrier")
a("s_barrier")
run_jobs(("w", OPT.get("j9", 5)))
a.wait(vm=("w1", 3))
stamp("h10")
a("s_barrier")
run_jobs(("w", 7))
a("s_mov_b32 exec_hi, 0")
a(f1_load(hP, hF1), vm="f1")
a("s_mov_b64 exec, -1")
a.wait(vm=("w1", 7))
stamp("h11")
a("s_barrier")
stamp("bar11")
q_reads()
a.wait(vm="all")
a("s_mov_b32 exec_hi, 0")
poll(f1_load(hP, hF1), 4, hP, first_done=True)
a("s_mov_b64 exec, -1")
stamp("f1seen")
kvload(0)
kvload(1)
if OPT["prio"]:
    a("s_setprio 2")
a.wait(vm="all", lg="all")
a("s_branch L_ATT")

a.label("L_C")
role[0] = "C"
a.reset_counts()
XR = lambda s: 4 * s
cACC = [160, 176, 192]
cSET = [128 + 8 * j for j in range(4)]
cSUM, cSQ, cSEL = 208, [212, 216], 244
cXa, cWa, cRS = 224, [228, 232], 236
cXA, cWP, cVO, cR = 240, [224, 228], 220, 248
cKC = [192, 196]
cT = [249, 250]
if OPT.get("cprio", 0):
    a("s_setprio 1")
a(f"""v_bfe_u32 {vr(cT[0])}, {vr(vL)}, 1, 3
      v_xor_b32 {vr(cT[0])}, {vr(cT[0])}, {vr(vHH)}
      v_lshlrev_b32 {vr(cT[0])}, 4, {vr(cT[0])}
      v_lshl_add_u32 {vr(cXA)}, {vr(vL31)}, 7, {vr(cT[0])}
      s_mul_i32 {sr(sT[0])}, {sr(sWQ)}, {4096 + 32}
      v_xor_b32 {vr(cXA)}, {sr(sT[0])}, {vr(cXA)}
      v_xor_b32 {vr(cXA+1)}, 32, {vr(cXA)}
      v_xor_b32 {vr(cXA+2)}, 64, {vr(cXA)}
      v_xor_b32 {vr(cXA+3)}, 0x60, {vr(cXA)}""")
tr_addr128(cWP[0], cWP[1], 8, cT[0])
a(f"s_lshl_b32 {sr(sT[0])}, {sr(sWQ)}, 11")
for t in range(2):
    a(f"v_add_u32 {vr(cWP[t])}, {sr(sT[0])}, {vr(cWP[t])}")
    for j in range(1, 4):
        a(f"v_xor_b32 {vr(cWP[t]+j)}, {2048*j}, {vr(cWP[t])}")
make_sel(cSEL, cT[0])
a(f"""v_mov_b32 {vr(cWa[1]+2)}, 0
      v_mov_b32 {vr(cWa[1]+3)}, 0
      v_mov_b32 {vr(cRS)}, 0
      v_mov_b32 {vr(cRS+1)}, 0
      v_mov_b32 {vr(cRS+2)}, 0x3f803f80
      v_mov_b32 {vr(cRS+3)}, 0x3f80
      v_lshlrev_b32 v221, 4, {vr(vL31)}
      v_add_u32 v221, {L_CSP}, v221
      s_lshl_b32 {sr(sT[0])}, {sr(sWQ)}, 2
      v_add_u32 v222, {sr(sT[0])}, v221
      s_add_u32 {sr(sT[0])}, {sr(sT[0])}, {L_FLG}
      v_mov_b32 {vr(cT[0])}, {sr(sT[0])}
      ds_write_b32 {vr(cT[0])}, {vr(cRS)}
      s_waitcnt lgkmcnt(0)""")
if OPT["stamps"]:
    a("s_memtime s[0:1]")
srd(R_X, P_X, 2048 * 512 * 2)
other_srds()
att_addr_s(sT[0], sT[1])
a(f"""s_lshl_b32 {sr(sHS)}, {sr(sRB)}, 2
      s_add_u32 {sr(sHS)}, {sr(sHS)}, {sr(sWQ)}
      s_mul_i32 {sr(sHS)}, {sr(sHS)}, {86*1024}
      s_lshl_b32 {sr(sT[0])}, {sr(sT0)}, 11
      s_add_u32 {sr(sHS)}, {sr(sHS)}, {sr(sT[0])}
      s_add_u32 {sr(sHS)}, {sr(sHS)}, {WS_H}""")
a(f"""s_cmp_lg_u32 {sr(sWQ)}, 0
      s_cbranch_scc1 L_C0
      s_cmp_lg_u32 {sr(sRB)}, {sr(sCB)}
      s_cbranch_scc1 L_C1
      s_and_b32 {sr(sT[0])}, {sr(sLINE)}, 0xfffff800
      v_lshrrev_b32 v1, 2, {vr(vL)}
      v_and_b32 v3, 3, {vr(vL)}
      v_lshlrev_b32 v3, 4, v3
      v_lshl_add_u32 v1, v1, 7, v3
      v_mov_b32 v4, 0
      v_mov_b32 v5, 0
      v_mov_b32 v6, 0
      v_mov_b32 v7, 0
      buffer_store_dwordx4 v[4:7], v1, {sr(R_WS,4)}, {sr(sT[0])} offen sc1
      s_lshl_b32 {sr(sT[0])}, {sr(sRB)}, 2
      s_waitcnt vmcnt(0)
      s_mov_b64 exec, 1
      v_mov_b32 v3, 1
      buffer_store_dword v3, off, {sr(R_DBG,4)}, {sr(sT[0])} sc1
      s_mov_b64 exec, -1
      s_branch L_C1""")
a.label("L_C0")
a(f"""s_cmp_lg_u32 {sr(sWQ)}, 1
      s_cbranch_scc1 L_C1
      s_getpc_b64 s[74:75]""")
a.label("L_pc")
a(f"""s_sub_u32 s74, s74, L_pc-{NAME}_kernel
      s_subb_u32 s75, s75, 0
      s_lshr_b32 {sr(sT[0])}, s2, 3
      s_lshl_b32 {sr(sT[0])}, {sr(sT[0])}, 10
      v_lshlrev_b32 v1, 7, {vr(vL)}
      v_add_u32 v1, {sr(sT[0])}, v1
      v_min_u32 v1, L_end-{NAME}_kernel, v1
      s_mov_b64 exec, 0xff
      global_load_dword {vr(vDUM)}, v1, s[74:75]""")
if OPT["touch"]:
    a.comment("first touch of the pages used later in the launch")
    a(f"""v_lshlrev_b32 v1, 21, {vr(vL)}
          s_mov_b64 exec, 0x3f
          buffer_load_dword {vr(vDUM)}, v1, {sr(R_WS,4)}, 0 offen sc1
          s_mov_b64 exec, 1""")
    for r in (R_W1, R_W2, R_WO, R_B1, R_B2, R_OUT):
        a(f"buffer_load_dword {vr(vDUM)}, off, {sr(r,4)}, 0")
a("s_mov_b64 exec, -1")
a.label("L_C1")
a.reset_counts()
a(f"""s_lshr_b32 {sr(sT[0])}, {sr(sCB)}, 1
      s_lshl_b32 {sr(sT[0])}, {sr(sT[0])}, 19
      s_lshl_b32 {sr(sT[1])}, {sr(sRB)}, 2
      s_add_u32 {sr(sT[1])}, {sr(sT[1])}, {sr(sWQ)}
      s_lshl_b32 {sr(sT[1])}, {sr(sT[1])}, 11
      s_add_u32 {sr(sT[2])}, {sr(sT[0])}, {sr(sT[1])}
      s_bitcmp1_b32 {sr(sCB)}, 0
      s_cbranch_scc1 L_CV""")


def kv_path(isV):
    px = [Ptr(cXA + j) for j in range(4)]
    pw = [[Ptr(cWP[t] + j) for j in range(4)] for t in range(2)]

    def rx(n, j):
        rd128(XR(4 * n + j), px[j], (n % 6) * SLOT, ("r", n, j))

    def rw(n, j, t):
        for u in range(0 if OPT.get("norw") and n > 0 else 2):
            tr(cSET[j] + 4 * t + 2 * u, pw[t][j], (n % 6) * SLOT + 16384 + u * 512, ("r", n, j))

    def main(n, j, t):
        if OPT.get("nomain") and n > 0:
            return
        c = "0" if (n == 0 and j == 0) else cACC[t]
        if isV:
            mfma32(cACC[t], XR(4 * n + j), cSET[j] + 4 * t, c)
        else:
            mfma32(cACC[t], cSET[j] + 4 * t, XR(4 * n + j), c)

    def s16(n, j):
        mfma16(cSUM, cSEL, XR(4 * n + j), "0" if (n == 0 and j == 0) else cSUM)

    def s4(n, j, h):
        mfma4(cSQ[h], XR(4 * n + j) + 2 * h, "0" if (n == 0 and j == 0) else cSQ[h])

    def small(n, j):
        if OPT.get("nosmall") and n > 0:
            return
        s16(n, j)
        s4(n, j, 0)
        s4(n, j, 1)

    if isV:
        a(f"""v_bfe_u32 {vr(cT[0])}, {vr(vL)}, 4, 1
              v_lshlrev_b32 {vr(cT[0])}, 17, {vr(cT[0])}
              v_lshl_add_u32 {vr(cT[0])}, {vr(vHH)}, 8, {vr(cT[0])}
              v_and_b32 {vr(cVO)}, 15, {vr(vL)}
              v_lshl_add_u32 {vr(cVO)}, {vr(cVO)}, 4, {vr(cT[0])}""")
    else:
        a.comment("key slot = lane with bits 2 and 3 swapped")
        a(f"""v_and_b32 {vr(cVO)}, 0x33, {vr(vL)}
              v_bfe_u32 {vr(cT[0])}, {vr(vL)}, 2, 1
              v_lshl_add_u32 {vr(cVO)}, {vr(cT[0])}, 3, {vr(cVO)}
              v_bfe_u32 {vr(cT[0])}, {vr(vL)}, 3, 1
              v_lshl_add_u32 {vr(cVO)}, {vr(cT[0])}, 2, {vr(cVO)}
              v_lshlrev_b32 {vr(cVO)}, 4, {vr(cVO)}""")
    def rd(n, j):
        rx(n, j)
        rw(n, j, 0)
        rw(n, j, 1)

    for n in range(8):
        stamp(f"ca{n}")
        a("s_barrier")
        stamp(f"cp{n}")
        if n == 0:
            stamp("c0")
        if n == 7:
            stamp("c7")
        if n == 0:
            rd(0, 0)
            rd(0, 1)
            rd(0, 2)
        else:
            main(n - 1, 2, 0)
            rx(n, 0)
            rw(n, 0, 0)
            main(n - 1, 2, 1)
            rw(n, 0, 1)
            main(n - 1, 3, 0)
            rx(n, 1)
            rw(n, 1, 0)
            main(n - 1, 3, 1)
            rw(n, 1, 1)
            for j in range(4):
                s16(n - 1, j)
                if j == 0:
                    rx(n, 2)
                elif j < 3:
                    rw(n, 2, j - 1)
                s4(n - 1, j, 0)
                s4(n - 1, j, 1)
        a.wait(lg=("r", n, 0))
        main(n, 0, 0)
        rx(n, 3)
        rw(n, 3, 0)
        main(n, 0, 1)
        rw(n, 3, 1)
        for t in range(2):
            mfma16(cKC[t], cSEL, cSET[0] + 4 * t, "0" if n == 0 else cKC[t])
        a.wait(lg=("r", n, 1))
        if n < 7:
            main(n, 1, 0)
            main(n, 1, 1)
            a.wait(lg=("r", n, 3))
    small(7, 0)
    small(7, 1)
    a.wait(lg=("r", 7, 3))
    s16(7, 2)
    a(f"ds_write_b32 v222, {vr(cKC[0])}", lg="k")
    a(f"ds_write_b32 v222, {vr(cKC[1])} offset:512", lg="k")
    s4(7, 2, 0)
    s4(7, 2, 1)
    small(7, 3)
    main(7, 1, 0)
    a.wait(lg="all")
    a("s_barrier")
    a("s_setprio 1")
    CS = cSET[0]
    T0, T1 = cT
    T2, T3, T4 = 223, 221, 222
    a(f"ds_read_b128 {vr(CS,4)}, {vr(T3)}", lg="cs")
    a(f"ds_read_b128 {vr(CS+4,4)}, {vr(T3)} offset:512", lg="cs")
    ops = [f"v_and_b32 {vr(T0)}, 3, {vr(vL)}",
           f"v_cmp_eq_u32 vcc, 1, {vr(T0)}",
           f"v_cmp_eq_u32 s[76:77], 2, {vr(T0)}",
           f"v_cmp_eq_u32 s[78:79], 3, {vr(T0)}"]
    ops += [f"v_add_f32 {vr(cSQ[0]+i)}, {vr(cSQ[0]+i)}, {vr(cSQ[1]+i)}" for i in range(4)]
    ops += [f"v_cndmask_b32 {vr(T0)}, {vr(cSQ[0])}, {vr(cSQ[0]+1)}, vcc",
            f"v_cndmask_b32 {vr(T0)}, {vr(T0)}, {vr(cSQ[0]+2)}, s[76:77]",
            f"v_cndmask_b32 {vr(T0)}, {vr(T0)}, {vr(cSQ[0]+3)}, s[78:79]",
            f"v_mov_b32 {vr(T1)}, {vr(T0)}",
            f"v_mul_f32 {vr(T2)}, {f32(1/512)}, {vr(cSUM)}",
            f"v_cvt_pk_bf16_f32 {vr(cXa)}, -{vr(T2)}, -{vr(T2)}",
            f"v_permlane32_swap_b32 {vr(T0)}, {vr(T1)}",
            f"v_add_f32 {vr(T0)}, {vr(T0)}, {vr(T1)}",
            f"v_mul_f32 {vr(T0)}, {f32(1/512)}, {vr(T0)}",
            f"v_fma_f32 {vr(T0)}, -{vr(T2)}, {vr(T2)}, {vr(T0)}",
            f"v_max_f32 {vr(T0)}, 0, {vr(T0)}",
            f"v_cvt_pk_bf16_f32 {vr(T0)}, {vr(T0)}, {vr(T0)}",
            f"v_lshlrev_b32 {vr(T0)}, 16, {vr(T0)}",
            f"v_add_f32 {vr(T0)}, {f32(1e-5)}, {vr(T0)}",
            f"v_cvt_pk_bf16_f32 {vr(T0)}, {vr(T0)}, {vr(T0)}",
            f"v_lshlrev_b32 {vr(T0)}, 16, {vr(T0)}",
            f"v_sqrt_f32 {vr(T0)}, {vr(T0)}",
            "WAITCS",
            f"v_add_f32 {vr(CS)}, {vr(CS)}, {vr(CS+1)}",
            f"v_cvt_pk_bf16_f32 {vr(cXa+1)}, -{vr(T2)}, {vr(T0)}",
            f"v_and_b32 {vr(T0)}, 0xffff0000, {vr(cXa+1)}",
            f"v_rcp_f32 {vr(cR)}, {vr(T0)}",
            f"v_add_f32 {vr(CS+2)}, {vr(CS+2)}, {vr(CS+3)}",
            f"v_add_f32 {vr(CS)}, {vr(CS)}, {vr(CS+2)}"]
    ops += split3_ops(cR, "0", cXa + 2, cXa + 3, T0, T1, None)
    ops += [f"s_lshl_b32 {sr(sT[0])}, {sr(sWQ)}, 9",
            f"s_add_u32 {sr(sT[0])}, {sr(sT[0])}, {L_STATS - L_CSP}",
            f"v_add_u32 {vr(T3)}, {sr(sT[0])}, {vr(T3)}",
            f"v_add_u32 {vr(T4)}, -1, {vr(vHH)}",
            "WSTAT"]
    ops += [f"v_and_b32 {vr(cXa+i)}, {vr(cXa+i)}, {vr(T4)}" for i in range(4)]
    ops += [f"v_mov_b64 {vr(cWa[0]+2,2)}, 0"]
    ops += split3_ops(CS, "0", cWa[0], cWa[0] + 1, T0, T1, None)
    rest = [(1, 1), (2, 0), (2, 1), (3, 0), (3, 1)]
    for i, op in enumerate(ops):
        if i % 6 == 2 and rest:
            j, t = rest.pop(0)
            main(7, j, t)
        if op == "WAITCS":
            a.wait(lg="cs")
        elif op == "WSTAT":
            a(f"ds_write_b32 {vr(T3)}, {vr(cXa+1)} offset:4", lg="st")
        else:
            a(op)
    assert not rest
    a(f"""v_add_f32 {vr(CS+4)}, {vr(CS+4)}, {vr(CS+5)}
          v_add_f32 {vr(CS+6)}, {vr(CS+6)}, {vr(CS+7)}""")
    if isV:
        mfma32(cACC[2], cXa, cRS, "0")
        mfma32(cACC[0], cXa, cWa[0], cACC[0])
    else:
        mfma32(cACC[0], cWa[0], cXa, cACC[0])
    a(f"v_add_f32 {vr(CS+4)}, {vr(CS+4)}, {vr(CS+6)}")
    emit(split3_ops(CS + 4, "0", cWa[1], cWa[1] + 1, T0, T1, None))
    if isV:
        mfma32(cACC[1], cXa, cWa[1], cACC[1])
    else:
        mfma32(cACC[1], cWa[1], cXa, cACC[1])
    for t in range(2):
        for u in range(2):
            b = cACC[t] + 8 * u
            for i in range(8):
                a(f"v_mul_f32 {vr(b+i)}, {vr(b+i)}, {vr(cACC[2]+8*u+i) if isV else vr(cR)}")
            p = cSET[0] + 8 * t + 4 * u
            for i in range(4):
                a(f"v_cvt_pk_bf16_f32 {vr(p+i)}, {vr(b+2*i)}, {vr(b+2*i+1)}")
            if isV:
                if u == 0:
                    a(f"s_add_u32 {sr(sT[3])}, {sr(sT[2])}, {2*t*131072}")
                a(f"buffer_store_dwordx4 {vr(p,4)}, {vr(cVO)}, {sr(R_WS,4)}, {sr(sT[3])} offen offset:{1024+512*u} sc1", vm="kv")
            else:
                a(f"s_add_u32 {sr(sT[3])}, {sr(sT[2])}, {(2*t+u)*131072}")
                a(f"buffer_store_dwordx4 {vr(p,4)}, {vr(cVO)}, {sr(R_WS,4)}, {sr(sT[3])} offen sc1", vm="kv")


kv_path(False)
a("s_branch L_C2")
a.label("L_CV")
a.reset_counts()
kv_path(True)
a.label("L_C2")
stamp("kvst")
cQA, RING = 208, 128
cWF = [208, 212, 216]
cPS, cPA = cWa[1], vDUM
cQC, cFB, cFC = 160, 204, [0, 4, 8]
cF1A, cF1, cBI, cP3, cFL = 64, 68, 72, 76, 88
tr_addr(cXA, 8, 64, cT[0])
a(f"""s_lshl_b32 {sr(sT[0])}, {sr(sWQ)}, 10
      s_add_u32 {sr(sT[0])}, {sr(sT[0])}, {L_WQ}
      v_add_u32 {vr(cXA)}, {sr(sT[0])}, {vr(cXA)}""")
for j in range(1, 4):
    a(f"v_xor_b32 {vr(cXA+j)}, {1024*j}, {vr(cXA)}")
pq = [Ptr(cXA + j, L_WQ) for j in range(4)]
pf = [Ptr(cXA + j, L_W1[0]) for j in range(4)]
a(f"s_setprio {OPT.get('cp2', 0)}")
a("s_barrier")
stamp("c8b")
LA = 6


def t_read(i):
    if i >= 128:
        return
    for u in range(2):
        if i < 32:
            tr(RING + 4 * (i & 7) + 2 * u, pq[i & 3], L_WQ + (i >> 2) * 4096 + u * 256, ("tw", i))
        else:
            k, t = divmod(i - 32, 3)
            tr(RING + 4 * (i & 7) + 2 * u, pf[k & 3], L_W1[k >> 2] + t * 64 + u * 768, ("tw", i))


def sum4(p):
    return [f"v_add_f32 {vr(p)}, {vr(p)}, {vr(p+1)}", f"v_add_f32 {vr(p+2)}, {vr(p+2)}, {vr(p+3)}", f"v_add_f32 {vr(p)}, {vr(p)}, {vr(p+2)}"]


side = []


def side_ops(n):
    for _ in range(n):
        if not side:
            return
        op = side.pop(0)
        if isinstance(op, tuple):
            a.wait(lg=op[1])
        elif callable(op):
            op()
        elif op:
            a(op)


F1S, B11 = OPT.get("f1s", 20), OPT.get("b11", 64)
at = {}


def sched(i, ops):
    at.setdefault(i, []).extend(ops)


sched(2, record(lambda: tr_addr(cFB, 8, 192, cT[0])))
for j in range(4):
    sched(5 + 2 * j, [f"s_xor_b32 {sr(20+j)}, {sr(sWQ)}, {j}", f"s_mul_i32 {sr(20+j)}, {sr(20+j)}, 3072", f"s_add_u32 {sr(20+j)}, {sr(20+j)}, {L_W1[0]}"])
    sched(22 + j, [f"v_add_u32 {vr(cXA+j)}, {sr(20+j)}, {vr(cFB)}"])
sched(26, [f"v_lshlrev_b32 {vr(cPA)}, 4, {vr(vL31)}", f"v_add_u32 {vr(cPA)}, {L_CSP + 1024}, {vr(cPA)}",
           f"s_lshl_b32 {sr(sT[0])}, {sr(sWQ)}, 2", f"v_add_u32 {vr(cT[0])}, {sr(sT[0])}, {vr(cPA)}"])
sched(30, [lambda: a(f"ds_write_b32 {vr(cT[0])}, {vr(cQC)}", lg="qc")])
q2 = [lambda: a(f"ds_read_b128 {vr(cPS,4)}, {vr(cPA)}", lg="ps"),
      f"s_lshl_b32 {sr(sT[0])}, {sr(sWQ)}, 10", f"s_add_u32 {sr(sT[0])}, {sr(sT[0])}, {L_QX}", "", "", "", ("W", "ps")]
q2 += sum4(cPS) + split3_ops(cPS, "0", cWa[0], cWa[0] + 1, cT[0], cT[1], None)
q2 += [f"v_lshl_add_u32 {vr(cT[1])}, {vr(vL)}, 4, {sr(sT[0])}",
       lambda: mfma32(cQA, cWa[0], cXa, cQA),
       f"v_mul_f32 {vr(cT[0])}, {f32(0.25*math.log2(math.e))}, {vr(cR)}",
       "", "", "", ""]
q2 += [f"v_mul_f32 {vr(cQA+i)}, {vr(cQA+i)}, {vr(cT[0])}" for i in range(16)]
for u in range(2):
    q2 += [f"v_cvt_pk_bf16_f32 {vr(cQA+4*u+i)}, {vr(cQA+8*u+2*i)}, {vr(cQA+8*u+2*i+1)}" for i in range(4)]
    q2 += [lambda u=u: a(f"ds_write_b128 {vr(cT[1])}, {vr(cQA+4*u,4)} offset:{u*4096}", lg="qx")]
sched(33, q2)
sched(76, record(lambda: att_addr_v(cT[0])) + [f"v_mov_b64 {vr(cWF[k]+2,2)}, 0" for k in range(3)])
sched(84, [x for x in record(o_zero)[6:]])


def late_loads():
    a(f"""s_lshl_b32 {sr(sT[0])}, {sr(sT0)}, 6
          v_lshlrev_b32 {vr(cT[0])}, 1, {vr(vL31)}""")
    for t in range(3):
        a(f"buffer_load_ushort {vr(cBI+t)}, {vr(cT[0])}, {sr(R_B1,4)}, {sr(sT[0])} offen offset:{64*t}", vm="bias")


sched(98, [late_loads] + record(lambda: f1_addr(cF1A, cT[0])))
sched(106, [lambda: (a("s_mov_b32 exec_hi, 0"), a(f1_load(cF1, cF1A), vm="f1"), a("s_mov_b64 exec, -1"))])
sched(112, [f"s_lshl_b32 {sr(sT[0])}, {sr(sWQ)}, 2", f"v_add_u32 {vr(cT[0])}, {sr(sT[0])}, {vr(cPA)}",
            f"s_add_u32 {sr(sT[0])}, {sr(sT[0])}, {L_FLG}", f"v_mov_b32 {vr(cT[1])}, {sr(sT[0])}",
            f"v_mov_b32 {vr(cFL+4)}, {L_FLG}", lambda: a.wait(vm="bias")] + [f"v_lshlrev_b32 {vr(cBI+t)}, 16, {vr(cBI+t)}" for t in range(3)])
sched(119, [lambda t=t: a(f"ds_write_b32 {vr(cT[0])}, {vr(cFC[t])} offset:{512*(t+1)}", lg="fc") for t in range(2)])
sched(122, [lambda: a(f"ds_write_b32 {vr(cT[0])}, {vr(cFC[2])} offset:1536", lg="fc"),
            lambda: a(f"ds_write_b32 {vr(cT[1])}, {vr(cT[1])}", lg="fc")])
sched(123, record(o_zero)[:4])


def part_reads():
    a(f"ds_read_b128 {vr(cFL,4)}, {vr(cFL+4)}", lg="p3")
    for t in range(3):
        a(f"ds_read_b128 {vr(cP3+4*t,4)}, {vr(cPA)} offset:{512*(t+1)}", lg="p3")


sched(125, [part_reads] + record(o_zero)[4:6])
for i in range(LA):
    t_read(i)
for i in range(128):
    a.wait(lg=("tw", i))
    fr = RING + 4 * (i & 7)
    if i < 32:
        mfma32(cQA, fr, XR(i), "0" if i == 0 else cQA)
        cs = (cQC, i == 0) if i % 4 == 0 else None
    else:
        k, t = divmod(i - 32, 3)
        mfma32(cACC[t], fr, XR(k), "0" if k == 0 else cACC[t])
        cs = (cFC[t], k == 3) if (k == 3 or (k >= 4 and k % 4 == 0)) else None
    if i + LA == 32:
        a("s_barrier")
        stamp("c9")
    if i == 33:
        a.wait(lg="qc")
        a("s_barrier")
    if i + LA == 56:
        a("s_barrier")
        stamp("c10")
    if i == B11:
        assert not side and 56 - LA < B11 <= 80 - LA
        a.wait(lg="qx")
        a("s_barrier")
        stamp("c11")
    stamp(f"i{i}")
    t_read(i + LA)
    side += at.get(i, [])
    side_ops(2)
    if cs:
        mfma16(cs[0], cSEL, fr, "0" if cs[1] else cs[0])
    if i == F1S:
        assert F1S < 26
        a(f"""s_lshl_b32 {sr(sT[3])}, {sr(sWQ)}, 2
              s_add_u32 {sr(sT[3])}, {sr(sT[3])}, {sr(sLINE)}""")
        a.wait(vm="all")
        set_flag(sT[3], cT[1])
        stamp("f1sent")
assert not side
stamp("ffnend")
a("s_setprio 3")
a(f"s_mov_b32 {sr(sT[6])}, {OPT['spin']}")
a.label("L_p3")
a.wait(lg="all")
a(f"""v_min_u32 {vr(cFL)}, {vr(cFL)}, {vr(cFL+1)}
      v_min3_u32 {vr(cFL)}, {vr(cFL)}, {vr(cFL+2)}, {vr(cFL+3)}
      v_cmp_eq_u32 vcc, 0, {vr(cFL)}
      s_nop 1
      s_cmp_eq_u64 vcc, 0
      s_cbranch_scc1 L_p3d""")
part_reads()
a(f"""s_sub_u32 {sr(sT[6])}, {sr(sT[6])}, 1
      s_cmp_lg_u32 {sr(sT[6])}, 0
      s_cbranch_scc1 L_p3""")
a.wait(lg="all")
a.label("L_p3d")
q_reads()
for t in range(3):
    emit(sum4(cP3 + 4 * t) + split3_ops(cP3 + 4 * t, vr(cBI + t), cWF[t], cWF[t] + 1, cT[0], cT[1], None))
    if t:
        mfma32(cACC[t - 1], cWF[t - 1], cXa, cACC[t - 1])
a.wait(vm="all")
a("s_mov_b32 exec_hi, 0")
poll(f1_load(cF1, cF1A), 4, cF1, first_done=True)
a("s_mov_b64 exec, -1")
mfma32(cACC[2], cWF[2], cXa, cACC[2])
att_init()
kvload(0)
kvload(1)
for t in range(3):
    for u in range(2):
        b = cACC[t] + 8 * u
        for i in range(8):
            a(f"v_max_f32 {vr(b+i)}, 0, {vr(b+i)}")
        for i in range(8):
            a(f"v_mul_f32 {vr(b+i)}, {vr(b+i)}, {vr(b+i)}")
        p = 208 + 8 * t + 4 * u
        for i in range(4):
            a(f"v_cvt_pk_bf16_f32 {vr(p+i)}, {vr(b+2*i)}, {vr(b+2*i+1)}")
        a(f"buffer_store_dwordx4 {vr(p,4)}, {vr(vL16)}, {sr(R_WS,4)}, {sr(sHS)} offen offset:{1024*u} sc1", vm="h")
    if t < 2:
        a(f"s_add_u32 {sr(sHS)}, {sr(sHS)}, 2048")
a.wait(vm=("v", 1), lg="all")

a.label("L_ATT")
role[0] = "HC"
a.reset_counts()
stamp("attst")


def w2dma(lds, tag):
    dma(vWD, R_W2, sW2, lds, tag, f"s_add_u32 {sr(sW2)}, {sr(sW2)}, 16384")


def hload(i):
    if i % 4 == 0:
        a(f"""s_add_u32 {sr(sU2)}, {sr(sKS)}, {i}
              s_min_u32 {sr(sU2)}, {sr(sU2)}, 84
              s_lshl_b32 {sr(sU2)}, {sr(sU2)}, 10
              s_add_u32 {sr(sT[2])}, {sr(sU2)}, {sr(sH0)}""")
    a(f"buffer_load_dwordx4 {vr(HF+4*i,4)}, {vr(vL16)}, {sr(R_WS,4)}, {sr(sT[2])} offen offset:{(i%4)*1024} sc1", vm="hf")


def f2_check():
    a(f"""v_and_b32 {vr(vFL)}, 15, {vr(vL)}
          v_lshlrev_b32 {vr(vFL)}, 7, {vr(vFL)}
          s_and_b32 {sr(sU2)}, {sr(sLINE)}, 0xfffff800
          s_mov_b64 exec, 0xffff""")
    poll(f"buffer_load_dwordx4 {vr(vFP,4)}, {vr(vFL)}, {sr(R_WS,4)}, {sr(sU2)} offen offset:16 sc1", 4, vFP)
    a("s_mov_b64 exec, -1")
    a.vm = []


def l2_touch():
    a.comment("pull a share of the W2 / Wo column block used after the attention into L2")
    a(f"""s_and_b32 {sr(sU)}, {sr(sRB)}, 3
          s_lshl_b32 {sr(sU)}, {sr(sU)}, 1
          s_and_b32 {sr(sU2)}, {sr(sCB)}, 1
          s_add_u32 {sr(sU)}, {sr(sU)}, {sr(sU2)}
          s_lshl_b32 {sr(sU)}, {sr(sU)}, 3
          s_add_u32 {sr(sU)}, {sr(sU)}, {sr(sW)}
          s_lshr_b32 {sr(sU2)}, {sr(sCB)}, 1
          s_lshl_b32 {sr(sU2)}, {sr(sU2)}, 7
          s_mul_i32 {sr(sT[3])}, {sr(sU)}, {22*1024}
          s_add_u32 {sr(sT[3])}, {sr(sT[3])}, {sr(sU2)}
          s_lshl_b32 {sr(sU)}, {sr(sU)}, 13
          s_add_u32 {sr(sU)}, {sr(sU)}, {sr(sU2)}
          v_lshlrev_b32 {vr(vFL)}, 10, {vr(vL)}
          s_mov_b64 exec, 0x3fffff""")
    a(f"buffer_load_dword {vr(vDUM)}, {vr(vFL)}, {sr(R_W2,4)}, {sr(sT[3])} offen", vm="t")
    a("s_mov_b64 exec, 0xff")
    a(f"buffer_load_dword {vr(vDUM)}, {vr(vFL)}, {sr(R_WO,4)}, {sr(sU)} offen", vm="t")
    a("s_mov_b64 exec, -1")


extras = {}


def put(it, tile, slot, fn):
    extras.setdefault((it, tile, slot), []).append(fn)


for it in range(16):
    put(it, 0, 1, lambda it=it: kvload(it + 2))


def f2_signal():
    a(f"""s_cmp_lt_u32 {sr(sW)}, 4
          s_cbranch_scc1 L_nof2
          s_lshl_b32 {sr(sU)}, {sr(sW)}, 2
          s_add_u32 {sr(sU)}, {sr(sU)}, {sr(sLINE)}
          s_waitcnt vmcnt(0)""")
    set_flag(sU, vFL)
    a(f"s_setprio {2 if OPT['prio'] else 0}")
    a.label("L_nof2")


BF = OPT.get("bf", 2)
put(BF, 0, 0, f2_signal)
put(BF, 0, 0, lambda: a("s_barrier"))
put(0, 2, 2, l2_touch)
for i in range(12):
    put(BF + i // 3, 1 + i % 3, 2, lambda i=i: w2dma((sLA, i * 8192), "w2a"))
F2IT = OPT["f2it"]
put(F2IT, 0, 0, f2_check)
for i in range(22):
    put(F2IT + i // 3, 1 + i % 3, 2, lambda i=i: hload(i))
if OPT["prio"]:
    P1, P0 = OPT.get("p1", 50), OPT.get("p0", 61)
    put(P1 // 4, P1 % 4, 0, lambda: a("s_setprio 1"))
    put(P0 // 4, P0 % 4, 0, lambda: a("s_setprio 0"))


def run_extras(it, tile, slot):
    for fn in extras.get((it, tile, slot), []):
        fn()


def exps(b, lo, hi):
    for i in range(lo, hi):
        a(f"v_exp_f32 {vr(b+i)}, {vr(b+i)}")


a.wait(vm=("k", 0))
mfma32(S[0], KB[0], Q[0], "0")
for t in range(64):
    it, j = t // 4, t % 4
    X, Y = S[t & 1], S[(t + 1) & 1]
    exps(X, 0, 2)
    if t > 0:
        pit, pj = (t - 1) // 4, (t - 1) % 4
        smf(O[pj], VB[pit % 3] + 4, Y + 8, vIDX)
    run_extras(it, j, 0)
    exps(X, 2, 5)
    if t < 63:
        nit, nj = (t + 1) // 4, (t + 1) % 4
        if nj == 0:
            a.wait(vm=("k", nit))
        mfma32(Y, KB[nit % 3], Q[nj], "0")
    run_extras(it, j, 1)
    exps(X, 5, 11)
    if j == 0:
        a.wait(vm=("v", it))
    smf(O[j], VB[it % 3], X, vIDX)
    run_extras(it, j, 2)
    exps(X, 11, 16)
T = [64 + i for i in range(32)]
a(f"""s_mul_i32 {sr(sU)}, {sr(sW)}, 7168
      s_add_u32 {sr(sU)}, {sr(sU)}, {L_CMB}""")
smf(O[3], VB[15 % 3] + 4, S[1] + 8, vIDX)
stamp("attend")

a(f"""v_add_u32 {vr(T[0])}, {sr(sU)}, {vr(vL16)}
      v_lshl_add_u32 {vr(T[1])}, {vr(vL)}, 2, {sr(sU)}""")
for j in range(1, 4):
    o = (j - 1) * 2304
    a(f"ds_write_b128 {vr(T[0])}, {vr(O[j],4)} offset:{o}", lg="c")
    a(f"ds_write_b128 {vr(T[0])}, {vr(O[j]+4,4)} offset:{o+1024}", lg="c")
    a(f"ds_write_b32 {vr(T[1])}, {vr(O[j]+8)} offset:{o+2048}", lg="c")
for j in range(1, 4):
    a(f"""s_xor_b32 {sr(sU)}, {sr(sW)}, {j}
          s_mul_i32 {sr(sU)}, {sr(sU)}, 7168
          s_add_u32 {sr(sU)}, {sr(sU)}, {L_CMB + (j-1)*2304}
          v_add_u32 {vr(T[2*j])}, {sr(sU)}, {vr(vL16)}
          v_lshl_add_u32 {vr(T[2*j+1])}, {vr(vL)}, 2, {sr(sU)}""")
vB0, vB1, vC0, vC1 = 241, 242, 243, 248
tr_addr128(vB0, vB1, 4, T[8])
a(f"""s_and_b32 {sr(sU)}, {sr(sLA)}, 0xfffff800
      v_add_u32 {vr(vC0)}, {sr(sU)}, {vr(vB0)}
      v_add_u32 {vr(vC1)}, {sr(sU)}, {vr(vB1)}""")
a.wait(vm="all", lg="all")
a("s_barrier")
stamp("barc")
for j in range(1, 4):
    a(f"ds_read_b128 {vr(O[j],4)}, {vr(T[2*j])}", lg=("c", j))
    a(f"ds_read_b128 {vr(O[j]+4,4)}, {vr(T[2*j])} offset:1024", lg=("c", j))
    a(f"ds_read_b32 {vr(O[j]+8)}, {vr(T[2*j+1])} offset:2048", lg=("c", j))
for j in range(1, 4):
    a.wait(lg=("c", j))
    for i in range(9):
        a(f"v_add_f32 {vr(O[0]+i)}, {vr(O[0]+i)}, {vr(O[j]+i)}")
a(f"""v_add_f32 {vr(T[2])}, |{vr(O[0])}|, |{vr(O[0]+1)}|
      v_add_f32 {vr(T[3])}, |{vr(O[0]+2)}|, |{vr(O[0]+3)}|
      v_cmp_nle_f32 vcc, {f32(2.0**-64)}, {vr(O[0]+8)}
      v_add_f32 {vr(T[2])}, |{vr(O[0]+4)}|, {vr(T[2])}
      s_mov_b64 s[76:77], vcc
      v_add_f32 {vr(T[3])}, |{vr(O[0]+5)}|, {vr(T[3])}
      v_cmp_nge_f32 vcc, {f32(2.0**64)}, {vr(O[0]+8)}
      v_add_f32 {vr(T[2])}, |{vr(O[0]+6)}|, {vr(T[2])}
      s_or_b64 s[76:77], s[76:77], vcc
      v_add_f32 {vr(T[3])}, |{vr(O[0]+7)}|, {vr(T[3])}
      v_add_f32 {vr(T[2])}, {vr(T[2])}, {vr(T[3])}
      v_cmp_nge_f32 vcc, {f32(2.0**126)}, {vr(T[2])}
      s_or_b64 s[76:77], s[76:77], vcc""")
a("s_branch L_SLOW" if OPT["force_slow"] else "s_cbranch_scc1 L_SLOW")
a.label("L_NORM")
a(f"v_rcp_f32 {vr(T[2])}, {vr(O[0]+8)}")
WR = 32
FA = [96, 112]


pC = [Ptr(vC0), Ptr(vC1)]


def w_read(i, addr, tag):
    for ct in range(2):
        for u in range(2):
            tr(WR + 8 * (i & 3) + 4 * ct + 2 * u, pC[ct], addr + u * 1024, (tag, i))


def f_addr(i):
    return i * 8192 if i < 19 else L_B2 + (i - 19) * 8192


w_read(0, 0, "f")
for i in range(8):
    a(f"v_mul_f32 {vr(O[0]+i)}, {vr(O[0]+i)}, {vr(T[2])}")
for i in range(4):
    a(f"v_cvt_pk_bf16_f32 {vr(T[4]+i)}, {vr(O[0]+2*i)}, {vr(O[0]+2*i+1)}")
a(f"buffer_store_dwordx4 {vr(T[4],4)}, {vr(vL16)}, {sr(R_WS,4)}, {sr(sO)} offen sc1", vm="o")
stamp("ost")
w_read(1, 8192, "f")
a("s_barrier")

vOUT = T[8]
vX, vB2 = 128, 136
sWoS = sT[3]
a(f"""s_lshl_b32 {sr(sWoS)}, {sr(sW)}, 13
      s_and_b32 {sr(sU2)}, {sr(sOUT)}, 0x3ff
      s_add_u32 {sr(sWoS)}, {sr(sWoS)}, {sr(sU2)}
      s_sub_u32 {sr(sWoS)}, {sr(sWoS)}, 0x10000""")


def wodma(p):
    dma(vWD, R_WO, sWoS, (sLA, L_WO + p * 8192), "wo", f"s_add_u32 {sr(sWoS)}, {sr(sWoS)}, 0x10000")


def fstep(i):
    a.wait(lg=("f", i))
    mfma32(FA[0], WR + 8 * (i & 3), HF + 4 * i, "0" if i == 0 else FA[0])


def fstep2(i):
    mfma32(FA[1], WR + 8 * (i & 3) + 4, HF + 4 * i, "0" if i == 0 else FA[1])


vPW, vPR = T[10], T[14]
vSD = T[3]
dq = [lambda i=i: w2dma((sLA, f_addr(i)), "b") for i in range(12, 22)] + [lambda p=p: wodma(p) for p in range(8)]
for i in range(12):
    fstep(i)
    if i == 0:
        dq.pop(0)()
    if i + 2 < 12:
        w_read(i + 2, f_addr(i + 2), "f")
    fstep2(i)
    dq.pop(0)()
    if i == 5:
        a(f"s_cmp_lg_u32 {sr(sW)}, 0")
        a.wait(vm="o")
        a("s_barrier")
        a("s_cbranch_scc1 L_nof3")
        set_flag(sLINE, T[2], 32)
        a.label("L_nof3")
        stamp("a6")
stamp("aend")
a(f"""v_and_b32 {vr(vFL)}, 7, {vr(vL)}
      v_xor_b32 {vr(vPW)}, {vr(vFL)}, {vr(vHH)}
      v_lshlrev_b32 {vr(vPW)}, 4, {vr(vPW)}
      v_lshl_add_u32 {vr(vPW)}, {vr(vL31)}, 8, {vr(vPW)}
      s_lshl_b32 {sr(sU2)}, {sr(sW)}, 13
      s_add_u32 {sr(sU2)}, {sr(sU2)}, {L_PART}
      v_add_u32 {vr(vPW)}, {sr(sU2)}, {vr(vPW)}
      v_xor_b32 {vr(vPW+1)}, 32, {vr(vPW)}
      v_xor_b32 {vr(vPW+2)}, 64, {vr(vPW)}
      v_xor_b32 {vr(vPW+3)}, 0x60, {vr(vPW)}
      v_lshrrev_b32 {vr(T[2])}, 3, {vr(vL)}
      v_lshlrev_b32 {vr(vPR)}, 1, {vr(vFL)}
      v_xor_b32 {vr(vPR)}, {vr(vPR)}, {vr(T[2])}
      v_lshlrev_b32 {vr(vPR)}, 4, {vr(vPR)}
      v_lshl_add_u32 {vr(vPR)}, {vr(T[2])}, 8, {vr(vPR)}
      s_lshl_b32 {sr(sU2)}, {sr(sWQ)}, 11
      s_add_u32 {sr(sU2)}, {sr(sU2)}, {L_PART}
      v_add_u32 {vr(vPR)}, {sr(sU2)}, {vr(vPR)}
      v_xor_b32 {vr(vPR+1)}, 16, {vr(vPR)}
      s_and_b32 {sr(sU2)}, {sr(sCB)}, 1
      s_lshl_b32 {sr(sU2)}, {sr(sU2)}, 3
      s_add_u32 {sr(sU2)}, {sr(sU2)}, {sr(sWQ)}
      s_lshl_b32 {sr(sU2)}, {sr(sU2)}, 7
      s_add_u32 {sr(sU2)}, {sr(sU2)}, {L_STATS}
      v_lshl_add_u32 {vr(vSD)}, {vr(T[2])}, 4, {sr(sU2)}
      v_lshlrev_b32 {vr(T[9])}, 4, {vr(vFL)}
      v_lshl_add_u32 {vr(vOUT)}, {vr(T[2])}, 10, {vr(T[9])}
      v_lshlrev_b32 {vr(vFL)}, 7, {vr(vFL)}
      s_and_b32 {sr(sT[5])}, {sr(sLINE)}, 0xfffff800
      s_and_b32 {sr(sU2)}, {sr(sW)}, 2
      s_lshl_b32 {sr(sU2)}, {sr(sU2)}, 9
      s_add_u32 {sr(sT[5])}, {sr(sT[5])}, {sr(sU2)}""")
a.wait(vm="b")
a("s_barrier")
stamp("g1")
w_read(12, f_addr(12), "f")
w_read(13, f_addr(13), "f")
for i in range(12, 18):
    fstep(i)
    w_read(i + 2, f_addr(i + 2), "f")
    fstep2(i)
    if dq:
        dq.pop(0)()
assert not dq
a(f"s_cmp_ge_u32 {sr(sW)}, 4")
a.wait(lg=("f", 18))
a("s_barrier")
stamp("g2")
a("s_cbranch_scc1 L_TC")
pCb = [p.base for p in pC]


def f_last():
    for p, b in zip(pC, pCb):
        p.base = b
    for i in range(18, 22):
        fstep(i)
        if i + 2 < 22:
            w_read(i + 2, f_addr(i + 2), "f")
        fstep2(i)


def pw1(acc, n):
    ct, g = n >> 2, n & 3
    a(f"ds_write_b128 {vr(vPW+g)}, {vr(acc[ct]+4*g,4)} offset:{ct*128}", lg="p")


sv = (list(a.vm), list(a.lg))
role[0] = "H"
f3load = f"buffer_load_dword {vr(vFP)}, {vr(vFL)}, {sr(R_WS,4)}, {sr(sT[5])} offen offset:32 sc1"
a("s_mov_b64 exec, 0xff")
a(f3load, vm="f3")
a("s_mov_b64 exec, -1")
f_last()
OF = HF
a(f"""s_lshr_b32 {sr(sU)}, {sr(sW)}, 1
      s_lshl_b32 {sr(sU2)}, {sr(sU)}, 15
      v_add_u32 {vr(vC0)}, {sr(sU2)}, {vr(vB0)}
      v_add_u32 {vr(vC1)}, {sr(sU2)}, {vr(vB1)}
      s_and_b32 {sr(sU2)}, {sr(sCB)}, 1
      s_lshl_b32 {sr(sT[2])}, {sr(sRB)}, 1
      s_add_u32 {sr(sT[2])}, {sr(sT[2])}, {sr(sU2)}
      s_lshl_b32 {sr(sT[2])}, {sr(sT[2])}, 1
      s_and_b32 {sr(sU2)}, {sr(sW)}, 1
      s_add_u32 {sr(sT[2])}, {sr(sT[2])}, {sr(sU2)}
      s_lshl_b32 {sr(sT[2])}, {sr(sT[2])}, 1
      s_add_u32 {sr(sT[2])}, {sr(sT[2])}, {sr(sU)}
      s_lshl_b32 {sr(sT[2])}, {sr(sT[2])}, 14
      s_add_u32 {sr(sT[2])}, {sr(sT[2])}, {WS_O}""")
NPW = OPT.get("npw", 4)
for n in range(NPW):
    pw1(FA, n)
a.wait(vm="all")
a("s_mov_b64 exec, 0xff")
poll(f3load, 1, vFP, first_done=True)
a("s_mov_b64 exec, -1")
stamp("f3seen")


def oload(i):
    a(f"buffer_load_dwordx4 {vr(OF+4*i,4)}, {vr(vL16)}, {sr(R_WS,4)}, {sr(sT[2])} offen offset:{(i&3)*1024} sc1", vm=("of", i))
    if i & 3 == 3 and i < 15:
        a(f"s_add_u32 {sr(sT[2])}, {sr(sT[2])}, 4096")


NOL = OPT.get("nol", 10)
for i in range(NOL):
    oload(i)
    if NPW + i < 8:
        pw1(FA, NPW + i)
a.wait(lg="all")
a("s_barrier")
stamp("g3")
pC = [Ptr(vC0), Ptr(vC1)]
for i in range(3):
    w_read(i, L_WO + i * 2048, "wo")
a(f"""s_cmp_eq_u32 {sr(sW)}, 3
      s_mov_b32 {sr(sU2)}, {(L_B2 - L_PART) & 0xffffffff}
      s_cselect_b32 {sr(sU2)}, {L_STATS - L_PART - 3 * 8192}, {sr(sU2)}""")
for g in range(4):
    a(f"v_add_u32 {vr(vPW+g)}, {sr(sU2)}, {vr(vPW+g)}")
for i in range(16):
    if NOL + i < 16:
        oload(NOL + i)
    a.wait(vm=("of", i), lg=("wo", i))
    if i == 0:
        stamp("wost")
    mfma32(FA[0], WR + 8 * (i & 3), OF + 4 * i, "0" if i == 0 else FA[0])
    if i + 3 < 16:
        w_read(i + 3, L_WO + (i + 3) * 2048, "wo")
    mfma32(FA[1], WR + 8 * (i & 3) + 4, OF + 4 * i, "0" if i == 0 else FA[1])
for n in range(8):
    pw1(FA, n)
a.wait(lg="all")
a("s_barrier")
a("s_branch L_DONE" if OPT["stamps"] else "s_endpgm")

a.label("L_TC")
role[0] = "C"
a.vm, a.lg = list(sv[0]), list(sv[1])
a(f"""s_and_b32 {sr(sU2)}, {sr(sOUT)}, 0x3ff
      s_add_u32 {sr(sU)}, {sr(sOUT)}, 0x8000""")
a(f"buffer_load_dwordx4 {vr(vB2,4)}, {vr(T[9])}, {sr(R_B2,4)}, {sr(sU2)} offen", vm="fin")
a(f"buffer_load_dwordx4 {vr(vX,4)}, {vr(vOUT)}, {sr(R_X,4)}, {sr(sOUT)} offen", vm="fin")
a(f"buffer_load_dwordx4 {vr(vX+4,4)}, {vr(vOUT)}, {sr(R_X,4)}, {sr(sU)} offen", vm="fin")
f_last()
vR2 = T[4]
a(f"ds_read_b32 {vr(vR2)}, {vr(vSD)} offset:4", lg="sd")
a(f"ds_read_b32 {vr(vR2+1)}, {vr(vSD)} offset:516", lg="sd")
for n in range(8):
    pw1(FA, n)
stamp("pw")
a.wait(vm="wo", lg="all")
a("s_barrier")
stamp("g3")
G, XU, PR, BU, TE = 0, 16, 148, T[16], 32


def p_read(r, kq):
    for h in range(2):
        d = G + 8 * r + 4 * h if kq == 0 else PR + 24 * r + 8 * (kq - 1) + 4 * h
        a(f"ds_read_b128 {vr(d,4)}, {vr(vPR+h)} offset:{r*8192+kq*16384}", lg=("p", r, kq))


for kq in range(4):
    p_read(0, kq)
for kq in range(3):
    p_read(1, kq)
for r in range(2):
    a(f"""v_and_b32 {vr(vR2+r)}, 0xffff0000, {vr(vR2+r)}
          v_rcp_f32 {vr(vR2+r)}, {vr(vR2+r)}""")
a.wait(vm="fin", lg=("p", 0, 0))
p_read(1, 3)
for r in range(2):
    a(f"v_mul_f32 {vr(vR2+r)}, {vr(vR2+r)}, {vr(vR2+r)}")
for i in range(4):
    a(f"""v_lshlrev_b32 {vr(BU+2*i)}, 16, {vr(vB2+i)}
          v_and_b32 {vr(BU+2*i+1)}, 0xffff0000, {vr(vB2+i)}""")
for r in range(2):
    for kq in range(1, 4):
        a.wait(lg=("p", r, kq))
        for i in range(8):
            a(f"v_add_f32 {vr(G+8*r+i)}, {vr(G+8*r+i)}, {vr(PR+24*r+8*(kq-1)+i)}")
for i in range(16):
    a(f"v_fma_f32 {vr(G+i)}, {vr(G+i)}, {vr(vR2+i//8)}, {vr(BU+i%8)}")
for i in range(16):
    a(f"v_mul_f32 {vr(TE+i)}, {f32(-math.log2(math.e))}, {vr(G+i)}")
for i in range(16):
    a(f"v_exp_f32 {vr(TE+i)}, {vr(TE+i)}")
for i in range(16):
    a(f"v_add_f32 {vr(TE+i)}, 1.0, {vr(TE+i)}")
for i in range(16):
    a(f"v_rcp_f32 {vr(TE+i)}, {vr(TE+i)}")
for h in range(2):
    a(f"""v_add_u32 {vr(vPW+h)}, {L_STATS - L_PART}, {vr(vPR+h)}
          v_add_u32 {vr(vPR+h)}, {(L_B2 - L_PART) & 0xffffffff}, {vr(vPR+h)}""")
for i in range(16):
    a(f"v_mul_f32 {vr(G+i)}, {vr(G+i)}, {vr(TE+i)}")
for i in range(8):
    a(f"""v_lshlrev_b32 {vr(XU+2*i)}, 16, {vr(vX+i)}
          v_and_b32 {vr(XU+2*i+1)}, 0xffff0000, {vr(vX+i)}""")
a("s_barrier")
stamp("fin")
for r in range(2):
    for kh in range(2):
        for h in range(2):
            if r + 2 * kh == 3:
                a(f"ds_read_b128 {vr(PR+16*r+8*kh+4*h,4)}, {vr(vPW+h)}", lg=("p", r))
            else:
                a(f"ds_read_b128 {vr(PR+16*r+8*kh+4*h,4)}, {vr(vPR+h)} offset:{r*8192+kh*16384}", lg=("p", r))
for r in range(2):
    a.wait(lg=("p", r))
    b = PR + 16 * r
    for i in range(8):
        a(f"v_add_f32 {vr(b+i)}, {vr(b+i)}, {vr(b+8+i)}")
    for i in range(8):
        a(f"v_fma_f32 {vr(b+i)}, {vr(b+i)}, {vr(G+8*r+i)}, {vr(XU+8*r+i)}")
    for i in range(4):
        a(f"v_cvt_pk_bf16_f32 {vr(TE+4*r+i)}, {vr(b+2*i)}, {vr(b+2*i+1)}")
    a(f"buffer_store_dwordx4 {vr(TE+4*r,4)}, {vr(vOUT)}, {sr(R_OUT,4)}, {sr(sU if r else sOUT)} offen")
a.label("L_DONE")
role[0] = "HC"
if OPT["stamps"]:
    stamp("end")
    a("s_memtime s[8:9]")
    a(f"""s_waitcnt lgkmcnt(0)
          s_sub_u32 s0, s8, s0
          s_sub_u32 {sr(sU)}, {sr(sLINE)}, {WS_FL}
          s_lshl_b32 {sr(sU)}, {sr(sU)}, 3
          s_lshl_b32 {sr(sU2)}, {sr(sW)}, 7
          s_add_u32 {sr(sU)}, {sr(sU)}, {sr(sU2)}
          s_add_u32 {sr(sU)}, {sr(sU)}, {WS_TS}
          s_mov_b64 exec, 1""")
    for i in range(11):
        a(f"v_mov_b32 {vr(i)}, {sr(sSTAMP+2*i)}")
    a("v_mov_b32 v11, s0")
    for i in range(3):
        a(f"buffer_store_dwordx4 {vr(4*i,4)}, off, {sr(R_WS,4)}, {sr(sU)} offset:{16*i}")
if OPT.get("amp") is not None:
    i = OPT["amp"]
    a(f"""s_cmp_lg_u32 {sr(sW)}, {OPT.get('ampw', 0)}
          s_cbranch_scc1 L_end
          s_sub_u32 s4, {sr(sSTAMP+2*i)}, {sr(sSTAMP)}
          s_lshl_b32 s4, s4, 2
          s_min_u32 s4, s4, 100000""")
    a.label("L_amp")
    a(f"""s_memrealtime s[6:7]
          s_waitcnt lgkmcnt(0)
          s_sub_u32 s6, s6, {sr(sSTAMP+20)}
          s_cmp_lt_u32 s6, s4
          s_cbranch_scc1 L_amp""")
a("s_endpgm")

a.label("L_SLOW")
a.reset_counts()
C = 16
M = T[2]
a(f"""s_nop 7
      s_lshr_b32 {sr(sU)}, {sr(sKV)}, 17
      s_lshl_b32 {sr(sU)}, {sr(sU)}, 17
      s_mov_b32 {sr(sU2)}, 64
      v_mov_b32 {vr(M)}, 0xff800000""")
a.label("L_S1")
a(f"""buffer_load_dwordx4 {vr(KB[0],4)}, {vr(vL16)}, {sr(R_WS,4)}, {sr(sU)} offen sc1
      s_waitcnt vmcnt(0)""")
mfma32(S[1], KB[0], Q[0], "0")
for i in range(8):
    a(f"v_max3_f32 {vr(M)}, {vr(M)}, {vr(S[1]+2*i)}, {vr(S[1]+2*i+1)}")
a(f"""s_add_u32 {sr(sU)}, {sr(sU)}, 2048
      s_sub_u32 {sr(sU2)}, {sr(sU2)}, 1
      s_cmp_lg_u32 {sr(sU2)}, 0
      s_cbranch_scc1 L_S1
      v_mov_b32 {vr(T[3])}, {vr(M)}
      s_nop 1
      v_permlane32_swap_b32 {vr(M)}, {vr(T[3])}
      v_max_f32 {vr(M)}, {vr(M)}, {vr(T[3])}
      s_sub_u32 {sr(sU)}, {sr(sU)}, 0x20000
      s_mov_b32 {sr(sU2)}, 64""")
for i in range(16):
    a(f"v_sub_f32 {vr(C+i)}, 0, {vr(M)}")
    a(f"v_mov_b32 {vr(O[0]+i)}, 0")
a.label("L_S2")
a(f"""buffer_load_dwordx4 {vr(KB[0],4)}, {vr(vL16)}, {sr(R_WS,4)}, {sr(sU)} offen sc1
      s_mov_b64 exec, {sr(sVM,2)}
      buffer_load_dwordx4 {vr(VB[0],4)}, {vr(vVO)}, {sr(R_WS,4)}, {sr(sU)} offen offset:1024 sc1
      buffer_load_dwordx4 {vr(VB[0]+4,4)}, {vr(vVO)}, {sr(R_WS,4)}, {sr(sU)} offen offset:1536 sc1
      s_mov_b64 exec, -1
      s_waitcnt vmcnt(0)""")
mfma32(S[1], KB[0], Q[0], C)
exps(S[1], 0, 16)
smf(O[0], VB[0], S[1], vIDX)
smf(O[0], VB[0] + 4, S[1] + 8, vIDX)
a(f"""s_add_u32 {sr(sU)}, {sr(sU)}, 2048
      s_sub_u32 {sr(sU2)}, {sr(sU2)}, 1
      s_cmp_lg_u32 {sr(sU2)}, 0
      s_cbranch_scc1 L_S2
      s_nop 15
      s_branch L_NORM""")
a.label("L_end")
a("s_endpgm")

ref = open(__file__.rsplit("/", 1)[0] + "/../cdna_kernels/" + NAME + ".s.ref").read().split("\n")
head = [l for l in ref if l.startswith(";") and "@launch" not in l]
if OPT["stamps"]:
    st = STSETS[OPT.get("st", 0)]
    head.append("; stamps H " + " ".join(st["H"]))
    head.append("; stamps C " + " ".join(st["C"]))
out = "\n".join(head) + f"""
; @launch grid=(256,1,1) block=(512,1,1) lds=163840
.amdgcn_target "amdgcn-amd-amdhsa--gfx950"
.text
.globl {NAME}_kernel
.p2align 8
.type {NAME}_kernel,@function
""" + a.text() + f""".section .rodata,"a"
.p2align 6
.amdhsa_kernel {NAME}_kernel
  .amdhsa_next_free_vgpr 256
  .amdhsa_next_free_sgpr 102
  .amdhsa_accum_offset 256
  .amdhsa_group_segment_fixed_size 0
  .amdhsa_kernarg_size 88
  .amdhsa_user_sgpr_count 2
  .amdhsa_user_sgpr_kernarg_segment_ptr 1
  .amdhsa_system_sgpr_workgroup_id_x 1
  .amdhsa_float_denorm_mode_32 3
.end_amdhsa_kernel
"""
open(sys.argv[1], "w").write(out)
if OPT.get("pads"):
    for p in a.pads:
        print("pad", p)
```

```python
import sys, math, struct
from asmlib import Asm, vr, sr

NAME = "recurrent_scan__softmax_full_mha__dense_activation_squared_relu__prompt"
OPT = dict(stamps=0, rot=4, force_slow=0, prio=1, spin=1 << 18, up=3, touch=0, f2it=8, j8=4, j9=7, cprio=1, cp2=1)
for arg in sys.argv[2:]:
    k, v = arg.split("=")
    OPT[k] = int(v, 0)

WS_KV = 0
WS_H = 4 << 20
WS_O = WS_H + 64 * 86 * 1024
WS_FL = WS_O + (2 << 20)
WS_TS = 13 << 20
WS_SIZE = 14 << 20
SLOT = 24576
L_WQ = 49152
L_QX = 147456
L_STATS = 155648
L_CSP = 157696
L_FLG = 160768
L_W1 = [81920 + 12288 * i for i in range(5)] + [12288 * i for i in range(3)]
L_CMB = 98304
L_B2 = 0
L_WO = 24576
L_PART = 90112
P_X, P_WQKV, P_WO, P_W1, P_B1, P_W2, P_B2, P_OUT, P_DBG, P_WS = 4, 6, 8, 12, 14, 16, 18, 20, 22, 24
R_X, R_WQKV, R_WO, R_W1, R_W2, R_OUT, R_WS, R_B1, R_B2, R_DBG = 28, 32, 36, 40, 44, 48, 52, 56, 60, 64
sW, sWQ, sRB, sCB, sROT = 68, 69, 70, 71, 72
sT = [73, 74, 75, 76, 77, 78, 79]
sVM = 26
sLINE = 3
sT0 = 10
sSTAMP = 80
vL, vHH, vL31, vTR = 252, 253, 254, 255


def f32(x):
    return "0x%08x" % struct.unpack("<I", struct.pack("<f", x))[0]


a = Asm()


STSETS = {
    0: dict(H=["start", "bar8", "x", "f1seen", "bar11", "x", "attst", "attend", "g1", "f3seen", "end"],
            C=["start", "c0", "c7", "kvst", "f1sent", "ffnend", "attst", "attend", "g1", "x", "end"]),
    1: dict(H=["start", "bar8", "h8b", "h9", "h10", "h11", "bar11", "x", "f1seen", "attst", "end"],
            C=["start", "c0", "c7", "kvst", "c8b", "c9", "f1sent", "c10", "c11", "attst", "end"]),
    2: dict(H=["start", "attend", "barc", "ost", "a6", "g1", "g2", "f3seen", "g3", "wost", "end"],
            C=["start", "attend", "barc", "ost", "a6", "g1", "g2", "pw", "g3", "fin", "end"]),
    3: dict(H=["start", "hk", "hi2", "hw3", "ha3", "hi3", "hw4", "ha4", "hi4", "hup", "end"],
            C=["start", "c0", "ca3", "cp3", "ca4", "cp4", "ca5", "cp5", "cp2", "c7", "end"]),
    4: dict(H=["start", "h9", "h9a", "h9b", "h9c", "h10", "h10a", "h10b", "h10c", "h11", "end"],
            C=["start", "i27", "i33", "i39", "i45", "i49", "i57", "i65", "i73", "i90", "end"]),
    5: dict(H=["start", "attst", "t8", "t12", "t20", "t32", "t33", "t50", "t61", "attend", "end"],
            C=["start", "attst", "t8", "t12", "t20", "t32", "t33", "t50", "t61", "attend", "end"]),
}
role = ["HC"]


def stamp(name):
    if not OPT["stamps"]:
        return
    st = STSETS[OPT.get("st", 0)]
    idx = {st[r].index(name) for r in role[0] if name in st[r]}
    for i in idx:
        a(f"{'s_memtime' if OPT['stamps'] == 2 else 's_memrealtime'} {sr(sSTAMP + 2*i, 2)}")


def cop(c, n):
    return c if isinstance(c, str) else vr(c, n)


def mfma32(d, x, y, c):
    a(f"v_mfma_f32_32x32x16_bf16 {vr(d,16)}, {vr(x,4)}, {vr(y,4)}, {cop(c,16)}")


def mfma16(d, x, y, c):
    a(f"v_mfma_f32_16x16x32_bf16 {vr(d,4)}, {vr(x,4)}, {vr(y,4)}, {cop(c,4)}")


def mfma4(d, x, c):
    a(f"v_mfma_f32_4x4x4_16b_bf16 {vr(d,4)}, {vr(x,2)}, {vr(x,2)}, {cop(c,4)}")


def smf(d, x, y, idx):
    a(f"v_smfmac_f32_32x32x32_bf16 {vr(d,16)}, {vr(x,4)}, {vr(y,8)}, {vr(idx)}")


def srd(r, p, n):
    a(f"""s_mov_b32 {sr(r)}, {sr(p)}
          s_mov_b32 {sr(r+1)}, {sr(p+1)}
          s_mov_b32 {sr(r+2)}, {n}
          s_mov_b32 {sr(r+3)}, 0x20000""")


filler, fill = [], [0]


def dma(voff, r, soff, lds, tag, pre=None):
    a(f"s_add_u32 m0, {sr(lds[0])}, {lds[1]}")
    if pre:
        a(pre)
    a(f"buffer_load_dwordx4 {vr(voff)}, {sr(r,4)}, {sr(soff)} offen lds", vm=tag)
    for _ in range(fill[0]):
        if filler:
            a(filler.pop(0))


class Ptr:
    def __init__(self, reg, base=0):
        self.reg, self.base = reg, base

    def off(self, addr):
        if not 0 <= addr - self.base <= 65535:
            a(f"v_add_u32 {vr(self.reg)}, {(addr - self.base) & 0xffffffff}, {vr(self.reg)}")
            self.base = addr
        return addr - self.base


def tr(dst, p, addr, tag):
    o = p.off(addr)
    a(f"ds_read_b64_tr_b16 {vr(dst,2)}, {vr(p.reg)} offset:{o}", lg=tag)


def rd128(dst, p, addr, tag):
    o = p.off(addr)
    a(f"ds_read_b128 {vr(dst,4)}, {vr(p.reg)} offset:{o}", lg=tag)


def split3_ops(x, bias, d0, d1, t0, t1, mask):
    l = [f"v_cvt_pk_bf16_f32 {vr(t0)}, {vr(x)}, {vr(x)}",
         f"v_lshlrev_b32 {vr(t0)}, 16, {vr(t0)}",
         f"v_sub_f32 {vr(t0)}, {vr(x)}, {vr(t0)}",
         f"v_cvt_pk_bf16_f32 {vr(d0)}, {vr(x)}, {vr(t0)}",
         f"v_and_b32 {vr(t1)}, 0xffff0000, {vr(d0)}",
         f"v_sub_f32 {vr(t1)}, {vr(t0)}, {vr(t1)}",
         f"v_cvt_pk_bf16_f32 {vr(d1)}, {vr(t1)}, {bias}"]
    if mask is not None:
        l += [f"v_and_b32 {vr(d0)}, {vr(d0)}, {vr(mask)}", f"v_and_b32 {vr(d1)}, {vr(d1)}, {vr(mask)}"]
    return l


def emit(l):
    for x in l:
        a(x)


uid = [0]


def poll(load, nreg, reg, first_done=False):
    uid[0] += 1
    L, D, C = f"L_poll{uid[0]}", f"L_polld{uid[0]}", f"L_pollc{uid[0]}"
    a(f"s_mov_b32 {sr(sT[6])}, {OPT['spin']}")
    if first_done:
        a(f"s_branch {C}")
    a.label(L)
    a.raw(load)
    a("s_waitcnt vmcnt(0)")
    a.label(C)
    if nreg == 4:
        a(f"""v_min_u32 {vr(reg)}, {vr(reg)}, {vr(reg+1)}
              v_min3_u32 {vr(reg)}, {vr(reg)}, {vr(reg+2)}, {vr(reg+3)}""")
    a(f"""v_cmp_eq_u32 vcc, 0, {vr(reg)}
          s_nop 1
          s_cmp_eq_u64 vcc, 0
          s_cbranch_scc1 {D}
          s_sub_u32 {sr(sT[6])}, {sr(sT[6])}, 1
          s_cmp_lg_u32 {sr(sT[6])}, 0
          s_cbranch_scc1 {L}""")
    a.label(D)


def set_flag(soff, tmp, imm=0):
    sv = list(a.vm)
    a(f"""s_mov_b64 exec, 1
          v_mov_b32 {vr(tmp)}, 1
          buffer_store_dword {vr(tmp)}, off, {sr(R_WS,4)}, {sr(soff)} offset:{imm} sc1
          s_mov_b64 exec, -1""")
    a.vm = sv


def tr_addr(dst, hmul, rowbytes, tmp):
    a(f"""v_bfe_u32 {vr(tmp)}, {vr(vL)}, 2, 2
          v_mad_u32_u24 {vr(tmp)}, {vr(vHH)}, {hmul}, {vr(tmp)}
          v_mul_u32_u24 {vr(tmp)}, {rowbytes}, {vr(tmp)}
          v_add_u32 {vr(dst)}, {vr(tmp)}, {vr(vTR)}""")


def tr_addr128(d0, d1, hmul, tmp):
    tr_addr(d0, hmul, 128, tmp)
    a(f"""v_bfe_u32 {vr(tmp)}, {vr(vL)}, 3, 1
          v_lshl_add_u32 {vr(d0)}, {vr(tmp)}, 6, {vr(d0)}
          v_xor_b32 {vr(d1)}, 64, {vr(d0)}""")


def wdma_voff(dst, stride, tmp):
    a(f"""v_bfe_u32 {vr(tmp)}, {vr(vL)}, 4, 1
          v_lshlrev_b32 {vr(tmp)}, 2, {vr(tmp)}
          v_and_b32 {vr(dst)}, 7, {vr(vL)}
          v_xor_b32 {vr(dst)}, {vr(dst)}, {vr(tmp)}
          v_lshlrev_b32 {vr(dst)}, 4, {vr(dst)}
          v_lshrrev_b32 {vr(tmp)}, 3, {vr(vL)}
          v_mul_u32_u24 {vr(tmp)}, {stride}, {vr(tmp)}
          v_add_u32 {vr(dst)}, {vr(dst)}, {vr(tmp)}""")


def make_sel(d, tmp):
    a(f"""v_lshrrev_b32 {vr(tmp)}, 2, {vr(vL)}
          v_xor_b32 {vr(tmp)}, {vr(tmp)}, {vr(vL)}
          v_bfe_u32 {vr(tmp)}, {vr(tmp)}, 2, 1
          v_add_u32 {vr(tmp)}, -1, {vr(tmp)}
          v_and_b32 {vr(d)}, 0x3f803f80, {vr(tmp)}
          v_mov_b32 {vr(d+1)}, {vr(d)}
          v_mov_b32 {vr(d+2)}, {vr(d)}
          v_mov_b32 {vr(d+3)}, {vr(d)}""")


def other_srds():
    srd(R_WO, P_WO, 512 * 512 * 2)
    srd(R_W1, P_W1, 512 * 1376 * 2)
    srd(R_W2, P_W2, 1376 * 512 * 2)
    srd(R_OUT, P_OUT, 2048 * 512 * 2)
    srd(R_WS, P_WS, WS_SIZE)
    srd(R_B1, P_B1, 1376 * 2)
    srd(R_B2, P_B2, 512 * 2)
    srd(R_DBG, P_DBG, 256)
    a(f"""s_mul_i32 {sr(sT0)}, {sr(sCB)}, 3
          s_min_u32 {sr(sT0)}, {sr(sT0)}, 40
          s_lshl_b32 {sr(sLINE)}, {sr(sRB)}, 4
          s_add_u32 {sr(sLINE)}, {sr(sLINE)}, {sr(sCB)}
          s_lshl_b32 {sr(sLINE)}, {sr(sLINE)}, 7
          s_add_u32 {sr(sLINE)}, {sr(sLINE)}, {WS_FL}
          s_mov_b32 {sr(sVM)}, 0xffff
          s_mov_b32 {sr(sVM+1)}, 0xffff""")


class Rec:
    def __init__(self):
        self.l = []

    def __call__(self, text, vm=None, lg=None):
        assert vm is None and lg is None
        self.l += [x.strip() for x in text.strip().split("\n") if x.strip()]

    def comment(self, t):
        pass


def record(fn):
    global a
    keep, a = a, Rec()
    fn()
    l, a = a.l, keep
    return l


O = [0, 16, 32, 48]
S = [64, 80]
Q = [96, 100, 104, 108]
KB = [112, 116, 120]
VB = [124, 132, 140]
HF = 148
vIDX, vL16, vVO, vWD, vFL, vDUM = 236, 237, 238, 239, 240, 251
vFP = 244
sKV, sIT, sH0, sW2, sLA, sKS, sO, sOUT, sF1, sHS = 4, 5, 6, 7, 12, 13, 14, 15, 16, 17
sU, sU2 = sT[0], sT[1]


def att_addr_v(tmp):
    a(f"""v_lshlrev_b32 {vr(vL16)}, 4, {vr(vL)}
          v_and_b32 {vr(vVO)}, 15, {vr(vL)}
          v_lshlrev_b32 {vr(vVO)}, 4, {vr(vVO)}
          v_lshl_add_u32 {vr(vVO)}, {vr(vHH)}, 8, {vr(vVO)}
          v_mov_b32 {vr(vIDX)}, 0xdddddddd""")
    wdma_voff(vWD, 1024, tmp)


def att_addr_s(u, u2):
    a(f"""s_lshr_b32 {sr(u)}, {sr(sW)}, 2
          s_lshl_b32 {sr(u2)}, {sr(sCB)}, 1
          s_add_u32 {sr(u2)}, {sr(u2)}, {sr(u)}
          s_lshl_b32 {sr(sKV)}, {sr(u2)}, 17
          s_lshl_b32 {sr(sO)}, {sr(u2)}, 10
          s_lshl_b32 {sr(u2)}, {sr(sWQ)}, 11
          s_add_u32 {sr(sKV)}, {sr(sKV)}, {sr(u2)}
          s_and_b32 {sr(sIT)}, {sr(sRB)}, 3
          s_lshl_b32 {sr(sIT)}, {sr(sIT)}, 15
          s_lshl_b32 {sr(u2)}, {sr(sRB)}, 2
          s_add_u32 {sr(u2)}, {sr(u2)}, {sr(sWQ)}
          s_lshl_b32 {sr(u2)}, {sr(u2)}, 15
          s_add_u32 {sr(sO)}, {sr(sO)}, {sr(u2)}
          s_add_u32 {sr(sO)}, {sr(sO)}, {WS_O}""")
    a(f"""s_lshr_b32 {sr(u)}, {sr(sW)}, 1
          s_mul_i32 {sr(sKS)}, {sr(u)}, 22
          s_lshl_b32 {sr(sLA)}, {sr(sW)}, 10
          s_and_b32 {sr(u)}, {sr(sW)}, 1
          s_lshl_b32 {sr(sW2)}, {sr(sKS)}, 1
          s_add_u32 {sr(sW2)}, {sr(sW2)}, {sr(u)}
          s_lshl_b32 {sr(sW2)}, {sr(sW2)}, 13
          s_lshr_b32 {sr(u2)}, {sr(sCB)}, 1
          s_lshl_b32 {sr(u2)}, {sr(u2)}, 7
          s_add_u32 {sr(sW2)}, {sr(sW2)}, {sr(u2)}
          s_sub_u32 {sr(sW2)}, {sr(sW2)}, 16384
          s_and_b32 {sr(sH0)}, {sr(sCB)}, 1
          s_lshl_b32 {sr(sOUT)}, {sr(sRB)}, 1
          s_add_u32 {sr(sOUT)}, {sr(sOUT)}, {sr(sH0)}
          s_lshl_b32 {sr(sH0)}, {sr(sOUT)}, 1
          s_add_u32 {sr(sH0)}, {sr(sH0)}, {sr(u)}
          s_mul_i32 {sr(sH0)}, {sr(sH0)}, {86*1024}
          s_add_u32 {sr(sH0)}, {sr(sH0)}, {WS_H}
          s_lshl_b32 {sr(sOUT)}, {sr(sOUT)}, 3
          s_add_u32 {sr(sOUT)}, {sr(sOUT)}, {sr(sWQ)}
          s_lshl_b32 {sr(sOUT)}, {sr(sOUT)}, 13
          s_add_u32 {sr(sOUT)}, {sr(sOUT)}, {sr(u2)}
          s_and_b32 {sr(sF1)}, {sr(sCB)}, 14
          s_lshl_b32 {sr(sF1)}, {sr(sF1)}, 7
          s_add_u32 {sr(sF1)}, {sr(sF1)}, {WS_FL}""")


def q_reads():
    a(f"""s_lshl_b32 {sr(sU)}, {sr(sW)}, 10
          s_add_u32 {sr(sU)}, {sr(sU)}, {L_QX}
          v_lshl_add_u32 {vr(vFP)}, {vr(vL)}, 4, {sr(sU)}""")
    for j in range(4):
        if j:
            a(f"v_xor_b32 {vr(vFP+j)}, {j*1024}, {vr(vFP)}")
        a(f"ds_read_b128 {vr(Q[j],4)}, {vr(vFP+j)}", lg="q")


def att_init():
    a.comment("rows 16 and 20 of the V operand are ones (row sums), the other spare rows are zero")
    a(f"""v_and_b32 {vr(VB[0])}, 27, {vr(vL)}
          v_cmp_eq_u32 vcc, 16, {vr(VB[0])}
          v_mov_b32 {vr(VB[0]+1)}, 0x3f803f80
          v_cndmask_b32 {vr(VB[0])}, 0, {vr(VB[0]+1)}, vcc
          v_cndmask_b32 {vr(VB[0]+1)}, 0, {vr(VB[0]+1)}, vcc""")
    for i in range(2, 24, 2):
        a(f"v_mov_b64 {vr(VB[0]+i,2)}, {vr(VB[0],2)}")


def o_zero():
    for j in range(4):
        for i in range(0, 16, 2):
            a(f"v_mov_b64 {vr(O[j]+i,2)}, 0")


def kvload(i):
    if i >= 16:
        return
    b = i % 3
    a(f"s_add_u32 {sr(sU)}, {sr(sKV)}, {sr(sIT)}")
    a(f"buffer_load_dwordx4 {vr(KB[b],4)}, {vr(vL16)}, {sr(R_WS,4)}, {sr(sU)} offen sc1", vm=("k", i))
    a(f"s_mov_b64 exec, {sr(sVM,2)}")
    a(f"buffer_load_dwordx4 {vr(VB[b],4)}, {vr(vVO)}, {sr(R_WS,4)}, {sr(sU)} offen offset:1024 sc1", vm=("v", i))
    a(f"buffer_load_dwordx4 {vr(VB[b]+4,4)}, {vr(vVO)}, {sr(R_WS,4)}, {sr(sU)} offen offset:1536 sc1", vm=("v", i))
    a(f"""s_mov_b64 exec, -1
          s_add_u32 {sr(sIT)}, {sr(sIT)}, 8192
          s_and_b32 {sr(sIT)}, {sr(sIT)}, 0x1ffff""")


def f1_addr(d, tmp):
    a(f"""v_lshrrev_b32 {vr(d)}, 1, {vr(vL31)}
          v_and_b32 {vr(tmp)}, 1, {vr(vL)}
          v_lshlrev_b32 {vr(tmp)}, 7, {vr(tmp)}
          v_lshl_add_u32 {vr(d)}, {vr(d)}, 11, {vr(tmp)}""")


def f1_load(d, ad):
    return f"buffer_load_dwordx4 {vr(d,4)}, {vr(ad)}, {sr(R_WS,4)}, {sr(sF1)} offen sc1"


a.label(NAME + "_kernel")
a(f"""s_cmp_ge_u32 s2, 256
      s_cbranch_scc1 L_end
      s_load_dwordx16 s[4:19], s[0:1], 0
      s_load_dwordx4 s[20:23], s[0:1], 64
      s_load_dwordx2 s[24:25], s[0:1], 80""")
stamp("start")
a(f"""v_lshrrev_b32 v1, 6, v0
      v_and_b32 {vr(vL)}, 63, v0
      v_readfirstlane_b32 {sr(sW)}, v1
      v_bfe_u32 {vr(vHH)}, v0, 5, 1
      v_and_b32 {vr(vL31)}, 31, v0
      v_bfe_u32 v1, v0, 4, 1
      v_and_b32 v2, 3, v0
      v_lshlrev_b32 v2, 3, v2
      v_lshl_add_u32 {vr(vTR)}, v1, 5, v2
      s_and_b32 {sr(sWQ)}, {sr(sW)}, 3
      s_bfe_u32 {sr(sT[0])}, s2, 0x20001
      s_bfe_u32 {sr(sT[1])}, s2, 0x20003
      s_lshl_b32 {sr(sT[0])}, {sr(sT[0])}, 2
      s_add_u32 {sr(sRB)}, {sr(sT[0])}, {sr(sT[1])}
      s_and_b32 {sr(sT[0])}, s2, 1
      s_lshr_b32 {sr(sT[1])}, s2, 5
      s_lshl_b32 {sr(sT[0])}, {sr(sT[0])}, 3
      s_add_u32 {sr(sCB)}, {sr(sT[0])}, {sr(sT[1])}
      s_cmp_ge_u32 {sr(sW)}, 4
      s_cbranch_scc1 L_C""")

role[0] = "H"
hVXE, hVXO, hVW, hVQ, hV1 = 150, 151, 152, 153, 154
hGO, hF1 = 158, 159
hT = [162, 163, 164, 165]
hP = 168
sXB, sWB, sLX, sLW, sA, sB_ = sT[0], sT[1], sT[2], sT[3], sT[4], sT[5]
if OPT["rot"] == 0:
    a(f"s_mov_b32 {sr(sROT)}, 0")
elif OPT["rot"] == 1:
    a(f"""s_lshl_b32 {sr(sA)}, {sr(sRB)}, 1
          s_add_u32 {sr(sA)}, {sr(sA)}, {sr(sCB)}
          s_and_b32 {sr(sROT)}, {sr(sA)}, 7""")
elif OPT["rot"] == 2:
    a(f"""s_add_u32 {sr(sA)}, {sr(sRB)}, {sr(sCB)}
          s_and_b32 {sr(sA)}, {sr(sA)}, 1
          s_lshl_b32 {sr(sROT)}, {sr(sA)}, 2""")
elif OPT["rot"] == 4:
    a(f"s_and_b32 {sr(sROT)}, s2, 7")
elif OPT["rot"] == 5:
    a(f"s_and_b32 {sr(sROT)}, s2, 6")
elif OPT["rot"] == 3:
    a(f"""s_add_u32 {sr(sA)}, {sr(sRB)}, {sr(sCB)}
          s_and_b32 {sr(sA)}, {sr(sA)}, 3
          s_lshl_b32 {sr(sROT)}, {sr(sA)}, 1""")
a(f"""v_lshrrev_b32 {vr(hT[0])}, 4, {vr(vL)}
      v_and_b32 {vr(hVXE)}, 7, {vr(vL)}
      v_xor_b32 {vr(hVXE)}, {vr(hVXE)}, {vr(hT[0])}
      v_lshlrev_b32 {vr(hVXE)}, 4, {vr(hVXE)}
      v_lshrrev_b32 {vr(hT[0])}, 3, {vr(vL)}
      v_lshl_add_u32 {vr(hVXE)}, {vr(hT[0])}, 10, {vr(hVXE)}
      v_xor_b32 {vr(hVXO)}, 64, {vr(hVXE)}
      s_lshl_b32 {sr(sXB)}, {sr(sRB)}, 2
      s_add_u32 {sr(sXB)}, {sr(sXB)}, {sr(sWQ)}
      s_lshl_b32 {sr(sXB)}, {sr(sXB)}, 15
      s_lshl_b32 {sr(sLX)}, {sr(sWQ)}, 12
      s_lshl_b32 {sr(sLW)}, {sr(sWQ)}, 11
      s_and_b32 {sr(sA)}, {sr(sCB)}, 1
      s_add_u32 {sr(sA)}, {sr(sA)}, 1
      s_lshl_b32 {sr(sA)}, {sr(sA)}, 10
      s_lshr_b32 {sr(sB_)}, {sr(sCB)}, 1
      s_lshl_b32 {sr(sB_)}, {sr(sB_)}, 7
      s_add_u32 {sr(sA)}, {sr(sA)}, {sr(sB_)}
      s_mul_i32 {sr(sWB)}, {sr(sWQ)}, {16*3072}
      s_add_u32 {sr(sWB)}, {sr(sWB)}, {sr(sA)}""")
wdma_voff(hVW, 3072, hT[0])
a(f"""s_mov_b32 {sr(R_X+2)}, {2048*512*2}
      s_mov_b32 {sr(R_X+3)}, 0x20000
      s_mov_b32 {sr(R_WQKV+2)}, {512*1536*2}
      s_mov_b32 {sr(R_WQKV+3)}, 0x20000
      s_waitcnt lgkmcnt(0)
      s_mov_b64 {sr(R_X,2)}, {sr(P_X,2)}
      s_mov_b64 {sr(R_WQKV,2)}, {sr(P_WQKV,2)}""")
if OPT["stamps"]:
    a("s_memtime s[0:1]")


def rotc(c):
    a(f"""s_add_u32 {sr(sB_)}, {sr(sROT)}, {c}
          s_and_b32 {sr(sB_)}, {sr(sB_)}, 7""")


def issue_chunk(c):
    base = (c % 6) * SLOT
    rotc(c)
    a(f"s_lshl_b32 {sr(sA)}, {sr(sB_)}, 7")
    for i in range(4):
        pre = f"s_add_u32 {sr(sA)}, {sr(sA)}, {sr(sXB) if i == 0 else 8192}"
        dma(hVXO if i & 1 else hVXE, R_X, sA, (sLX, base + i * 1024), ("c", c), pre)
    a(f"s_mul_i32 {sr(sA)}, {sr(sB_)}, {64*3072}")
    for i in range(2):
        pre = f"s_add_u32 {sr(sA)}, {sr(sA)}, {sr(sWB) if i == 0 else 8*3072}"
        dma(hVW, R_WQKV, sA, (sLW, base + 16384 + i * 1024), ("c", c), pre)


sQB, s1B, sLQ, sL1 = 2, 11, 8, 9


def issue_wq(half):
    for c in range(4 * half, 4 * half + 4):
        rotc(c)
        a(f"s_mul_i32 {sr(sA)}, {sr(sB_)}, {64*3072}")
        dma(hVQ, R_WQKV, sA, (sLQ, L_WQ + c * 4096), "wq", f"s_add_u32 {sr(sA)}, {sr(sA)}, {sr(sQB)}")


def issue_w1(c):
    rotc(c)
    a(f"s_mul_i32 {sr(sA)}, {sr(sB_)}, {64*2752}")
    for p in range(3):
        dma(hV1 + p, R_W1, sA, (sL1, L_W1[c] + p * 1024), ("w1", c), f"s_add_u32 {sr(sA)}, {sr(sA)}, {sr(s1B)}" if p == 0 else None)


def h_setup():
    u = sT[6]
    other_srds()
    a(f"""s_mul_i32 {sr(sQB)}, {sr(sWQ)}, {16*3072}
          s_lshl_b32 {sr(u)}, {sr(sCB)}, 6
          s_add_u32 {sr(sQB)}, {sr(sQB)}, {sr(u)}
          s_mul_i32 {sr(s1B)}, {sr(sWQ)}, {16*2752}
          s_lshl_b32 {sr(u)}, {sr(sT0)}, 6
          s_add_u32 {sr(s1B)}, {sr(s1B)}, {sr(u)}
          s_lshl_b32 {sr(sLQ)}, {sr(sWQ)}, 10
          s_mul_i32 {sr(sL1)}, {sr(sWQ)}, 3072
          v_lshrrev_b32 {vr(hT[0])}, 2, {vr(vL)}
          v_mul_u32_u24 {vr(hT[0])}, 3072, {vr(hT[0])}
          v_and_b32 {vr(hVQ)}, 3, {vr(vL)}
          v_lshl_add_u32 {vr(hVQ)}, {vr(hVQ)}, 4, {vr(hT[0])}""")
    for p in range(3):
        a(f"""v_add_u32 {vr(hT[0])}, {64*p}, {vr(vL)}
              v_mul_u32_u24 {vr(hT[1])}, 171, {vr(hT[0])}
              v_lshrrev_b32 {vr(hT[1])}, 11, {vr(hT[1])}
              v_mul_u32_u24 {vr(hT[2])}, {2752 - 192}, {vr(hT[1])}
              v_lshl_add_u32 {vr(hV1+p)}, {vr(hT[0])}, 4, {vr(hT[2])}""")
    att_addr_s(18, 19)
    att_addr_v(hT[0])
    att_init()
    o_zero()
    f1_addr(hF1, hT[0])
    a(f"""v_and_b32 {vr(hGO)}, 15, {vr(vL)}
          v_lshlrev_b32 {vr(hGO)}, 2, {vr(hGO)}""")


UP = OPT["up"]
filler += record(h_setup)
stamp("hk")
issue_chunk(0)
fill[0] = OPT.get("fill", 12)
for c in range(1, UP):
    issue_chunk(c)
emit(filler)
filler.clear()
stamp("hup")
jobs = [(max(0, c - 5), ("c", c), lambda c=c: issue_chunk(c)) for c in range(UP, 8)]
jobs += [(3, ("q", 0), lambda: issue_wq(0)), (4, ("q", 1), lambda: issue_wq(1))]
jobs += [(g, ("w", c), lambda c=c: issue_w1(c)) for c, g in enumerate([4, 5, 5, 6, 6, 7, 7, 8])]


def run_jobs(upto):
    while any(j[1] == upto for j in jobs):
        jobs.pop(0)[2]()


goload = f"buffer_load_dword {vr(hP)}, {vr(hGO)}, {sr(R_DBG,4)}, 0 offen sc1"
for n in range(8):
    stamp(f"hw{n}")
    a.wait(vm=("c", n))
    stamp(f"ha{n}")
    a("s_barrier")
    if n == 7:
        a("s_mov_b64 exec, 0xffff")
        a(goload, vm="go")
        a("s_mov_b64 exec, -1")
    if jobs[0][0] <= n:
        jobs.pop(0)[2]()
    stamp(f"hi{n}")
a("s_barrier")
stamp("bar8")
run_jobs(("q", 1))
run_jobs(("w", 1))
a.wait(vm=["wq", "go"])
a("s_mov_b64 exec, 0xffff")
poll(goload, 1, hP, first_done=True)
a("s_mov_b64 exec, -1")
stamp("h8b")
a("s_barrier")
run_jobs(("w", OPT.get("j8", 3)))
a.wait(vm=("w1", 1))
stamp("h9")
a("s_barrier")
a("s_barrier")
run_jobs(("w", OPT.get("j9", 5)))
a.wait(vm=("w1", 3))
stamp("h10")
a("s_barrier")
run_jobs(("w", 7))
a("s_mov_b32 exec_hi, 0")
a(f1_load(hP, hF1), vm="f1")
a("s_mov_b64 exec, -1")
a.wait(vm=("w1", 7))
stamp("h11")
a("s_barrier")
stamp("bar11")
q_reads()
a.wait(lg="all")
a("s_barrier")
a.wait(vm="all")
a("s_mov_b32 exec_hi, 0")
poll(f1_load(hP, hF1), 4, hP, first_done=True)
a("s_mov_b64 exec, -1")
stamp("f1seen")
kvload(0)
kvload(1)
kvload(2)
if OPT["prio"]:
    a("s_setprio 2")
a.wait(vm="all")
a("s_branch L_ATT")

a.label("L_C")
role[0] = "C"
a.reset_counts()
XR = lambda s: 4 * s
cACC = [160, 176, 192]
cSET = [128 + 8 * j for j in range(4)]
cSUM, cSQ, cSEL = 208, [212, 216], 244
cXa, cWa, cRS = 224, [228, 232], 236
cXA, cWP, cVO, cR = 240, [224, 228], 220, 248
cKC = [192, 196]
cT = [249, 250]
if OPT.get("cprio", 0):
    a("s_setprio 1")
a(f"""v_bfe_u32 {vr(cT[0])}, {vr(vL)}, 1, 3
      v_xor_b32 {vr(cT[0])}, {vr(cT[0])}, {vr(vHH)}
      v_lshlrev_b32 {vr(cT[0])}, 4, {vr(cT[0])}
      v_lshl_add_u32 {vr(cXA)}, {vr(vL31)}, 7, {vr(cT[0])}
      s_mul_i32 {sr(sT[0])}, {sr(sWQ)}, {4096 + 32}
      v_xor_b32 {vr(cXA)}, {sr(sT[0])}, {vr(cXA)}
      v_xor_b32 {vr(cXA+1)}, 32, {vr(cXA)}
      v_xor_b32 {vr(cXA+2)}, 64, {vr(cXA)}
      v_xor_b32 {vr(cXA+3)}, 0x60, {vr(cXA)}""")
tr_addr128(cWP[0], cWP[1], 8, cT[0])
a(f"s_lshl_b32 {sr(sT[0])}, {sr(sWQ)}, 11")
for t in range(2):
    a(f"v_add_u32 {vr(cWP[t])}, {sr(sT[0])}, {vr(cWP[t])}")
    for j in range(1, 4):
        a(f"v_xor_b32 {vr(cWP[t]+j)}, {2048*j}, {vr(cWP[t])}")
make_sel(cSEL, cT[0])
a(f"""v_mov_b32 {vr(cWa[1]+2)}, 0
      v_mov_b32 {vr(cWa[1]+3)}, 0
      v_mov_b32 {vr(cRS)}, 0
      v_mov_b32 {vr(cRS+1)}, 0
      v_mov_b32 {vr(cRS+2)}, 0x3f803f80
      v_mov_b32 {vr(cRS+3)}, 0x3f80
      v_lshlrev_b32 v221, 4, {vr(vL31)}
      v_add_u32 v221, {L_CSP}, v221
      s_lshl_b32 {sr(sT[0])}, {sr(sWQ)}, 2
      v_add_u32 v222, {sr(sT[0])}, v221
      s_add_u32 {sr(sT[0])}, {sr(sT[0])}, {L_FLG}
      v_mov_b32 {vr(cT[0])}, {sr(sT[0])}
      ds_write_b32 {vr(cT[0])}, {vr(cRS)}
      s_waitcnt lgkmcnt(0)""")
if OPT["stamps"]:
    a("s_memtime s[0:1]")
srd(R_X, P_X, 2048 * 512 * 2)
other_srds()
att_addr_s(sT[0], sT[1])
a(f"""s_lshl_b32 {sr(sHS)}, {sr(sRB)}, 2
      s_add_u32 {sr(sHS)}, {sr(sHS)}, {sr(sWQ)}
      s_mul_i32 {sr(sHS)}, {sr(sHS)}, {86*1024}
      s_lshl_b32 {sr(sT[0])}, {sr(sT0)}, 11
      s_add_u32 {sr(sHS)}, {sr(sHS)}, {sr(sT[0])}
      s_add_u32 {sr(sHS)}, {sr(sHS)}, {WS_H}""")
a(f"""s_cmp_lg_u32 {sr(sWQ)}, 0
      s_cbranch_scc1 L_C0
      s_cmp_lg_u32 {sr(sRB)}, {sr(sCB)}
      s_cbranch_scc1 L_C1
      s_and_b32 {sr(sT[0])}, {sr(sLINE)}, 0xfffff800
      v_lshrrev_b32 v1, 2, {vr(vL)}
      v_and_b32 v3, 3, {vr(vL)}
      v_lshlrev_b32 v3, 4, v3
      v_lshl_add_u32 v1, v1, 7, v3
      v_mov_b32 v4, 0
      v_mov_b32 v5, 0
      v_mov_b32 v6, 0
      v_mov_b32 v7, 0
      buffer_store_dwordx4 v[4:7], v1, {sr(R_WS,4)}, {sr(sT[0])} offen sc1
      s_lshl_b32 {sr(sT[0])}, {sr(sRB)}, 2
      s_waitcnt vmcnt(0)
      s_mov_b64 exec, 1
      v_mov_b32 v3, 1
      buffer_store_dword v3, off, {sr(R_DBG,4)}, {sr(sT[0])} sc1
      s_mov_b64 exec, -1
      s_branch L_C1""")
a.label("L_C0")
a(f"""s_cmp_lg_u32 {sr(sWQ)}, 1
      s_cbranch_scc1 L_C1
      s_getpc_b64 s[74:75]""")
a.label("L_pc")
a(f"""s_sub_u32 s74, s74, L_pc-{NAME}_kernel
      s_subb_u32 s75, s75, 0
      s_lshr_b32 {sr(sT[0])}, s2, 3
      s_lshl_b32 {sr(sT[0])}, {sr(sT[0])}, 10
      v_lshlrev_b32 v1, 7, {vr(vL)}
      v_add_u32 v1, {sr(sT[0])}, v1
      v_min_u32 v1, L_end-{NAME}_kernel, v1
      s_mov_b64 exec, 0xff
      global_load_dword {vr(vDUM)}, v1, s[74:75]""")
if OPT["touch"]:
    a.comment("first touch of the pages used later in the launch")
    a(f"""v_lshlrev_b32 v1, 21, {vr(vL)}
          s_mov_b64 exec, 0x3f
          buffer_load_dword {vr(vDUM)}, v1, {sr(R_WS,4)}, 0 offen sc1
          s_mov_b64 exec, 1""")
    for r in (R_W1, R_W2, R_WO, R_B1, R_B2, R_OUT):
        a(f"buffer_load_dword {vr(vDUM)}, off, {sr(r,4)}, 0")
a("s_mov_b64 exec, -1")
a.label("L_C1")
a.reset_counts()
a(f"""s_lshr_b32 {sr(sT[0])}, {sr(sCB)}, 1
      s_lshl_b32 {sr(sT[0])}, {sr(sT[0])}, 19
      s_lshl_b32 {sr(sT[1])}, {sr(sRB)}, 2
      s_add_u32 {sr(sT[1])}, {sr(sT[1])}, {sr(sWQ)}
      s_lshl_b32 {sr(sT[1])}, {sr(sT[1])}, 11
      s_add_u32 {sr(sT[2])}, {sr(sT[0])}, {sr(sT[1])}
      s_bitcmp1_b32 {sr(sCB)}, 0
      s_cbranch_scc1 L_CV""")


def kv_path(isV):
    px = [Ptr(cXA + j) for j in range(4)]
    pw = [[Ptr(cWP[t] + j) for j in range(4)] for t in range(2)]

    def rx(n, j):
        rd128(XR(4 * n + j), px[j], (n % 6) * SLOT, ("r", n, j))

    def rw(n, j, t):
        for u in range(0 if OPT.get("norw") and n > 0 else 2):
            tr(cSET[j] + 4 * t + 2 * u, pw[t][j], (n % 6) * SLOT + 16384 + u * 512, ("r", n, j))

    def main(n, j, t):
        if OPT.get("nomain") and n > 0:
            return
        c = "0" if (n == 0 and j == 0) else cACC[t]
        if isV:
            mfma32(cACC[t], XR(4 * n + j), cSET[j] + 4 * t, c)
        else:
            mfma32(cACC[t], cSET[j] + 4 * t, XR(4 * n + j), c)

    def s16(n, j):
        mfma16(cSUM, cSEL, XR(4 * n + j), "0" if (n == 0 and j == 0) else cSUM)

    def s4(n, j, h):
        mfma4(cSQ[h], XR(4 * n + j) + 2 * h, "0" if (n == 0 and j == 0) else cSQ[h])

    def small(n, j):
        if OPT.get("nosmall") and n > 0:
            return
        s16(n, j)
        s4(n, j, 0)
        s4(n, j, 1)

    if isV:
        a(f"""v_bfe_u32 {vr(cT[0])}, {vr(vL)}, 4, 1
              v_lshlrev_b32 {vr(cT[0])}, 17, {vr(cT[0])}
              v_lshl_add_u32 {vr(cT[0])}, {vr(vHH)}, 8, {vr(cT[0])}
              v_and_b32 {vr(cVO)}, 15, {vr(vL)}
              v_lshl_add_u32 {vr(cVO)}, {vr(cVO)}, 4, {vr(cT[0])}""")
    else:
        a.comment("key slot = lane with bits 2 and 3 swapped")
        a(f"""v_and_b32 {vr(cVO)}, 0x33, {vr(vL)}
              v_bfe_u32 {vr(cT[0])}, {vr(vL)}, 2, 1
              v_lshl_add_u32 {vr(cVO)}, {vr(cT[0])}, 3, {vr(cVO)}
              v_bfe_u32 {vr(cT[0])}, {vr(vL)}, 3, 1
              v_lshl_add_u32 {vr(cVO)}, {vr(cT[0])}, 2, {vr(cVO)}
              v_lshlrev_b32 {vr(cVO)}, 4, {vr(cVO)}""")
    def rd(n, j):
        rx(n, j)
        rw(n, j, 0)
        rw(n, j, 1)

    for n in range(8):
        stamp(f"ca{n}")
        a("s_barrier")
        stamp(f"cp{n}")
        if n == 0:
            stamp("c0")
        if n == 7:
            stamp("c7")
        if n == 0:
            rd(0, 0)
            rd(0, 1)
            rd(0, 2)
        else:
            main(n - 1, 2, 0)
            rx(n, 0)
            rw(n, 0, 0)
            main(n - 1, 2, 1)
            rw(n, 0, 1)
            main(n - 1, 3, 0)
            rx(n, 1)
            rw(n, 1, 0)
            main(n - 1, 3, 1)
            rw(n, 1, 1)
            for j in range(4):
                s16(n - 1, j)
                if j == 0:
                    rx(n, 2)
                elif j < 3:
                    rw(n, 2, j - 1)
                s4(n - 1, j, 0)
                s4(n - 1, j, 1)
        a.wait(lg=("r", n, 0))
        main(n, 0, 0)
        rx(n, 3)
        rw(n, 3, 0)
        main(n, 0, 1)
        rw(n, 3, 1)
        for t in range(2):
            mfma16(cKC[t], cSEL, cSET[0] + 4 * t, "0" if n == 0 else cKC[t])
        a.wait(lg=("r", n, 1))
        if n < 7:
            main(n, 1, 0)
            main(n, 1, 1)
            a.wait(lg=("r", n, 3))
    small(7, 0)
    small(7, 1)
    a.wait(lg=("r", 7, 3))
    s16(7, 2)
    a(f"ds_write_b32 v222, {vr(cKC[0])}", lg="k")
    a(f"ds_write_b32 v222, {vr(cKC[1])} offset:512", lg="k")
    s4(7, 2, 0)
    s4(7, 2, 1)
    small(7, 3)
    main(7, 1, 0)
    a.wait(lg="all")
    a("s_barrier")
    a("s_setprio 1")
    CS = cSET[0]
    T0, T1 = cT
    T2, T3, T4 = 223, 221, 222
    a(f"ds_read_b128 {vr(CS,4)}, {vr(T3)}", lg="cs")
    a(f"ds_read_b128 {vr(CS+4,4)}, {vr(T3)} offset:512", lg="cs")
    ops = [f"v_and_b32 {vr(T0)}, 3, {vr(vL)}",
           f"v_cmp_eq_u32 vcc, 1, {vr(T0)}",
           f"v_cmp_eq_u32 s[76:77], 2, {vr(T0)}",
           f"v_cmp_eq_u32 s[78:79], 3, {vr(T0)}"]
    ops += [f"v_add_f32 {vr(cSQ[0]+i)}, {vr(cSQ[0]+i)}, {vr(cSQ[1]+i)}" for i in range(4)]
    ops += [f"v_cndmask_b32 {vr(T0)}, {vr(cSQ[0])}, {vr(cSQ[0]+1)}, vcc",
            f"v_cndmask_b32 {vr(T0)}, {vr(T0)}, {vr(cSQ[0]+2)}, s[76:77]",
            f"v_cndmask_b32 {vr(T0)}, {vr(T0)}, {vr(cSQ[0]+3)}, s[78:79]",
            f"v_mov_b32 {vr(T1)}, {vr(T0)}",
            f"v_mul_f32 {vr(T2)}, {f32(1/512)}, {vr(cSUM)}",
            f"v_cvt_pk_bf16_f32 {vr(cXa)}, -{vr(T2)}, -{vr(T2)}",
            f"v_permlane32_swap_b32 {vr(T0)}, {vr(T1)}",
            f"v_add_f32 {vr(T0)}, {vr(T0)}, {vr(T1)}",
            f"v_mul_f32 {vr(T0)}, {f32(1/512)}, {vr(T0)}",
            f"v_fma_f32 {vr(T0)}, -{vr(T2)}, {vr(T2)}, {vr(T0)}",
            f"v_max_f32 {vr(T0)}, 0, {vr(T0)}",
            f"v_cvt_pk_bf16_f32 {vr(T0)}, {vr(T0)}, {vr(T0)}",
            f"v_lshlrev_b32 {vr(T0)}, 16, {vr(T0)}",
            f"v_add_f32 {vr(T0)}, {f32(1e-5)}, {vr(T0)}",
            f"v_cvt_pk_bf16_f32 {vr(T0)}, {vr(T0)}, {vr(T0)}",
            f"v_lshlrev_b32 {vr(T0)}, 16, {vr(T0)}",
            f"v_sqrt_f32 {vr(T0)}, {vr(T0)}",
            "WAITCS",
            f"v_add_f32 {vr(CS)}, {vr(CS)}, {vr(CS+1)}",
            f"v_cvt_pk_bf16_f32 {vr(cXa+1)}, -{vr(T2)}, {vr(T0)}",
            f"v_and_b32 {vr(T0)}, 0xffff0000, {vr(cXa+1)}",
            f"v_rcp_f32 {vr(cR)}, {vr(T0)}",
            f"v_add_f32 {vr(CS+2)}, {vr(CS+2)}, {vr(CS+3)}",
            f"v_add_f32 {vr(CS)}, {vr(CS)}, {vr(CS+2)}"]
    ops += split3_ops(cR, "0", cXa + 2, cXa + 3, T0, T1, None)
    ops += [f"s_lshl_b32 {sr(sT[0])}, {sr(sWQ)}, 9",
            f"s_add_u32 {sr(sT[0])}, {sr(sT[0])}, {L_STATS - L_CSP}",
            f"v_add_u32 {vr(T3)}, {sr(sT[0])}, {vr(T3)}",
            f"v_add_u32 {vr(T4)}, -1, {vr(vHH)}",
            "WSTAT"]
    ops += [f"v_and_b32 {vr(cXa+i)}, {vr(cXa+i)}, {vr(T4)}" for i in range(4)]
    ops += [f"v_mov_b64 {vr(cWa[0]+2,2)}, 0"]
    ops += split3_ops(CS, "0", cWa[0], cWa[0] + 1, T0, T1, None)
    rest = [(1, 1), (2, 0), (2, 1), (3, 0), (3, 1)]
    for i, op in enumerate(ops):
        if i % 6 == 2 and rest:
            j, t = rest.pop(0)
            main(7, j, t)
        if op == "WAITCS":
            a.wait(lg="cs")
        elif op == "WSTAT":
            a(f"ds_write_b32 {vr(T3)}, {vr(cXa+1)} offset:4", lg="st")
        else:
            a(op)
    assert not rest
    a(f"""v_add_f32 {vr(CS+4)}, {vr(CS+4)}, {vr(CS+5)}
          v_add_f32 {vr(CS+6)}, {vr(CS+6)}, {vr(CS+7)}""")
    if isV:
        mfma32(cACC[2], cXa, cRS, "0")
        mfma32(cACC[0], cXa, cWa[0], cACC[0])
    else:
        mfma32(cACC[0], cWa[0], cXa, cACC[0])
    a(f"v_add_f32 {vr(CS+4)}, {vr(CS+4)}, {vr(CS+6)}")
    emit(split3_ops(CS + 4, "0", cWa[1], cWa[1] + 1, T0, T1, None))
    if isV:
        mfma32(cACC[1], cXa, cWa[1], cACC[1])
    else:
        mfma32(cACC[1], cWa[1], cXa, cACC[1])
    for t in range(2):
        for u in range(2):
            b = cACC[t] + 8 * u
            for i in range(8):
                a(f"v_mul_f32 {vr(b+i)}, {vr(b+i)}, {vr(cACC[2]+8*u+i) if isV else vr(cR)}")
            p = cSET[0] + 8 * t + 4 * u
            for i in range(4):
                a(f"v_cvt_pk_bf16_f32 {vr(p+i)}, {vr(b+2*i)}, {vr(b+2*i+1)}")
            if isV:
                if u == 0:
                    a(f"s_add_u32 {sr(sT[3])}, {sr(sT[2])}, {2*t*131072}")
                a(f"buffer_store_dwordx4 {vr(p,4)}, {vr(cVO)}, {sr(R_WS,4)}, {sr(sT[3])} offen offset:{1024+512*u} sc1", vm="kv")
            else:
                a(f"s_add_u32 {sr(sT[3])}, {sr(sT[2])}, {(2*t+u)*131072}")
                a(f"buffer_store_dwordx4 {vr(p,4)}, {vr(cVO)}, {sr(R_WS,4)}, {sr(sT[3])} offen sc1", vm="kv")


kv_path(False)
a("s_branch L_C2")
a.label("L_CV")
a.reset_counts()
kv_path(True)
a.label("L_C2")
stamp("kvst")
cQA, RING = 208, 128
cWF = [208, 212, 216]
cPS, cPA = cWa[1], vDUM
cQC, cFB, cFC = 160, 204, [0, 4, 8]
cF1A, cF1, cBI, cP3, cFL = 64, 68, 72, 76, 88
tr_addr(cXA, 8, 64, cT[0])
a(f"""s_lshl_b32 {sr(sT[0])}, {sr(sWQ)}, 10
      s_add_u32 {sr(sT[0])}, {sr(sT[0])}, {L_WQ}
      v_add_u32 {vr(cXA)}, {sr(sT[0])}, {vr(cXA)}""")
for j in range(1, 4):
    a(f"v_xor_b32 {vr(cXA+j)}, {1024*j}, {vr(cXA)}")
pq = [Ptr(cXA + j, L_WQ) for j in range(4)]
pf = [Ptr(cXA + j, L_W1[0]) for j in range(4)]
a(f"s_setprio {OPT.get('cp2', 0)}")
a("s_barrier")
stamp("c8b")
LA = 6


def t_read(i):
    if i >= 128:
        return
    for u in range(2):
        if i < 32:
            tr(RING + 4 * (i & 7) + 2 * u, pq[i & 3], L_WQ + (i >> 2) * 4096 + u * 256, ("tw", i))
        else:
            k, t = divmod(i - 32, 3)
            tr(RING + 4 * (i & 7) + 2 * u, pf[k & 3], L_W1[k >> 2] + t * 64 + u * 768, ("tw", i))


def sum4(p):
    return [f"v_add_f32 {vr(p)}, {vr(p)}, {vr(p+1)}", f"v_add_f32 {vr(p+2)}, {vr(p+2)}, {vr(p+3)}", f"v_add_f32 {vr(p)}, {vr(p)}, {vr(p+2)}"]


side = []


def side_ops(n):
    for _ in range(n):
        if not side:
            return
        op = side.pop(0)
        if isinstance(op, tuple):
            a.wait(lg=op[1])
        elif callable(op):
            op()
        elif op:
            a(op)


F1S, B11 = OPT.get("f1s", 20), OPT.get("b11", 64)
at = {}


def sched(i, ops):
    at.setdefault(i, []).extend(ops)


sched(2, record(lambda: tr_addr(cFB, 8, 192, cT[0])))
for j in range(4):
    sched(5 + 2 * j, [f"s_xor_b32 {sr(20+j)}, {sr(sWQ)}, {j}", f"s_mul_i32 {sr(20+j)}, {sr(20+j)}, 3072", f"s_add_u32 {sr(20+j)}, {sr(20+j)}, {L_W1[0]}"])
    sched(22 + j, [f"v_add_u32 {vr(cXA+j)}, {sr(20+j)}, {vr(cFB)}"])
sched(26, [f"v_lshlrev_b32 {vr(cPA)}, 4, {vr(vL31)}", f"v_add_u32 {vr(cPA)}, {L_CSP + 1024}, {vr(cPA)}",
           f"s_lshl_b32 {sr(sT[0])}, {sr(sWQ)}, 2", f"v_add_u32 {vr(cT[0])}, {sr(sT[0])}, {vr(cPA)}"])
sched(30, [lambda: a(f"ds_write_b32 {vr(cT[0])}, {vr(cQC)}", lg="qc")])
q2 = [lambda: a(f"ds_read_b128 {vr(cPS,4)}, {vr(cPA)}", lg="ps"),
      f"s_lshl_b32 {sr(sT[0])}, {sr(sWQ)}, 10", f"s_add_u32 {sr(sT[0])}, {sr(sT[0])}, {L_QX}", "", "", "", ("W", "ps")]
q2 += sum4(cPS) + split3_ops(cPS, "0", cWa[0], cWa[0] + 1, cT[0], cT[1], None)
q2 += [f"v_lshl_add_u32 {vr(cT[1])}, {vr(vL)}, 4, {sr(sT[0])}",
       lambda: mfma32(cQA, cWa[0], cXa, cQA),
       f"v_mul_f32 {vr(cT[0])}, {f32(0.25*math.log2(math.e))}, {vr(cR)}",
       "", "", "", ""]
q2 += [f"v_mul_f32 {vr(cQA+i)}, {vr(cQA+i)}, {vr(cT[0])}" for i in range(16)]
for u in range(2):
    q2 += [f"v_cvt_pk_bf16_f32 {vr(cQA+4*u+i)}, {vr(cQA+8*u+2*i)}, {vr(cQA+8*u+2*i+1)}" for i in range(4)]
    q2 += [lambda u=u: a(f"ds_write_b128 {vr(cT[1])}, {vr(cQA+4*u,4)} offset:{u*4096}", lg="qx")]
sched(33, q2)
sched(76, record(lambda: att_addr_v(cT[0])) + [f"v_mov_b64 {vr(cWF[k]+2,2)}, 0" for k in range(3)])
sched(84, [x for x in record(o_zero)[6:]])


def late_loads():
    a(f"""s_lshl_b32 {sr(sT[0])}, {sr(sT0)}, 6
          v_lshlrev_b32 {vr(cT[0])}, 1, {vr(vL31)}""")
    for t in range(3):
        a(f"buffer_load_ushort {vr(cBI+t)}, {vr(cT[0])}, {sr(R_B1,4)}, {sr(sT[0])} offen offset:{64*t}", vm="bias")


sched(98, [late_loads] + record(lambda: f1_addr(cF1A, cT[0])))
sched(106, [lambda: (a("s_mov_b32 exec_hi, 0"), a(f1_load(cF1, cF1A), vm="f1"), a("s_mov_b64 exec, -1"))])
sched(112, [f"s_lshl_b32 {sr(sT[0])}, {sr(sWQ)}, 2", f"v_add_u32 {vr(cT[0])}, {sr(sT[0])}, {vr(cPA)}",
            f"s_add_u32 {sr(sT[0])}, {sr(sT[0])}, {L_FLG}", f"v_mov_b32 {vr(cT[1])}, {sr(sT[0])}",
            f"v_mov_b32 {vr(cFL+4)}, {L_FLG}", lambda: a.wait(vm="bias")] + [f"v_lshlrev_b32 {vr(cBI+t)}, 16, {vr(cBI+t)}" for t in range(3)])
sched(119, [lambda t=t: a(f"ds_write_b32 {vr(cT[0])}, {vr(cFC[t])} offset:{512*(t+1)}", lg="fc") for t in range(2)])
sched(122, [lambda: a(f"ds_write_b32 {vr(cT[0])}, {vr(cFC[2])} offset:1536", lg="fc"),
            lambda: a(f"ds_write_b32 {vr(cT[1])}, {vr(cT[1])}", lg="fc")])
sched(123, record(o_zero)[:4])


def part_reads():
    a(f"ds_read_b128 {vr(cFL,4)}, {vr(cFL+4)}", lg="p3")
    for t in range(3):
        a(f"ds_read_b128 {vr(cP3+4*t,4)}, {vr(cPA)} offset:{512*(t+1)}", lg="p3")


sched(125, [part_reads] + record(o_zero)[4:6])
for i in range(LA):
    t_read(i)
for i in range(128):
    a.wait(lg=("tw", i))
    fr = RING + 4 * (i & 7)
    if i < 32:
        mfma32(cQA, fr, XR(i), "0" if i == 0 else cQA)
        cs = (cQC, i == 0) if i % 4 == 0 else None
    else:
        k, t = divmod(i - 32, 3)
        mfma32(cACC[t], fr, XR(k), "0" if k == 0 else cACC[t])
        cs = (cFC[t], k == 3) if (k == 3 or (k >= 4 and k % 4 == 0)) else None
    if i + LA == 32:
        a("s_barrier")
        stamp("c9")
    if i == 33:
        a.wait(lg="qc")
        a("s_barrier")
    if i + LA == 56:
        a("s_barrier")
        stamp("c10")
    if i == B11:
        assert not side and 56 - LA < B11 <= 80 - LA
        a.wait(lg="qx")
        a("s_barrier")
        stamp("c11")
    if i == B11 + 5:
        a("s_barrier")
        a(f"s_setprio {OPT.get('cp3', 3)}")
    stamp(f"i{i}")
    t_read(i + LA)
    side += at.get(i, [])
    side_ops(2)
    if cs:
        mfma16(cs[0], cSEL, fr, "0" if cs[1] else cs[0])
    if i == F1S:
        assert F1S < 26
        a(f"""s_lshl_b32 {sr(sT[3])}, {sr(sWQ)}, 2
              s_add_u32 {sr(sT[3])}, {sr(sT[3])}, {sr(sLINE)}""")
        a.wait(vm="all")
        set_flag(sT[3], cT[1])
        stamp("f1sent")
assert not side
stamp("ffnend")
a("s_setprio 3")
a(f"s_mov_b32 {sr(sT[6])}, {OPT['spin']}")
a.label("L_p3")
a.wait(lg="all")
a(f"""v_min_u32 {vr(cFL)}, {vr(cFL)}, {vr(cFL+1)}
      v_min3_u32 {vr(cFL)}, {vr(cFL)}, {vr(cFL+2)}, {vr(cFL+3)}
      v_cmp_eq_u32 vcc, 0, {vr(cFL)}
      s_nop 1
      s_cmp_eq_u64 vcc, 0
      s_cbranch_scc1 L_p3d""")
part_reads()
a(f"""s_sub_u32 {sr(sT[6])}, {sr(sT[6])}, 1
      s_cmp_lg_u32 {sr(sT[6])}, 0
      s_cbranch_scc1 L_p3""")
a.wait(lg="all")
a.label("L_p3d")
q_reads()
for t in range(3):
    emit(sum4(cP3 + 4 * t) + split3_ops(cP3 + 4 * t, vr(cBI + t), cWF[t], cWF[t] + 1, cT[0], cT[1], None))
    if t:
        mfma32(cACC[t - 1], cWF[t - 1], cXa, cACC[t - 1])
a.wait(vm="all")
a("s_mov_b32 exec_hi, 0")
poll(f1_load(cF1, cF1A), 4, cF1, first_done=True)
a("s_mov_b64 exec, -1")
mfma32(cACC[2], cWF[2], cXa, cACC[2])
att_init()
kvload(0)
kvload(1)
kvload(2)
for t in range(3):
    for u in range(2):
        b = cACC[t] + 8 * u
        for i in range(8):
            a(f"v_max_f32 {vr(b+i)}, 0, {vr(b+i)}")
        for i in range(8):
            a(f"v_mul_f32 {vr(b+i)}, {vr(b+i)}, {vr(b+i)}")
        p = 208 + 8 * t + 4 * u
        for i in range(4):
            a(f"v_cvt_pk_bf16_f32 {vr(p+i)}, {vr(b+2*i)}, {vr(b+2*i+1)}")
        a(f"buffer_store_dwordx4 {vr(p,4)}, {vr(vL16)}, {sr(R_WS,4)}, {sr(sHS)} offen offset:{1024*u} sc1", vm="h")
    if t < 2:
        a(f"s_add_u32 {sr(sHS)}, {sr(sHS)}, 2048")
a.wait(vm=("v", 2), lg="all")

a.label("L_ATT")
role[0] = "HC"
a.reset_counts()
stamp("attst")


def w2dma(lds, tag):
    dma(vWD, R_W2, sW2, lds, tag, f"s_add_u32 {sr(sW2)}, {sr(sW2)}, 16384")


def hload(i):
    if i % 4 == 0:
        a(f"""s_add_u32 {sr(sU2)}, {sr(sKS)}, {i}
              s_min_u32 {sr(sU2)}, {sr(sU2)}, 84
              s_lshl_b32 {sr(sU2)}, {sr(sU2)}, 10
              s_add_u32 {sr(sT[2])}, {sr(sU2)}, {sr(sH0)}""")
    a(f"buffer_load_dwordx4 {vr(HF+4*i,4)}, {vr(vL16)}, {sr(R_WS,4)}, {sr(sT[2])} offen offset:{(i%4)*1024} sc1", vm="hf")


def f2_check():
    a(f"""v_and_b32 {vr(vFL)}, 15, {vr(vL)}
          v_lshlrev_b32 {vr(vFL)}, 7, {vr(vFL)}
          s_and_b32 {sr(sU2)}, {sr(sLINE)}, 0xfffff800
          s_mov_b64 exec, 0xffff""")
    poll(f"buffer_load_dwordx4 {vr(vFP,4)}, {vr(vFL)}, {sr(R_WS,4)}, {sr(sU2)} offen offset:16 sc1", 4, vFP)
    a("s_mov_b64 exec, -1")
    a.vm = []


def l2_touch():
    a.comment("pull a share of the W2 / Wo column block used after the attention into L2")
    a(f"""s_and_b32 {sr(sU)}, {sr(sRB)}, 3
          s_lshl_b32 {sr(sU)}, {sr(sU)}, 1
          s_and_b32 {sr(sU2)}, {sr(sCB)}, 1
          s_add_u32 {sr(sU)}, {sr(sU)}, {sr(sU2)}
          s_lshl_b32 {sr(sU)}, {sr(sU)}, 3
          s_add_u32 {sr(sU)}, {sr(sU)}, {sr(sW)}
          s_lshr_b32 {sr(sU2)}, {sr(sCB)}, 1
          s_lshl_b32 {sr(sU2)}, {sr(sU2)}, 7
          s_mul_i32 {sr(sT[3])}, {sr(sU)}, {22*1024}
          s_add_u32 {sr(sT[3])}, {sr(sT[3])}, {sr(sU2)}
          s_lshl_b32 {sr(sU)}, {sr(sU)}, 13
          s_add_u32 {sr(sU)}, {sr(sU)}, {sr(sU2)}
          v_lshlrev_b32 {vr(vFL)}, 10, {vr(vL)}
          s_mov_b64 exec, 0x3fffff""")
    a(f"buffer_load_dword {vr(vDUM)}, {vr(vFL)}, {sr(R_W2,4)}, {sr(sT[3])} offen", vm="t")
    a("s_mov_b64 exec, 0xff")
    a(f"buffer_load_dword {vr(vDUM)}, {vr(vFL)}, {sr(R_WO,4)}, {sr(sU)} offen", vm="t")
    a("s_mov_b64 exec, -1")


extras = {}


def put(it, tile, slot, fn):
    extras.setdefault((it, tile, slot), []).append(fn)


for it in range(1, 16):
    put(it, 0, 1, lambda it=it: kvload(it + 2))


def f2_signal():
    a(f"""s_cmp_lt_u32 {sr(sW)}, 4
          s_cbranch_scc1 L_nof2
          s_lshl_b32 {sr(sU)}, {sr(sW)}, 2
          s_add_u32 {sr(sU)}, {sr(sU)}, {sr(sLINE)}""")
    assert ("k", 3) not in a.vm and ("k", 4) in a.vm
    set_flag(sU, vFL)
    a(f"s_setprio {2 if OPT['prio'] else 0}")
    a.label("L_nof2")


put(2, 3, 1, f2_signal)
put(3, 2, 2, l2_touch)
F2IT = OPT["f2it"]
put(F2IT, 0, 0, f2_check)
pre = []
for i in range(22):
    pre.append(lambda i=i: hload(i))
    if i % 2 == 1 or i == 0:
        pre.append(lambda i=(i + 1) // 2: w2dma((sLA, i * 8192), "w2a"))
assert len(pre) == 34
slots = [(it, t, sl) for it in range(F2IT, 16) for t, sl in ((0, 2), (1, 0), (1, 2), (2, 2), (3, 2))]
for n, fn in enumerate(pre):
    put(*slots[n], fn)
if OPT["prio"]:
    P1, P0 = OPT.get("p1", 50), OPT.get("p0", 61)
    put(P1 // 4, P1 % 4, 0, lambda: a("s_setprio 1"))
    put(P0 // 4, P0 % 4, 0, lambda: a("s_setprio 0"))


def run_extras(it, tile, slot):
    for fn in extras.get((it, tile, slot), []):
        fn()


def exps(b, lo, hi):
    for i in range(lo, hi):
        a(f"v_exp_f32 {vr(b+i)}, {vr(b+i)}")


a.wait(vm=("k", 0))
mfma32(S[0], KB[0], Q[0], "0")
for t in range(64):
    it, j = t // 4, t % 4
    X, Y = S[t & 1], S[(t + 1) & 1]
    stamp(f"t{t}")
    exps(X, 0, 2)
    if t > 0:
        pit, pj = (t - 1) // 4, (t - 1) % 4
        smf(O[pj], VB[pit % 3] + 4, Y + 8, vIDX)
    run_extras(it, j, 0)
    exps(X, 2, 5)
    if t < 63:
        nit, nj = (t + 1) // 4, (t + 1) % 4
        if nj == 0:
            a.wait(vm=("k", nit))
        mfma32(Y, KB[nit % 3], Q[nj], "0")
    run_extras(it, j, 1)
    exps(X, 5, 11)
    if j == 0:
        a.wait(vm=("v", it))
    smf(O[j], VB[it % 3], X, vIDX)
    run_extras(it, j, 2)
    exps(X, 11, 16)
T = [64 + i for i in range(32)]
a(f"""s_mul_i32 {sr(sU)}, {sr(sW)}, 7168
      s_add_u32 {sr(sU)}, {sr(sU)}, {L_CMB}""")
smf(O[3], VB[15 % 3] + 4, S[1] + 8, vIDX)
stamp("attend")

a(f"""v_add_u32 {vr(T[0])}, {sr(sU)}, {vr(vL16)}
      v_lshl_add_u32 {vr(T[1])}, {vr(vL)}, 2, {sr(sU)}""")
for j in range(1, 4):
    o = (j - 1) * 2304
    a(f"ds_write_b128 {vr(T[0])}, {vr(O[j],4)} offset:{o}", lg="c")
    a(f"ds_write_b128 {vr(T[0])}, {vr(O[j]+4,4)} offset:{o+1024}", lg="c")
    a(f"ds_write_b32 {vr(T[1])}, {vr(O[j]+8)} offset:{o+2048}", lg="c")
for j in range(1, 4):
    a(f"""s_xor_b32 {sr(sU)}, {sr(sW)}, {j}
          s_mul_i32 {sr(sU)}, {sr(sU)}, 7168
          s_add_u32 {sr(sU)}, {sr(sU)}, {L_CMB + (j-1)*2304}
          v_add_u32 {vr(T[2*j])}, {sr(sU)}, {vr(vL16)}
          v_lshl_add_u32 {vr(T[2*j+1])}, {vr(vL)}, 2, {sr(sU)}""")
vB0, vB1, vC0, vC1 = 241, 242, 243, 248
tr_addr128(vB0, vB1, 4, T[8])
a(f"""s_and_b32 {sr(sU)}, {sr(sLA)}, 0xfffff800
      v_add_u32 {vr(vC0)}, {sr(sU)}, {vr(vB0)}
      v_add_u32 {vr(vC1)}, {sr(sU)}, {vr(vB1)}""")
a.wait(vm="all", lg="all")
a("s_barrier")
stamp("barc")
for j in range(1, 4):
    a(f"ds_read_b128 {vr(O[j],4)}, {vr(T[2*j])}", lg=("c", j))
    a(f"ds_read_b128 {vr(O[j]+4,4)}, {vr(T[2*j])} offset:1024", lg=("c", j))
    a(f"ds_read_b32 {vr(O[j]+8)}, {vr(T[2*j+1])} offset:2048", lg=("c", j))
for j in range(1, 4):
    a.wait(lg=("c", j))
    for i in range(9):
        a(f"v_add_f32 {vr(O[0]+i)}, {vr(O[0]+i)}, {vr(O[j]+i)}")
a(f"""v_add_f32 {vr(T[2])}, |{vr(O[0])}|, |{vr(O[0]+1)}|
      v_add_f32 {vr(T[3])}, |{vr(O[0]+2)}|, |{vr(O[0]+3)}|
      v_cmp_nle_f32 vcc, {f32(2.0**-64)}, {vr(O[0]+8)}
      v_add_f32 {vr(T[2])}, |{vr(O[0]+4)}|, {vr(T[2])}
      s_mov_b64 s[76:77], vcc
      v_add_f32 {vr(T[3])}, |{vr(O[0]+5)}|, {vr(T[3])}
      v_cmp_nge_f32 vcc, {f32(2.0**64)}, {vr(O[0]+8)}
      v_add_f32 {vr(T[2])}, |{vr(O[0]+6)}|, {vr(T[2])}
      s_or_b64 s[76:77], s[76:77], vcc
      v_add_f32 {vr(T[3])}, |{vr(O[0]+7)}|, {vr(T[3])}
      v_add_f32 {vr(T[2])}, {vr(T[2])}, {vr(T[3])}
      v_cmp_nge_f32 vcc, {f32(2.0**126)}, {vr(T[2])}
      s_or_b64 s[76:77], s[76:77], vcc""")
a("s_branch L_SLOW" if OPT["force_slow"] else "s_cbranch_scc1 L_SLOW")
a.label("L_NORM")
a(f"v_rcp_f32 {vr(T[2])}, {vr(O[0]+8)}")
WR = 32
FA = [96, 112]


pC = [Ptr(vC0), Ptr(vC1)]


def w_read(i, addr, tag):
    for ct in range(2):
        for u in range(2):
            tr(WR + 8 * (i & 3) + 4 * ct + 2 * u, pC[ct], addr + u * 1024, (tag, i))


def f_addr(i):
    return i * 8192 if i < 19 else L_B2 + (i - 19) * 8192


w_read(0, 0, "f")
for i in range(8):
    a(f"v_mul_f32 {vr(O[0]+i)}, {vr(O[0]+i)}, {vr(T[2])}")
for i in range(4):
    a(f"v_cvt_pk_bf16_f32 {vr(T[4]+i)}, {vr(O[0]+2*i)}, {vr(O[0]+2*i+1)}")
a(f"buffer_store_dwordx4 {vr(T[4],4)}, {vr(vL16)}, {sr(R_WS,4)}, {sr(sO)} offen sc1", vm="o")
stamp("ost")
w_read(1, 8192, "f")
a("s_barrier")

vOUT = T[8]
vX, vB2 = 128, 136
sWoS = sT[3]
a(f"""s_lshl_b32 {sr(sWoS)}, {sr(sW)}, 13
      s_and_b32 {sr(sU2)}, {sr(sOUT)}, 0x3ff
      s_add_u32 {sr(sWoS)}, {sr(sWoS)}, {sr(sU2)}
      s_sub_u32 {sr(sWoS)}, {sr(sWoS)}, 0x10000""")


def wodma(p):
    dma(vWD, R_WO, sWoS, (sLA, L_WO + p * 8192), "wo", f"s_add_u32 {sr(sWoS)}, {sr(sWoS)}, 0x10000")


def fstep(i):
    a.wait(lg=("f", i))
    mfma32(FA[0], WR + 8 * (i & 3), HF + 4 * i, "0" if i == 0 else FA[0])


def fstep2(i):
    mfma32(FA[1], WR + 8 * (i & 3) + 4, HF + 4 * i, "0" if i == 0 else FA[1])


vPW, vPR = T[10], T[14]
vSD = T[3]
dq = [lambda i=i: w2dma((sLA, f_addr(i)), "b") for i in range(12, 22)] + [lambda p=p: wodma(p) for p in range(8)]
for i in range(12):
    fstep(i)
    if i == 0:
        dq.pop(0)()
    if i + 2 < 12:
        w_read(i + 2, f_addr(i + 2), "f")
    fstep2(i)
    dq.pop(0)()
    if i == 5:
        a(f"s_cmp_lg_u32 {sr(sW)}, 0")
        a.wait(vm="o")
        a("s_barrier")
        a("s_cbranch_scc1 L_nof3")
        set_flag(sLINE, T[2], 32)
        a.label("L_nof3")
        stamp("a6")
stamp("aend")
a(f"""v_and_b32 {vr(vFL)}, 7, {vr(vL)}
      v_xor_b32 {vr(vPW)}, {vr(vFL)}, {vr(vHH)}
      v_lshlrev_b32 {vr(vPW)}, 4, {vr(vPW)}
      v_lshl_add_u32 {vr(vPW)}, {vr(vL31)}, 8, {vr(vPW)}
      s_lshl_b32 {sr(sU2)}, {sr(sW)}, 13
      s_add_u32 {sr(sU2)}, {sr(sU2)}, {L_PART}
      v_add_u32 {vr(vPW)}, {sr(sU2)}, {vr(vPW)}
      v_xor_b32 {vr(vPW+1)}, 32, {vr(vPW)}
      v_xor_b32 {vr(vPW+2)}, 64, {vr(vPW)}
      v_xor_b32 {vr(vPW+3)}, 0x60, {vr(vPW)}
      v_lshrrev_b32 {vr(T[2])}, 3, {vr(vL)}
      v_lshlrev_b32 {vr(vPR)}, 1, {vr(vFL)}
      v_xor_b32 {vr(vPR)}, {vr(vPR)}, {vr(T[2])}
      v_lshlrev_b32 {vr(vPR)}, 4, {vr(vPR)}
      v_lshl_add_u32 {vr(vPR)}, {vr(T[2])}, 8, {vr(vPR)}
      s_lshl_b32 {sr(sU2)}, {sr(sWQ)}, 11
      s_add_u32 {sr(sU2)}, {sr(sU2)}, {L_PART}
      v_add_u32 {vr(vPR)}, {sr(sU2)}, {vr(vPR)}
      v_xor_b32 {vr(vPR+1)}, 16, {vr(vPR)}
      s_and_b32 {sr(sU2)}, {sr(sCB)}, 1
      s_lshl_b32 {sr(sU2)}, {sr(sU2)}, 3
      s_add_u32 {sr(sU2)}, {sr(sU2)}, {sr(sWQ)}
      s_lshl_b32 {sr(sU2)}, {sr(sU2)}, 7
      s_add_u32 {sr(sU2)}, {sr(sU2)}, {L_STATS}
      v_lshl_add_u32 {vr(vSD)}, {vr(T[2])}, 4, {sr(sU2)}
      v_lshlrev_b32 {vr(T[9])}, 4, {vr(vFL)}
      v_lshl_add_u32 {vr(vOUT)}, {vr(T[2])}, 10, {vr(T[9])}
      v_lshlrev_b32 {vr(vFL)}, 7, {vr(vFL)}
      s_and_b32 {sr(sT[5])}, {sr(sLINE)}, 0xfffff800
      s_and_b32 {sr(sU2)}, {sr(sW)}, 2
      s_lshl_b32 {sr(sU2)}, {sr(sU2)}, 9
      s_add_u32 {sr(sT[5])}, {sr(sT[5])}, {sr(sU2)}""")
a.wait(vm="b")
a("s_barrier")
stamp("g1")
w_read(12, f_addr(12), "f")
w_read(13, f_addr(13), "f")
for i in range(12, 18):
    fstep(i)
    w_read(i + 2, f_addr(i + 2), "f")
    fstep2(i)
    if dq:
        dq.pop(0)()
assert not dq
a(f"s_cmp_ge_u32 {sr(sW)}, 4")
a.wait(lg=("f", 18))
a("s_barrier")
stamp("g2")
a("s_cbranch_scc1 L_TC")
pCb = [p.base for p in pC]


def f_last():
    for p, b in zip(pC, pCb):
        p.base = b
    for i in range(18, 22):
        fstep(i)
        if i + 2 < 22:
            w_read(i + 2, f_addr(i + 2), "f")
        fstep2(i)


def pw1(acc, n):
    ct, g = n >> 2, n & 3
    a(f"ds_write_b128 {vr(vPW+g)}, {vr(acc[ct]+4*g,4)} offset:{ct*128}", lg="p")


sv = (list(a.vm), list(a.lg))
role[0] = "H"
f3load = f"buffer_load_dword {vr(vFP)}, {vr(vFL)}, {sr(R_WS,4)}, {sr(sT[5])} offen offset:32 sc1"
a("s_mov_b64 exec, 0xff")
a(f3load, vm="f3")
a("s_mov_b64 exec, -1")
f_last()
OF = HF
a(f"""s_lshr_b32 {sr(sU)}, {sr(sW)}, 1
      s_lshl_b32 {sr(sU2)}, {sr(sU)}, 15
      v_add_u32 {vr(vC0)}, {sr(sU2)}, {vr(vB0)}
      v_add_u32 {vr(vC1)}, {sr(sU2)}, {vr(vB1)}
      s_and_b32 {sr(sU2)}, {sr(sCB)}, 1
      s_lshl_b32 {sr(sT[2])}, {sr(sRB)}, 1
      s_add_u32 {sr(sT[2])}, {sr(sT[2])}, {sr(sU2)}
      s_lshl_b32 {sr(sT[2])}, {sr(sT[2])}, 1
      s_and_b32 {sr(sU2)}, {sr(sW)}, 1
      s_add_u32 {sr(sT[2])}, {sr(sT[2])}, {sr(sU2)}
      s_lshl_b32 {sr(sT[2])}, {sr(sT[2])}, 1
      s_add_u32 {sr(sT[2])}, {sr(sT[2])}, {sr(sU)}
      s_lshl_b32 {sr(sT[2])}, {sr(sT[2])}, 14
      s_add_u32 {sr(sT[2])}, {sr(sT[2])}, {WS_O}""")
NPW = OPT.get("npw", 4)
for n in range(NPW):
    pw1(FA, n)
a.wait(vm="all")
a("s_mov_b64 exec, 0xff")
poll(f3load, 1, vFP, first_done=True)
a("s_mov_b64 exec, -1")
stamp("f3seen")


def oload(i):
    a(f"buffer_load_dwordx4 {vr(OF+4*i,4)}, {vr(vL16)}, {sr(R_WS,4)}, {sr(sT[2])} offen offset:{(i&3)*1024} sc1", vm=("of", i))
    if i & 3 == 3 and i < 15:
        a(f"s_add_u32 {sr(sT[2])}, {sr(sT[2])}, 4096")


NOL = OPT.get("nol", 10)
for i in range(NOL):
    oload(i)
    if NPW + i < 8:
        pw1(FA, NPW + i)
a.wait(lg="all")
a("s_barrier")
stamp("g3")
pC = [Ptr(vC0), Ptr(vC1)]
for i in range(3):
    w_read(i, L_WO + i * 2048, "wo")
a(f"""s_cmp_eq_u32 {sr(sW)}, 3
      s_mov_b32 {sr(sU2)}, {(L_B2 - L_PART) & 0xffffffff}
      s_cselect_b32 {sr(sU2)}, {L_STATS - L_PART - 3 * 8192}, {sr(sU2)}""")
for g in range(4):
    a(f"v_add_u32 {vr(vPW+g)}, {sr(sU2)}, {vr(vPW+g)}")
for i in range(16):
    if NOL + i < 16:
        oload(NOL + i)
    a.wait(vm=("of", i), lg=("wo", i))
    if i == 0:
        stamp("wost")
    mfma32(FA[0], WR + 8 * (i & 3), OF + 4 * i, "0" if i == 0 else FA[0])
    if i + 3 < 16:
        w_read(i + 3, L_WO + (i + 3) * 2048, "wo")
    mfma32(FA[1], WR + 8 * (i & 3) + 4, OF + 4 * i, "0" if i == 0 else FA[1])
for n in range(8):
    pw1(FA, n)
a.wait(lg="all")
a("s_barrier")
a("s_branch L_DONE" if OPT["stamps"] else "s_endpgm")

a.label("L_TC")
role[0] = "C"
a.vm, a.lg = list(sv[0]), list(sv[1])
a(f"""s_and_b32 {sr(sU2)}, {sr(sOUT)}, 0x3ff
      s_add_u32 {sr(sU)}, {sr(sOUT)}, 0x8000""")
a(f"buffer_load_dwordx4 {vr(vB2,4)}, {vr(T[9])}, {sr(R_B2,4)}, {sr(sU2)} offen", vm="fin")
a(f"buffer_load_dwordx4 {vr(vX,4)}, {vr(vOUT)}, {sr(R_X,4)}, {sr(sOUT)} offen", vm="fin")
a(f"buffer_load_dwordx4 {vr(vX+4,4)}, {vr(vOUT)}, {sr(R_X,4)}, {sr(sU)} offen", vm="fin")
f_last()
vR2 = T[4]
a(f"ds_read_b32 {vr(vR2)}, {vr(vSD)} offset:4", lg="sd")
a(f"ds_read_b32 {vr(vR2+1)}, {vr(vSD)} offset:516", lg="sd")
for n in range(8):
    pw1(FA, n)
stamp("pw")
a.wait(vm="wo", lg="all")
a("s_barrier")
stamp("g3")
G, XU, PR, BU, TE = 0, 16, 148, T[16], 32


def p_read(r, kq):
    for h in range(2):
        d = G + 8 * r + 4 * h if kq == 0 else PR + 24 * r + 8 * (kq - 1) + 4 * h
        a(f"ds_read_b128 {vr(d,4)}, {vr(vPR+h)} offset:{r*8192+kq*16384}", lg=("p", r, kq))


for kq in range(4):
    p_read(0, kq)
for kq in range(3):
    p_read(1, kq)
for r in range(2):
    a(f"""v_and_b32 {vr(vR2+r)}, 0xffff0000, {vr(vR2+r)}
          v_rcp_f32 {vr(vR2+r)}, {vr(vR2+r)}""")
a.wait(vm="fin", lg=("p", 0, 0))
p_read(1, 3)
for r in range(2):
    a(f"v_mul_f32 {vr(vR2+r)}, {vr(vR2+r)}, {vr(vR2+r)}")
for i in range(4):
    a(f"""v_lshlrev_b32 {vr(BU+2*i)}, 16, {vr(vB2+i)}
          v_and_b32 {vr(BU+2*i+1)}, 0xffff0000, {vr(vB2+i)}""")
for r in range(2):
    for kq in range(1, 4):
        a.wait(lg=("p", r, kq))
        for i in range(8):
            a(f"v_add_f32 {vr(G+8*r+i)}, {vr(G+8*r+i)}, {vr(PR+24*r+8*(kq-1)+i)}")
for i in range(16):
    a(f"v_fma_f32 {vr(G+i)}, {vr(G+i)}, {vr(vR2+i//8)}, {vr(BU+i%8)}")
for i in range(16):
    a(f"v_mul_f32 {vr(TE+i)}, {f32(-math.log2(math.e))}, {vr(G+i)}")
for i in range(16):
    a(f"v_exp_f32 {vr(TE+i)}, {vr(TE+i)}")
for i in range(16):
    a(f"v_add_f32 {vr(TE+i)}, 1.0, {vr(TE+i)}")
for i in range(16):
    a(f"v_rcp_f32 {vr(TE+i)}, {vr(TE+i)}")
for h in range(2):
    a(f"""v_add_u32 {vr(vPW+h)}, {L_STATS - L_PART}, {vr(vPR+h)}
          v_add_u32 {vr(vPR+h)}, {(L_B2 - L_PART) & 0xffffffff}, {vr(vPR+h)}""")
for i in range(16):
    a(f"v_mul_f32 {vr(G+i)}, {vr(G+i)}, {vr(TE+i)}")
for i in range(8):
    a(f"""v_lshlrev_b32 {vr(XU+2*i)}, 16, {vr(vX+i)}
          v_and_b32 {vr(XU+2*i+1)}, 0xffff0000, {vr(vX+i)}""")
a("s_barrier")
stamp("fin")
for r in range(2):
    for kh in range(2):
        for h in range(2):
            if r + 2 * kh == 3:
                a(f"ds_read_b128 {vr(PR+16*r+8*kh+4*h,4)}, {vr(vPW+h)}", lg=("p", r))
            else:
                a(f"ds_read_b128 {vr(PR+16*r+8*kh+4*h,4)}, {vr(vPR+h)} offset:{r*8192+kh*16384}", lg=("p", r))
for r in range(2):
    a.wait(lg=("p", r))
    b = PR + 16 * r
    for i in range(8):
        a(f"v_add_f32 {vr(b+i)}, {vr(b+i)}, {vr(b+8+i)}")
    for i in range(8):
        a(f"v_fma_f32 {vr(b+i)}, {vr(b+i)}, {vr(G+8*r+i)}, {vr(XU+8*r+i)}")
    for i in range(4):
        a(f"v_cvt_pk_bf16_f32 {vr(TE+4*r+i)}, {vr(b+2*i)}, {vr(b+2*i+1)}")
    a(f"buffer_store_dwordx4 {vr(TE+4*r,4)}, {vr(vOUT)}, {sr(R_OUT,4)}, {sr(sU if r else sOUT)} offen")
a.label("L_DONE")
role[0] = "HC"
if OPT["stamps"]:
    stamp("end")
    a("s_memtime s[8:9]")
    a(f"""s_waitcnt lgkmcnt(0)
          s_sub_u32 s0, s8, s0
          s_sub_u32 {sr(sU)}, {sr(sLINE)}, {WS_FL}
          s_lshl_b32 {sr(sU)}, {sr(sU)}, 3
          s_lshl_b32 {sr(sU2)}, {sr(sW)}, 7
          s_add_u32 {sr(sU)}, {sr(sU)}, {sr(sU2)}
          s_add_u32 {sr(sU)}, {sr(sU)}, {WS_TS}
          s_mov_b64 exec, 1""")
    for i in range(11):
        a(f"v_mov_b32 {vr(i)}, {sr(sSTAMP+2*i)}")
    a("v_mov_b32 v11, s0")
    for i in range(3):
        a(f"buffer_store_dwordx4 {vr(4*i,4)}, off, {sr(R_WS,4)}, {sr(sU)} offset:{16*i}")
if OPT.get("amp") is not None:
    i = OPT["amp"]
    a(f"""s_cmp_lg_u32 {sr(sW)}, {OPT.get('ampw', 0)}
          s_cbranch_scc1 L_end
          s_sub_u32 s4, {sr(sSTAMP+2*i)}, {sr(sSTAMP)}
          s_lshl_b32 s4, s4, 2
          s_min_u32 s4, s4, 100000""")
    a.label("L_amp")
    a(f"""s_memrealtime s[6:7]
          s_waitcnt lgkmcnt(0)
          s_sub_u32 s6, s6, {sr(sSTAMP+20)}
          s_cmp_lt_u32 s6, s4
          s_cbranch_scc1 L_amp""")
a("s_endpgm")

a.label("L_SLOW")
a.reset_counts()
C = 16
M = T[2]
a(f"""s_nop 7
      s_lshr_b32 {sr(sU)}, {sr(sKV)}, 17
      s_lshl_b32 {sr(sU)}, {sr(sU)}, 17
      s_mov_b32 {sr(sU2)}, 64
      v_mov_b32 {vr(M)}, 0xff800000""")
a.label("L_S1")
a(f"""buffer_load_dwordx4 {vr(KB[0],4)}, {vr(vL16)}, {sr(R_WS,4)}, {sr(sU)} offen sc1
      s_waitcnt vmcnt(0)""")
mfma32(S[1], KB[0], Q[0], "0")
for i in range(8):
    a(f"v_max3_f32 {vr(M)}, {vr(M)}, {vr(S[1]+2*i)}, {vr(S[1]+2*i+1)}")
a(f"""s_add_u32 {sr(sU)}, {sr(sU)}, 2048
      s_sub_u32 {sr(sU2)}, {sr(sU2)}, 1
      s_cmp_lg_u32 {sr(sU2)}, 0
      s_cbranch_scc1 L_S1
      v_mov_b32 {vr(T[3])}, {vr(M)}
      s_nop 1
      v_permlane32_swap_b32 {vr(M)}, {vr(T[3])}
      v_max_f32 {vr(M)}, {vr(M)}, {vr(T[3])}
      s_sub_u32 {sr(sU)}, {sr(sU)}, 0x20000
      s_mov_b32 {sr(sU2)}, 64""")
for i in range(16):
    a(f"v_sub_f32 {vr(C+i)}, 0, {vr(M)}")
    a(f"v_mov_b32 {vr(O[0]+i)}, 0")
a.label("L_S2")
a(f"""buffer_load_dwordx4 {vr(KB[0],4)}, {vr(vL16)}, {sr(R_WS,4)}, {sr(sU)} offen sc1
      s_mov_b64 exec, {sr(sVM,2)}
      buffer_load_dwordx4 {vr(VB[0],4)}, {vr(vVO)}, {sr(R_WS,4)}, {sr(sU)} offen offset:1024 sc1
      buffer_load_dwordx4 {vr(VB[0]+4,4)}, {vr(vVO)}, {sr(R_WS,4)}, {sr(sU)} offen offset:1536 sc1
      s_mov_b64 exec, -1
      s_waitcnt vmcnt(0)""")
mfma32(S[1], KB[0], Q[0], C)
exps(S[1], 0, 16)
smf(O[0], VB[0], S[1], vIDX)
smf(O[0], VB[0] + 4, S[1] + 8, vIDX)
a(f"""s_add_u32 {sr(sU)}, {sr(sU)}, 2048
      s_sub_u32 {sr(sU2)}, {sr(sU2)}, 1
      s_cmp_lg_u32 {sr(sU2)}, 0
      s_cbranch_scc1 L_S2
      s_nop 15
      s_branch L_NORM""")
a.label("L_end")
a("s_endpgm")

ref = open(__file__.rsplit("/", 1)[0] + "/../cdna_kernels/" + NAME + ".s.ref").read().split("\n")
head = [l for l in ref if l.startswith(";") and "@launch" not in l]
if OPT["stamps"]:
    st = STSETS[OPT.get("st", 0)]
    head.append("; stamps H " + " ".join(st["H"]))
    head.append("; stamps C " + " ".join(st["C"]))
out = "\n".join(head) + f"""
; @launch grid=(256,1,1) block=(512,1,1) lds=163840
.amdgcn_target "amdgcn-amd-amdhsa--gfx950"
.text
.globl {NAME}_kernel
.p2align 8
.type {NAME}_kernel,@function
""" + a.text() + f""".section .rodata,"a"
.p2align 6
.amdhsa_kernel {NAME}_kernel
  .amdhsa_next_free_vgpr 256
  .amdhsa_next_free_sgpr 102
  .amdhsa_accum_offset 256
  .amdhsa_group_segment_fixed_size 0
  .amdhsa_kernarg_size 88
  .amdhsa_user_sgpr_count 2
  .amdhsa_user_sgpr_kernarg_segment_ptr 1
  .amdhsa_system_sgpr_workgroup_id_x 1
  .amdhsa_float_denorm_mode_32 3
.end_amdhsa_kernel
"""
open(sys.argv[1], "w").write(out)
if OPT.get("pads"):
    for p in a.pads:
        print("pad", p)
```

```python
import sys, math, struct
from asmlib import Asm, vr, sr

NAME = "recurrent_scan__softmax_full_mha__dense_activation_squared_relu__prompt"
OPT = dict(stamps=0, rot=4, force_slow=0, prio=1, spin=1 << 18, up=3, touch=0, pf=4, tit=14, f2it=8, j8=4, j9=7, cprio=1, cp2=1)
for arg in sys.argv[2:]:
    k, v = arg.split("=")
    OPT[k] = int(v, 0)

WS_KV = 0
WS_H = 4 << 20
WS_O = WS_H + 64 * 86 * 1024
WS_FL = WS_O + (2 << 20)
WS_TS = 13 << 20
WS_SIZE = 14 << 20
SLOT = 24576
L_WQ = 49152
L_QX = 147456
L_STATS = 155648
L_CSP = 157696
L_FLG = 160768
L_W1 = [81920 + 12288 * i for i in range(5)] + [12288 * i for i in range(3)]
L_CMB = 98304
L_B2 = 0
L_WO = 24576
L_PART = 90112
P_X, P_WQKV, P_WO, P_W1, P_B1, P_W2, P_B2, P_OUT, P_DBG, P_WS = 4, 6, 8, 12, 14, 16, 18, 20, 22, 24
R_X, R_WQKV, R_WO, R_W1, R_W2, R_OUT, R_WS, R_B1, R_B2, R_DBG = 28, 32, 36, 40, 44, 48, 52, 56, 60, 64
sW, sWQ, sRB, sCB, sROT = 68, 69, 70, 71, 72
sT = [73, 74, 75, 76, 77, 78, 79]
sVM = 26
sLINE = 3
sT0 = 10
sSTAMP = 80
vL, vHH, vL31, vTR = 252, 253, 254, 255


def f32(x):
    return "0x%08x" % struct.unpack("<I", struct.pack("<f", x))[0]


a = Asm()


STSETS = {
    0: dict(H=["start", "bar8", "x", "f1seen", "bar11", "x", "attst", "attend", "g1", "f3seen", "end"],
            C=["start", "c0", "c7", "kvst", "f1sent", "ffnend", "attst", "attend", "g1", "x", "end"]),
    1: dict(H=["start", "bar8", "h8b", "h9", "h10", "h11", "bar11", "x", "f1seen", "attst", "end"],
            C=["start", "c0", "c7", "kvst", "c8b", "c9", "f1sent", "c10", "c11", "attst", "end"]),
    2: dict(H=["start", "attend", "barc", "ost", "a6", "g1", "g2", "f3seen", "g3", "wost", "end"],
            C=["start", "attend", "barc", "ost", "a6", "g1", "g2", "gate", "g3", "fin", "end"]),
    3: dict(H=["start", "hk", "hi2", "hw3", "ha3", "hi3", "hw4", "ha4", "hi4", "hup", "end"],
            C=["start", "c0", "ca3", "cp3", "ca4", "cp4", "ca5", "cp5", "cp2", "c7", "end"]),
    4: dict(H=["start", "h9", "h9a", "h9b", "h9c", "h10", "h10a", "h10b", "h10c", "h11", "end"],
            C=["start", "i27", "i33", "i39", "i45", "i49", "i57", "i65", "i73", "i90", "end"]),
    5: dict(H=["start", "attst", "t8", "t12", "t20", "t32", "t33", "t50", "t61", "attend", "end"],
            C=["start", "attst", "t8", "t12", "t20", "t32", "t33", "t50", "t61", "attend", "end"]),
    6: dict(H=["start"] + ["x"] * 9 + ["end"], C=["start"] + ["x"] * 9 + ["end"]),
}
role = ["HC"]


def stamp(name):
    if not OPT["stamps"]:
        return
    st = STSETS[OPT.get("st", 0)]
    idx = {st[r].index(name) for r in role[0] if name in st[r]}
    for i in idx:
        a(f"{'s_memtime' if OPT['stamps'] == 2 else 's_memrealtime'} {sr(sSTAMP + 2*i, 2)}")


def cop(c, n):
    return c if isinstance(c, str) else vr(c, n)


def mfma32(d, x, y, c):
    a(f"v_mfma_f32_32x32x16_bf16 {vr(d,16)}, {vr(x,4)}, {vr(y,4)}, {cop(c,16)}")


def mfma16(d, x, y, c):
    a(f"v_mfma_f32_16x16x32_bf16 {vr(d,4)}, {vr(x,4)}, {vr(y,4)}, {cop(c,4)}")


def mfma4(d, x, c):
    a(f"v_mfma_f32_4x4x4_16b_bf16 {vr(d,4)}, {vr(x,2)}, {vr(x,2)}, {cop(c,4)}")


def smf(d, x, y, idx):
    a(f"v_smfmac_f32_32x32x32_bf16 {vr(d,16)}, {vr(x,4)}, {vr(y,8)}, {vr(idx)}")


def srd(r, p, n):
    a(f"""s_mov_b32 {sr(r)}, {sr(p)}
          s_mov_b32 {sr(r+1)}, {sr(p+1)}
          s_mov_b32 {sr(r+2)}, {n}
          s_mov_b32 {sr(r+3)}, 0x20000""")


filler, fill = [], [0]


def dma(voff, r, soff, lds, tag, pre=None):
    a(f"s_add_u32 m0, {sr(lds[0])}, {lds[1]}")
    if pre:
        a(pre)
    a(f"buffer_load_dwordx4 {vr(voff)}, {sr(r,4)}, {sr(soff)} offen lds", vm=tag)
    for _ in range(fill[0]):
        if filler:
            a(filler.pop(0))


class Ptr:
    def __init__(self, reg, base=0):
        self.reg, self.base = reg, base

    def off(self, addr):
        if not 0 <= addr - self.base <= 65535:
            a(f"v_add_u32 {vr(self.reg)}, {(addr - self.base) & 0xffffffff}, {vr(self.reg)}")
            self.base = addr
        return addr - self.base


def tr(dst, p, addr, tag):
    o = p.off(addr)
    a(f"ds_read_b64_tr_b16 {vr(dst,2)}, {vr(p.reg)} offset:{o}", lg=tag)


def rd128(dst, p, addr, tag):
    o = p.off(addr)
    a(f"ds_read_b128 {vr(dst,4)}, {vr(p.reg)} offset:{o}", lg=tag)


def split3_ops(x, bias, d0, d1, t0, t1, mask):
    l = [f"v_cvt_pk_bf16_f32 {vr(t0)}, {vr(x)}, {vr(x)}",
         f"v_lshlrev_b32 {vr(t0)}, 16, {vr(t0)}",
         f"v_sub_f32 {vr(t0)}, {vr(x)}, {vr(t0)}",
         f"v_cvt_pk_bf16_f32 {vr(d0)}, {vr(x)}, {vr(t0)}",
         f"v_and_b32 {vr(t1)}, 0xffff0000, {vr(d0)}",
         f"v_sub_f32 {vr(t1)}, {vr(t0)}, {vr(t1)}",
         f"v_cvt_pk_bf16_f32 {vr(d1)}, {vr(t1)}, {bias}"]
    if mask is not None:
        l += [f"v_and_b32 {vr(d0)}, {vr(d0)}, {vr(mask)}", f"v_and_b32 {vr(d1)}, {vr(d1)}, {vr(mask)}"]
    return l


def emit(l):
    for x in l:
        a(x)


uid = [0]


def poll(load, nreg, reg, first_done=False):
    uid[0] += 1
    L, D, C = f"L_poll{uid[0]}", f"L_polld{uid[0]}", f"L_pollc{uid[0]}"
    a(f"s_mov_b32 {sr(sT[6])}, {OPT['spin']}")
    if first_done:
        a(f"s_branch {C}")
    a.label(L)
    a.raw(load)
    a("s_waitcnt vmcnt(0)")
    a.label(C)
    if nreg == 4:
        a(f"""v_min_u32 {vr(reg)}, {vr(reg)}, {vr(reg+1)}
              v_min3_u32 {vr(reg)}, {vr(reg)}, {vr(reg+2)}, {vr(reg+3)}""")
    a(f"""v_cmp_eq_u32 vcc, 0, {vr(reg)}
          s_nop 1
          s_cmp_eq_u64 vcc, 0
          s_cbranch_scc1 {D}
          s_sub_u32 {sr(sT[6])}, {sr(sT[6])}, 1
          s_cmp_lg_u32 {sr(sT[6])}, 0
          s_cbranch_scc1 {L}""")
    a.label(D)


def set_flag(soff, tmp, imm=0):
    sv = list(a.vm)
    a(f"""s_mov_b64 exec, 1
          v_mov_b32 {vr(tmp)}, 1
          buffer_store_dword {vr(tmp)}, off, {sr(R_WS,4)}, {sr(soff)} offset:{imm} sc1
          s_mov_b64 exec, -1""")
    a.vm = sv


def tr_addr(dst, hmul, rowbytes, tmp):
    a(f"""v_bfe_u32 {vr(tmp)}, {vr(vL)}, 2, 2
          v_mad_u32_u24 {vr(tmp)}, {vr(vHH)}, {hmul}, {vr(tmp)}
          v_mul_u32_u24 {vr(tmp)}, {rowbytes}, {vr(tmp)}
          v_add_u32 {vr(dst)}, {vr(tmp)}, {vr(vTR)}""")


def tr_addr128(d0, d1, hmul, tmp):
    tr_addr(d0, hmul, 128, tmp)
    a(f"""v_bfe_u32 {vr(tmp)}, {vr(vL)}, 3, 1
          v_lshl_add_u32 {vr(d0)}, {vr(tmp)}, 6, {vr(d0)}
          v_xor_b32 {vr(d1)}, 64, {vr(d0)}""")


def wdma_voff(dst, stride, tmp):
    a(f"""v_bfe_u32 {vr(tmp)}, {vr(vL)}, 4, 1
          v_lshlrev_b32 {vr(tmp)}, 2, {vr(tmp)}
          v_and_b32 {vr(dst)}, 7, {vr(vL)}
          v_xor_b32 {vr(dst)}, {vr(dst)}, {vr(tmp)}
          v_lshlrev_b32 {vr(dst)}, 4, {vr(dst)}
          v_lshrrev_b32 {vr(tmp)}, 3, {vr(vL)}
          v_mul_u32_u24 {vr(tmp)}, {stride}, {vr(tmp)}
          v_add_u32 {vr(dst)}, {vr(dst)}, {vr(tmp)}""")


def make_sel(d, tmp):
    a(f"""v_lshrrev_b32 {vr(tmp)}, 2, {vr(vL)}
          v_xor_b32 {vr(tmp)}, {vr(tmp)}, {vr(vL)}
          v_bfe_u32 {vr(tmp)}, {vr(tmp)}, 2, 1
          v_add_u32 {vr(tmp)}, -1, {vr(tmp)}
          v_and_b32 {vr(d)}, 0x3f803f80, {vr(tmp)}
          v_mov_b32 {vr(d+1)}, {vr(d)}
          v_mov_b32 {vr(d+2)}, {vr(d)}
          v_mov_b32 {vr(d+3)}, {vr(d)}""")


def other_srds():
    srd(R_WO, P_WO, 512 * 512 * 2)
    srd(R_W1, P_W1, 512 * 1376 * 2)
    srd(R_W2, P_W2, 1376 * 512 * 2)
    srd(R_OUT, P_OUT, 2048 * 512 * 2)
    srd(R_WS, P_WS, WS_SIZE)
    srd(R_B1, P_B1, 1376 * 2)
    srd(R_B2, P_B2, 512 * 2)
    srd(R_DBG, P_DBG, 256)
    a(f"""s_mul_i32 {sr(sT0)}, {sr(sCB)}, 3
          s_min_u32 {sr(sT0)}, {sr(sT0)}, 40
          s_lshl_b32 {sr(sLINE)}, {sr(sRB)}, 4
          s_add_u32 {sr(sLINE)}, {sr(sLINE)}, {sr(sCB)}
          s_lshl_b32 {sr(sLINE)}, {sr(sLINE)}, 7
          s_add_u32 {sr(sLINE)}, {sr(sLINE)}, {WS_FL}
          s_mov_b32 {sr(sVM)}, 0xffff
          s_mov_b32 {sr(sVM+1)}, 0xffff""")


class Rec:
    def __init__(self):
        self.l = []

    def __call__(self, text, vm=None, lg=None):
        assert vm is None and lg is None
        self.l += [x.strip() for x in text.strip().split("\n") if x.strip()]

    def comment(self, t):
        pass


def record(fn):
    global a
    keep, a = a, Rec()
    fn()
    l, a = a.l, keep
    return l


O = [0, 16, 32, 48]
S = [64, 80]
Q = [96, 100, 104, 108]
KB = [112, 116, 120]
VB = [124, 132, 140]
HF = 148
vIDX, vL16, vVO, vWD, vFL, vDUM = 236, 237, 238, 239, 240, 251
vFP = 244
sKV, sIT, sH0, sW2, sLA, sKS, sO, sOUT, sF1, sHS = 4, 5, 6, 7, 12, 13, 14, 15, 16, 17
sU, sU2 = sT[0], sT[1]


def att_addr_v(tmp):
    a(f"""v_lshlrev_b32 {vr(vL16)}, 4, {vr(vL)}
          v_and_b32 {vr(vVO)}, 15, {vr(vL)}
          v_lshlrev_b32 {vr(vVO)}, 4, {vr(vVO)}
          v_lshl_add_u32 {vr(vVO)}, {vr(vHH)}, 8, {vr(vVO)}
          v_mov_b32 {vr(vIDX)}, 0xdddddddd""")
    wdma_voff(vWD, 1024, tmp)


def att_addr_s(u, u2):
    a(f"""s_lshr_b32 {sr(u)}, {sr(sW)}, 2
          s_lshl_b32 {sr(u2)}, {sr(sCB)}, 1
          s_add_u32 {sr(u2)}, {sr(u2)}, {sr(u)}
          s_lshl_b32 {sr(sKV)}, {sr(u2)}, 17
          s_lshl_b32 {sr(sO)}, {sr(u2)}, 10
          s_lshl_b32 {sr(u2)}, {sr(sWQ)}, 11
          s_add_u32 {sr(sKV)}, {sr(sKV)}, {sr(u2)}
          s_and_b32 {sr(sIT)}, {sr(sRB)}, 3
          s_lshl_b32 {sr(sIT)}, {sr(sIT)}, 15
          s_lshl_b32 {sr(u2)}, {sr(sRB)}, 2
          s_add_u32 {sr(u2)}, {sr(u2)}, {sr(sWQ)}
          s_lshl_b32 {sr(u2)}, {sr(u2)}, 15
          s_add_u32 {sr(sO)}, {sr(sO)}, {sr(u2)}
          s_add_u32 {sr(sO)}, {sr(sO)}, {WS_O}""")
    a(f"""s_lshr_b32 {sr(u)}, {sr(sW)}, 1
          s_mul_i32 {sr(sKS)}, {sr(u)}, 22
          s_lshl_b32 {sr(sLA)}, {sr(sW)}, 10
          s_and_b32 {sr(u)}, {sr(sW)}, 1
          s_lshl_b32 {sr(sW2)}, {sr(sKS)}, 1
          s_add_u32 {sr(sW2)}, {sr(sW2)}, {sr(u)}
          s_lshl_b32 {sr(sW2)}, {sr(sW2)}, 13
          s_lshr_b32 {sr(u2)}, {sr(sCB)}, 1
          s_lshl_b32 {sr(u2)}, {sr(u2)}, 7
          s_add_u32 {sr(sW2)}, {sr(sW2)}, {sr(u2)}
          s_sub_u32 {sr(sW2)}, {sr(sW2)}, 16384
          s_and_b32 {sr(sH0)}, {sr(sCB)}, 1
          s_lshl_b32 {sr(sOUT)}, {sr(sRB)}, 1
          s_add_u32 {sr(sOUT)}, {sr(sOUT)}, {sr(sH0)}
          s_lshl_b32 {sr(sH0)}, {sr(sOUT)}, 1
          s_add_u32 {sr(sH0)}, {sr(sH0)}, {sr(u)}
          s_mul_i32 {sr(sH0)}, {sr(sH0)}, {86*1024}
          s_add_u32 {sr(sH0)}, {sr(sH0)}, {WS_H}
          s_lshl_b32 {sr(sOUT)}, {sr(sOUT)}, 3
          s_add_u32 {sr(sOUT)}, {sr(sOUT)}, {sr(sWQ)}
          s_lshl_b32 {sr(sOUT)}, {sr(sOUT)}, 13
          s_add_u32 {sr(sOUT)}, {sr(sOUT)}, {sr(u2)}
          s_and_b32 {sr(sF1)}, {sr(sCB)}, 14
          s_lshl_b32 {sr(sF1)}, {sr(sF1)}, 7
          s_add_u32 {sr(sF1)}, {sr(sF1)}, {WS_FL}""")


def q_reads():
    a(f"""s_lshl_b32 {sr(sU)}, {sr(sW)}, 10
          s_add_u32 {sr(sU)}, {sr(sU)}, {L_QX}
          v_lshl_add_u32 {vr(vFP)}, {vr(vL)}, 4, {sr(sU)}""")
    for j in range(4):
        if j:
            a(f"v_xor_b32 {vr(vFP+j)}, {j*1024}, {vr(vFP)}")
        a(f"ds_read_b128 {vr(Q[j],4)}, {vr(vFP+j)}", lg="q")


def att_init():
    a.comment("rows 16 and 20 of the V operand are ones (row sums), the other spare rows are zero")
    a(f"""v_and_b32 {vr(VB[0])}, 27, {vr(vL)}
          v_cmp_eq_u32 vcc, 16, {vr(VB[0])}
          v_mov_b32 {vr(VB[0]+1)}, 0x3f803f80
          v_cndmask_b32 {vr(VB[0])}, 0, {vr(VB[0]+1)}, vcc
          v_cndmask_b32 {vr(VB[0]+1)}, 0, {vr(VB[0]+1)}, vcc""")
    for i in range(2, 24, 2):
        a(f"v_mov_b64 {vr(VB[0]+i,2)}, {vr(VB[0],2)}")


def o_zero():
    for j in range(4):
        for i in range(0, 16, 2):
            a(f"v_mov_b64 {vr(O[j]+i,2)}, 0")


def kvload(i):
    if i >= 16:
        return
    b = i % 3
    a(f"s_add_u32 {sr(sU)}, {sr(sKV)}, {sr(sIT)}")
    a(f"buffer_load_dwordx4 {vr(KB[b],4)}, {vr(vL16)}, {sr(R_WS,4)}, {sr(sU)} offen sc1", vm=("k", i))
    a(f"s_mov_b64 exec, {sr(sVM,2)}")
    a(f"buffer_load_dwordx4 {vr(VB[b],4)}, {vr(vVO)}, {sr(R_WS,4)}, {sr(sU)} offen offset:1024 sc1", vm=("v", i))
    a(f"buffer_load_dwordx4 {vr(VB[b]+4,4)}, {vr(vVO)}, {sr(R_WS,4)}, {sr(sU)} offen offset:1536 sc1", vm=("v", i))
    a(f"""s_mov_b64 exec, -1
          s_add_u32 {sr(sIT)}, {sr(sIT)}, 8192
          s_and_b32 {sr(sIT)}, {sr(sIT)}, 0x1ffff""")


def f1_addr(d, tmp):
    a(f"""v_lshrrev_b32 {vr(d)}, 1, {vr(vL31)}
          v_and_b32 {vr(tmp)}, 1, {vr(vL)}
          v_lshlrev_b32 {vr(tmp)}, 7, {vr(tmp)}
          v_lshl_add_u32 {vr(d)}, {vr(d)}, 11, {vr(tmp)}""")


def f1_load(d, ad):
    return f"buffer_load_dwordx4 {vr(d,4)}, {vr(ad)}, {sr(R_WS,4)}, {sr(sF1)} offen sc1"


a.label(NAME + "_kernel")
a(f"""s_cmp_ge_u32 s2, 256
      s_cbranch_scc1 L_end
      s_load_dwordx16 s[4:19], s[0:1], 0
      s_load_dwordx4 s[20:23], s[0:1], 64
      s_load_dwordx2 s[24:25], s[0:1], 80""")
stamp("start")
a(f"""v_lshrrev_b32 v1, 6, v0
      v_and_b32 {vr(vL)}, 63, v0
      v_readfirstlane_b32 {sr(sW)}, v1
      v_bfe_u32 {vr(vHH)}, v0, 5, 1
      v_and_b32 {vr(vL31)}, 31, v0
      v_bfe_u32 v1, v0, 4, 1
      v_and_b32 v2, 3, v0
      v_lshlrev_b32 v2, 3, v2
      v_lshl_add_u32 {vr(vTR)}, v1, 5, v2
      s_and_b32 {sr(sWQ)}, {sr(sW)}, 3
      s_bfe_u32 {sr(sT[0])}, s2, 0x20001
      s_bfe_u32 {sr(sT[1])}, s2, 0x20003
      s_lshl_b32 {sr(sT[0])}, {sr(sT[0])}, 2
      s_add_u32 {sr(sRB)}, {sr(sT[0])}, {sr(sT[1])}
      s_and_b32 {sr(sT[0])}, s2, 1
      s_lshr_b32 {sr(sT[1])}, s2, 5
      s_lshl_b32 {sr(sT[0])}, {sr(sT[0])}, 3
      s_add_u32 {sr(sCB)}, {sr(sT[0])}, {sr(sT[1])}
      {("s_xor_b32 %s, %s, %d" % (sr(sCB), sr(sCB), OPT["perm"])) if OPT.get("perm") else ""}
      s_and_b32 {sr(sROT)}, s2, {dict([(0, 0), (4, 7), (5, 6)])[OPT["rot"]]}
      s_cmp_ge_u32 {sr(sW)}, 4
      s_cbranch_scc1 L_C""")

role[0] = "H"
hVXE, hVXO, hVW, hVQ, hV1 = 150, 151, 152, 153, 154
hGO, hF1 = 158, 159
hT = [162, 163, 164, 165]
hP = 168
sXB, sWB, sLX, sLW, sA, sB_ = sT[0], sT[1], sT[2], sT[3], sT[4], sT[5]
a(f"""v_lshrrev_b32 {vr(hT[0])}, 4, {vr(vL)}
      v_and_b32 {vr(hVXE)}, 7, {vr(vL)}
      v_xor_b32 {vr(hVXE)}, {vr(hVXE)}, {vr(hT[0])}
      v_lshlrev_b32 {vr(hVXE)}, 4, {vr(hVXE)}
      v_lshrrev_b32 {vr(hT[0])}, 3, {vr(vL)}
      v_lshl_add_u32 {vr(hVXE)}, {vr(hT[0])}, 10, {vr(hVXE)}
      v_xor_b32 {vr(hVXO)}, 64, {vr(hVXE)}
      s_lshl_b32 {sr(sXB)}, {sr(sRB)}, 2
      s_add_u32 {sr(sXB)}, {sr(sXB)}, {sr(sWQ)}
      s_lshl_b32 {sr(sXB)}, {sr(sXB)}, 15
      s_lshl_b32 {sr(sLX)}, {sr(sWQ)}, 12
      s_lshl_b32 {sr(sLW)}, {sr(sWQ)}, 11
      s_and_b32 {sr(sA)}, {sr(sCB)}, 1
      s_add_u32 {sr(sA)}, {sr(sA)}, 1
      s_lshl_b32 {sr(sA)}, {sr(sA)}, 10
      s_lshr_b32 {sr(sB_)}, {sr(sCB)}, 1
      s_lshl_b32 {sr(sB_)}, {sr(sB_)}, 7
      s_add_u32 {sr(sA)}, {sr(sA)}, {sr(sB_)}
      s_mul_i32 {sr(sWB)}, {sr(sWQ)}, {16*3072}
      s_add_u32 {sr(sWB)}, {sr(sWB)}, {sr(sA)}""")
wdma_voff(hVW, 3072, hT[0])
a(f"""s_mov_b32 {sr(R_X+2)}, {2048*512*2}
      s_mov_b32 {sr(R_X+3)}, 0x20000
      s_mov_b32 {sr(R_WQKV+2)}, {512*1536*2}
      s_mov_b32 {sr(R_WQKV+3)}, 0x20000
      s_waitcnt lgkmcnt(0)
      s_mov_b64 {sr(R_X,2)}, {sr(P_X,2)}
      s_mov_b64 {sr(R_WQKV,2)}, {sr(P_WQKV,2)}""")
if OPT["stamps"]:
    a("s_memtime s[0:1]")


def rotc(c):
    a(f"""s_add_u32 {sr(sB_)}, {sr(sROT)}, {c}
          s_and_b32 {sr(sB_)}, {sr(sB_)}, 7""")


def issue_chunk(c):
    base = (c % 6) * SLOT
    rotc(c)
    a(f"s_lshl_b32 {sr(sA)}, {sr(sB_)}, 7")
    for i in range(4):
        pre = f"s_add_u32 {sr(sA)}, {sr(sA)}, {sr(sXB) if i == 0 else 8192}"
        dma(hVXO if i & 1 else hVXE, R_X, sA, (sLX, base + i * 1024), ("c", c), pre)
    a(f"s_mul_i32 {sr(sA)}, {sr(sB_)}, {64*3072}")
    for i in range(2):
        pre = f"s_add_u32 {sr(sA)}, {sr(sA)}, {sr(sWB) if i == 0 else 8*3072}"
        dma(hVW, R_WQKV, sA, (sLW, base + 16384 + i * 1024), ("c", c), pre)


sQB, s1B, sLQ, sL1 = 2, 11, 8, 9


def issue_wq(half):
    for c in range(4 * half, 4 * half + 4):
        rotc(c)
        a(f"s_mul_i32 {sr(sA)}, {sr(sB_)}, {64*3072}")
        dma(hVQ, R_WQKV, sA, (sLQ, L_WQ + c * 4096), "wq", f"s_add_u32 {sr(sA)}, {sr(sA)}, {sr(sQB)}")


def issue_w1(c):
    rotc(c)
    a(f"s_mul_i32 {sr(sA)}, {sr(sB_)}, {64*2752}")
    for p in range(3):
        dma(hV1 + p, R_W1, sA, (sL1, L_W1[c] + p * 1024), ("w1", c), f"s_add_u32 {sr(sA)}, {sr(sA)}, {sr(s1B)}" if p == 0 else None)


def h_setup():
    u = sT[6]
    other_srds()
    a(f"""s_mul_i32 {sr(sQB)}, {sr(sWQ)}, {16*3072}
          s_lshl_b32 {sr(u)}, {sr(sCB)}, 6
          s_add_u32 {sr(sQB)}, {sr(sQB)}, {sr(u)}
          s_mul_i32 {sr(s1B)}, {sr(sWQ)}, {16*2752}
          s_lshl_b32 {sr(u)}, {sr(sT0)}, 6
          s_add_u32 {sr(s1B)}, {sr(s1B)}, {sr(u)}
          s_lshl_b32 {sr(sLQ)}, {sr(sWQ)}, 10
          s_mul_i32 {sr(sL1)}, {sr(sWQ)}, 3072
          v_lshrrev_b32 {vr(hT[0])}, 2, {vr(vL)}
          v_mul_u32_u24 {vr(hT[0])}, 3072, {vr(hT[0])}
          v_and_b32 {vr(hVQ)}, 3, {vr(vL)}
          v_lshl_add_u32 {vr(hVQ)}, {vr(hVQ)}, 4, {vr(hT[0])}""")
    for p in range(3):
        a(f"""v_add_u32 {vr(hT[0])}, {64*p}, {vr(vL)}
              v_mul_u32_u24 {vr(hT[1])}, 171, {vr(hT[0])}
              v_lshrrev_b32 {vr(hT[1])}, 11, {vr(hT[1])}
              v_mul_u32_u24 {vr(hT[2])}, {2752 - 192}, {vr(hT[1])}
              v_lshl_add_u32 {vr(hV1+p)}, {vr(hT[0])}, 4, {vr(hT[2])}""")
    att_addr_s(18, 19)
    a(f"s_mov_b32 {sr(sHS)}, {WS_SIZE}")
    att_addr_v(hT[0])
    att_init()
    o_zero()
    f1_addr(hF1, hT[0])
    a(f"""v_and_b32 {vr(hGO)}, 15, {vr(vL)}
          v_lshlrev_b32 {vr(hGO)}, 2, {vr(hGO)}""")


UP = OPT["up"]
filler += record(h_setup)
stamp("hk")
issue_chunk(0)
fill[0] = OPT.get("fill", 12)
for c in range(1, UP):
    issue_chunk(c)
emit(filler)
filler.clear()
stamp("hup")
jobs = [(max(0, c - 5), ("c", c), lambda c=c: issue_chunk(c)) for c in range(UP, 8)]


def w1_touch():
    a.comment("L2 prefetch of a quarter of this workgroup's W1 lines")
    a(f"""s_and_b32 {sr(sA)}, {sr(sRB)}, 3
          s_lshl_b32 {sr(sA)}, {sr(sA)}, 1
          s_lshr_b32 {sr(sB_)}, {sr(sWQ)}, 1
          s_add_u32 {sr(sA)}, {sr(sA)}, {sr(sB_)}
          s_mul_i32 {sr(sA)}, {sr(sA)}, {64*2752}
          s_and_b32 {sr(sB_)}, {sr(sWQ)}, 1
          s_lshl_b32 {sr(sB_)}, {sr(sB_)}, 1
          s_add_u32 {sr(sB_)}, {sr(sB_)}, {sr(sT0)}
          s_lshl_b32 {sr(sB_)}, {sr(sB_)}, 6
          s_add_u32 {sr(sA)}, {sr(sA)}, {sr(sB_)}
          v_mul_u32_u24 {vr(hT[0])}, 2752, {vr(vL)}""")
    a(f"buffer_load_dword {vr(vDUM)}, {vr(hT[0])}, {sr(R_W1,4)}, {sr(sA)} offen", vm="t")


TJ = OPT.get("tj", 0)
if TJ == 1:
    jobs += [(0, ("t", 0), w1_touch)]
elif TJ >= 2:
    g, nm, fn = jobs[1 - TJ]
    jobs[1 - TJ] = (g, nm, lambda fn=fn: (fn(), w1_touch()))
jobs += [(3, ("q", 0), lambda: issue_wq(0)), (4, ("q", 1), lambda: issue_wq(1))]
jobs += [(g, ("w", c), lambda c=c: issue_w1(c)) for c, g in enumerate([4, 5, 5, 6, 6, 7, 7, 8])]


def run_jobs(upto):
    while any(j[1] == upto for j in jobs):
        jobs.pop(0)[2]()


goload = f"buffer_load_dword {vr(hP)}, {vr(hGO)}, {sr(R_DBG,4)}, 0 offen sc1"
for n in range(8):
    stamp(f"hw{n}")
    a.wait(vm=("c", n))
    stamp(f"ha{n}")
    a("s_barrier")
    if n == 7:
        a("s_mov_b64 exec, 0xffff")
        a(goload, vm="go")
        a("s_mov_b64 exec, -1")
    if jobs[0][0] <= n:
        jobs.pop(0)[2]()
    stamp(f"hi{n}")
a("s_barrier")
stamp("bar8")
run_jobs(("q", 1))
run_jobs(("w", 1))
a.wait(vm=["wq", "go"])
a("s_mov_b64 exec, 0xffff")
poll(goload, 1, hP, first_done=True)
a("s_mov_b64 exec, -1")
stamp("h8b")
a("s_barrier")
run_jobs(("w", OPT.get("j8", 3)))
a.wait(vm=("w1", 1))
stamp("h9")
a("s_barrier")
a("s_barrier")
run_jobs(("w", OPT.get("j9", 5)))
a.wait(vm=("w1", 3))
stamp("h10")
a("s_barrier")
run_jobs(("w", 7))
a("s_mov_b32 exec_hi, 0")
a(f1_load(hP, hF1), vm="f1")
a("s_mov_b64 exec, -1")
a.wait(vm=("w1", 7))
stamp("h11")
a("s_barrier")
stamp("bar11")
q_reads()
a.wait(lg="all")
a("s_barrier")
a.wait(vm="all")
a("s_mov_b32 exec_hi, 0")
poll(f1_load(hP, hF1), 4, hP, first_done=True)
a("s_mov_b64 exec, -1")
stamp("f1seen")
kvload(0)
kvload(1)
kvload(2)
if OPT["prio"]:
    a("s_setprio 2")
a.wait(vm="all")
a("s_branch L_ATT")

a.label("L_C")
role[0] = "C"
a.reset_counts()
XR = lambda s: 4 * s
cACC = [160, 176, 192]
cSET = [128 + 8 * j for j in range(4)]
cSUM, cSQ, cSEL = 208, [212, 216], 244
cXa, cWa, cRS = 224, [228, 232], 236
cXA, cWP, cVO, cR = 240, [224, 228], 220, 248
cKC = [192, 196]
cT = [249, 250]
if OPT.get("cprio", 0):
    a("s_setprio 1")
a(f"""v_bfe_u32 {vr(cT[0])}, {vr(vL)}, 1, 3
      v_xor_b32 {vr(cT[0])}, {vr(cT[0])}, {vr(vHH)}
      v_lshlrev_b32 {vr(cT[0])}, 4, {vr(cT[0])}
      v_lshl_add_u32 {vr(cXA)}, {vr(vL31)}, 7, {vr(cT[0])}
      s_mul_i32 {sr(sT[0])}, {sr(sWQ)}, {4096 + 32}
      v_xor_b32 {vr(cXA)}, {sr(sT[0])}, {vr(cXA)}
      v_xor_b32 {vr(cXA+1)}, 32, {vr(cXA)}
      v_xor_b32 {vr(cXA+2)}, 64, {vr(cXA)}
      v_xor_b32 {vr(cXA+3)}, 0x60, {vr(cXA)}""")
tr_addr128(cWP[0], cWP[1], 8, cT[0])
a(f"s_lshl_b32 {sr(sT[0])}, {sr(sWQ)}, 11")
for t in range(2):
    a(f"v_add_u32 {vr(cWP[t])}, {sr(sT[0])}, {vr(cWP[t])}")
    for j in range(1, 4):
        a(f"v_xor_b32 {vr(cWP[t]+j)}, {2048*j}, {vr(cWP[t])}")
make_sel(cSEL, cT[0])
a(f"""v_mov_b32 {vr(cWa[1]+2)}, 0
      v_mov_b32 {vr(cWa[1]+3)}, 0
      v_mov_b32 {vr(cRS)}, 0
      v_mov_b32 {vr(cRS+1)}, 0
      v_mov_b32 {vr(cRS+2)}, 0x3f803f80
      v_mov_b32 {vr(cRS+3)}, 0x3f80
      v_lshlrev_b32 v221, 4, {vr(vL31)}
      v_add_u32 v221, {L_CSP}, v221
      s_lshl_b32 {sr(sT[0])}, {sr(sWQ)}, 2
      v_add_u32 v222, {sr(sT[0])}, v221
      s_add_u32 {sr(sT[0])}, {sr(sT[0])}, {L_FLG}
      v_mov_b32 {vr(cT[0])}, {sr(sT[0])}
      ds_write_b32 {vr(cT[0])}, {vr(cRS)}
      s_waitcnt lgkmcnt(0)""")
if OPT["stamps"]:
    a("s_memtime s[0:1]")
srd(R_X, P_X, 2048 * 512 * 2)
other_srds()
a(f"s_mov_b64 s[20:21], {sr(P_WQKV,2)}")
att_addr_s(sT[0], sT[1])
a(f"""s_lshl_b32 {sr(sHS)}, {sr(sRB)}, 2
      s_add_u32 {sr(sHS)}, {sr(sHS)}, {sr(sWQ)}
      s_mul_i32 {sr(sHS)}, {sr(sHS)}, {86*1024}
      s_lshl_b32 {sr(sT[0])}, {sr(sT0)}, 11
      s_add_u32 {sr(sHS)}, {sr(sHS)}, {sr(sT[0])}
      s_add_u32 {sr(sHS)}, {sr(sHS)}, {WS_H}""")
a(f"""s_cmp_lg_u32 {sr(sWQ)}, 0
      s_cbranch_scc1 L_C0
      s_cmp_lg_u32 {sr(sRB)}, {sr(sCB)}
      s_cbranch_scc1 L_C1
      s_and_b32 {sr(sT[0])}, {sr(sLINE)}, 0xfffff800
      v_lshrrev_b32 v1, 2, {vr(vL)}
      v_and_b32 v3, 3, {vr(vL)}
      v_lshlrev_b32 v3, 4, v3
      v_lshl_add_u32 v1, v1, 7, v3
      v_mov_b32 v4, 0
      v_mov_b32 v5, 0
      v_mov_b32 v6, 0
      v_mov_b32 v7, 0
      buffer_store_dwordx4 v[4:7], v1, {sr(R_WS,4)}, {sr(sT[0])} offen sc1
      s_lshl_b32 {sr(sT[0])}, {sr(sRB)}, 2
      s_waitcnt vmcnt(0)
      s_mov_b64 exec, 1
      v_mov_b32 v3, 1
      buffer_store_dword v3, off, {sr(R_DBG,4)}, {sr(sT[0])} sc1
      s_mov_b64 exec, -1
      s_branch L_C1""")
a.label("L_C0")
a(f"""s_cmp_lg_u32 {sr(sWQ)}, 1
      s_cbranch_scc1 L_C1
      s_getpc_b64 s[74:75]""")
a.label("L_pc")
a(f"""s_sub_u32 s74, s74, L_pc-{NAME}_kernel
      s_subb_u32 s75, s75, 0
      s_lshr_b32 {sr(sT[0])}, s2, 3
      s_lshl_b32 {sr(sT[0])}, {sr(sT[0])}, 10
      v_lshlrev_b32 v1, 7, {vr(vL)}
      v_add_u32 v1, {sr(sT[0])}, v1
      v_min_u32 v1, L_end-{NAME}_kernel, v1
      s_mov_b64 exec, 0xff
      global_load_dword {vr(vDUM)}, v1, s[74:75]""")
if OPT["touch"]:
    a.comment("first touch of the pages used later in the launch")
    a(f"""v_lshlrev_b32 v1, 21, {vr(vL)}
          s_mov_b64 exec, 0x3f
          buffer_load_dword {vr(vDUM)}, v1, {sr(R_WS,4)}, 0 offen sc1
          s_mov_b64 exec, 1""")
    for r in (R_W1, R_W2, R_WO, R_B1, R_B2, R_OUT):
        a(f"buffer_load_dword {vr(vDUM)}, off, {sr(r,4)}, 0")
a("s_mov_b64 exec, -1")
a.label("L_C1")
PF = OPT.get("pf", 15)
if PF:
    a.comment("L2 prefetch of this workgroup's share of the lines its XCD neighbours also stream later")
    srd(R_WQKV, 20, 512 * 1536 * 2)
    u, u2, u3 = sT[0], sT[1], sT[2]
    a(f"""s_and_b32 {sr(u3)}, {sr(sRB)}, 3
          s_cmp_eq_u32 {sr(sWQ)}, 1
          s_cbranch_scc1 L_pf1
          s_cmp_eq_u32 {sr(sWQ)}, 2
          s_cbranch_scc1 L_pf2
          s_cmp_eq_u32 {sr(sWQ)}, 3
          s_cbranch_scc1 L_pf3""")
    if PF & 16:
        a(f"""s_lshl_b32 {sr(u)}, s2, 13
              v_lshlrev_b32 v1, 7, {vr(vL)}
              buffer_load_dword {vr(vDUM)}, v1, {sr(R_X,4)}, {sr(u)} offen""")
    if PF & 1:
        a(f"""s_and_b32 {sr(u)}, {sr(sCB)}, 7
              s_lshl_b32 {sr(u2)}, {sr(sRB)}, 3
              s_add_u32 {sr(u)}, {sr(u)}, {sr(u2)}
              s_lshl_b32 {sr(u)}, {sr(u)}, 14
              s_add_u32 {sr(u2)}, {sr(sROT)}, 4
              v_lshrrev_b32 v1, 4, {vr(vL)}
              v_add_u32 v1, {sr(u2)}, v1
              v_and_b32 v1, 7, v1
              v_lshlrev_b32 v1, 7, v1
              v_and_b32 v2, 15, {vr(vL)}
              v_lshl_add_u32 v1, v2, 10, v1
              buffer_load_dword {vr(vDUM)}, v1, {sr(R_X,4)}, {sr(u)} offen""")
    a("s_branch L_pfd")
    a.label("L_pf1")
    if PF & 32:
        a(f"""s_mul_i32 {sr(u)}, s2, 6144
              v_lshlrev_b32 v1, 7, {vr(vL)}
              s_mov_b32 exec_hi, 0xffff
              buffer_load_dword {vr(vDUM)}, v1, {sr(R_WQKV,4)}, {sr(u)} offen
              s_mov_b64 exec, -1""")
    if PF & 2:
        a(f"""s_and_b32 {sr(u)}, {sr(sCB)}, 1
              s_add_u32 {sr(u)}, {sr(u)}, 1
              s_lshl_b32 {sr(u)}, {sr(u)}, 10
              s_lshr_b32 {sr(u2)}, {sr(sCB)}, 1
              s_lshl_b32 {sr(u2)}, {sr(u2)}, 7
              s_add_u32 {sr(u)}, {sr(u)}, {sr(u2)}
              s_mul_i32 {sr(u2)}, {sr(u3)}, {16*3072}
              s_add_u32 {sr(u)}, {sr(u)}, {sr(u2)}
              s_add_u32 {sr(u2)}, {sr(sROT)}, 4
              v_lshrrev_b32 v1, 4, {vr(vL)}
              v_add_u32 v1, {sr(u2)}, v1
              v_and_b32 v1, 7, v1
              v_and_b32 v2, 15, {vr(vL)}
              v_lshl_add_u32 v1, v1, 6, v2
              v_mul_u32_u24 v1, 3072, v1
              buffer_load_dword {vr(vDUM)}, v1, {sr(R_WQKV,4)}, {sr(u)} offen""")
    a("s_branch L_pfd")
    a.label("L_pf2")
    if PF & 4:
        a(f"""s_and_b32 {sr(u)}, {sr(sCB)}, 1
              s_lshl_b32 {sr(u2)}, {sr(u3)}, 1
              s_add_u32 {sr(u)}, {sr(u)}, {sr(u2)}
              s_mul_i32 {sr(u)}, {sr(u)}, {64*3072}
              s_lshl_b32 {sr(u2)}, {sr(sCB)}, 6
              s_add_u32 {sr(u)}, {sr(u)}, {sr(u2)}
              v_mul_u32_u24 v1, 3072, {vr(vL)}
              buffer_load_dword {vr(vDUM)}, v1, {sr(R_WQKV,4)}, {sr(u)} offen""")
    a("s_branch L_pfd")
    a.label("L_pf3")
    if PF & 64:
        a(f"""s_mul_i32 {sr(u)}, s2, 5504
              v_lshlrev_b32 v1, 7, {vr(vL)}
              s_mov_b32 exec_hi, 0x7ff
              buffer_load_dword {vr(vDUM)}, v1, {sr(R_W1,4)}, {sr(u)} offen
              s_mov_b64 exec, -1""")
    if PF & 8:
        a(f"""s_mul_i32 {sr(u)}, {sr(u3)}, {128*2752}
              s_lshl_b32 {sr(u2)}, {sr(sT0)}, 6
              s_add_u32 {sr(u)}, {sr(u)}, {sr(u2)}
              s_add_u32 {sr(u2)}, {sr(u)}, {64*2752}
              v_mul_u32_u24 v1, 2752, {vr(vL)}
              buffer_load_dword {vr(vDUM)}, v1, {sr(R_W1,4)}, {sr(u)} offen
              buffer_load_dword {vr(vDUM)}, v1, {sr(R_W1,4)}, {sr(u)} offen offset:128
              buffer_load_dword {vr(vDUM)}, v1, {sr(R_W1,4)}, {sr(u2)} offen
              buffer_load_dword {vr(vDUM)}, v1, {sr(R_W1,4)}, {sr(u2)} offen offset:128""")
    a.label("L_pfd")
a.reset_counts()
a(f"""s_lshr_b32 {sr(sT[0])}, {sr(sCB)}, 1
      s_lshl_b32 {sr(sT[0])}, {sr(sT[0])}, 19
      s_lshl_b32 {sr(sT[1])}, {sr(sRB)}, 2
      s_add_u32 {sr(sT[1])}, {sr(sT[1])}, {sr(sWQ)}
      s_lshl_b32 {sr(sT[1])}, {sr(sT[1])}, 11
      s_add_u32 {sr(sT[2])}, {sr(sT[0])}, {sr(sT[1])}
      s_bitcmp1_b32 {sr(sCB)}, 0
      s_cbranch_scc1 L_CV""")


def kv_path(isV):
    px = [Ptr(cXA + j) for j in range(4)]
    pw = [[Ptr(cWP[t] + j) for j in range(4)] for t in range(2)]

    def rx(n, j):
        rd128(XR(4 * n + j), px[j], (n % 6) * SLOT, ("r", n, j))

    def rw(n, j, t):
        for u in range(0 if OPT.get("norw") and n > 0 else 2):
            tr(cSET[j] + 4 * t + 2 * u, pw[t][j], (n % 6) * SLOT + 16384 + u * 512, ("r", n, j))

    def main(n, j, t):
        if OPT.get("nomain") and n > 0:
            return
        c = "0" if (n == 0 and j == 0) else cACC[t]
        if isV:
            mfma32(cACC[t], XR(4 * n + j), cSET[j] + 4 * t, c)
        else:
            mfma32(cACC[t], cSET[j] + 4 * t, XR(4 * n + j), c)

    def s16(n, j):
        mfma16(cSUM, cSEL, XR(4 * n + j), "0" if (n == 0 and j == 0) else cSUM)

    def s4(n, j, h):
        mfma4(cSQ[h], XR(4 * n + j) + 2 * h, "0" if (n == 0 and j == 0) else cSQ[h])

    def small(n, j):
        if OPT.get("nosmall") and n > 0:
            return
        s16(n, j)
        s4(n, j, 0)
        s4(n, j, 1)

    if isV:
        a(f"""v_bfe_u32 {vr(cT[0])}, {vr(vL)}, 4, 1
              v_lshlrev_b32 {vr(cT[0])}, 17, {vr(cT[0])}
              v_lshl_add_u32 {vr(cT[0])}, {vr(vHH)}, 8, {vr(cT[0])}
              v_and_b32 {vr(cVO)}, 15, {vr(vL)}
              v_lshl_add_u32 {vr(cVO)}, {vr(cVO)}, 4, {vr(cT[0])}""")
    else:
        a.comment("key slot = lane with bits 2 and 3 swapped")
        a(f"""v_and_b32 {vr(cVO)}, 0x33, {vr(vL)}
              v_bfe_u32 {vr(cT[0])}, {vr(vL)}, 2, 1
              v_lshl_add_u32 {vr(cVO)}, {vr(cT[0])}, 3, {vr(cVO)}
              v_bfe_u32 {vr(cT[0])}, {vr(vL)}, 3, 1
              v_lshl_add_u32 {vr(cVO)}, {vr(cT[0])}, 2, {vr(cVO)}
              v_lshlrev_b32 {vr(cVO)}, 4, {vr(cVO)}""")
    def rd(n, j):
        rx(n, j)
        rw(n, j, 0)
        rw(n, j, 1)

    for n in range(8):
        stamp(f"ca{n}")
        a("s_barrier")
        stamp(f"cp{n}")
        if n == 0:
            stamp("c0")
        if n == 7:
            stamp("c7")
        if n == 0:
            rd(0, 0)
            rd(0, 1)
            rd(0, 2)
        else:
            main(n - 1, 2, 0)
            rx(n, 0)
            rw(n, 0, 0)
            main(n - 1, 2, 1)
            rw(n, 0, 1)
            main(n - 1, 3, 0)
            rx(n, 1)
            rw(n, 1, 0)
            main(n - 1, 3, 1)
            rw(n, 1, 1)
            for j in range(4):
                s16(n - 1, j)
                if j == 0:
                    rx(n, 2)
                elif j < 3:
                    rw(n, 2, j - 1)
                s4(n - 1, j, 0)
                s4(n - 1, j, 1)
        a.wait(lg=("r", n, 0))
        main(n, 0, 0)
        rx(n, 3)
        rw(n, 3, 0)
        main(n, 0, 1)
        rw(n, 3, 1)
        for t in range(2):
            mfma16(cKC[t], cSEL, cSET[0] + 4 * t, "0" if n == 0 else cKC[t])
        a.wait(lg=("r", n, 1))
        if n < 7:
            main(n, 1, 0)
            main(n, 1, 1)
            a.wait(lg=("r", n, 3))
    small(7, 0)
    small(7, 1)
    a.wait(lg=("r", 7, 3))
    s16(7, 2)
    a(f"ds_write_b32 v222, {vr(cKC[0])}", lg="k")
    a(f"ds_write_b32 v222, {vr(cKC[1])} offset:512", lg="k")
    s4(7, 2, 0)
    s4(7, 2, 1)
    small(7, 3)
    main(7, 1, 0)
    a.wait(lg="all")
    a("s_barrier")
    a("s_setprio 1")
    CS = cSET[0]
    T0, T1 = cT
    T2, T3, T4 = 223, 221, 222
    a(f"ds_read_b128 {vr(CS,4)}, {vr(T3)}", lg="cs")
    a(f"ds_read_b128 {vr(CS+4,4)}, {vr(T3)} offset:512", lg="cs")
    ops = [f"v_and_b32 {vr(T0)}, 3, {vr(vL)}",
           f"v_cmp_eq_u32 vcc, 1, {vr(T0)}",
           f"v_cmp_eq_u32 s[76:77], 2, {vr(T0)}",
           f"v_cmp_eq_u32 s[78:79], 3, {vr(T0)}"]
    ops += [f"v_add_f32 {vr(cSQ[0]+i)}, {vr(cSQ[0]+i)}, {vr(cSQ[1]+i)}" for i in range(4)]
    ops += [f"v_cndmask_b32 {vr(T0)}, {vr(cSQ[0])}, {vr(cSQ[0]+1)}, vcc",
            f"v_cndmask_b32 {vr(T0)}, {vr(T0)}, {vr(cSQ[0]+2)}, s[76:77]",
            f"v_cndmask_b32 {vr(T0)}, {vr(T0)}, {vr(cSQ[0]+3)}, s[78:79]",
            f"v_mov_b32 {vr(T1)}, {vr(T0)}",
            f"v_mul_f32 {vr(T2)}, {f32(1/512)}, {vr(cSUM)}",
            f"v_cvt_pk_bf16_f32 {vr(cXa)}, -{vr(T2)}, -{vr(T2)}",
            f"v_permlane32_swap_b32 {vr(T0)}, {vr(T1)}",
            f"v_add_f32 {vr(T0)}, {vr(T0)}, {vr(T1)}",
            f"v_mul_f32 {vr(T0)}, {f32(1/512)}, {vr(T0)}",
            f"v_fma_f32 {vr(T0)}, -{vr(T2)}, {vr(T2)}, {vr(T0)}",
            f"v_max_f32 {vr(T0)}, 0, {vr(T0)}",
            f"v_cvt_pk_bf16_f32 {vr(T0)}, {vr(T0)}, {vr(T0)}",
            f"v_lshlrev_b32 {vr(T0)}, 16, {vr(T0)}",
            f"v_add_f32 {vr(T0)}, {f32(1e-5)}, {vr(T0)}",
            f"v_cvt_pk_bf16_f32 {vr(T0)}, {vr(T0)}, {vr(T0)}",
            f"v_lshlrev_b32 {vr(T0)}, 16, {vr(T0)}",
            f"v_sqrt_f32 {vr(T0)}, {vr(T0)}",
            "WAITCS",
            f"v_add_f32 {vr(CS)}, {vr(CS)}, {vr(CS+1)}",
            f"v_cvt_pk_bf16_f32 {vr(cXa+1)}, -{vr(T2)}, {vr(T0)}",
            f"v_and_b32 {vr(T0)}, 0xffff0000, {vr(cXa+1)}",
            f"v_rcp_f32 {vr(cR)}, {vr(T0)}",
            f"v_add_f32 {vr(CS+2)}, {vr(CS+2)}, {vr(CS+3)}",
            f"v_add_f32 {vr(CS)}, {vr(CS)}, {vr(CS+2)}"]
    ops += split3_ops(cR, "0", cXa + 2, cXa + 3, T0, T1, None)
    ops += [f"s_lshl_b32 {sr(sT[0])}, {sr(sWQ)}, 9",
            f"s_add_u32 {sr(sT[0])}, {sr(sT[0])}, {L_STATS - L_CSP}",
            f"v_add_u32 {vr(T3)}, {sr(sT[0])}, {vr(T3)}",
            f"v_add_u32 {vr(T4)}, -1, {vr(vHH)}",
            "WSTAT"]
    ops += [f"v_and_b32 {vr(cXa+i)}, {vr(cXa+i)}, {vr(T4)}" for i in range(4)]
    ops += [f"v_mov_b64 {vr(cWa[0]+2,2)}, 0"]
    ops += split3_ops(CS, "0", cWa[0], cWa[0] + 1, T0, T1, None)
    rest = [(1, 1), (2, 0), (2, 1), (3, 0), (3, 1)]
    for i, op in enumerate(ops):
        if i % 6 == 2 and rest:
            j, t = rest.pop(0)
            main(7, j, t)
        if op == "WAITCS":
            a.wait(lg="cs")
        elif op == "WSTAT":
            a(f"ds_write_b32 {vr(T3)}, {vr(cXa+1)} offset:4", lg="st")
        else:
            a(op)
    assert not rest
    a(f"""v_add_f32 {vr(CS+4)}, {vr(CS+4)}, {vr(CS+5)}
          v_add_f32 {vr(CS+6)}, {vr(CS+6)}, {vr(CS+7)}""")
    if isV:
        mfma32(cACC[2], cXa, cRS, "0")
        mfma32(cACC[0], cXa, cWa[0], cACC[0])
    else:
        mfma32(cACC[0], cWa[0], cXa, cACC[0])
    a(f"v_add_f32 {vr(CS+4)}, {vr(CS+4)}, {vr(CS+6)}")
    emit(split3_ops(CS + 4, "0", cWa[1], cWa[1] + 1, T0, T1, None))
    if isV:
        mfma32(cACC[1], cXa, cWa[1], cACC[1])
    else:
        mfma32(cACC[1], cWa[1], cXa, cACC[1])
    for t in range(2):
        for u in range(2):
            b = cACC[t] + 8 * u
            for i in range(8):
                a(f"v_mul_f32 {vr(b+i)}, {vr(b+i)}, {vr(cACC[2]+8*u+i) if isV else vr(cR)}")
            p = cSET[0] + 8 * t + 4 * u
            for i in range(4):
                a(f"v_cvt_pk_bf16_f32 {vr(p+i)}, {vr(b+2*i)}, {vr(b+2*i+1)}")
            if isV:
                if u == 0:
                    a(f"s_add_u32 {sr(sT[3])}, {sr(sT[2])}, {2*t*131072}")
                a(f"buffer_store_dwordx4 {vr(p,4)}, {vr(cVO)}, {sr(R_WS,4)}, {sr(sT[3])} offen offset:{1024+512*u} sc1", vm="kv")
            else:
                a(f"s_add_u32 {sr(sT[3])}, {sr(sT[2])}, {(2*t+u)*131072}")
                a(f"buffer_store_dwordx4 {vr(p,4)}, {vr(cVO)}, {sr(R_WS,4)}, {sr(sT[3])} offen sc1", vm="kv")


kv_path(False)
a("s_branch L_C2")
a.label("L_CV")
a.reset_counts()
kv_path(True)
a.label("L_C2")
stamp("kvst")
cQA, RING = 208, 128
cWF = [208, 212, 216]
cPS, cPA = cWa[1], vDUM
cQC, cFB, cFC = 160, 204, [0, 4, 8]
cF1A, cF1, cBI, cP3, cFL = 64, 68, 72, 76, 88
tr_addr(cXA, 8, 64, cT[0])
a(f"""s_lshl_b32 {sr(sT[0])}, {sr(sWQ)}, 10
      s_add_u32 {sr(sT[0])}, {sr(sT[0])}, {L_WQ}
      v_add_u32 {vr(cXA)}, {sr(sT[0])}, {vr(cXA)}""")
for j in range(1, 4):
    a(f"v_xor_b32 {vr(cXA+j)}, {1024*j}, {vr(cXA)}")
pq = [Ptr(cXA + j, L_WQ) for j in range(4)]
pf = [Ptr(cXA + j, L_W1[0]) for j in range(4)]
a(f"s_setprio {OPT.get('cp2', 0)}")
a("s_barrier")
stamp("c8b")
LA = 6


def t_read(i):
    if i >= 128:
        return
    for u in range(2):
        if i < 32:
            tr(RING + 4 * (i & 7) + 2 * u, pq[i & 3], L_WQ + (i >> 2) * 4096 + u * 256, ("tw", i))
        else:
            k, t = divmod(i - 32, 3)
            tr(RING + 4 * (i & 7) + 2 * u, pf[k & 3], L_W1[k >> 2] + t * 64 + u * 768, ("tw", i))


def sum4(p):
    return [f"v_add_f32 {vr(p)}, {vr(p)}, {vr(p+1)}", f"v_add_f32 {vr(p+2)}, {vr(p+2)}, {vr(p+3)}", f"v_add_f32 {vr(p)}, {vr(p)}, {vr(p+2)}"]


side = []


def side_ops(n):
    for _ in range(n):
        if not side:
            return
        op = side.pop(0)
        if isinstance(op, tuple):
            a.wait(lg=op[1])
        elif callable(op):
            op()
        elif op:
            a(op)


F1S, B11 = OPT.get("f1s", 24), OPT.get("b11", 64)
at = {}


def sched(i, ops):
    at.setdefault(i, []).extend(ops)


sched(2, record(lambda: tr_addr(cFB, 8, 192, cT[0])))
for j in range(4):
    sched(5 + 2 * j, [f"s_xor_b32 {sr(20+j)}, {sr(sWQ)}, {j}", f"s_mul_i32 {sr(20+j)}, {sr(20+j)}, 3072", f"s_add_u32 {sr(20+j)}, {sr(20+j)}, {L_W1[0]}"])
    sched(22 + j, [f"v_add_u32 {vr(cXA+j)}, {sr(20+j)}, {vr(cFB)}"])
sched(26, ["s_waitcnt vmcnt(4)", f"v_lshlrev_b32 {vr(cPA)}, 4, {vr(vL31)}", f"v_add_u32 {vr(cPA)}, {L_CSP + 1024}, {vr(cPA)}",
           f"s_lshl_b32 {sr(sT[0])}, {sr(sWQ)}, 2", f"v_add_u32 {vr(cT[0])}, {sr(sT[0])}, {vr(cPA)}"])
sched(30, [lambda: a(f"ds_write_b32 {vr(cT[0])}, {vr(cQC)}", lg="qc")])
q2 = [lambda: a(f"ds_read_b128 {vr(cPS,4)}, {vr(cPA)}", lg="ps"),
      f"s_lshl_b32 {sr(sT[0])}, {sr(sWQ)}, 10", f"s_add_u32 {sr(sT[0])}, {sr(sT[0])}, {L_QX}", "", "", "", ("W", "ps")]
q2 += sum4(cPS) + split3_ops(cPS, "0", cWa[0], cWa[0] + 1, cT[0], cT[1], None)
q2 += [f"v_lshl_add_u32 {vr(cT[1])}, {vr(vL)}, 4, {sr(sT[0])}",
       lambda: mfma32(cQA, cWa[0], cXa, cQA),
       f"v_mul_f32 {vr(cT[0])}, {f32(0.25*math.log2(math.e))}, {vr(cR)}",
       "", "", "", ""]
q2 += [f"v_mul_f32 {vr(cQA+i)}, {vr(cQA+i)}, {vr(cT[0])}" for i in range(16)]
for u in range(2):
    q2 += [f"v_cvt_pk_bf16_f32 {vr(cQA+4*u+i)}, {vr(cQA+8*u+2*i)}, {vr(cQA+8*u+2*i+1)}" for i in range(4)]
    q2 += [lambda u=u: a(f"ds_write_b128 {vr(cT[1])}, {vr(cQA+4*u,4)} offset:{u*4096}", lg="qx")]
sched(33, q2)
sched(76, record(lambda: att_addr_v(cT[0])) + [f"v_mov_b64 {vr(cWF[k]+2,2)}, 0" for k in range(3)])
sched(84, [x for x in record(o_zero)[6:]])


def late_loads():
    a(f"""s_lshl_b32 {sr(sT[0])}, {sr(sT0)}, 6
          v_lshlrev_b32 {vr(cT[0])}, 1, {vr(vL31)}""")
    for t in range(3):
        a(f"buffer_load_ushort {vr(cBI+t)}, {vr(cT[0])}, {sr(R_B1,4)}, {sr(sT[0])} offen offset:{64*t}", vm="bias")


sched(98, [late_loads] + record(lambda: f1_addr(cF1A, cT[0])))
sched(106, [lambda: (a("s_mov_b32 exec_hi, 0"), a(f1_load(cF1, cF1A), vm="f1"), a("s_mov_b64 exec, -1"))])
sched(112, [f"s_lshl_b32 {sr(sT[0])}, {sr(sWQ)}, 2", f"v_add_u32 {vr(cT[0])}, {sr(sT[0])}, {vr(cPA)}",
            f"s_add_u32 {sr(sT[0])}, {sr(sT[0])}, {L_FLG}", f"v_mov_b32 {vr(cT[1])}, {sr(sT[0])}",
            f"v_mov_b32 {vr(cFL+4)}, {L_FLG}", lambda: a.wait(vm="bias")] + [f"v_lshlrev_b32 {vr(cBI+t)}, 16, {vr(cBI+t)}" for t in range(3)])
sched(119, [lambda t=t: a(f"ds_write_b32 {vr(cT[0])}, {vr(cFC[t])} offset:{512*(t+1)}", lg="fc") for t in range(2)])
sched(122, [lambda: a(f"ds_write_b32 {vr(cT[0])}, {vr(cFC[2])} offset:1536", lg="fc"),
            lambda: a(f"ds_write_b32 {vr(cT[1])}, {vr(cT[1])}", lg="fc")])
sched(123, record(o_zero)[:4])


def part_reads():
    a(f"ds_read_b128 {vr(cFL,4)}, {vr(cFL+4)}", lg="p3")
    for t in range(3):
        a(f"ds_read_b128 {vr(cP3+4*t,4)}, {vr(cPA)} offset:{512*(t+1)}", lg="p3")


sched(125, [part_reads] + record(o_zero)[4:6])
for i in range(LA):
    t_read(i)
for i in range(128):
    a.wait(lg=("tw", i))
    fr = RING + 4 * (i & 7)
    if i < 32:
        mfma32(cQA, fr, XR(i), "0" if i == 0 else cQA)
        cs = (cQC, i == 0) if i % 4 == 0 else None
    else:
        k, t = divmod(i - 32, 3)
        mfma32(cACC[t], fr, XR(k), "0" if k == 0 else cACC[t])
        cs = (cFC[t], k == 3) if (k == 3 or (k >= 4 and k % 4 == 0)) else None
    if i + LA == 32:
        a("s_barrier")
        stamp("c9")
    if i == 33:
        a.wait(lg="qc")
        a("s_barrier")
    if i + LA == 56:
        a("s_barrier")
        stamp("c10")
    if i == B11:
        assert not side and 56 - LA < B11 <= 80 - LA
        a.wait(lg="qx")
        a("s_barrier")
        stamp("c11")
    if i == B11 + 5:
        a("s_barrier")
        a(f"s_setprio {OPT.get('cp3', 3)}")
    stamp(f"i{i}")
    t_read(i + LA)
    side += at.get(i, [])
    side_ops(2)
    if cs:
        mfma16(cs[0], cSEL, fr, "0" if cs[1] else cs[0])
    if i == F1S:
        a(f"""s_lshl_b32 {sr(sT[3])}, {sr(sWQ)}, 2
              s_add_u32 {sr(sT[3])}, {sr(sT[3])}, {sr(sLINE)}""")
        a.wait(vm="all")
        set_flag(sT[3], cRS)
        stamp("f1sent")
assert not side
stamp("ffnend")
a("s_setprio 3")
a(f"s_mov_b32 {sr(sT[6])}, {OPT['spin']}")
a.label("L_p3")
a.wait(lg="all")
a(f"""v_min_u32 {vr(cFL)}, {vr(cFL)}, {vr(cFL+1)}
      v_min3_u32 {vr(cFL)}, {vr(cFL)}, {vr(cFL+2)}, {vr(cFL+3)}
      v_cmp_eq_u32 vcc, 0, {vr(cFL)}
      s_nop 1
      s_cmp_eq_u64 vcc, 0
      s_cbranch_scc1 L_p3d""")
part_reads()
a(f"""s_sub_u32 {sr(sT[6])}, {sr(sT[6])}, 1
      s_cmp_lg_u32 {sr(sT[6])}, 0
      s_cbranch_scc1 L_p3""")
a.wait(lg="all")
a.label("L_p3d")
q_reads()
for t in range(3):
    emit(sum4(cP3 + 4 * t) + split3_ops(cP3 + 4 * t, vr(cBI + t), cWF[t], cWF[t] + 1, cT[0], cT[1], None))
    if t:
        mfma32(cACC[t - 1], cWF[t - 1], cXa, cACC[t - 1])
a.wait(vm="all")
a("s_mov_b32 exec_hi, 0")
poll(f1_load(cF1, cF1A), 4, cF1, first_done=True)
a("s_mov_b64 exec, -1")
mfma32(cACC[2], cWF[2], cXa, cACC[2])
att_init()
kvload(0)
kvload(1)
kvload(2)
HSP = OPT.get("hsp", 2)


def hstore(n):
    if n == 4:
        a(f"s_add_u32 {sr(sHS)}, {sr(sHS)}, 4096")
    a(f"buffer_store_dwordx4 {vr(208+4*n,4)}, {vr(vL16)}, {sr(R_WS,4)}, {sr(sHS)} offen offset:{1024*(n&3)} sc1", vm="h")


for t in range(3):
    for u in range(2):
        b = cACC[t] + 8 * u
        for i in range(8):
            a(f"v_max_f32 {vr(b+i)}, 0, {vr(b+i)}")
        for i in range(8):
            a(f"v_mul_f32 {vr(b+i)}, {vr(b+i)}, {vr(b+i)}")
        p = 208 + 8 * t + 4 * u
        for i in range(4):
            a(f"v_cvt_pk_bf16_f32 {vr(p+i)}, {vr(b+2*i)}, {vr(b+2*i+1)}")
        if not HSP:
            hstore(2 * t + u)
a.wait(vm=("v", 2), lg="all")

a.label("L_ATT")
role[0] = "HC"
a.reset_counts()
stamp("attst")


def w2dma(lds, tag):
    dma(vWD, R_W2, sW2, lds, tag, f"s_add_u32 {sr(sW2)}, {sr(sW2)}, 16384")


def hload(i):
    if i % 4 == 0:
        a(f"""s_add_u32 {sr(sU2)}, {sr(sKS)}, {i}
              s_min_u32 {sr(sU2)}, {sr(sU2)}, 84
              s_lshl_b32 {sr(sU2)}, {sr(sU2)}, 10
              s_add_u32 {sr(sT[2])}, {sr(sU2)}, {sr(sH0)}""")
    a(f"buffer_load_dwordx4 {vr(HF+4*i,4)}, {vr(vL16)}, {sr(R_WS,4)}, {sr(sT[2])} offen offset:{(i%4)*1024} sc1", vm="hf")


def f2_check():
    a(f"""v_and_b32 {vr(vFL)}, 15, {vr(vL)}
          v_lshlrev_b32 {vr(vFL)}, 7, {vr(vFL)}
          s_and_b32 {sr(sU2)}, {sr(sLINE)}, 0xfffff800
          s_mov_b64 exec, 0xffff""")
    poll(f"buffer_load_dwordx4 {vr(vFP,4)}, {vr(vFL)}, {sr(R_WS,4)}, {sr(sU2)} offen offset:16 sc1", 4, vFP)
    a("s_mov_b64 exec, -1")
    a.vm = []


def l2_touch():
    a.comment("pull a share of the W2 / Wo column block used after the attention into L2")
    a(f"""s_and_b32 {sr(sU)}, {sr(sRB)}, 3
          s_lshl_b32 {sr(sU)}, {sr(sU)}, 1
          s_and_b32 {sr(sU2)}, {sr(sCB)}, 1
          s_add_u32 {sr(sU)}, {sr(sU)}, {sr(sU2)}
          s_lshl_b32 {sr(sU)}, {sr(sU)}, 3
          s_add_u32 {sr(sU)}, {sr(sU)}, {sr(sW)}
          s_lshr_b32 {sr(sU2)}, {sr(sCB)}, 1
          s_lshl_b32 {sr(sU2)}, {sr(sU2)}, 7
          s_mul_i32 {sr(sT[3])}, {sr(sU)}, {22*1024}
          s_add_u32 {sr(sT[3])}, {sr(sT[3])}, {sr(sU2)}
          s_lshl_b32 {sr(sU)}, {sr(sU)}, 13
          s_add_u32 {sr(sU)}, {sr(sU)}, {sr(sU2)}
          v_lshlrev_b32 {vr(vFL)}, 10, {vr(vL)}
          s_mov_b64 exec, 0x3fffff""")
    a(f"buffer_load_dword {vr(vDUM)}, {vr(vFL)}, {sr(R_W2,4)}, {sr(sT[3])} offen", vm="t")
    a("s_mov_b64 exec, 0xff")
    a(f"buffer_load_dword {vr(vDUM)}, {vr(vFL)}, {sr(R_WO,4)}, {sr(sU)} offen", vm="t")
    a("s_mov_b64 exec, -1")


extras = {}


def put(it, tile, slot, fn):
    extras.setdefault((it, tile, slot), []).append(fn)


for it in range(1, 16):
    put(it, 0, 1, lambda it=it: kvload(it + 2))


def f2_signal():
    a(f"""s_cmp_lt_u32 {sr(sW)}, 4
          s_cbranch_scc1 L_nof2
          s_lshl_b32 {sr(sU)}, {sr(sW)}, 2
          s_add_u32 {sr(sU)}, {sr(sU)}, {sr(sLINE)}""")
    assert "h" not in a.vm and ("k", 3) not in a.vm
    set_flag(sU, vFL)
    a(f"s_setprio {2 if OPT['prio'] else 0}")
    a.label("L_nof2")


if HSP:
    a.comment("waves 4-7 publish h one fragment at a time; waves 0-3 run the same stores out of range (dropped)")
    for n in range(6):
        put(n * HSP // 4, n * HSP % 4, 2, lambda n=n: hstore(n))
    put(5 * HSP // 4 + 2, 3, 1, f2_signal)
else:
    put(2, 3, 1, f2_signal)
if OPT['tit'] < 16:
    put(OPT['tit'], 2, 0, l2_touch)
F2IT = OPT["f2it"]
put(F2IT, 0, 0, f2_check)
pre = []
for i in range(22):
    pre.append(lambda i=i: hload(i))
    if i % 2 == 1 or i == 0:
        pre.append(lambda i=(i + 1) // 2: w2dma((sLA, i * 8192), "w2a"))
assert len(pre) == 34
slots = [(it, t, sl) for it in range(F2IT, 16) for t, sl in ((0, 2), (1, 0), (1, 2), (2, 2), (3, 2))]
for n, fn in enumerate(pre):
    put(*slots[n], fn)
if OPT["prio"]:
    P1, P0 = OPT.get("p1", 50), OPT.get("p0", 61)
    put(P1 // 4, P1 % 4, 0, lambda: a("s_setprio 1"))
    put(P0 // 4, P0 % 4, 0, lambda: a("s_setprio 0"))


def run_extras(it, tile, slot):
    for fn in extras.get((it, tile, slot), []):
        fn()


def exps(b, lo, hi):
    for i in range(lo, hi):
        a(f"v_exp_f32 {vr(b+i)}, {vr(b+i)}")


ORD = [1, 2, 3, 0]
T = [64 + i for i in range(32)]
CA = KB[1]
vB0, vB1, vC0, vC1 = 241, 242, 243, 248


def cmb_addr(j):
    a(f"""s_xor_b32 {sr(sU)}, {sr(sW)}, {j}
          s_mul_i32 {sr(sU)}, {sr(sU)}, 7168
          s_add_u32 {sr(sU)}, {sr(sU)}, {L_CMB + max(j-1, 0)*2304}
          v_add_u32 {vr(CA+2*j)}, {sr(sU)}, {vr(vL16)}
          v_lshl_add_u32 {vr(CA+2*j+1)}, {vr(vL)}, 2, {sr(sU)}""")


def cmb_write(j):
    o = (j - 1) * 2304
    a(f"ds_write_b128 {vr(CA)}, {vr(O[j],4)} offset:{o}", lg="c")
    a(f"ds_write_b128 {vr(CA)}, {vr(O[j]+4,4)} offset:{o+1024}", lg="c")
    a(f"ds_write_b32 {vr(CA+1)}, {vr(O[j]+8)} offset:{o+2048}", lg="c")


def w_addr():
    tr_addr128(vB0, vB1, 4, vFL)
    a(f"""s_and_b32 {sr(sU)}, {sr(sLA)}, 0xfffff800
          v_add_u32 {vr(vC0)}, {sr(sU)}, {vr(vB0)}
          v_add_u32 {vr(vC1)}, {sr(sU)}, {vr(vB1)}""")


put(14, 3, 0, w_addr)
for j in range(4):
    put(15, j // 2, 1 + j % 2, lambda j=j: cmb_addr(j))
put(15, 2, 0, lambda: cmb_write(1))
put(15, 3, 0, lambda: cmb_write(2))
mfma32(S[0], KB[0], Q[ORD[0]], "0")
for t in range(64):
    it, j = t // 4, t % 4
    X, Y = S[t & 1], S[(t + 1) & 1]
    stamp(f"t{t}")
    exps(X, 0, 2)
    if t > 0:
        pit, pj = (t - 1) // 4, (t - 1) % 4
        smf(O[ORD[pj]], VB[pit % 3] + 4, Y + 8, vIDX)
    run_extras(it, j, 0)
    exps(X, 2, 5)
    if t < 63:
        nit, nj = (t + 1) // 4, (t + 1) % 4
        if nj == 0:
            a.wait(vm=("k", nit))
        mfma32(Y, KB[nit % 3], Q[ORD[nj]], "0")
    run_extras(it, j, 1)
    exps(X, 5, 11)
    if j == 0:
        a.wait(vm=("v", it))
    smf(O[ORD[j]], VB[it % 3], X, vIDX)
    run_extras(it, j, 2)
    if t == 63:
        cmb_write(3)
    exps(X, 11, 16)
a.wait(vm="all", lg="all")
smf(O[0], VB[15 % 3] + 4, S[1] + 8, vIDX)
stamp("attend")

a("s_barrier")
stamp("barc")
for j in range(1, 4):
    a(f"ds_read_b128 {vr(O[j],4)}, {vr(CA+2*j)}", lg=("c", j))
    a(f"ds_read_b128 {vr(O[j]+4,4)}, {vr(CA+2*j)} offset:1024", lg=("c", j))
    a(f"ds_read_b32 {vr(O[j]+8)}, {vr(CA+2*j+1)} offset:2048", lg=("c", j))
for j in range(1, 4):
    a.wait(lg=("c", j))
    for i in range(9):
        a(f"v_add_f32 {vr(O[0]+i)}, {vr(O[0]+i)}, {vr(O[j]+i)}")
a(f"""v_add_f32 {vr(T[2])}, |{vr(O[0])}|, |{vr(O[0]+1)}|
      v_add_f32 {vr(T[3])}, |{vr(O[0]+2)}|, |{vr(O[0]+3)}|
      v_cmp_nle_f32 vcc, {f32(2.0**-64)}, {vr(O[0]+8)}
      v_add_f32 {vr(T[2])}, |{vr(O[0]+4)}|, {vr(T[2])}
      s_mov_b64 s[76:77], vcc
      v_add_f32 {vr(T[3])}, |{vr(O[0]+5)}|, {vr(T[3])}
      v_cmp_nge_f32 vcc, {f32(2.0**64)}, {vr(O[0]+8)}
      v_add_f32 {vr(T[2])}, |{vr(O[0]+6)}|, {vr(T[2])}
      s_or_b64 s[76:77], s[76:77], vcc
      v_add_f32 {vr(T[3])}, |{vr(O[0]+7)}|, {vr(T[3])}
      v_add_f32 {vr(T[2])}, {vr(T[2])}, {vr(T[3])}
      v_cmp_nge_f32 vcc, {f32(2.0**126)}, {vr(T[2])}
      s_or_b64 s[76:77], s[76:77], vcc""")
a("s_branch L_SLOW" if OPT["force_slow"] else "s_cbranch_scc1 L_SLOW")
a.label("L_NORM")
a(f"v_rcp_f32 {vr(T[2])}, {vr(O[0]+8)}")
WR = 32
FA = [96, 112]


pC = [Ptr(vC0), Ptr(vC1)]


def w_read(i, addr, tag):
    for ct in range(2):
        for u in range(2):
            tr(WR + 8 * (i & 3) + 4 * ct + 2 * u, pC[ct], addr + u * 1024, (tag, i))


def f_addr(i):
    return i * 8192 if i < 19 else L_B2 + (i - 19) * 8192


w_read(0, 0, "f")
for i in range(8):
    a(f"v_mul_f32 {vr(O[0]+i)}, {vr(O[0]+i)}, {vr(T[2])}")
for i in range(4):
    a(f"v_cvt_pk_bf16_f32 {vr(T[4]+i)}, {vr(O[0]+2*i)}, {vr(O[0]+2*i+1)}")
a(f"buffer_store_dwordx4 {vr(T[4],4)}, {vr(vL16)}, {sr(R_WS,4)}, {sr(sO)} offen sc1", vm="o")
stamp("ost")
w_read(1, 8192, "f")
a("s_barrier")

vOUT = T[8]
vX, vB2 = 128, 136
sWoS = sT[3]
a(f"""s_lshl_b32 {sr(sWoS)}, {sr(sW)}, 13
      s_and_b32 {sr(sU2)}, {sr(sOUT)}, 0x3ff
      s_add_u32 {sr(sWoS)}, {sr(sWoS)}, {sr(sU2)}
      s_sub_u32 {sr(sWoS)}, {sr(sWoS)}, 0x10000""")


def wodma(p):
    dma(vWD, R_WO, sWoS, (sLA, L_WO + p * 8192), "wo", f"s_add_u32 {sr(sWoS)}, {sr(sWoS)}, 0x10000")


def fstep(i):
    a.wait(lg=("f", i))
    mfma32(FA[0], WR + 8 * (i & 3), HF + 4 * i, "0" if i == 0 else FA[0])


def fstep2(i):
    mfma32(FA[1], WR + 8 * (i & 3) + 4, HF + 4 * i, "0" if i == 0 else FA[1])


vPW, vPR = T[10], T[14]
vSD = T[3]
dq = [lambda i=i: w2dma((sLA, f_addr(i)), "b1" if i < 19 else "b2") for i in range(12, 22)] + [lambda p=p: wodma(p) for p in range(8)]
for i in range(12):
    fstep(i)
    if i == 0:
        dq.pop(0)()
    if i + 2 < 12:
        w_read(i + 2, f_addr(i + 2), "f")
    fstep2(i)
    dq.pop(0)()
    if i == 5:
        a(f"s_cmp_lg_u32 {sr(sW)}, 0")
        a.wait(vm="o")
        a("s_barrier")
        a("s_cbranch_scc1 L_nof3")
        set_flag(sLINE, T[2], 32)
        a.label("L_nof3")
        stamp("a6")
stamp("aend")
a(f"""v_and_b32 {vr(vFL)}, 7, {vr(vL)}
      v_xor_b32 {vr(vPW)}, {vr(vFL)}, {vr(vHH)}
      v_lshlrev_b32 {vr(vPW)}, 4, {vr(vPW)}
      v_lshl_add_u32 {vr(vPW)}, {vr(vL31)}, 8, {vr(vPW)}
      s_lshl_b32 {sr(sU2)}, {sr(sW)}, 13
      s_add_u32 {sr(sU2)}, {sr(sU2)}, {L_PART}
      v_add_u32 {vr(vPW)}, {sr(sU2)}, {vr(vPW)}
      v_xor_b32 {vr(vPW+1)}, 32, {vr(vPW)}
      v_xor_b32 {vr(vPW+2)}, 64, {vr(vPW)}
      v_xor_b32 {vr(vPW+3)}, 0x60, {vr(vPW)}
      v_lshrrev_b32 {vr(T[2])}, 3, {vr(vL)}
      v_lshlrev_b32 {vr(vPR)}, 1, {vr(vFL)}
      v_xor_b32 {vr(vPR)}, {vr(vPR)}, {vr(T[2])}
      v_lshlrev_b32 {vr(vPR)}, 4, {vr(vPR)}
      v_lshl_add_u32 {vr(vPR)}, {vr(T[2])}, 8, {vr(vPR)}
      s_lshl_b32 {sr(sU2)}, {sr(sWQ)}, 11
      s_add_u32 {sr(sU2)}, {sr(sU2)}, {L_PART}
      v_add_u32 {vr(vPR)}, {sr(sU2)}, {vr(vPR)}
      v_xor_b32 {vr(vPR+1)}, 16, {vr(vPR)}
      s_and_b32 {sr(sU2)}, {sr(sCB)}, 1
      s_lshl_b32 {sr(sU2)}, {sr(sU2)}, 3
      s_add_u32 {sr(sU2)}, {sr(sU2)}, {sr(sWQ)}
      s_lshl_b32 {sr(sU2)}, {sr(sU2)}, 7
      s_add_u32 {sr(sU2)}, {sr(sU2)}, {L_STATS}
      v_lshl_add_u32 {vr(vSD)}, {vr(T[2])}, 4, {sr(sU2)}
      v_lshlrev_b32 {vr(T[9])}, 4, {vr(vFL)}
      v_lshl_add_u32 {vr(vOUT)}, {vr(T[2])}, 10, {vr(T[9])}
      v_lshlrev_b32 {vr(vFL)}, 7, {vr(vFL)}
      s_and_b32 {sr(sT[5])}, {sr(sLINE)}, 0xfffff800
      s_and_b32 {sr(sU2)}, {sr(sW)}, 2
      s_lshl_b32 {sr(sU2)}, {sr(sU2)}, 9
      s_add_u32 {sr(sT[5])}, {sr(sT[5])}, {sr(sU2)}""")
a(f"s_cmp_ge_u32 {sr(sW)}, 4")
a.wait(vm="b1")
a("s_barrier")
stamp("g1")
w_read(12, f_addr(12), "f")
w_read(13, f_addr(13), "f")
a("s_cbranch_scc1 L_TC")
pCb = [p.base for p in pC]
dqb = list(dq)


def stage_b(hook):
    for p, b in zip(pC, pCb):
        p.base = b
    q = list(dqb)
    for i in range(12, 22):
        if i == 18:
            a.wait(vm="b2", lg=("f", 18))
            a("s_barrier")
            stamp("g2")
            w_read(19, f_addr(19), "f")
        fstep(i)
        if i + 2 < 22 and i != 17:
            w_read(i + 2, f_addr(i + 2), "f")
        if q:
            q.pop(0)()
        hook(i, 0)
        fstep2(i)
        if q:
            q.pop(0)()
        hook(i, 1)


def pw1(acc, n):
    ct, g = n >> 2, n & 3
    a(f"ds_write_b128 {vr(vPW+g)}, {vr(acc[ct]+4*g,4)} offset:{ct*128}", lg="p")


sv = (list(a.vm), list(a.lg))
role[0] = "H"
f3load = f"buffer_load_dword {vr(vFP)}, {vr(vFL)}, {sr(R_WS,4)}, {sr(sT[5])} offen offset:32 sc1"
a(f"""s_lshr_b32 {sr(sU)}, {sr(sW)}, 1
      s_lshl_b32 {sr(sU2)}, {sr(sU)}, 3
      s_xor_b32 {sr(sU2)}, {sr(sU2)}, {sr(sCB)}
      s_mov_b64 s[20:21], 0xff
      s_bitset0_b32 s20, {sr(sU2)}
      s_mov_b64 exec, s[20:21]""")
a(f3load, vm="f3")
a("s_mov_b64 exec, -1")
OF = [128, 132, 136, 140] + [HF + 4 * i for i in range(12)]
oq = list(range(16))
PF3 = OPT.get("pf3", 17)


def oload():
    if not oq:
        return
    i = oq.pop(0)
    a(f"buffer_load_dwordx4 {vr(OF[i],4)}, {vr(vL16)}, {sr(R_WS,4)}, {sr(sT[2])} offen offset:{(i&3)*1024} sc1", vm=("of", i))
    if i & 3 == 3 and i < 15:
        a(f"s_add_u32 {sr(sT[2])}, {sr(sT[2])}, 4096")


def h_hook(i, h):
    if (i, h) == (12, 1):
        a(f"""s_and_b32 {sr(sU2)}, {sr(sCB)}, 1
              s_lshl_b32 {sr(sT[2])}, {sr(sRB)}, 1
              s_add_u32 {sr(sT[2])}, {sr(sT[2])}, {sr(sU2)}
              s_lshl_b32 {sr(sT[2])}, {sr(sT[2])}, 1
              s_and_b32 {sr(sU2)}, {sr(sW)}, 1""")
    if (i, h) == (13, 1):
        a(f"""s_add_u32 {sr(sT[2])}, {sr(sT[2])}, {sr(sU2)}
              s_lshl_b32 {sr(sT[2])}, {sr(sT[2])}, 1
              s_add_u32 {sr(sT[2])}, {sr(sT[2])}, {sr(sU)}
              s_lshl_b32 {sr(sT[2])}, {sr(sT[2])}, 14
              s_add_u32 {sr(sT[2])}, {sr(sT[2])}, {WS_O}""")
    if (i, h) == (PF3, 1):
        a.wait(vm="f3")
        a("s_mov_b64 exec, s[20:21]")
        poll(f3load, 1, vFP, first_done=True)
        a("s_mov_b64 exec, -1")
        stamp("f3seen")
    if i > PF3 or (i, h) == (PF3, 1):
        oload()


stage_b(h_hook)
a(f"""s_lshl_b32 {sr(sU2)}, {sr(sU)}, 15
      v_add_u32 {vr(vC0)}, {sr(sU2)}, {vr(vB0)}
      v_add_u32 {vr(vC1)}, {sr(sU2)}, {vr(vB1)}
      s_cmp_eq_u32 {sr(sW)}, 3
      s_mov_b32 {sr(sU2)}, {(L_B2 - L_PART) & 0xffffffff}
      s_cselect_b32 {sr(sU2)}, {L_STATS - L_PART - 3 * 8192}, {sr(sU2)}""")
oload()
oload()
for n in range(8):
    pw1(FA, n)
    oload()
assert not oq
a.wait(vm="wo", lg="all")
a("s_barrier")
stamp("g3")
pC = [Ptr(vC0), Ptr(vC1)]
for i in range(3):
    w_read(i, L_WO + i * 2048, "wo")
for g in range(4):
    a(f"v_add_u32 {vr(vPW+g)}, {sr(sU2)}, {vr(vPW+g)}")
for i in range(16):
    a.wait(vm=("of", i), lg=("wo", i))
    if i == 0:
        stamp("wost")
    mfma32(FA[0], WR + 8 * (i & 3), OF[i], "0" if i == 0 else FA[0])
    if i + 3 < 16:
        w_read(i + 3, L_WO + (i + 3) * 2048, "wo")
    mfma32(FA[1], WR + 8 * (i & 3) + 4, OF[i], "0" if i == 0 else FA[1])
for n in range(8):
    pw1(FA, n)
a.wait(lg="all")
a("s_barrier")
a("s_branch L_DONE" if OPT["stamps"] else "s_endpgm")

a.label("L_TC")
role[0] = "C"
a.vm, a.lg = list(sv[0]), list(sv[1])


def c_hook(i, h):
    if (i, h) == (14, 1):
        a(f"""s_and_b32 {sr(sU2)}, {sr(sOUT)}, 0x3ff
              s_add_u32 {sr(sU)}, {sr(sOUT)}, 0x8000""")
        a(f"buffer_load_dwordx4 {vr(vB2,4)}, {vr(T[9])}, {sr(R_B2,4)}, {sr(sU2)} offen", vm="fin")
    if (i, h) == (15, 0):
        a(f"buffer_load_dwordx4 {vr(vX,4)}, {vr(vOUT)}, {sr(R_X,4)}, {sr(sOUT)} offen", vm="fin")
    if (i, h) == (15, 1):
        a(f"buffer_load_dwordx4 {vr(vX+4,4)}, {vr(vOUT)}, {sr(R_X,4)}, {sr(sU)} offen", vm="fin")


stage_b(c_hook)
vR2 = T[4]
G, XU, PR, BU, TE = 0, 16, 148, T[16], 32
a(f"ds_read_b32 {vr(vR2)}, {vr(vSD)} offset:4", lg="sd")
a(f"ds_read_b32 {vr(vR2+1)}, {vr(vSD)} offset:516", lg="sd")
a.wait(vm="fin")
for i in range(4):
    a(f"""v_lshlrev_b32 {vr(BU+2*i)}, 16, {vr(vB2+i)}
          v_and_b32 {vr(BU+2*i+1)}, 0xffff0000, {vr(vB2+i)}""")
for n in range(8):
    pw1(FA, n)
    a(f"""v_lshlrev_b32 {vr(XU+2*n)}, 16, {vr(vX+n)}
          v_and_b32 {vr(XU+2*n+1)}, 0xffff0000, {vr(vX+n)}""")
stamp("pw")
a.wait(lg="sd")
for r in range(2):
    a(f"""v_and_b32 {vr(vR2+r)}, 0xffff0000, {vr(vR2+r)}
          v_rcp_f32 {vr(vR2+r)}, {vr(vR2+r)}""")
for r in range(2):
    a(f"v_mul_f32 {vr(vR2+r)}, {vr(vR2+r)}, {vr(vR2+r)}")
a.wait(lg="all")
a("s_barrier")
stamp("g3")


def p_read(r, kq):
    for h in range(2):
        d = G + 8 * r + 4 * h if kq == 0 else PR + 24 * r + 8 * (kq - 1) + 4 * h
        a(f"ds_read_b128 {vr(d,4)}, {vr(vPR+h)} offset:{r*8192+kq*16384}", lg=("p", r, kq))


for kq in range(4):
    p_read(0, kq)
for kq in range(3):
    p_read(1, kq)
a.wait(lg=("p", 0, 0))
p_read(1, 3)
for r in range(2):
    for kq in range(1, 4):
        a.wait(lg=("p", r, kq))
        for i in range(8):
            a(f"v_add_f32 {vr(G+8*r+i)}, {vr(G+8*r+i)}, {vr(PR+24*r+8*(kq-1)+i)}")
for i in range(16):
    a(f"v_fma_f32 {vr(G+i)}, {vr(G+i)}, {vr(vR2+i//8)}, {vr(BU+i%8)}")
for i in range(16):
    a(f"v_mul_f32 {vr(TE+i)}, {f32(-math.log2(math.e))}, {vr(G+i)}")
for i in range(16):
    a(f"v_exp_f32 {vr(TE+i)}, {vr(TE+i)}")
for i in range(16):
    a(f"v_add_f32 {vr(TE+i)}, 1.0, {vr(TE+i)}")
for i in range(16):
    a(f"v_rcp_f32 {vr(TE+i)}, {vr(TE+i)}")
for h in range(2):
    a(f"""v_add_u32 {vr(vPW+h)}, {L_STATS - L_PART}, {vr(vPR+h)}
          v_add_u32 {vr(vPR+h)}, {(L_B2 - L_PART) & 0xffffffff}, {vr(vPR+h)}""")
for i in range(16):
    a(f"v_mul_f32 {vr(G+i)}, {vr(G+i)}, {vr(TE+i)}")
stamp("gate")
a("s_barrier")
stamp("fin")
for r in range(2):
    for kh in range(2):
        for h in range(2):
            if r + 2 * kh == 3:
                a(f"ds_read_b128 {vr(PR+16*r+8*kh+4*h,4)}, {vr(vPW+h)}", lg=("p", r))
            else:
                a(f"ds_read_b128 {vr(PR+16*r+8*kh+4*h,4)}, {vr(vPR+h)} offset:{r*8192+kh*16384}", lg=("p", r))
for r in range(2):
    a.wait(lg=("p", r))
    b = PR + 16 * r
    for i in range(8):
        a(f"v_add_f32 {vr(b+i)}, {vr(b+i)}, {vr(b+8+i)}")
    for i in range(8):
        a(f"v_fma_f32 {vr(b+i)}, {vr(b+i)}, {vr(G+8*r+i)}, {vr(XU+8*r+i)}")
    for i in range(4):
        a(f"v_cvt_pk_bf16_f32 {vr(TE+4*r+i)}, {vr(b+2*i)}, {vr(b+2*i+1)}")
    a(f"buffer_store_dwordx4 {vr(TE+4*r,4)}, {vr(vOUT)}, {sr(R_OUT,4)}, {sr(sU if r else sOUT)} offen")
a.label("L_DONE")
role[0] = "HC"
if OPT["stamps"]:
    stamp("end")
    a("s_memtime s[8:9]")
    a(f"""s_waitcnt lgkmcnt(0)
          s_sub_u32 s0, s8, s0
          s_sub_u32 {sr(sU)}, {sr(sLINE)}, {WS_FL}
          s_lshl_b32 {sr(sU)}, {sr(sU)}, 3
          s_lshl_b32 {sr(sU2)}, {sr(sW)}, 7
          s_add_u32 {sr(sU)}, {sr(sU)}, {sr(sU2)}
          s_add_u32 {sr(sU)}, {sr(sU)}, {WS_TS}
          s_mov_b64 exec, 1""")
    for i in range(11):
        a(f"v_mov_b32 {vr(i)}, {sr(sSTAMP+2*i)}")
    a("v_mov_b32 v11, s0")
    for i in range(3):
        a(f"buffer_store_dwordx4 {vr(4*i,4)}, off, {sr(R_WS,4)}, {sr(sU)} offset:{16*i}")
if OPT.get("amp") is not None:
    i = OPT["amp"]
    a(f"""s_cmp_lg_u32 {sr(sW)}, {OPT.get('ampw', 0)}
          s_cbranch_scc1 L_end
          s_sub_u32 s4, {sr(sSTAMP+2*i)}, {sr(sSTAMP)}
          s_lshl_b32 s4, s4, 2
          s_min_u32 s4, s4, 100000""")
    a.label("L_amp")
    a(f"""s_memrealtime s[6:7]
          s_waitcnt lgkmcnt(0)
          s_sub_u32 s6, s6, {sr(sSTAMP+20)}
          s_cmp_lt_u32 s6, s4
          s_cbranch_scc1 L_amp""")
a("s_endpgm")

a.label("L_SLOW")
a.reset_counts()
C = 16
M = T[2]
a(f"""s_nop 7
      s_lshr_b32 {sr(sU)}, {sr(sKV)}, 17
      s_lshl_b32 {sr(sU)}, {sr(sU)}, 17
      s_mov_b32 {sr(sU2)}, 64
      v_mov_b32 {vr(M)}, 0xff800000""")
a.label("L_S1")
a(f"""buffer_load_dwordx4 {vr(KB[0],4)}, {vr(vL16)}, {sr(R_WS,4)}, {sr(sU)} offen sc1
      s_waitcnt vmcnt(0)""")
mfma32(S[1], KB[0], Q[0], "0")
for i in range(8):
    a(f"v_max3_f32 {vr(M)}, {vr(M)}, {vr(S[1]+2*i)}, {vr(S[1]+2*i+1)}")
a(f"""s_add_u32 {sr(sU)}, {sr(sU)}, 2048
      s_sub_u32 {sr(sU2)}, {sr(sU2)}, 1
      s_cmp_lg_u32 {sr(sU2)}, 0
      s_cbranch_scc1 L_S1
      v_mov_b32 {vr(T[3])}, {vr(M)}
      s_nop 1
      v_permlane32_swap_b32 {vr(M)}, {vr(T[3])}
      v_max_f32 {vr(M)}, {vr(M)}, {vr(T[3])}
      s_sub_u32 {sr(sU)}, {sr(sU)}, 0x20000
      s_mov_b32 {sr(sU2)}, 64""")
for i in range(16):
    a(f"v_sub_f32 {vr(C+i)}, 0, {vr(M)}")
    a(f"v_mov_b32 {vr(O[0]+i)}, 0")
a.label("L_S2")
a(f"""buffer_load_dwordx4 {vr(KB[0],4)}, {vr(vL16)}, {sr(R_WS,4)}, {sr(sU)} offen sc1
      s_mov_b64 exec, {sr(sVM,2)}
      buffer_load_dwordx4 {vr(VB[0],4)}, {vr(vVO)}, {sr(R_WS,4)}, {sr(sU)} offen offset:1024 sc1
      buffer_load_dwordx4 {vr(VB[0]+4,4)}, {vr(vVO)}, {sr(R_WS,4)}, {sr(sU)} offen offset:1536 sc1
      s_mov_b64 exec, -1
      s_waitcnt vmcnt(0)""")
mfma32(S[1], KB[0], Q[0], C)
exps(S[1], 0, 16)
smf(O[0], VB[0], S[1], vIDX)
smf(O[0], VB[0] + 4, S[1] + 8, vIDX)
a(f"""s_add_u32 {sr(sU)}, {sr(sU)}, 2048
      s_sub_u32 {sr(sU2)}, {sr(sU2)}, 1
      s_cmp_lg_u32 {sr(sU2)}, 0
      s_cbranch_scc1 L_S2
      s_nop 15
      s_branch L_NORM""")
a.label("L_end")
a("s_endpgm")

ref = open(__file__.rsplit("/", 1)[0] + "/../cdna_kernels/" + NAME + ".s.ref").read().split("\n")
head = [l for l in ref if l.startswith(";") and "@launch" not in l]
if OPT["stamps"]:
    st = STSETS[OPT.get("st", 0)]
    head.append("; stamps H " + " ".join(st["H"]))
    head.append("; stamps C " + " ".join(st["C"]))
out = "\n".join(head) + f"""
; @launch grid=(256,1,1) block=(512,1,1) lds=163840
.amdgcn_target "amdgcn-amd-amdhsa--gfx950"
.text
.globl {NAME}_kernel
.p2align 8
.type {NAME}_kernel,@function
""" + a.text() + f""".section .rodata,"a"
.p2align 6
.amdhsa_kernel {NAME}_kernel
  .amdhsa_next_free_vgpr 256
  .amdhsa_next_free_sgpr 102
  .amdhsa_accum_offset 256
  .amdhsa_group_segment_fixed_size 0
  .amdhsa_kernarg_size 88
  .amdhsa_user_sgpr_count 2
  .amdhsa_user_sgpr_kernarg_segment_ptr 1
  .amdhsa_system_sgpr_workgroup_id_x 1
  .amdhsa_float_denorm_mode_32 3
.end_amdhsa_kernel
"""
open(sys.argv[1], "w").write(out)
if OPT.get("pads"):
    for p in a.pads:
        print("pad", p)
```

```python
import sys, math, struct
from asmlib import Asm, vr, sr

NAME = "recurrent_scan__softmax_full_mha__dense_activation_squared_relu__prompt"
OPT = dict(stamps=0, rot=4, force_slow=0, prio=1, spin=1 << 18, up=3, touch=0, pf=68, tit=13, f2it=8, j8=4, j9=7, cprio=1, cp2=1)
for arg in sys.argv[2:]:
    k, v = arg.split("=")
    OPT[k] = int(v, 0)

WS_KV = 0
WS_H = 4 << 20
WS_O = WS_H + 64 * 86 * 1024
WS_FL = WS_O + (2 << 20)
WS_TS = 13 << 20
WS_SIZE = 14 << 20
SLOT = 24576
L_WQ = 49152
L_QX = 147456
L_STATS = 155648
L_CSP = 157696
L_FLG = 160768
L_W1 = [81920 + 12288 * i for i in range(5)] + [12288 * i for i in range(3)]
L_CMB = 98304
L_B2 = 0
L_WO = 24576
L_PART = 90112
P_X, P_WQKV, P_WO, P_W1, P_B1, P_W2, P_B2, P_OUT, P_DBG, P_WS = 4, 6, 8, 12, 14, 16, 18, 20, 22, 24
R_X, R_WQKV, R_WO, R_W1, R_W2, R_OUT, R_WS, R_B1, R_B2, R_DBG = 28, 32, 36, 40, 44, 48, 52, 56, 60, 64
sW, sWQ, sRB, sCB, sROT = 68, 69, 70, 71, 72
sT = [73, 74, 75, 76, 77, 78, 79]
sVM = 26
sLINE = 3
sT0 = 10
sSTAMP = 80
vL, vHH, vL31, vTR = 252, 253, 254, 255


def f32(x):
    return "0x%08x" % struct.unpack("<I", struct.pack("<f", x))[0]


a = Asm()


STSETS = {
    0: dict(H=["start", "bar8", "x", "f1seen", "bar11", "x", "attst", "attend", "g1", "f3seen", "end"],
            C=["start", "c0", "c7", "kvst", "f1sent", "ffnend", "attst", "attend", "g1", "x", "end"]),
    1: dict(H=["start", "bar8", "h8b", "h9", "h10", "h11", "bar11", "x", "f1seen", "attst", "end"],
            C=["start", "c0", "c7", "kvst", "c8b", "c9", "f1sent", "c10", "c11", "attst", "end"]),
    2: dict(H=["start", "attend", "barc", "ost", "a6", "g1", "g2", "f3seen", "g3", "wost", "end"],
            C=["start", "attend", "barc", "ost", "a6", "g1", "g2", "gate", "g3", "fin", "end"]),
    3: dict(H=["start", "hk", "hi2", "hw3", "ha3", "hi3", "hw4", "ha4", "hi4", "hup", "end"],
            C=["start", "c0", "ca3", "cp3", "ca4", "cp4", "ca5", "cp5", "cp2", "c7", "end"]),
    4: dict(H=["start", "h9", "h9a", "h9b", "h9c", "h10", "h10a", "h10b", "h10c", "h11", "end"],
            C=["start", "i27", "i33", "i39", "i45", "i49", "i57", "i65", "i73", "i90", "end"]),
    5: dict(H=["start", "attst", "t8", "t12", "t20", "t32", "t33", "t50", "t61", "attend", "end"],
            C=["start", "attst", "t8", "t12", "t20", "t32", "t33", "t50", "t61", "attend", "end"]),
    6: dict(H=["start"] + ["x"] * 9 + ["end"], C=["start"] + ["x"] * 9 + ["end"]),
    7: dict(H=["start", "h9", "h10", "h11", "f1seen", "x", "x", "x", "x", "attst", "end"],
            C=["start", "c8b", "i23", "i32", "i48", "i63", "i90", "ffnend", "kvl", "attst", "end"]),
    8: dict(H=["start", "attst", "t1", "t2", "t4", "t6", "t8", "t10", "t16", "t24", "end"],
            C=["start", "attst", "t1", "t2", "t4", "t6", "t8", "t10", "t16", "t24", "end"]),
}
role = ["HC"]


def stamp(name):
    if not OPT["stamps"]:
        return
    st = STSETS[OPT.get("st", 0)]
    idx = {st[r].index(name) for r in role[0] if name in st[r]}
    for i in idx:
        a(f"{'s_memtime' if OPT['stamps'] == 2 else 's_memrealtime'} {sr(sSTAMP + 2*i, 2)}")


def cop(c, n):
    return c if isinstance(c, str) else vr(c, n)


def mfma32(d, x, y, c):
    a(f"v_mfma_f32_32x32x16_bf16 {vr(d,16)}, {vr(x,4)}, {vr(y,4)}, {cop(c,16)}")


def mfma16(d, x, y, c):
    a(f"v_mfma_f32_16x16x32_bf16 {vr(d,4)}, {vr(x,4)}, {vr(y,4)}, {cop(c,4)}")


def mfma4(d, x, c):
    a(f"v_mfma_f32_4x4x4_16b_bf16 {vr(d,4)}, {vr(x,2)}, {vr(x,2)}, {cop(c,4)}")


def smf(d, x, y, idx):
    a(f"v_smfmac_f32_32x32x32_bf16 {vr(d,16)}, {vr(x,4)}, {vr(y,8)}, {vr(idx)}")


def srd(r, p, n):
    a(f"""s_mov_b32 {sr(r)}, {sr(p)}
          s_mov_b32 {sr(r+1)}, {sr(p+1)}
          s_mov_b32 {sr(r+2)}, {n}
          s_mov_b32 {sr(r+3)}, 0x20000""")


filler, fill = [], [0]


def dma(voff, r, soff, lds, tag, pre=None):
    a(f"s_add_u32 m0, {sr(lds[0])}, {lds[1]}")
    if pre:
        a(pre)
    a(f"buffer_load_dwordx4 {vr(voff)}, {sr(r,4)}, {sr(soff)} offen lds", vm=tag)
    for _ in range(fill[0]):
        if filler:
            a(filler.pop(0))


class Ptr:
    def __init__(self, reg, base=0):
        self.reg, self.base = reg, base

    def off(self, addr):
        if not 0 <= addr - self.base <= 65535:
            a(f"v_add_u32 {vr(self.reg)}, {(addr - self.base) & 0xffffffff}, {vr(self.reg)}")
            self.base = addr
        return addr - self.base


def tr(dst, p, addr, tag):
    o = p.off(addr)
    a(f"ds_read_b64_tr_b16 {vr(dst,2)}, {vr(p.reg)} offset:{o}", lg=tag)


def rd128(dst, p, addr, tag):
    o = p.off(addr)
    a(f"ds_read_b128 {vr(dst,4)}, {vr(p.reg)} offset:{o}", lg=tag)


def split3_ops(x, bias, d0, d1, t0, t1, mask):
    l = [f"v_cvt_pk_bf16_f32 {vr(t0)}, {vr(x)}, {vr(x)}",
         f"v_lshlrev_b32 {vr(t0)}, 16, {vr(t0)}",
         f"v_sub_f32 {vr(t0)}, {vr(x)}, {vr(t0)}",
         f"v_cvt_pk_bf16_f32 {vr(d0)}, {vr(x)}, {vr(t0)}",
         f"v_and_b32 {vr(t1)}, 0xffff0000, {vr(d0)}",
         f"v_sub_f32 {vr(t1)}, {vr(t0)}, {vr(t1)}",
         f"v_cvt_pk_bf16_f32 {vr(d1)}, {vr(t1)}, {bias}"]
    if mask is not None:
        l += [f"v_and_b32 {vr(d0)}, {vr(d0)}, {vr(mask)}", f"v_and_b32 {vr(d1)}, {vr(d1)}, {vr(mask)}"]
    return l


def emit(l):
    for x in l:
        a(x)


uid = [0]


def poll(load, nreg, reg, first_done=False):
    uid[0] += 1
    L, D, C = f"L_poll{uid[0]}", f"L_polld{uid[0]}", f"L_pollc{uid[0]}"
    a(f"s_mov_b32 {sr(sT[6])}, {OPT['spin']}")
    if first_done:
        a(f"s_branch {C}")
    a.label(L)
    a.raw(load)
    a("s_waitcnt vmcnt(0)")
    a.label(C)
    if nreg == 4:
        a(f"""v_min_u32 {vr(reg)}, {vr(reg)}, {vr(reg+1)}
              v_min3_u32 {vr(reg)}, {vr(reg)}, {vr(reg+2)}, {vr(reg+3)}""")
    a(f"""v_cmp_eq_u32 vcc, 0, {vr(reg)}
          s_nop 1
          s_cmp_eq_u64 vcc, 0
          s_cbranch_scc1 {D}
          s_sub_u32 {sr(sT[6])}, {sr(sT[6])}, 1
          s_cmp_lg_u32 {sr(sT[6])}, 0
          s_cbranch_scc1 {L}""")
    a.label(D)


def set_flag(soff, tmp, imm=0):
    sv = list(a.vm)
    a(f"""s_mov_b64 exec, 1
          v_mov_b32 {vr(tmp)}, 1
          buffer_store_dword {vr(tmp)}, off, {sr(R_WS,4)}, {sr(soff)} offset:{imm} sc1
          s_mov_b64 exec, -1""")
    a.vm = sv


def tr_addr(dst, hmul, rowbytes, tmp):
    a(f"""v_bfe_u32 {vr(tmp)}, {vr(vL)}, 2, 2
          v_mad_u32_u24 {vr(tmp)}, {vr(vHH)}, {hmul}, {vr(tmp)}
          v_mul_u32_u24 {vr(tmp)}, {rowbytes}, {vr(tmp)}
          v_add_u32 {vr(dst)}, {vr(tmp)}, {vr(vTR)}""")


def tr_addr128(d0, d1, hmul, tmp):
    tr_addr(d0, hmul, 128, tmp)
    a(f"""v_bfe_u32 {vr(tmp)}, {vr(vL)}, 3, 1
          v_lshl_add_u32 {vr(d0)}, {vr(tmp)}, 6, {vr(d0)}
          v_xor_b32 {vr(d1)}, 64, {vr(d0)}""")


def wdma_voff(dst, stride, tmp):
    a(f"""v_bfe_u32 {vr(tmp)}, {vr(vL)}, 4, 1
          v_lshlrev_b32 {vr(tmp)}, 2, {vr(tmp)}
          v_and_b32 {vr(dst)}, 7, {vr(vL)}
          v_xor_b32 {vr(dst)}, {vr(dst)}, {vr(tmp)}
          v_lshlrev_b32 {vr(dst)}, 4, {vr(dst)}
          v_lshrrev_b32 {vr(tmp)}, 3, {vr(vL)}
          v_mul_u32_u24 {vr(tmp)}, {stride}, {vr(tmp)}
          v_add_u32 {vr(dst)}, {vr(dst)}, {vr(tmp)}""")


def make_sel(d, tmp):
    a(f"""v_lshrrev_b32 {vr(tmp)}, 2, {vr(vL)}
          v_xor_b32 {vr(tmp)}, {vr(tmp)}, {vr(vL)}
          v_bfe_u32 {vr(tmp)}, {vr(tmp)}, 2, 1
          v_add_u32 {vr(tmp)}, -1, {vr(tmp)}
          v_and_b32 {vr(d)}, 0x3f803f80, {vr(tmp)}
          v_mov_b32 {vr(d+1)}, {vr(d)}
          v_mov_b32 {vr(d+2)}, {vr(d)}
          v_mov_b32 {vr(d+3)}, {vr(d)}""")


def other_srds():
    srd(R_WO, P_WO, 512 * 512 * 2)
    srd(R_W1, P_W1, 512 * 1376 * 2)
    srd(R_W2, P_W2, 1376 * 512 * 2)
    srd(R_OUT, P_OUT, 2048 * 512 * 2)
    srd(R_WS, P_WS, WS_SIZE)
    srd(R_B1, P_B1, 1376 * 2)
    srd(R_B2, P_B2, 512 * 2)
    srd(R_DBG, P_DBG, 256)
    a(f"""s_mul_i32 {sr(sT0)}, {sr(sCB)}, 3
          s_min_u32 {sr(sT0)}, {sr(sT0)}, 40
          s_lshl_b32 {sr(sLINE)}, {sr(sRB)}, 4
          s_add_u32 {sr(sLINE)}, {sr(sLINE)}, {sr(sCB)}
          s_lshl_b32 {sr(sLINE)}, {sr(sLINE)}, 7
          s_add_u32 {sr(sLINE)}, {sr(sLINE)}, {WS_FL}
          s_mov_b32 {sr(sVM)}, 0xffff
          s_mov_b32 {sr(sVM+1)}, 0xffff""")


class Rec:
    def __init__(self):
        self.l = []

    def __call__(self, text, vm=None, lg=None):
        assert vm is None and lg is None
        self.l += [x.strip() for x in text.strip().split("\n") if x.strip()]

    def comment(self, t):
        pass


def record(fn):
    global a
    keep, a = a, Rec()
    fn()
    l, a = a.l, keep
    return l


O = [0, 16, 32, 48]
S = [64, 80]
Q = [96, 100, 104, 108]
KB = [112, 116, 120]
VB = [124, 132, 140]
HF = 148
vIDX, vL16, vVO, vWD, vFL, vDUM = 236, 237, 238, 239, 240, 251
vFP = 244
sKV, sIT, sH0, sW2, sLA, sKS, sO, sOUT, sF1, sHS = 4, 5, 6, 7, 12, 13, 14, 15, 16, 17
sU, sU2 = sT[0], sT[1]


def att_addr_v(tmp):
    a(f"""v_lshlrev_b32 {vr(vL16)}, 4, {vr(vL)}
          v_and_b32 {vr(vVO)}, 15, {vr(vL)}
          v_lshlrev_b32 {vr(vVO)}, 4, {vr(vVO)}
          v_lshl_add_u32 {vr(vVO)}, {vr(vHH)}, 8, {vr(vVO)}
          v_mov_b32 {vr(vIDX)}, 0xdddddddd""")
    wdma_voff(vWD, 1024, tmp)


def att_addr_s(u, u2):
    a(f"""s_lshr_b32 {sr(u)}, {sr(sW)}, 2
          s_lshl_b32 {sr(u2)}, {sr(sCB)}, 1
          s_add_u32 {sr(u2)}, {sr(u2)}, {sr(u)}
          s_lshl_b32 {sr(sKV)}, {sr(u2)}, 17
          s_lshl_b32 {sr(sO)}, {sr(u2)}, 10
          s_lshl_b32 {sr(u2)}, {sr(sWQ)}, 11
          s_add_u32 {sr(sKV)}, {sr(sKV)}, {sr(u2)}
          s_and_b32 {sr(sIT)}, {sr(sRB)}, {[0, 3, 12, 1][OPT.get("kvrot", 2)]}
          s_lshl_b32 {sr(sIT)}, {sr(sIT)}, {[15, 15, 13, 16][OPT.get("kvrot", 2)]}
          s_lshl_b32 {sr(u2)}, {sr(sRB)}, 2
          s_add_u32 {sr(u2)}, {sr(u2)}, {sr(sWQ)}
          s_lshl_b32 {sr(u2)}, {sr(u2)}, 15
          s_add_u32 {sr(sO)}, {sr(sO)}, {sr(u2)}
          s_add_u32 {sr(sO)}, {sr(sO)}, {WS_O}""")
    a(f"""s_lshr_b32 {sr(u)}, {sr(sW)}, 1
          s_mul_i32 {sr(sKS)}, {sr(u)}, 22
          s_lshl_b32 {sr(sLA)}, {sr(sW)}, 10
          s_and_b32 {sr(u)}, {sr(sW)}, 1
          s_lshl_b32 {sr(sW2)}, {sr(sKS)}, 1
          s_add_u32 {sr(sW2)}, {sr(sW2)}, {sr(u)}
          s_lshl_b32 {sr(sW2)}, {sr(sW2)}, 13
          s_lshr_b32 {sr(u2)}, {sr(sCB)}, 1
          s_lshl_b32 {sr(u2)}, {sr(u2)}, 7
          s_add_u32 {sr(sW2)}, {sr(sW2)}, {sr(u2)}
          s_sub_u32 {sr(sW2)}, {sr(sW2)}, 16384
          s_and_b32 {sr(sH0)}, {sr(sCB)}, 1
          s_lshl_b32 {sr(sOUT)}, {sr(sRB)}, 1
          s_add_u32 {sr(sOUT)}, {sr(sOUT)}, {sr(sH0)}
          s_lshl_b32 {sr(sH0)}, {sr(sOUT)}, 1
          s_add_u32 {sr(sH0)}, {sr(sH0)}, {sr(u)}
          s_mul_i32 {sr(sH0)}, {sr(sH0)}, {86*1024}
          s_add_u32 {sr(sH0)}, {sr(sH0)}, {WS_H}
          s_lshl_b32 {sr(sOUT)}, {sr(sOUT)}, 3
          s_add_u32 {sr(sOUT)}, {sr(sOUT)}, {sr(sWQ)}
          s_lshl_b32 {sr(sOUT)}, {sr(sOUT)}, 13
          s_add_u32 {sr(sOUT)}, {sr(sOUT)}, {sr(u2)}
          s_and_b32 {sr(sF1)}, {sr(sCB)}, 14
          s_lshl_b32 {sr(sF1)}, {sr(sF1)}, 7
          s_add_u32 {sr(sF1)}, {sr(sF1)}, {WS_FL}""")


def q_reads():
    a(f"""s_lshl_b32 {sr(sU)}, {sr(sW)}, 10
          s_add_u32 {sr(sU)}, {sr(sU)}, {L_QX}
          v_lshl_add_u32 {vr(vFP)}, {vr(vL)}, 4, {sr(sU)}""")
    for j in range(4):
        if j:
            a(f"v_xor_b32 {vr(vFP+j)}, {j*1024}, {vr(vFP)}")
        a(f"ds_read_b128 {vr(Q[j],4)}, {vr(vFP+j)}", lg="q")


def att_init():
    a.comment("rows 16 and 20 of the V operand are ones (row sums), the other spare rows are zero")
    a(f"""v_and_b32 {vr(VB[0])}, 27, {vr(vL)}
          v_cmp_eq_u32 vcc, 16, {vr(VB[0])}
          v_mov_b32 {vr(VB[0]+1)}, 0x3f803f80
          v_cndmask_b32 {vr(VB[0])}, 0, {vr(VB[0]+1)}, vcc
          v_cndmask_b32 {vr(VB[0]+1)}, 0, {vr(VB[0]+1)}, vcc""")
    for i in range(2, 24, 2):
        a(f"v_mov_b64 {vr(VB[0]+i,2)}, {vr(VB[0],2)}")


def o_zero():
    for j in range(4):
        for i in range(0, 16, 2):
            a(f"v_mov_b64 {vr(O[j]+i,2)}, 0")


def kvload(i):
    if i >= 16:
        return
    b = i % 3
    a(f"s_add_u32 {sr(sU)}, {sr(sKV)}, {sr(sIT)}")
    a(f"buffer_load_dwordx4 {vr(KB[b],4)}, {vr(vL16)}, {sr(R_WS,4)}, {sr(sU)} offen sc1", vm=("k", i))
    a(f"s_mov_b64 exec, {sr(sVM,2)}")
    a(f"buffer_load_dwordx4 {vr(VB[b],4)}, {vr(vVO)}, {sr(R_WS,4)}, {sr(sU)} offen offset:1024 sc1", vm=("v", i))
    a(f"buffer_load_dwordx4 {vr(VB[b]+4,4)}, {vr(vVO)}, {sr(R_WS,4)}, {sr(sU)} offen offset:1536 sc1", vm=("v", i))
    a(f"""s_mov_b64 exec, -1
          s_add_u32 {sr(sIT)}, {sr(sIT)}, 8192
          s_and_b32 {sr(sIT)}, {sr(sIT)}, 0x1ffff""")


def f1_addr(d, tmp):
    a(f"""v_lshrrev_b32 {vr(d)}, 1, {vr(vL31)}
          v_and_b32 {vr(tmp)}, 1, {vr(vL)}
          v_lshlrev_b32 {vr(tmp)}, 7, {vr(tmp)}
          v_lshl_add_u32 {vr(d)}, {vr(d)}, 11, {vr(tmp)}""")


def f1_load(d, ad):
    return f"buffer_load_dwordx4 {vr(d,4)}, {vr(ad)}, {sr(R_WS,4)}, {sr(sF1)} offen sc1"


a.label(NAME + "_kernel")
a(f"""s_cmp_ge_u32 s2, 256
      s_cbranch_scc1 L_end
      s_load_dwordx16 s[4:19], s[0:1], 0
      s_load_dwordx4 s[20:23], s[0:1], 64
      s_load_dwordx2 s[24:25], s[0:1], 80""")
stamp("start")
a(f"""v_lshrrev_b32 v1, 6, v0
      v_and_b32 {vr(vL)}, 63, v0
      v_readfirstlane_b32 {sr(sW)}, v1
      v_bfe_u32 {vr(vHH)}, v0, 5, 1
      v_and_b32 {vr(vL31)}, 31, v0
      v_bfe_u32 v1, v0, 4, 1
      v_and_b32 v2, 3, v0
      v_lshlrev_b32 v2, 3, v2
      v_lshl_add_u32 {vr(vTR)}, v1, 5, v2
      s_and_b32 {sr(sWQ)}, {sr(sW)}, 3
      s_bfe_u32 {sr(sT[0])}, s2, 0x20001
      s_bfe_u32 {sr(sT[1])}, s2, 0x20003
      s_lshl_b32 {sr(sT[0])}, {sr(sT[0])}, 2
      s_add_u32 {sr(sRB)}, {sr(sT[0])}, {sr(sT[1])}
      s_and_b32 {sr(sT[0])}, s2, 1
      s_lshr_b32 {sr(sT[1])}, s2, 5
      s_lshl_b32 {sr(sT[0])}, {sr(sT[0])}, 3
      s_add_u32 {sr(sCB)}, {sr(sT[0])}, {sr(sT[1])}
      {("s_xor_b32 %s, %s, %d" % (sr(sCB), sr(sCB), OPT["perm"])) if OPT.get("perm") else ""}
      s_and_b32 {sr(sROT)}, s2, {dict([(0, 0), (4, 7), (5, 6)])[OPT["rot"]]}
      s_cmp_ge_u32 {sr(sW)}, 4
      s_cbranch_scc1 L_C""")

role[0] = "H"
hVXE, hVXO, hVW, hVQ, hV1 = 150, 151, 152, 153, 154
hGO, hF1 = 158, 159
hT = [162, 163, 164, 165]
hP = 168
sXB, sWB, sLX, sLW, sA, sB_ = sT[0], sT[1], sT[2], sT[3], sT[4], sT[5]
a(f"""v_lshrrev_b32 {vr(hT[0])}, 4, {vr(vL)}
      v_and_b32 {vr(hVXE)}, 7, {vr(vL)}
      v_xor_b32 {vr(hVXE)}, {vr(hVXE)}, {vr(hT[0])}
      v_lshlrev_b32 {vr(hVXE)}, 4, {vr(hVXE)}
      v_lshrrev_b32 {vr(hT[0])}, 3, {vr(vL)}
      v_lshl_add_u32 {vr(hVXE)}, {vr(hT[0])}, 10, {vr(hVXE)}
      v_xor_b32 {vr(hVXO)}, 64, {vr(hVXE)}
      s_lshl_b32 {sr(sXB)}, {sr(sRB)}, 2
      s_add_u32 {sr(sXB)}, {sr(sXB)}, {sr(sWQ)}
      s_lshl_b32 {sr(sXB)}, {sr(sXB)}, 15
      s_lshl_b32 {sr(sLX)}, {sr(sWQ)}, 12
      s_lshl_b32 {sr(sLW)}, {sr(sWQ)}, 11
      s_and_b32 {sr(sA)}, {sr(sCB)}, 1
      s_add_u32 {sr(sA)}, {sr(sA)}, 1
      s_lshl_b32 {sr(sA)}, {sr(sA)}, 10
      s_lshr_b32 {sr(sB_)}, {sr(sCB)}, 1
      s_lshl_b32 {sr(sB_)}, {sr(sB_)}, 7
      s_add_u32 {sr(sA)}, {sr(sA)}, {sr(sB_)}
      s_mul_i32 {sr(sWB)}, {sr(sWQ)}, {16*3072}
      s_add_u32 {sr(sWB)}, {sr(sWB)}, {sr(sA)}""")
wdma_voff(hVW, 3072, hT[0])
a(f"""s_mov_b32 {sr(R_X+2)}, {2048*512*2}
      s_mov_b32 {sr(R_X+3)}, 0x20000
      s_mov_b32 {sr(R_WQKV+2)}, {512*1536*2}
      s_mov_b32 {sr(R_WQKV+3)}, 0x20000
      s_waitcnt lgkmcnt(0)
      s_mov_b64 {sr(R_X,2)}, {sr(P_X,2)}
      s_mov_b64 {sr(R_WQKV,2)}, {sr(P_WQKV,2)}""")
if OPT["stamps"]:
    a("s_memtime s[0:1]")


def rotc(c):
    a(f"""s_add_u32 {sr(sB_)}, {sr(sROT)}, {c}
          s_and_b32 {sr(sB_)}, {sr(sB_)}, 7""")


def issue_chunk(c):
    base = (c % 6) * SLOT
    rotc(c)
    a(f"s_lshl_b32 {sr(sA)}, {sr(sB_)}, 7")
    for i in range(4):
        pre = f"s_add_u32 {sr(sA)}, {sr(sA)}, {sr(sXB) if i == 0 else 8192}"
        dma(hVXO if i & 1 else hVXE, R_X, sA, (sLX, base + i * 1024), ("c", c), pre)
    a(f"s_mul_i32 {sr(sA)}, {sr(sB_)}, {64*3072}")
    for i in range(2):
        pre = f"s_add_u32 {sr(sA)}, {sr(sA)}, {sr(sWB) if i == 0 else 8*3072}"
        dma(hVW, R_WQKV, sA, (sLW, base + 16384 + i * 1024), ("c", c), pre)


sQB, s1B, sLQ, sL1 = 2, 11, 8, 9


def issue_wq(half):
    for c in range(4 * half, 4 * half + 4):
        rotc(c)
        a(f"s_mul_i32 {sr(sA)}, {sr(sB_)}, {64*3072}")
        dma(hVQ, R_WQKV, sA, (sLQ, L_WQ + c * 4096), "wq", f"s_add_u32 {sr(sA)}, {sr(sA)}, {sr(sQB)}")


def issue_w1(c):
    rotc(c)
    a(f"s_mul_i32 {sr(sA)}, {sr(sB_)}, {64*2752}")
    for p in range(3):
        dma(hV1 + p, R_W1, sA, (sL1, L_W1[c] + p * 1024), ("w1", c), f"s_add_u32 {sr(sA)}, {sr(sA)}, {sr(s1B)}" if p == 0 else None)


def h_setup():
    u = sT[6]
    other_srds()
    a(f"""s_mul_i32 {sr(sQB)}, {sr(sWQ)}, {16*3072}
          s_lshl_b32 {sr(u)}, {sr(sCB)}, 6
          s_add_u32 {sr(sQB)}, {sr(sQB)}, {sr(u)}
          s_mul_i32 {sr(s1B)}, {sr(sWQ)}, {16*2752}
          s_lshl_b32 {sr(u)}, {sr(sT0)}, 6
          s_add_u32 {sr(s1B)}, {sr(s1B)}, {sr(u)}
          s_lshl_b32 {sr(sLQ)}, {sr(sWQ)}, 10
          s_mul_i32 {sr(sL1)}, {sr(sWQ)}, 3072
          v_lshrrev_b32 {vr(hT[0])}, 2, {vr(vL)}
          v_mul_u32_u24 {vr(hT[0])}, 3072, {vr(hT[0])}
          v_and_b32 {vr(hVQ)}, 3, {vr(vL)}
          v_lshl_add_u32 {vr(hVQ)}, {vr(hVQ)}, 4, {vr(hT[0])}""")
    for p in range(3):
        a(f"""v_add_u32 {vr(hT[0])}, {64*p}, {vr(vL)}
              v_mul_u32_u24 {vr(hT[1])}, 171, {vr(hT[0])}
              v_lshrrev_b32 {vr(hT[1])}, 11, {vr(hT[1])}
              v_mul_u32_u24 {vr(hT[2])}, {2752 - 192}, {vr(hT[1])}
              v_lshl_add_u32 {vr(hV1+p)}, {vr(hT[0])}, 4, {vr(hT[2])}""")
    att_addr_s(18, 19)
    a(f"s_mov_b32 {sr(sHS)}, {WS_SIZE}")
    att_addr_v(hT[0])
    att_init()
    o_zero()
    f1_addr(hF1, hT[0])
    a(f"""v_and_b32 {vr(hGO)}, 15, {vr(vL)}
          v_lshlrev_b32 {vr(hGO)}, 2, {vr(hGO)}""")


UP = OPT["up"]
filler += record(h_setup)
stamp("hk")
issue_chunk(0)
fill[0] = OPT.get("fill", 12)
for c in range(1, UP):
    issue_chunk(c)
emit(filler)
filler.clear()
stamp("hup")
jobs = [(max(0, c - 5), ("c", c), lambda c=c: issue_chunk(c)) for c in range(UP, 8)]


def w1_touch():
    a.comment("L2 prefetch of a quarter of this workgroup's W1 lines")
    a(f"""s_and_b32 {sr(sA)}, {sr(sRB)}, 3
          s_lshl_b32 {sr(sA)}, {sr(sA)}, 1
          s_lshr_b32 {sr(sB_)}, {sr(sWQ)}, 1
          s_add_u32 {sr(sA)}, {sr(sA)}, {sr(sB_)}
          s_mul_i32 {sr(sA)}, {sr(sA)}, {64*2752}
          s_and_b32 {sr(sB_)}, {sr(sWQ)}, 1
          s_lshl_b32 {sr(sB_)}, {sr(sB_)}, 1
          s_add_u32 {sr(sB_)}, {sr(sB_)}, {sr(sT0)}
          s_lshl_b32 {sr(sB_)}, {sr(sB_)}, 6
          s_add_u32 {sr(sA)}, {sr(sA)}, {sr(sB_)}
          v_mul_u32_u24 {vr(hT[0])}, 2752, {vr(vL)}""")
    a(f"buffer_load_dword {vr(vDUM)}, {vr(hT[0])}, {sr(R_W1,4)}, {sr(sA)} offen", vm="t")


TJ = OPT.get("tj", 0)
if TJ == 1:
    jobs += [(0, ("t", 0), w1_touch)]
elif TJ >= 2:
    g, nm, fn = jobs[1 - TJ]
    jobs[1 - TJ] = (g, nm, lambda fn=fn: (fn(), w1_touch()))
jobs += [(3, ("q", 0), lambda: issue_wq(0)), (4, ("q", 1), lambda: issue_wq(1))]
jobs += [(g, ("w", c), lambda c=c: issue_w1(c)) for c, g in enumerate([4, 5, 5, 6, 6, 7, 7, 8])]


def run_jobs(upto):
    while any(j[1] == upto for j in jobs):
        jobs.pop(0)[2]()


goload = f"buffer_load_dword {vr(hP)}, {vr(hGO)}, {sr(R_DBG,4)}, 0 offen sc1"
for n in range(8):
    stamp(f"hw{n}")
    a.wait(vm=("c", n))
    stamp(f"ha{n}")
    a("s_barrier")
    if n == 7:
        a("s_mov_b64 exec, 0xffff")
        a(goload, vm="go")
        a("s_mov_b64 exec, -1")
    if jobs[0][0] <= n:
        jobs.pop(0)[2]()
    stamp(f"hi{n}")
a("s_barrier")
stamp("bar8")
run_jobs(("q", 1))
run_jobs(("w", 1))
a.wait(vm=["wq", "go"])
a("s_mov_b64 exec, 0xffff")
poll(goload, 1, hP, first_done=True)
a("s_mov_b64 exec, -1")
stamp("h8b")
a("s_barrier")
run_jobs(("w", OPT.get("j8", 3)))
a.wait(vm=("w1", 1))
stamp("h9")
a("s_barrier")
a("s_barrier")
run_jobs(("w", OPT.get("j9", 5)))
a.wait(vm=("w1", 3))
stamp("h10")
a("s_barrier")
run_jobs(("w", 7))
a("s_mov_b32 exec_hi, 0")
a(f1_load(hP, hF1), vm="f1")
a("s_mov_b64 exec, -1")
a.wait(vm=("w1", 7))
stamp("h11")
a("s_barrier")
stamp("bar11")
q_reads()
a.wait(lg="all")
a("s_barrier")
a.wait(vm="all")
a("s_mov_b32 exec_hi, 0")
poll(f1_load(hP, hF1), 4, hP, first_done=True)
a("s_mov_b64 exec, -1")
stamp("f1seen")
kvload(0)
kvload(1)
kvload(2)
if OPT["prio"]:
    a("s_setprio 2")
a.wait(vm="all")
a("s_branch L_ATT")

a.label("L_C")
role[0] = "C"
a.reset_counts()
XR = lambda s: 4 * s
cACC = [160, 176, 192]
cSET = [128 + 8 * j for j in range(4)]
cSUM, cSQ, cSEL = 208, [212, 216], 244
cXa, cWa, cRS = 224, [228, 232], 236
cXA, cWP, cVO, cR = 240, [224, 228], 220, 248
cKC = [192, 196]
cT = [249, 250]
if OPT.get("cprio", 0):
    a("s_setprio 1")
a(f"""v_bfe_u32 {vr(cT[0])}, {vr(vL)}, 1, 3
      v_xor_b32 {vr(cT[0])}, {vr(cT[0])}, {vr(vHH)}
      v_lshlrev_b32 {vr(cT[0])}, 4, {vr(cT[0])}
      v_lshl_add_u32 {vr(cXA)}, {vr(vL31)}, 7, {vr(cT[0])}
      s_mul_i32 {sr(sT[0])}, {sr(sWQ)}, {4096 + 32}
      v_xor_b32 {vr(cXA)}, {sr(sT[0])}, {vr(cXA)}
      v_xor_b32 {vr(cXA+1)}, 32, {vr(cXA)}
      v_xor_b32 {vr(cXA+2)}, 64, {vr(cXA)}
      v_xor_b32 {vr(cXA+3)}, 0x60, {vr(cXA)}""")
tr_addr128(cWP[0], cWP[1], 8, cT[0])
a(f"s_lshl_b32 {sr(sT[0])}, {sr(sWQ)}, 11")
for t in range(2):
    a(f"v_add_u32 {vr(cWP[t])}, {sr(sT[0])}, {vr(cWP[t])}")
    for j in range(1, 4):
        a(f"v_xor_b32 {vr(cWP[t]+j)}, {2048*j}, {vr(cWP[t])}")
make_sel(cSEL, cT[0])
a(f"""v_mov_b32 {vr(cWa[1]+2)}, 0
      v_mov_b32 {vr(cWa[1]+3)}, 0
      v_mov_b32 {vr(cRS)}, 0
      v_mov_b32 {vr(cRS+1)}, 0
      v_mov_b32 {vr(cRS+2)}, 0x3f803f80
      v_mov_b32 {vr(cRS+3)}, 0x3f80
      v_lshlrev_b32 v221, 4, {vr(vL31)}
      v_add_u32 v221, {L_CSP}, v221
      s_lshl_b32 {sr(sT[0])}, {sr(sWQ)}, 2
      v_add_u32 v222, {sr(sT[0])}, v221
      s_add_u32 {sr(sT[0])}, {sr(sT[0])}, {L_FLG}
      v_mov_b32 {vr(cT[0])}, {sr(sT[0])}
      ds_write_b32 {vr(cT[0])}, {vr(cRS)}
      s_waitcnt lgkmcnt(0)""")
if OPT["stamps"]:
    a("s_memtime s[0:1]")
srd(R_X, P_X, 2048 * 512 * 2)
other_srds()
a(f"s_mov_b64 s[20:21], {sr(P_WQKV,2)}")
att_addr_s(sT[0], sT[1])
a(f"""s_lshl_b32 {sr(sHS)}, {sr(sRB)}, 2
      s_add_u32 {sr(sHS)}, {sr(sHS)}, {sr(sWQ)}
      s_mul_i32 {sr(sHS)}, {sr(sHS)}, {86*1024}
      s_lshl_b32 {sr(sT[0])}, {sr(sT0)}, 11
      s_add_u32 {sr(sHS)}, {sr(sHS)}, {sr(sT[0])}
      s_add_u32 {sr(sHS)}, {sr(sHS)}, {WS_H}""")
a(f"""s_cmp_lg_u32 {sr(sWQ)}, 0
      s_cbranch_scc1 L_C0
      s_cmp_lg_u32 {sr(sRB)}, {sr(sCB)}
      s_cbranch_scc1 L_C1
      s_and_b32 {sr(sT[0])}, {sr(sLINE)}, 0xfffff800
      v_lshrrev_b32 v1, 2, {vr(vL)}
      v_and_b32 v3, 3, {vr(vL)}
      v_lshlrev_b32 v3, 4, v3
      v_lshl_add_u32 v1, v1, 7, v3
      v_mov_b32 v4, 0
      v_mov_b32 v5, 0
      v_mov_b32 v6, 0
      v_mov_b32 v7, 0
      buffer_store_dwordx4 v[4:7], v1, {sr(R_WS,4)}, {sr(sT[0])} offen sc1
      s_lshl_b32 {sr(sT[0])}, {sr(sRB)}, 2
      s_waitcnt vmcnt(0)
      s_mov_b64 exec, 1
      v_mov_b32 v3, 1
      buffer_store_dword v3, off, {sr(R_DBG,4)}, {sr(sT[0])} sc1
      s_mov_b64 exec, -1
      s_branch L_C1""")
a.label("L_C0")
a(f"""s_cmp_lg_u32 {sr(sWQ)}, 1
      s_cbranch_scc1 L_C1
      s_getpc_b64 s[74:75]""")
a.label("L_pc")
a(f"""s_sub_u32 s74, s74, L_pc-{NAME}_kernel
      s_subb_u32 s75, s75, 0
      s_lshr_b32 {sr(sT[0])}, s2, 3
      s_lshl_b32 {sr(sT[0])}, {sr(sT[0])}, 10
      v_lshlrev_b32 v1, 7, {vr(vL)}
      v_add_u32 v1, {sr(sT[0])}, v1
      v_min_u32 v1, L_end-{NAME}_kernel, v1
      s_mov_b64 exec, 0xff
      global_load_dword {vr(vDUM)}, v1, s[74:75]""")
if OPT["touch"]:
    a.comment("first touch of the pages used later in the launch")
    a(f"""v_lshlrev_b32 v1, 21, {vr(vL)}
          s_mov_b64 exec, 0x3f
          buffer_load_dword {vr(vDUM)}, v1, {sr(R_WS,4)}, 0 offen sc1
          s_mov_b64 exec, 1""")
    for r in (R_W1, R_W2, R_WO, R_B1, R_B2, R_OUT):
        a(f"buffer_load_dword {vr(vDUM)}, off, {sr(r,4)}, 0")
a("s_mov_b64 exec, -1")
a.label("L_C1")
PF = OPT.get("pf", 15)
if PF:
    a.comment("L2 prefetch of this workgroup's share of the lines its XCD neighbours also stream later")
    srd(R_WQKV, 20, 512 * 1536 * 2)
    u, u2, u3 = sT[0], sT[1], sT[2]
    a(f"""s_and_b32 {sr(u3)}, {sr(sRB)}, 3
          s_cmp_eq_u32 {sr(sWQ)}, 1
          s_cbranch_scc1 L_pf1
          s_cmp_eq_u32 {sr(sWQ)}, 2
          s_cbranch_scc1 L_pf2
          s_cmp_eq_u32 {sr(sWQ)}, 3
          s_cbranch_scc1 L_pf3""")
    if PF & 16:
        a(f"""s_lshl_b32 {sr(u)}, s2, 13
              v_lshlrev_b32 v1, 7, {vr(vL)}
              buffer_load_dword {vr(vDUM)}, v1, {sr(R_X,4)}, {sr(u)} offen""")
    if PF & 1:
        a(f"""s_and_b32 {sr(u)}, {sr(sCB)}, 7
              s_lshl_b32 {sr(u2)}, {sr(sRB)}, 3
              s_add_u32 {sr(u)}, {sr(u)}, {sr(u2)}
              s_lshl_b32 {sr(u)}, {sr(u)}, 14
              s_add_u32 {sr(u2)}, {sr(sROT)}, 4
              v_lshrrev_b32 v1, 4, {vr(vL)}
              v_add_u32 v1, {sr(u2)}, v1
              v_and_b32 v1, 7, v1
              v_lshlrev_b32 v1, 7, v1
              v_and_b32 v2, 15, {vr(vL)}
              v_lshl_add_u32 v1, v2, 10, v1
              buffer_load_dword {vr(vDUM)}, v1, {sr(R_X,4)}, {sr(u)} offen""")
    a("s_branch L_pfd")
    a.label("L_pf1")
    if PF & 32:
        a(f"""s_mul_i32 {sr(u)}, s2, 6144
              v_lshlrev_b32 v1, 7, {vr(vL)}
              s_mov_b32 exec_hi, 0xffff
              buffer_load_dword {vr(vDUM)}, v1, {sr(R_WQKV,4)}, {sr(u)} offen
              s_mov_b64 exec, -1""")
    if PF & 2:
        a(f"""s_and_b32 {sr(u)}, {sr(sCB)}, 1
              s_add_u32 {sr(u)}, {sr(u)}, 1
              s_lshl_b32 {sr(u)}, {sr(u)}, 10
              s_lshr_b32 {sr(u2)}, {sr(sCB)}, 1
              s_lshl_b32 {sr(u2)}, {sr(u2)}, 7
              s_add_u32 {sr(u)}, {sr(u)}, {sr(u2)}
              s_mul_i32 {sr(u2)}, {sr(u3)}, {16*3072}
              s_add_u32 {sr(u)}, {sr(u)}, {sr(u2)}
              s_add_u32 {sr(u2)}, {sr(sROT)}, 4
              v_lshrrev_b32 v1, 4, {vr(vL)}
              v_add_u32 v1, {sr(u2)}, v1
              v_and_b32 v1, 7, v1
              v_and_b32 v2, 15, {vr(vL)}
              v_lshl_add_u32 v1, v1, 6, v2
              v_mul_u32_u24 v1, 3072, v1
              buffer_load_dword {vr(vDUM)}, v1, {sr(R_WQKV,4)}, {sr(u)} offen""")
    a("s_branch L_pfd")
    a.label("L_pf2")
    if PF & 4:
        a(f"""s_and_b32 {sr(u)}, {sr(sCB)}, 1
              s_lshl_b32 {sr(u2)}, {sr(u3)}, 1
              s_add_u32 {sr(u)}, {sr(u)}, {sr(u2)}
              s_mul_i32 {sr(u)}, {sr(u)}, {64*3072}
              s_lshl_b32 {sr(u2)}, {sr(sCB)}, 6
              s_add_u32 {sr(u)}, {sr(u)}, {sr(u2)}
              v_mul_u32_u24 v1, 3072, {vr(vL)}
              buffer_load_dword {vr(vDUM)}, v1, {sr(R_WQKV,4)}, {sr(u)} offen""")
    a("s_branch L_pfd")
    a.label("L_pf3")
    if PF & 64:
        a(f"""s_mul_i32 {sr(u)}, s2, 5504
              v_lshlrev_b32 v1, 7, {vr(vL)}
              s_mov_b32 exec_hi, 0x7ff
              buffer_load_dword {vr(vDUM)}, v1, {sr(R_W1,4)}, {sr(u)} offen
              s_mov_b64 exec, -1""")
    if PF & 8:
        a(f"""s_mul_i32 {sr(u)}, {sr(u3)}, {128*2752}
              s_lshl_b32 {sr(u2)}, {sr(sT0)}, 6
              s_add_u32 {sr(u)}, {sr(u)}, {sr(u2)}
              s_add_u32 {sr(u2)}, {sr(u)}, {64*2752}
              v_mul_u32_u24 v1, 2752, {vr(vL)}
              buffer_load_dword {vr(vDUM)}, v1, {sr(R_W1,4)}, {sr(u)} offen
              buffer_load_dword {vr(vDUM)}, v1, {sr(R_W1,4)}, {sr(u)} offen offset:128
              buffer_load_dword {vr(vDUM)}, v1, {sr(R_W1,4)}, {sr(u2)} offen
              buffer_load_dword {vr(vDUM)}, v1, {sr(R_W1,4)}, {sr(u2)} offen offset:128""")
    a.label("L_pfd")
a.reset_counts()
a(f"""s_lshr_b32 {sr(sT[0])}, {sr(sCB)}, 1
      s_lshl_b32 {sr(sT[0])}, {sr(sT[0])}, 19
      s_lshl_b32 {sr(sT[1])}, {sr(sRB)}, 2
      s_add_u32 {sr(sT[1])}, {sr(sT[1])}, {sr(sWQ)}
      s_lshl_b32 {sr(sT[1])}, {sr(sT[1])}, 11
      s_add_u32 {sr(sT[2])}, {sr(sT[0])}, {sr(sT[1])}
      s_bitcmp1_b32 {sr(sCB)}, 0
      s_cbranch_scc1 L_CV""")


def kv_path(isV):
    px = [Ptr(cXA + j) for j in range(4)]
    pw = [[Ptr(cWP[t] + j) for j in range(4)] for t in range(2)]

    def rx(n, j):
        rd128(XR(4 * n + j), px[j], (n % 6) * SLOT, ("r", n, j))

    def rw(n, j, t):
        for u in range(0 if OPT.get("norw") and n > 0 else 2):
            tr(cSET[j] + 4 * t + 2 * u, pw[t][j], (n % 6) * SLOT + 16384 + u * 512, ("r", n, j))

    def main(n, j, t):
        if OPT.get("nomain") and n > 0:
            return
        c = "0" if (n == 0 and j == 0) else cACC[t]
        if isV:
            mfma32(cACC[t], XR(4 * n + j), cSET[j] + 4 * t, c)
        else:
            mfma32(cACC[t], cSET[j] + 4 * t, XR(4 * n + j), c)

    def s16(n, j):
        mfma16(cSUM, cSEL, XR(4 * n + j), "0" if (n == 0 and j == 0) else cSUM)

    def s4(n, j, h):
        mfma4(cSQ[h], XR(4 * n + j) + 2 * h, "0" if (n == 0 and j == 0) else cSQ[h])

    def small(n, j):
        if OPT.get("nosmall") and n > 0:
            return
        s16(n, j)
        s4(n, j, 0)
        s4(n, j, 1)

    if isV:
        a(f"""v_bfe_u32 {vr(cT[0])}, {vr(vL)}, 4, 1
              v_lshlrev_b32 {vr(cT[0])}, 17, {vr(cT[0])}
              v_lshl_add_u32 {vr(cT[0])}, {vr(vHH)}, 8, {vr(cT[0])}
              v_and_b32 {vr(cVO)}, 15, {vr(vL)}
              v_lshl_add_u32 {vr(cVO)}, {vr(cVO)}, 4, {vr(cT[0])}""")
    else:
        a.comment("key slot = lane with bits 2 and 3 swapped")
        a(f"""v_and_b32 {vr(cVO)}, 0x33, {vr(vL)}
              v_bfe_u32 {vr(cT[0])}, {vr(vL)}, 2, 1
              v_lshl_add_u32 {vr(cVO)}, {vr(cT[0])}, 3, {vr(cVO)}
              v_bfe_u32 {vr(cT[0])}, {vr(vL)}, 3, 1
              v_lshl_add_u32 {vr(cVO)}, {vr(cT[0])}, 2, {vr(cVO)}
              v_lshlrev_b32 {vr(cVO)}, 4, {vr(cVO)}""")
    def rd(n, j):
        rx(n, j)
        rw(n, j, 0)
        rw(n, j, 1)

    for n in range(8):
        stamp(f"ca{n}")
        a("s_barrier")
        stamp(f"cp{n}")
        if n == 0:
            stamp("c0")
        if n == 7:
            stamp("c7")
        if n == 0:
            rd(0, 0)
            rd(0, 1)
            rd(0, 2)
        else:
            main(n - 1, 2, 0)
            rx(n, 0)
            rw(n, 0, 0)
            main(n - 1, 2, 1)
            rw(n, 0, 1)
            main(n - 1, 3, 0)
            rx(n, 1)
            rw(n, 1, 0)
            main(n - 1, 3, 1)
            rw(n, 1, 1)
            for j in range(4):
                s16(n - 1, j)
                if j == 0:
                    rx(n, 2)
                elif j < 3:
                    rw(n, 2, j - 1)
                s4(n - 1, j, 0)
                s4(n - 1, j, 1)
        a.wait(lg=("r", n, 0))
        main(n, 0, 0)
        rx(n, 3)
        rw(n, 3, 0)
        main(n, 0, 1)
        rw(n, 3, 1)
        for t in range(2):
            mfma16(cKC[t], cSEL, cSET[0] + 4 * t, "0" if n == 0 else cKC[t])
        a.wait(lg=("r", n, 1))
        if n < 7:
            main(n, 1, 0)
            main(n, 1, 1)
            a.wait(lg=("r", n, 3))
    small(7, 0)
    small(7, 1)
    a.wait(lg=("r", 7, 3))
    s16(7, 2)
    a(f"ds_write_b32 v222, {vr(cKC[0])}", lg="k")
    a(f"ds_write_b32 v222, {vr(cKC[1])} offset:512", lg="k")
    s4(7, 2, 0)
    s4(7, 2, 1)
    small(7, 3)
    main(7, 1, 0)
    a.wait(lg="all")
    a("s_barrier")
    a("s_setprio 1")
    CS = cSET[0]
    T0, T1 = cT
    T2, T3, T4 = 223, 221, 222
    a(f"ds_read_b128 {vr(CS,4)}, {vr(T3)}", lg="cs")
    a(f"ds_read_b128 {vr(CS+4,4)}, {vr(T3)} offset:512", lg="cs")
    ops = [f"v_and_b32 {vr(T0)}, 3, {vr(vL)}",
           f"v_cmp_eq_u32 vcc, 1, {vr(T0)}",
           f"v_cmp_eq_u32 s[76:77], 2, {vr(T0)}",
           f"v_cmp_eq_u32 s[78:79], 3, {vr(T0)}"]
    ops += [f"v_add_f32 {vr(cSQ[0]+i)}, {vr(cSQ[0]+i)}, {vr(cSQ[1]+i)}" for i in range(4)]
    ops += [f"v_cndmask_b32 {vr(T0)}, {vr(cSQ[0])}, {vr(cSQ[0]+1)}, vcc",
            f"v_cndmask_b32 {vr(T0)}, {vr(T0)}, {vr(cSQ[0]+2)}, s[76:77]",
            f"v_cndmask_b32 {vr(T0)}, {vr(T0)}, {vr(cSQ[0]+3)}, s[78:79]",
            f"v_mov_b32 {vr(T1)}, {vr(T0)}",
            f"v_mul_f32 {vr(T2)}, {f32(1/512)}, {vr(cSUM)}",
            f"v_cvt_pk_bf16_f32 {vr(cXa)}, -{vr(T2)}, -{vr(T2)}",
            f"v_permlane32_swap_b32 {vr(T0)}, {vr(T1)}",
            f"v_add_f32 {vr(T0)}, {vr(T0)}, {vr(T1)}",
            f"v_mul_f32 {vr(T0)}, {f32(1/512)}, {vr(T0)}",
            f"v_fma_f32 {vr(T0)}, -{vr(T2)}, {vr(T2)}, {vr(T0)}",
            f"v_max_f32 {vr(T0)}, 0, {vr(T0)}",
            f"v_cvt_pk_bf16_f32 {vr(T0)}, {vr(T0)}, {vr(T0)}",
            f"v_lshlrev_b32 {vr(T0)}, 16, {vr(T0)}",
            f"v_add_f32 {vr(T0)}, {f32(1e-5)}, {vr(T0)}",
            f"v_cvt_pk_bf16_f32 {vr(T0)}, {vr(T0)}, {vr(T0)}",
            f"v_lshlrev_b32 {vr(T0)}, 16, {vr(T0)}",
            f"v_sqrt_f32 {vr(T0)}, {vr(T0)}",
            "WAITCS",
            f"v_add_f32 {vr(CS)}, {vr(CS)}, {vr(CS+1)}",
            f"v_cvt_pk_bf16_f32 {vr(cXa+1)}, -{vr(T2)}, {vr(T0)}",
            f"v_and_b32 {vr(T0)}, 0xffff0000, {vr(cXa+1)}",
            f"v_rcp_f32 {vr(cR)}, {vr(T0)}",
            f"v_add_f32 {vr(CS+2)}, {vr(CS+2)}, {vr(CS+3)}",
            f"v_add_f32 {vr(CS)}, {vr(CS)}, {vr(CS+2)}"]
    ops += split3_ops(cR, "0", cXa + 2, cXa + 3, T0, T1, None)
    ops += [f"s_lshl_b32 {sr(sT[0])}, {sr(sWQ)}, 9",
            f"s_add_u32 {sr(sT[0])}, {sr(sT[0])}, {L_STATS - L_CSP}",
            f"v_add_u32 {vr(T3)}, {sr(sT[0])}, {vr(T3)}",
            f"v_add_u32 {vr(T4)}, -1, {vr(vHH)}",
            "WSTAT"]
    ops += [f"v_and_b32 {vr(cXa+i)}, {vr(cXa+i)}, {vr(T4)}" for i in range(4)]
    ops += [f"v_mov_b64 {vr(cWa[0]+2,2)}, 0"]
    ops += split3_ops(CS, "0", cWa[0], cWa[0] + 1, T0, T1, None)
    rest = [(1, 1), (2, 0), (2, 1), (3, 0), (3, 1)]
    for i, op in enumerate(ops):
        if i % 6 == 2 and rest:
            j, t = rest.pop(0)
            main(7, j, t)
        if op == "WAITCS":
            a.wait(lg="cs")
        elif op == "WSTAT":
            a(f"ds_write_b32 {vr(T3)}, {vr(cXa+1)} offset:4", lg="st")
        else:
            a(op)
    assert not rest
    a(f"""v_add_f32 {vr(CS+4)}, {vr(CS+4)}, {vr(CS+5)}
          v_add_f32 {vr(CS+6)}, {vr(CS+6)}, {vr(CS+7)}""")
    if isV:
        mfma32(cACC[2], cXa, cRS, "0")
        mfma32(cACC[0], cXa, cWa[0], cACC[0])
    else:
        mfma32(cACC[0], cWa[0], cXa, cACC[0])
    a(f"v_add_f32 {vr(CS+4)}, {vr(CS+4)}, {vr(CS+6)}")
    emit(split3_ops(CS + 4, "0", cWa[1], cWa[1] + 1, T0, T1, None))
    if isV:
        mfma32(cACC[1], cXa, cWa[1], cACC[1])
    else:
        mfma32(cACC[1], cWa[1], cXa, cACC[1])
    for t in range(2):
        for u in range(2):
            b = cACC[t] + 8 * u
            for i in range(8):
                a(f"v_mul_f32 {vr(b+i)}, {vr(b+i)}, {vr(cACC[2]+8*u+i) if isV else vr(cR)}")
            p = cSET[0] + 8 * t + 4 * u
            for i in range(4):
                a(f"v_cvt_pk_bf16_f32 {vr(p+i)}, {vr(b+2*i)}, {vr(b+2*i+1)}")
            if isV:
                if u == 0:
                    a(f"s_add_u32 {sr(sT[3])}, {sr(sT[2])}, {2*t*131072}")
                a(f"buffer_store_dwordx4 {vr(p,4)}, {vr(cVO)}, {sr(R_WS,4)}, {sr(sT[3])} offen offset:{1024+512*u} sc1", vm="kv")
            else:
                a(f"s_add_u32 {sr(sT[3])}, {sr(sT[2])}, {(2*t+u)*131072}")
                a(f"buffer_store_dwordx4 {vr(p,4)}, {vr(cVO)}, {sr(R_WS,4)}, {sr(sT[3])} offen sc1", vm="kv")


kv_path(False)
a("s_branch L_C2")
a.label("L_CV")
a.reset_counts()
kv_path(True)
a.label("L_C2")
stamp("kvst")
cQA, RING = 208, 128
cWF = [208, 212, 216]
cPS, cPA = cWa[1], vDUM
cQC, cFB, cFC = 160, 204, [0, 4, 8]
cF1A, cF1, cBI, cP3, cFL = 64, 68, 72, 76, 88
tr_addr(cXA, 8, 64, cT[0])
a(f"""s_lshl_b32 {sr(sT[0])}, {sr(sWQ)}, 10
      s_add_u32 {sr(sT[0])}, {sr(sT[0])}, {L_WQ}
      v_add_u32 {vr(cXA)}, {sr(sT[0])}, {vr(cXA)}""")
for j in range(1, 4):
    a(f"v_xor_b32 {vr(cXA+j)}, {1024*j}, {vr(cXA)}")
pq = [Ptr(cXA + j, L_WQ) for j in range(4)]
pf = [Ptr(cXA + j, L_W1[0]) for j in range(4)]
a(f"s_setprio {OPT.get('cp2', 0)}")
a("s_barrier")
stamp("c8b")
LA = 6


def t_read(i):
    if i >= 128:
        return
    for u in range(2):
        if i < 32:
            tr(RING + 4 * (i & 7) + 2 * u, pq[i & 3], L_WQ + (i >> 2) * 4096 + u * 256, ("tw", i))
        else:
            k, t = divmod(i - 32, 3)
            tr(RING + 4 * (i & 7) + 2 * u, pf[k & 3], L_W1[k >> 2] + t * 64 + u * 768, ("tw", i))


def sum4(p):
    return [f"v_add_f32 {vr(p)}, {vr(p)}, {vr(p+1)}", f"v_add_f32 {vr(p+2)}, {vr(p+2)}, {vr(p+3)}", f"v_add_f32 {vr(p)}, {vr(p)}, {vr(p+2)}"]


side = []


def side_ops(n):
    for _ in range(n):
        if not side:
            return
        op = side.pop(0)
        if isinstance(op, tuple):
            a.wait(lg=op[1])
        elif callable(op):
            op()
        elif op:
            a(op)


F1S, B11 = OPT.get("f1s", 24), OPT.get("b11", 68)
at = {}


def sched(i, ops):
    at.setdefault(i, []).extend(ops)


sched(2, record(lambda: tr_addr(cFB, 8, 192, cT[0])))
for j in range(4):
    sched(5 + 2 * j, [f"s_xor_b32 {sr(20+j)}, {sr(sWQ)}, {j}", f"s_mul_i32 {sr(20+j)}, {sr(20+j)}, 3072", f"s_add_u32 {sr(20+j)}, {sr(20+j)}, {L_W1[0]}"])
    sched(22 + j, [f"v_add_u32 {vr(cXA+j)}, {sr(20+j)}, {vr(cFB)}"])
sched(26, ["s_waitcnt vmcnt(4)", f"v_lshlrev_b32 {vr(cPA)}, 4, {vr(vL31)}", f"v_add_u32 {vr(cPA)}, {L_CSP + 1024}, {vr(cPA)}",
           f"s_lshl_b32 {sr(sT[0])}, {sr(sWQ)}, 2", f"v_add_u32 {vr(cT[0])}, {sr(sT[0])}, {vr(cPA)}"])
sched(30, [lambda: a(f"ds_write_b32 {vr(cT[0])}, {vr(cQC)}", lg="qc")])
q2 = [lambda: a(f"ds_read_b128 {vr(cPS,4)}, {vr(cPA)}", lg="ps"),
      f"s_lshl_b32 {sr(sT[0])}, {sr(sWQ)}, 10", f"s_add_u32 {sr(sT[0])}, {sr(sT[0])}, {L_QX}", "", "", "", ("W", "ps")]
q2 += sum4(cPS) + split3_ops(cPS, "0", cWa[0], cWa[0] + 1, cT[0], cT[1], None)
q2 += [f"v_lshl_add_u32 {vr(cT[1])}, {vr(vL)}, 4, {sr(sT[0])}",
       lambda: mfma32(cQA, cWa[0], cXa, cQA),
       f"v_mul_f32 {vr(cT[0])}, {f32(0.25*math.log2(math.e))}, {vr(cR)}",
       "", "", "", ""]
q2 += [f"v_mul_f32 {vr(cQA+i)}, {vr(cQA+i)}, {vr(cT[0])}" for i in range(16)]
for u in range(2):
    q2 += [f"v_cvt_pk_bf16_f32 {vr(cQA+4*u+i)}, {vr(cQA+8*u+2*i)}, {vr(cQA+8*u+2*i+1)}" for i in range(4)]
    q2 += [lambda u=u: a(f"ds_write_b128 {vr(cT[1])}, {vr(cQA+4*u,4)} offset:{u*4096}", lg="qx")]
sched(33, q2)
sched(76, record(lambda: att_addr_v(cT[0])) + [f"v_mov_b64 {vr(cWF[k]+2,2)}, 0" for k in range(3)])
sched(84, [x for x in record(o_zero)[6:]])


def late_loads():
    a(f"""s_lshl_b32 {sr(sT[0])}, {sr(sT0)}, 6
          v_lshlrev_b32 {vr(cT[0])}, 1, {vr(vL31)}""")
    for t in range(3):
        a(f"buffer_load_ushort {vr(cBI+t)}, {vr(cT[0])}, {sr(R_B1,4)}, {sr(sT[0])} offen offset:{64*t}", vm="bias")


sched(98, [late_loads] + record(lambda: f1_addr(cF1A, cT[0])))
sched(106, [lambda: (a("s_mov_b32 exec_hi, 0"), a(f1_load(cF1, cF1A), vm="f1"), a("s_mov_b64 exec, -1"))])
sched(112, [f"s_lshl_b32 {sr(sT[0])}, {sr(sWQ)}, 2", f"v_add_u32 {vr(cT[0])}, {sr(sT[0])}, {vr(cPA)}",
            f"s_add_u32 {sr(sT[0])}, {sr(sT[0])}, {L_FLG}", f"v_mov_b32 {vr(cT[1])}, {sr(sT[0])}",
            f"v_mov_b32 {vr(cFL+4)}, {L_FLG}", lambda: a.wait(vm="bias")] + [f"v_lshlrev_b32 {vr(cBI+t)}, 16, {vr(cBI+t)}" for t in range(3)])
sched(119, [lambda t=t: a(f"ds_write_b32 {vr(cT[0])}, {vr(cFC[t])} offset:{512*(t+1)}", lg="fc") for t in range(2)])
sched(122, [lambda: a(f"ds_write_b32 {vr(cT[0])}, {vr(cFC[2])} offset:1536", lg="fc"),
            lambda: a(f"ds_write_b32 {vr(cT[1])}, {vr(cT[1])}", lg="fc")])
sched(123, record(o_zero)[:4])


def part_reads():
    a(f"ds_read_b128 {vr(cFL,4)}, {vr(cFL+4)}", lg="p3")
    for t in range(3):
        a(f"ds_read_b128 {vr(cP3+4*t,4)}, {vr(cPA)} offset:{512*(t+1)}", lg="p3")


sched(125, [part_reads] + record(o_zero)[4:6])
for i in range(LA):
    t_read(i)
for i in range(128):
    a.wait(lg=("tw", i))
    fr = RING + 4 * (i & 7)
    if i < 32:
        mfma32(cQA, fr, XR(i), "0" if i == 0 else cQA)
        cs = (cQC, i == 0) if i % 4 == 0 else None
    else:
        k, t = divmod(i - 32, 3)
        mfma32(cACC[t], fr, XR(k), "0" if k == 0 else cACC[t])
        cs = (cFC[t], k == 3) if (k == 3 or (k >= 4 and k % 4 == 0)) else None
    if i + LA == 32:
        a("s_barrier")
        stamp("c9")
    if i == 33:
        a.wait(lg="qc")
        a("s_barrier")
    if i + LA == 56:
        a("s_barrier")
        stamp("c10")
    if i == B11:
        assert not side and 56 - LA < B11 <= 80 - LA
        a.wait(lg="qx")
        a("s_barrier")
        stamp("c11")
    if i == B11 + 5:
        a("s_barrier")
        a(f"s_setprio {OPT.get('cp3', 3)}")
    stamp(f"i{i}")
    t_read(i + LA)
    side += at.get(i, [])
    side_ops(2)
    if cs:
        mfma16(cs[0], cSEL, fr, "0" if cs[1] else cs[0])
    if i == F1S:
        a(f"""s_lshl_b32 {sr(sT[3])}, {sr(sWQ)}, 2
              s_add_u32 {sr(sT[3])}, {sr(sT[3])}, {sr(sLINE)}""")
        a.wait(vm="all")
        set_flag(sT[3], cRS)
        stamp("f1sent")
assert not side
stamp("ffnend")
a("s_setprio 3")
a(f"s_mov_b32 {sr(sT[6])}, {OPT['spin']}")
a.label("L_p3")
a.wait(lg="all")
a(f"""v_min_u32 {vr(cFL)}, {vr(cFL)}, {vr(cFL+1)}
      v_min3_u32 {vr(cFL)}, {vr(cFL)}, {vr(cFL+2)}, {vr(cFL+3)}
      v_cmp_eq_u32 vcc, 0, {vr(cFL)}
      s_nop 1
      s_cmp_eq_u64 vcc, 0
      s_cbranch_scc1 L_p3d""")
part_reads()
a(f"""s_sub_u32 {sr(sT[6])}, {sr(sT[6])}, 1
      s_cmp_lg_u32 {sr(sT[6])}, 0
      s_cbranch_scc1 L_p3""")
a.wait(lg="all")
a.label("L_p3d")
q_reads()
for t in range(3):
    emit(sum4(cP3 + 4 * t) + split3_ops(cP3 + 4 * t, vr(cBI + t), cWF[t], cWF[t] + 1, cT[0], cT[1], None))
    if t:
        mfma32(cACC[t - 1], cWF[t - 1], cXa, cACC[t - 1])
a.wait(vm="all")
a("s_mov_b32 exec_hi, 0")
poll(f1_load(cF1, cF1A), 4, cF1, first_done=True)
a("s_mov_b64 exec, -1")
mfma32(cACC[2], cWF[2], cXa, cACC[2])
att_init()
kvload(0)
kvload(1)
kvload(2)
stamp("kvl")
HSP = OPT.get("hsp", 2)


def hstore(n):
    if n == 4:
        a(f"s_add_u32 {sr(sHS)}, {sr(sHS)}, 4096")
    a(f"buffer_store_dwordx4 {vr(208+4*n,4)}, {vr(vL16)}, {sr(R_WS,4)}, {sr(sHS)} offen offset:{1024*(n&3)} sc1", vm="h")


for t in range(3):
    for u in range(2):
        b = cACC[t] + 8 * u
        for i in range(8):
            a(f"v_max_f32 {vr(b+i)}, 0, {vr(b+i)}")
        for i in range(8):
            a(f"v_mul_f32 {vr(b+i)}, {vr(b+i)}, {vr(b+i)}")
        p = 208 + 8 * t + 4 * u
        for i in range(4):
            a(f"v_cvt_pk_bf16_f32 {vr(p+i)}, {vr(b+2*i)}, {vr(b+2*i+1)}")
        if not HSP:
            hstore(2 * t + u)
a.wait(vm=("v", 2), lg="all")

a.label("L_ATT")
role[0] = "HC"
a.reset_counts()
stamp("attst")


def w2dma(lds, tag):
    dma(vWD, R_W2, sW2, lds, tag, f"s_add_u32 {sr(sW2)}, {sr(sW2)}, 16384")


def hload(i):
    if i % 4 == 0:
        a(f"""s_add_u32 {sr(sU2)}, {sr(sKS)}, {i}
              s_min_u32 {sr(sU2)}, {sr(sU2)}, 84
              s_lshl_b32 {sr(sU2)}, {sr(sU2)}, 10
              s_add_u32 {sr(sT[2])}, {sr(sU2)}, {sr(sH0)}""")
    a(f"buffer_load_dwordx4 {vr(HF+4*i,4)}, {vr(vL16)}, {sr(R_WS,4)}, {sr(sT[2])} offen offset:{(i%4)*1024} sc1", vm="hf")


def f2_check():
    a(f"""v_and_b32 {vr(vFL)}, 15, {vr(vL)}
          v_lshlrev_b32 {vr(vFL)}, 7, {vr(vFL)}
          s_and_b32 {sr(sU2)}, {sr(sLINE)}, 0xfffff800
          s_mov_b64 exec, 0xffff""")
    poll(f"buffer_load_dwordx4 {vr(vFP,4)}, {vr(vFL)}, {sr(R_WS,4)}, {sr(sU2)} offen offset:16 sc1", 4, vFP)
    a("s_mov_b64 exec, -1")
    a.vm = []


def l2_touch():
    a.comment("pull a share of the W2 / Wo column block used after the attention into L2")
    a(f"""s_and_b32 {sr(sU)}, {sr(sRB)}, 3
          s_lshl_b32 {sr(sU)}, {sr(sU)}, 1
          s_and_b32 {sr(sU2)}, {sr(sCB)}, 1
          s_add_u32 {sr(sU)}, {sr(sU)}, {sr(sU2)}
          s_lshl_b32 {sr(sU)}, {sr(sU)}, 3
          s_add_u32 {sr(sU)}, {sr(sU)}, {sr(sW)}
          s_lshr_b32 {sr(sU2)}, {sr(sCB)}, 1
          s_lshl_b32 {sr(sU2)}, {sr(sU2)}, 7
          s_lshr_b32 {sr(sT[3])}, {sr(sU)}, 4
          s_mul_i32 {sr(sT[3])}, {sr(sT[3])}, {(352-160)*1024}
          s_mul_i32 {sr(sT[4])}, {sr(sU)}, {10*1024}
          s_add_u32 {sr(sT[3])}, {sr(sT[3])}, {sr(sT[4])}
          s_add_u32 {sr(sT[3])}, {sr(sT[3])}, {192*1024}
          s_add_u32 {sr(sT[3])}, {sr(sT[3])}, {sr(sU2)}
          s_lshl_b32 {sr(sU)}, {sr(sU)}, 13
          s_add_u32 {sr(sU)}, {sr(sU)}, {sr(sU2)}
          v_lshlrev_b32 {vr(vFL)}, 10, {vr(vL)}
          s_mov_b64 exec, 0x3ff""")
    a(f"buffer_load_dword {vr(vDUM)}, {vr(vFL)}, {sr(R_W2,4)}, {sr(sT[3])} offen", vm="t")
    a("s_mov_b64 exec, 0xff")
    a(f"buffer_load_dword {vr(vDUM)}, {vr(vFL)}, {sr(R_WO,4)}, {sr(sU)} offen", vm="t")
    a("s_mov_b64 exec, -1")


extras = {}


def put(it, tile, slot, fn):
    extras.setdefault((it, tile, slot), []).append(fn)


for it in range(1, 16):
    put(it, 0, 1, lambda it=it: kvload(it + 2))


def f2_signal():
    a(f"""s_cmp_lt_u32 {sr(sW)}, 4
          s_cbranch_scc1 L_nof2
          s_lshl_b32 {sr(sU)}, {sr(sW)}, 2
          s_add_u32 {sr(sU)}, {sr(sU)}, {sr(sLINE)}""")
    assert "h" not in a.vm and ("k", 3) not in a.vm
    set_flag(sU, vFL)
    a(f"s_setprio {2 if OPT['prio'] else 0}")
    a.label("L_nof2")


if HSP:
    a.comment("waves 4-7 publish h one fragment at a time; waves 0-3 run the same stores out of range (dropped)")
    for n in range(6):
        put(n * HSP // 4, n * HSP % 4, 2, lambda n=n: hstore(n))
    put(5 * HSP // 4 + 2, 3, 1, f2_signal)
else:
    put(2, 3, 1, f2_signal)
if OPT['tit'] < 16:
    put(OPT['tit'], 2, 0, l2_touch)
F2IT = OPT["f2it"]
put(F2IT, 0, 0, f2_check)


def marker_check():
    a.comment("the W1 image may be overwritten once all four compute waves have set their marker words")
    a(f"""v_mov_b32 {vr(vFL)}, {L_FLG}
          s_mov_b32 {sr(sT[6])}, {OPT['spin']}""")
    a.label("L_mk")
    a(f"ds_read_b128 {vr(vFP,4)}, {vr(vFL)}", lg="mk")
    a.wait(lg="all")
    a(f"""v_min_u32 {vr(vFP)}, {vr(vFP)}, {vr(vFP+1)}
          v_min3_u32 {vr(vFP)}, {vr(vFP)}, {vr(vFP+2)}, {vr(vFP+3)}
          v_cmp_eq_u32 vcc, 0, {vr(vFP)}
          s_sub_u32 {sr(sT[6])}, {sr(sT[6])}, 1
          s_cmp_eq_u64 vcc, 0
          s_cbranch_scc1 L_mkd
          s_cmp_lg_u32 {sr(sT[6])}, 0
          s_cbranch_scc1 L_mk""")
    a.label("L_mkd")


WIT = OPT.get("wit", 3)
if WIT:
    put(WIT, 0, 0, marker_check)
    for i in range(12):
        put(WIT + i // 3, 1 + i % 3, 0, lambda i=i: w2dma((sLA, i * 8192), "w2a"))
pre = []
for i in range(22):
    pre.append(lambda i=i: hload(i))
    if not WIT and (i % 2 == 1 or i == 0):
        pre.append(lambda i=(i + 1) // 2: w2dma((sLA, i * 8192), "w2a"))
slots = [(it, t, sl) for it in range(F2IT, 16) for t, sl in ((0, 2), (1, 0), (1, 2), (2, 2), (3, 2))[5 - OPT.get("hpi", 4):]]
for n, fn in enumerate(pre):
    put(*slots[n], fn)
if OPT["prio"]:
    P1, P0 = OPT.get("p1", 50), OPT.get("p0", 61)
    put(P1 // 4, P1 % 4, 0, lambda: a("s_setprio 1"))
    put(P0 // 4, P0 % 4, 0, lambda: a("s_setprio 0"))


def run_extras(it, tile, slot):
    for fn in extras.get((it, tile, slot), []):
        fn()


def exps(b, lo, hi):
    for i in range(lo, hi):
        a(f"v_exp_f32 {vr(b+i)}, {vr(b+i)}")


ORD = [1, 2, 3, 0]
T = [64 + i for i in range(32)]
CA = KB[1]
vB0, vB1, vC0, vC1 = 241, 242, 243, 248


def cmb_addr(j):
    a(f"""s_xor_b32 {sr(sU)}, {sr(sW)}, {j}
          s_mul_i32 {sr(sU)}, {sr(sU)}, 7168
          s_add_u32 {sr(sU)}, {sr(sU)}, {L_CMB + max(j-1, 0)*2304}
          v_add_u32 {vr(CA+2*j)}, {sr(sU)}, {vr(vL16)}
          v_lshl_add_u32 {vr(CA+2*j+1)}, {vr(vL)}, 2, {sr(sU)}""")


def cmb_write(j):
    o = (j - 1) * 2304
    a(f"ds_write_b128 {vr(CA)}, {vr(O[j],4)} offset:{o}", lg="c")
    a(f"ds_write_b128 {vr(CA)}, {vr(O[j]+4,4)} offset:{o+1024}", lg="c")
    a(f"ds_write_b32 {vr(CA+1)}, {vr(O[j]+8)} offset:{o+2048}", lg="c")


def w_addr():
    tr_addr128(vB0, vB1, 4, vFL)
    a(f"""s_and_b32 {sr(sU)}, {sr(sLA)}, 0xfffff800
          v_add_u32 {vr(vC0)}, {sr(sU)}, {vr(vB0)}
          v_add_u32 {vr(vC1)}, {sr(sU)}, {vr(vB1)}""")


put(14, 3, 0, w_addr)
for j in range(4):
    put(15, j // 2, 1 + j % 2, lambda j=j: cmb_addr(j))
put(15, 2, 0, lambda: cmb_write(1))
put(15, 3, 0, lambda: cmb_write(2))
mfma32(S[0], KB[0], Q[ORD[0]], "0")
for t in range(64):
    it, j = t // 4, t % 4
    X, Y = S[t & 1], S[(t + 1) & 1]
    stamp(f"t{t}")
    exps(X, 0, 2)
    if t > 0:
        pit, pj = (t - 1) // 4, (t - 1) % 4
        smf(O[ORD[pj]], VB[pit % 3] + 4, Y + 8, vIDX)
    run_extras(it, j, 0)
    exps(X, 2, 5)
    if t < 63:
        nit, nj = (t + 1) // 4, (t + 1) % 4
        if nj == 0:
            a.wait(vm=("k", nit))
        mfma32(Y, KB[nit % 3], Q[ORD[nj]], "0")
    run_extras(it, j, 1)
    exps(X, 5, 11)
    if j == 0:
        a.wait(vm=("v", it))
    smf(O[ORD[j]], VB[it % 3], X, vIDX)
    run_extras(it, j, 2)
    if t == 63:
        cmb_write(3)
    exps(X, 11, 16)
a.wait(vm="all", lg="all")
smf(O[0], VB[15 % 3] + 4, S[1] + 8, vIDX)
stamp("attend")

a("s_barrier")
stamp("barc")
for j in range(1, 4):
    a(f"ds_read_b128 {vr(O[j],4)}, {vr(CA+2*j)}", lg=("c", j))
    a(f"ds_read_b128 {vr(O[j]+4,4)}, {vr(CA+2*j)} offset:1024", lg=("c", j))
    a(f"ds_read_b32 {vr(O[j]+8)}, {vr(CA+2*j+1)} offset:2048", lg=("c", j))
for j in range(1, 4):
    a.wait(lg=("c", j))
    for i in range(9):
        a(f"v_add_f32 {vr(O[0]+i)}, {vr(O[0]+i)}, {vr(O[j]+i)}")
a(f"""v_add_f32 {vr(T[2])}, |{vr(O[0])}|, |{vr(O[0]+1)}|
      v_add_f32 {vr(T[3])}, |{vr(O[0]+2)}|, |{vr(O[0]+3)}|
      v_cmp_nle_f32 vcc, {f32(2.0**-64)}, {vr(O[0]+8)}
      v_add_f32 {vr(T[2])}, |{vr(O[0]+4)}|, {vr(T[2])}
      s_mov_b64 s[76:77], vcc
      v_add_f32 {vr(T[3])}, |{vr(O[0]+5)}|, {vr(T[3])}
      v_cmp_nge_f32 vcc, {f32(2.0**64)}, {vr(O[0]+8)}
      v_add_f32 {vr(T[2])}, |{vr(O[0]+6)}|, {vr(T[2])}
      s_or_b64 s[76:77], s[76:77], vcc
      v_add_f32 {vr(T[3])}, |{vr(O[0]+7)}|, {vr(T[3])}
      v_add_f32 {vr(T[2])}, {vr(T[2])}, {vr(T[3])}
      v_cmp_nge_f32 vcc, {f32(2.0**126)}, {vr(T[2])}
      s_or_b64 s[76:77], s[76:77], vcc""")
a("s_branch L_SLOW" if OPT["force_slow"] else "s_cbranch_scc1 L_SLOW")
a.label("L_NORM")
a(f"v_rcp_f32 {vr(T[2])}, {vr(O[0]+8)}")
WR = 32
FA = [96, 112]


pC = [Ptr(vC0), Ptr(vC1)]


def w_read(i, addr, tag):
    for ct in range(2):
        for u in range(2):
            tr(WR + 8 * (i & 3) + 4 * ct + 2 * u, pC[ct], addr + u * 1024, (tag, i))


def f_addr(i):
    return i * 8192 if i < 19 else L_B2 + (i - 19) * 8192


w_read(0, 0, "f")
for i in range(8):
    a(f"v_mul_f32 {vr(O[0]+i)}, {vr(O[0]+i)}, {vr(T[2])}")
for i in range(4):
    a(f"v_cvt_pk_bf16_f32 {vr(T[4]+i)}, {vr(O[0]+2*i)}, {vr(O[0]+2*i+1)}")
a(f"buffer_store_dwordx4 {vr(T[4],4)}, {vr(vL16)}, {sr(R_WS,4)}, {sr(sO)} offen sc1", vm="o")
stamp("ost")
w_read(1, 8192, "f")
a("s_barrier")

vOUT = T[8]
vX, vB2 = 128, 136
sWoS = sT[3]
a(f"""s_lshl_b32 {sr(sWoS)}, {sr(sW)}, 13
      s_and_b32 {sr(sU2)}, {sr(sOUT)}, 0x3ff
      s_add_u32 {sr(sWoS)}, {sr(sWoS)}, {sr(sU2)}
      s_sub_u32 {sr(sWoS)}, {sr(sWoS)}, 0x10000""")


def wodma(p):
    dma(vWD, R_WO, sWoS, (sLA, L_WO + p * 8192), "wo", f"s_add_u32 {sr(sWoS)}, {sr(sWoS)}, 0x10000")


def fstep(i):
    a.wait(lg=("f", i))
    mfma32(FA[0], WR + 8 * (i & 3), HF + 4 * i, "0" if i == 0 else FA[0])


def fstep2(i):
    mfma32(FA[1], WR + 8 * (i & 3) + 4, HF + 4 * i, "0" if i == 0 else FA[1])


vPW, vPR = T[10], T[14]
vSD = T[3]
dq = [lambda i=i: w2dma((sLA, f_addr(i)), "b1" if i < 19 else "b2") for i in range(12, 22)] + [lambda p=p: wodma(p) for p in range(8)]
for i in range(12):
    fstep(i)
    if i == 0:
        dq.pop(0)()
    if i + 2 < 12:
        w_read(i + 2, f_addr(i + 2), "f")
    fstep2(i)
    dq.pop(0)()
    if i == 5:
        a(f"s_cmp_lg_u32 {sr(sW)}, 0")
        a.wait(vm="o")
        a("s_barrier")
        a("s_cbranch_scc1 L_nof3")
        set_flag(sLINE, T[2], 32)
        a.label("L_nof3")
        stamp("a6")
stamp("aend")
a(f"""v_and_b32 {vr(vFL)}, 7, {vr(vL)}
      v_xor_b32 {vr(vPW)}, {vr(vFL)}, {vr(vHH)}
      v_lshlrev_b32 {vr(vPW)}, 4, {vr(vPW)}
      v_lshl_add_u32 {vr(vPW)}, {vr(vL31)}, 8, {vr(vPW)}
      s_lshl_b32 {sr(sU2)}, {sr(sW)}, 13
      s_add_u32 {sr(sU2)}, {sr(sU2)}, {L_PART}
      v_add_u32 {vr(vPW)}, {sr(sU2)}, {vr(vPW)}
      v_xor_b32 {vr(vPW+1)}, 32, {vr(vPW)}
      v_xor_b32 {vr(vPW+2)}, 64, {vr(vPW)}
      v_xor_b32 {vr(vPW+3)}, 0x60, {vr(vPW)}
      v_lshrrev_b32 {vr(T[2])}, 3, {vr(vL)}
      v_lshlrev_b32 {vr(vPR)}, 1, {vr(vFL)}
      v_xor_b32 {vr(vPR)}, {vr(vPR)}, {vr(T[2])}
      v_lshlrev_b32 {vr(vPR)}, 4, {vr(vPR)}
      v_lshl_add_u32 {vr(vPR)}, {vr(T[2])}, 8, {vr(vPR)}
      s_lshl_b32 {sr(sU2)}, {sr(sWQ)}, 11
      s_add_u32 {sr(sU2)}, {sr(sU2)}, {L_PART}
      v_add_u32 {vr(vPR)}, {sr(sU2)}, {vr(vPR)}
      v_xor_b32 {vr(vPR+1)}, 16, {vr(vPR)}
      s_and_b32 {sr(sU2)}, {sr(sCB)}, 1
      s_lshl_b32 {sr(sU2)}, {sr(sU2)}, 3
      s_add_u32 {sr(sU2)}, {sr(sU2)}, {sr(sWQ)}
      s_lshl_b32 {sr(sU2)}, {sr(sU2)}, 7
      s_add_u32 {sr(sU2)}, {sr(sU2)}, {L_STATS}
      v_lshl_add_u32 {vr(vSD)}, {vr(T[2])}, 4, {sr(sU2)}
      v_lshlrev_b32 {vr(T[9])}, 4, {vr(vFL)}
      v_lshl_add_u32 {vr(vOUT)}, {vr(T[2])}, 10, {vr(T[9])}
      v_lshlrev_b32 {vr(vFL)}, 7, {vr(vFL)}
      s_and_b32 {sr(sT[5])}, {sr(sLINE)}, 0xfffff800
      s_and_b32 {sr(sU2)}, {sr(sW)}, 2
      s_lshl_b32 {sr(sU2)}, {sr(sU2)}, 9
      s_add_u32 {sr(sT[5])}, {sr(sT[5])}, {sr(sU2)}""")
a(f"s_cmp_ge_u32 {sr(sW)}, 4")
a.wait(vm="b1")
a("s_barrier")
stamp("g1")
w_read(12, f_addr(12), "f")
w_read(13, f_addr(13), "f")
a("s_cbranch_scc1 L_TC")
pCb = [p.base for p in pC]
dqb = list(dq)


def stage_b(hook):
    for p, b in zip(pC, pCb):
        p.base = b
    q = list(dqb)
    for i in range(12, 22):
        if i == 18:
            a.wait(vm="b2", lg=("f", 18))
            a("s_barrier")
            stamp("g2")
            w_read(19, f_addr(19), "f")
        fstep(i)
        if i + 2 < 22 and i != 17:
            w_read(i + 2, f_addr(i + 2), "f")
        if q:
            q.pop(0)()
        hook(i, 0)
        fstep2(i)
        if q:
            q.pop(0)()
        hook(i, 1)


def pw1(acc, n):
    ct, g = n >> 2, n & 3
    a(f"ds_write_b128 {vr(vPW+g)}, {vr(acc[ct]+4*g,4)} offset:{ct*128}", lg="p")


sv = (list(a.vm), list(a.lg))
role[0] = "H"
f3load = f"buffer_load_dword {vr(vFP)}, {vr(vFL)}, {sr(R_WS,4)}, {sr(sT[5])} offen offset:32 sc1"
a(f"""s_lshr_b32 {sr(sU)}, {sr(sW)}, 1
      s_lshl_b32 {sr(sU2)}, {sr(sU)}, 3
      s_xor_b32 {sr(sU2)}, {sr(sU2)}, {sr(sCB)}
      s_mov_b64 s[20:21], 0xff
      s_bitset0_b32 s20, {sr(sU2)}
      s_mov_b64 exec, s[20:21]""")
a(f3load, vm="f3")
a("s_mov_b64 exec, -1")
OF = [128, 132, 136, 140] + [HF + 4 * i for i in range(12)]
oq = list(range(16))
PF3 = OPT.get("pf3", 17)


def oload():
    if not oq:
        return
    i = oq.pop(0)
    a(f"buffer_load_dwordx4 {vr(OF[i],4)}, {vr(vL16)}, {sr(R_WS,4)}, {sr(sT[2])} offen offset:{(i&3)*1024} sc1", vm=("of", i))
    if i & 3 == 3 and i < 15:
        a(f"s_add_u32 {sr(sT[2])}, {sr(sT[2])}, 4096")


def h_hook(i, h):
    if (i, h) == (12, 1):
        a(f"""s_and_b32 {sr(sU2)}, {sr(sCB)}, 1
              s_lshl_b32 {sr(sT[2])}, {sr(sRB)}, 1
              s_add_u32 {sr(sT[2])}, {sr(sT[2])}, {sr(sU2)}
              s_lshl_b32 {sr(sT[2])}, {sr(sT[2])}, 1
              s_and_b32 {sr(sU2)}, {sr(sW)}, 1""")
    if (i, h) == (13, 1):
        a(f"""s_add_u32 {sr(sT[2])}, {sr(sT[2])}, {sr(sU2)}
              s_lshl_b32 {sr(sT[2])}, {sr(sT[2])}, 1
              s_add_u32 {sr(sT[2])}, {sr(sT[2])}, {sr(sU)}
              s_lshl_b32 {sr(sT[2])}, {sr(sT[2])}, 14
              s_add_u32 {sr(sT[2])}, {sr(sT[2])}, {WS_O}""")
    if (i, h) == (PF3, 1):
        a.wait(vm="f3")
        a("s_mov_b64 exec, s[20:21]")
        poll(f3load, 1, vFP, first_done=True)
        a("s_mov_b64 exec, -1")
        stamp("f3seen")
    if i > PF3 or (i, h) == (PF3, 1):
        oload()


stage_b(h_hook)
a(f"""s_lshl_b32 {sr(sU2)}, {sr(sU)}, 15
      v_add_u32 {vr(vC0)}, {sr(sU2)}, {vr(vB0)}
      v_add_u32 {vr(vC1)}, {sr(sU2)}, {vr(vB1)}
      s_cmp_eq_u32 {sr(sW)}, 3
      s_mov_b32 {sr(sU2)}, {(L_B2 - L_PART) & 0xffffffff}
      s_cselect_b32 {sr(sU2)}, {L_STATS - L_PART - 3 * 8192}, {sr(sU2)}""")
oload()
oload()
for n in range(8):
    pw1(FA, n)
    oload()
assert not oq
a.wait(vm="wo", lg="all")
a("s_barrier")
stamp("g3")
pC = [Ptr(vC0), Ptr(vC1)]
for i in range(3):
    w_read(i, L_WO + i * 2048, "wo")
for g in range(4):
    a(f"v_add_u32 {vr(vPW+g)}, {sr(sU2)}, {vr(vPW+g)}")
for i in range(16):
    a.wait(vm=("of", i), lg=("wo", i))
    if i == 0:
        stamp("wost")
    mfma32(FA[0], WR + 8 * (i & 3), OF[i], "0" if i == 0 else FA[0])
    if i + 3 < 16:
        w_read(i + 3, L_WO + (i + 3) * 2048, "wo")
    mfma32(FA[1], WR + 8 * (i & 3) + 4, OF[i], "0" if i == 0 else FA[1])
for n in range(8):
    pw1(FA, n)
a.wait(lg="all")
a("s_barrier")
a("s_branch L_DONE" if OPT["stamps"] else "s_endpgm")

a.label("L_TC")
role[0] = "C"
a.vm, a.lg = list(sv[0]), list(sv[1])


def c_hook(i, h):
    if (i, h) == (14, 1):
        a(f"""s_and_b32 {sr(sU2)}, {sr(sOUT)}, 0x3ff
              s_add_u32 {sr(sU)}, {sr(sOUT)}, 0x8000""")
        a(f"buffer_load_dwordx4 {vr(vB2,4)}, {vr(T[9])}, {sr(R_B2,4)}, {sr(sU2)} offen", vm="fin")
    if (i, h) == (15, 0):
        a(f"buffer_load_dwordx4 {vr(vX,4)}, {vr(vOUT)}, {sr(R_X,4)}, {sr(sOUT)} offen", vm="fin")
    if (i, h) == (15, 1):
        a(f"buffer_load_dwordx4 {vr(vX+4,4)}, {vr(vOUT)}, {sr(R_X,4)}, {sr(sU)} offen", vm="fin")


stage_b(c_hook)
vR2 = T[4]
G, XU, PR, BU, TE = 0, 16, 148, T[16], 32
a(f"ds_read_b32 {vr(vR2)}, {vr(vSD)} offset:4", lg="sd")
a(f"ds_read_b32 {vr(vR2+1)}, {vr(vSD)} offset:516", lg="sd")
a.wait(vm="fin")
for i in range(4):
    a(f"""v_lshlrev_b32 {vr(BU+2*i)}, 16, {vr(vB2+i)}
          v_and_b32 {vr(BU+2*i+1)}, 0xffff0000, {vr(vB2+i)}""")
for n in range(8):
    pw1(FA, n)
    a(f"""v_lshlrev_b32 {vr(XU+2*n)}, 16, {vr(vX+n)}
          v_and_b32 {vr(XU+2*n+1)}, 0xffff0000, {vr(vX+n)}""")
stamp("pw")
a.wait(lg="sd")
for r in range(2):
    a(f"""v_and_b32 {vr(vR2+r)}, 0xffff0000, {vr(vR2+r)}
          v_rcp_f32 {vr(vR2+r)}, {vr(vR2+r)}""")
for r in range(2):
    a(f"v_mul_f32 {vr(vR2+r)}, {vr(vR2+r)}, {vr(vR2+r)}")
a.wait(lg="all")
a("s_barrier")
stamp("g3")


def p_read(r, kq):
    for h in range(2):
        d = G + 8 * r + 4 * h if kq == 0 else PR + 24 * r + 8 * (kq - 1) + 4 * h
        a(f"ds_read_b128 {vr(d,4)}, {vr(vPR+h)} offset:{r*8192+kq*16384}", lg=("p", r, kq))


for kq in range(4):
    p_read(0, kq)
for kq in range(3):
    p_read(1, kq)
a.wait(lg=("p", 0, 0))
p_read(1, 3)
for r in range(2):
    for kq in range(1, 4):
        a.wait(lg=("p", r, kq))
        for i in range(8):
            a(f"v_add_f32 {vr(G+8*r+i)}, {vr(G+8*r+i)}, {vr(PR+24*r+8*(kq-1)+i)}")
for i in range(16):
    a(f"v_fma_f32 {vr(G+i)}, {vr(G+i)}, {vr(vR2+i//8)}, {vr(BU+i%8)}")
for i in range(16):
    a(f"v_mul_f32 {vr(TE+i)}, {f32(-math.log2(math.e))}, {vr(G+i)}")
for i in range(16):
    a(f"v_exp_f32 {vr(TE+i)}, {vr(TE+i)}")
for i in range(16):
    a(f"v_add_f32 {vr(TE+i)}, 1.0, {vr(TE+i)}")
for i in range(16):
    a(f"v_rcp_f32 {vr(TE+i)}, {vr(TE+i)}")
for h in range(2):
    a(f"""v_add_u32 {vr(vPW+h)}, {L_STATS - L_PART}, {vr(vPR+h)}
          v_add_u32 {vr(vPR+h)}, {(L_B2 - L_PART) & 0xffffffff}, {vr(vPR+h)}""")
for i in range(16):
    a(f"v_mul_f32 {vr(G+i)}, {vr(G+i)}, {vr(TE+i)}")
stamp("gate")
a("s_barrier")
stamp("fin")
for r in range(2):
    for kh in range(2):
        for h in range(2):
            if r + 2 * kh == 3:
                a(f"ds_read_b128 {vr(PR+16*r+8*kh+4*h,4)}, {vr(vPW+h)}", lg=("p", r))
            else:
                a(f"ds_read_b128 {vr(PR+16*r+8*kh+4*h,4)}, {vr(vPR+h)} offset:{r*8192+kh*16384}", lg=("p", r))
for r in range(2):
    a.wait(lg=("p", r))
    b = PR + 16 * r
    for i in range(8):
        a(f"v_add_f32 {vr(b+i)}, {vr(b+i)}, {vr(b+8+i)}")
    for i in range(8):
        a(f"v_fma_f32 {vr(b+i)}, {vr(b+i)}, {vr(G+8*r+i)}, {vr(XU+8*r+i)}")
    for i in range(4):
        a(f"v_cvt_pk_bf16_f32 {vr(TE+4*r+i)}, {vr(b+2*i)}, {vr(b+2*i+1)}")
    a(f"buffer_store_dwordx4 {vr(TE+4*r,4)}, {vr(vOUT)}, {sr(R_OUT,4)}, {sr(sU if r else sOUT)} offen")
a.label("L_DONE")
role[0] = "HC"
if OPT["stamps"]:
    stamp("end")
    a("s_memtime s[8:9]")
    a(f"""s_waitcnt lgkmcnt(0)
          s_sub_u32 s0, s8, s0
          s_sub_u32 {sr(sU)}, {sr(sLINE)}, {WS_FL}
          s_lshl_b32 {sr(sU)}, {sr(sU)}, 3
          s_lshl_b32 {sr(sU2)}, {sr(sW)}, 7
          s_add_u32 {sr(sU)}, {sr(sU)}, {sr(sU2)}
          s_add_u32 {sr(sU)}, {sr(sU)}, {WS_TS}
          s_mov_b64 exec, 1""")
    for i in range(11):
        a(f"v_mov_b32 {vr(i)}, {sr(sSTAMP+2*i)}")
    a("v_mov_b32 v11, s0")
    for i in range(3):
        a(f"buffer_store_dwordx4 {vr(4*i,4)}, off, {sr(R_WS,4)}, {sr(sU)} offset:{16*i}")
if OPT.get("amp") is not None:
    i = OPT["amp"]
    a(f"""s_cmp_lg_u32 {sr(sW)}, {OPT.get('ampw', 0)}
          s_cbranch_scc1 L_end
          s_sub_u32 s4, {sr(sSTAMP+2*i)}, {sr(sSTAMP)}
          s_lshl_b32 s4, s4, 2
          s_min_u32 s4, s4, 100000""")
    a.label("L_amp")
    a(f"""s_memrealtime s[6:7]
          s_waitcnt lgkmcnt(0)
          s_sub_u32 s6, s6, {sr(sSTAMP+20)}
          s_cmp_lt_u32 s6, s4
          s_cbranch_scc1 L_amp""")
a("s_endpgm")

a.label("L_SLOW")
a.reset_counts()
C = 16
M = T[2]
a(f"""s_nop 7
      s_lshr_b32 {sr(sU)}, {sr(sKV)}, 17
      s_lshl_b32 {sr(sU)}, {sr(sU)}, 17
      s_mov_b32 {sr(sU2)}, 64
      v_mov_b32 {vr(M)}, 0xff800000""")
a.label("L_S1")
a(f"""buffer_load_dwordx4 {vr(KB[0],4)}, {vr(vL16)}, {sr(R_WS,4)}, {sr(sU)} offen sc1
      s_waitcnt vmcnt(0)""")
mfma32(S[1], KB[0], Q[0], "0")
for i in range(8):
    a(f"v_max3_f32 {vr(M)}, {vr(M)}, {vr(S[1]+2*i)}, {vr(S[1]+2*i+1)}")
a(f"""s_add_u32 {sr(sU)}, {sr(sU)}, 2048
      s_sub_u32 {sr(sU2)}, {sr(sU2)}, 1
      s_cmp_lg_u32 {sr(sU2)}, 0
      s_cbranch_scc1 L_S1
      v_mov_b32 {vr(T[3])}, {vr(M)}
      s_nop 1
      v_permlane32_swap_b32 {vr(M)}, {vr(T[3])}
      v_max_f32 {vr(M)}, {vr(M)}, {vr(T[3])}
      s_sub_u32 {sr(sU)}, {sr(sU)}, 0x20000
      s_mov_b32 {sr(sU2)}, 64""")
for i in range(16):
    a(f"v_sub_f32 {vr(C+i)}, 0, {vr(M)}")
    a(f"v_mov_b32 {vr(O[0]+i)}, 0")
a.label("L_S2")
a(f"""buffer_load_dwordx4 {vr(KB[0],4)}, {vr(vL16)}, {sr(R_WS,4)}, {sr(sU)} offen sc1
      s_mov_b64 exec, {sr(sVM,2)}
      buffer_load_dwordx4 {vr(VB[0],4)}, {vr(vVO)}, {sr(R_WS,4)}, {sr(sU)} offen offset:1024 sc1
      buffer_load_dwordx4 {vr(VB[0]+4,4)}, {vr(vVO)}, {sr(R_WS,4)}, {sr(sU)} offen offset:1536 sc1
      s_mov_b64 exec, -1
      s_waitcnt vmcnt(0)""")
mfma32(S[1], KB[0], Q[0], C)
exps(S[1], 0, 16)
smf(O[0], VB[0], S[1], vIDX)
smf(O[0], VB[0] + 4, S[1] + 8, vIDX)
a(f"""s_add_u32 {sr(sU)}, {sr(sU)}, 2048
      s_sub_u32 {sr(sU2)}, {sr(sU2)}, 1
      s_cmp_lg_u32 {sr(sU2)}, 0
      s_cbranch_scc1 L_S2
      s_nop 15
      s_branch L_NORM""")
a.label("L_end")
a("s_endpgm")

ref = open(__file__.rsplit("/", 1)[0] + "/../cdna_kernels/" + NAME + ".s.ref").read().split("\n")
head = [l for l in ref if l.startswith(";") and "@launch" not in l]
if OPT["stamps"]:
    st = STSETS[OPT.get("st", 0)]
    head.append("; stamps H " + " ".join(st["H"]))
    head.append("; stamps C " + " ".join(st["C"]))
out = "\n".join(head) + f"""
; @launch grid=(256,1,1) block=(512,1,1) lds=163840
.amdgcn_target "amdgcn-amd-amdhsa--gfx950"
.text
.globl {NAME}_kernel
.p2align 8
.type {NAME}_kernel,@function
""" + a.text() + f""".section .rodata,"a"
.p2align 6
.amdhsa_kernel {NAME}_kernel
  .amdhsa_next_free_vgpr 256
  .amdhsa_next_free_sgpr 102
  .amdhsa_accum_offset 256
  .amdhsa_group_segment_fixed_size 0
  .amdhsa_kernarg_size 88
  .amdhsa_user_sgpr_count 2
  .amdhsa_user_sgpr_kernarg_segment_ptr 1
  .amdhsa_system_sgpr_workgroup_id_x 1
  .amdhsa_float_denorm_mode_32 3
.end_amdhsa_kernel
"""
open(sys.argv[1], "w").write(out)
if OPT.get("pads"):
    for p in a.pads:
        print("pad", p)
```

```python
import re

TRANS = ("v_exp_f32", "v_log_f32", "v_rcp_f32", "v_rsq_f32", "v_sqrt_f32", "v_sin_f32", "v_cos_f32")
_REG = re.compile(r"(?<![\w.])(-|\|)?([vsa])(?:\[(\d+):(\d+)\]|(\d+))(?![\w])")


def regs_of(tok):
    out = set()
    for m in _REG.finditer(tok):
        k = m.group(2)
        if m.group(3) is not None:
            out |= {(k, i) for i in range(int(m.group(3)), int(m.group(4)) + 1)}
        else:
            out.add((k, int(m.group(5))))
    if re.search(r"\bvcc\b", tok):
        out.add(("s", "vcc"))
    if re.search(r"\bm0\b", tok):
        out.add(("s", "m0"))
    return out


def passes(op):
    if "4x4x4" in op:
        return 2
    if "16x16" in op:
        return 4
    return 8


class Ins:
    def __init__(self, text):
        self.text = text
        t = text.split(";")[0].strip()
        self.is_ins = bool(t) and not t.endswith(":") and not t.startswith(".")
        self.op = ""
        self.kind = "other"
        self.dst = set()
        self.src = set()
        self.ab = set()
        self.c = set()
        self.data = set()
        self.states = 1
        if not self.is_ins:
            return
        parts = t.split(None, 1)
        op = self.op = parts[0]
        ops = [x.strip() for x in parts[1].split(",")] if len(parts) > 1 else []
        base = re.sub(r"_(e32|e64)$", "", op)
        self.base = base
        if op == "s_nop":
            self.states = int(ops[0], 0) + 1
        elif op.startswith("v_mfma"):
            self.kind = "mfma"
            self.dst = regs_of(ops[0])
            self.ab = regs_of(ops[1]) | regs_of(ops[2])
            self.c = regs_of(ops[3])
            self.src = self.ab | self.c
        elif op.startswith("v_smfmac"):
            self.kind = "mfma"
            self.dst = regs_of(ops[0])
            self.ab = regs_of(ops[1]) | regs_of(ops[2]) | regs_of(ops[3])
            self.c = set(self.dst)
            self.src = self.ab | self.c
        elif op.startswith("v_"):
            self.kind = "valu"
            self.dst = regs_of(ops[0])
            rest = ops[1:]
            if base in ("v_add_co_u32", "v_addc_co_u32"):
                self.dst |= regs_of(ops[1])
                rest = ops[2:]
            for o in rest:
                self.src |= regs_of(o)
            if base.startswith("v_permlane"):
                self.dst |= regs_of(ops[1])
                self.src |= regs_of(ops[0])
            if base.startswith("v_fmac") or base.startswith("v_dot2c"):
                self.src |= regs_of(ops[0])
        elif op.startswith("buffer_") or op.startswith("global_"):
            self.kind = "vmem"
            allr = set()
            for o in ops:
                allr |= regs_of(o)
            if re.search(r"\blds\b", t):
                self.src = allr | {("s", "m0")}
                self.dma = True
            elif "load" in op:
                self.dst = regs_of(ops[0])
                for o in ops[1:]:
                    self.src |= regs_of(o)
            else:
                self.src = allr
                if "atomic" in op and "sc0" in t:
                    self.dst = regs_of(ops[0])
                if "x3" in op or "x4" in op:
                    self.data = regs_of(ops[0] if op.startswith("buffer_") else ops[1])
        elif op.startswith("ds_"):
            self.kind = "ds"
            if "read" in op or "rtn" in op or "permute" in op or "swizzle" in op:
                self.dst = regs_of(ops[0])
                for o in ops[1:]:
                    self.src |= regs_of(o)
            else:
                for o in ops:
                    self.src |= regs_of(o)
        elif op.startswith("s_"):
            self.kind = "salu"
            if ops and not op.startswith(("s_cmp", "s_cbranch", "s_branch", "s_waitcnt", "s_barrier", "s_setprio", "s_bitcmp")):
                self.dst = regs_of(ops[0])
                for o in ops[1:]:
                    self.src |= regs_of(o)
                if op.startswith(("s_addk", "s_mulk", "s_bitset")):
                    self.src |= self.dst


def need(p, c):
    n = 0
    vd = {r for r in p.dst if r[0] in "va"}
    sd = {r for r in p.dst if r[0] == "s"}
    if p.kind == "valu":
        if c.kind == "mfma" and vd & c.src:
            n = max(n, 2)
        if c.kind == "valu":
            if p.base in TRANS and c.base not in TRANS and vd & c.src:
                n = max(n, 1)
            if c.base in ("v_readfirstlane_b32", "v_readlane_b32") and vd & c.src:
                n = max(n, 1)
            if (c.base.startswith("v_permlane") or "dpp" in c.text or "row_" in c.text or "quad_perm" in c.text) and vd & c.src:
                n = max(n, 2)
            if sd & c.src:
                n = max(n, 2)
            if ("sdwa" in p.text or "op_sel" in p.text) and vd & (c.src | c.dst):
                n = max(n, 1)
        if c.kind == "vmem" and sd & c.src:
            n = max(n, 5)
        if c.kind == "salu" and sd & c.src:
            n = max(n, 1)
    if p.kind == "mfma":
        k = {2: 0, 4: 1, 8: 2}[passes(p.op)]
        if c.kind == "mfma":
            if vd & c.ab:
                n = max(n, (5, 8, 12)[k])
            if vd & c.c:
                if c.c == vd and passes(c.op) == passes(p.op):
                    n = max(n, (2, 0, 0)[k])
                else:
                    n = max(n, (4, 6, 10)[k])
            elif vd & c.dst:
                n = max(n, (4, 6, 10)[k]) if passes(c.op) < passes(p.op) else n
        elif c.kind in ("valu", "vmem", "ds"):
            if vd & (c.src | c.dst):
                n = max(n, (5, 8, 12)[k])
            if c.kind == "valu" and p.c & c.dst:
                n = max(n, (1, 3, 7)[k])
    if p.kind == "vmem" and p.data:
        if c.kind in ("valu", "mfma") and p.data & c.dst:
            n = max(n, 2)
        elif p.data & c.dst:
            n = max(n, 1)
    if p.kind == "salu" and ("s", "m0") in p.dst and ("s", "m0") in c.src and c.kind == "vmem":
        n = max(n, 1)
    return n


class Asm:
    def __init__(self):
        self.items = []
        self.vm = []
        self.lg = []
        self.pads = []

    def raw(self, text):
        self.items.append(Ins(text))

    def __call__(self, text, vm=None, lg=None):
        for line in text.strip().split("\n"):
            line = line.strip()
            if not line:
                continue
            ins = Ins(line)
            if ins.is_ins:
                self._pad(ins)
                if ins.kind == "vmem":
                    self.vm.append(vm)
                    assert len(self.vm) <= 63, ("vm overflow", line)
                if ins.kind == "ds":
                    self.lg.append(lg)
                    assert len(self.lg) <= 15, ("lgkm overflow", line)
            self.items.append(ins)

    def _pad(self, ins):
        dist = 0
        worst = 0
        for p in reversed(self.items):
            if not p.is_ins:
                continue
            if dist >= 20:
                break
            n = need(p, ins)
            if n - dist > worst:
                worst = n - dist
            dist += p.states
        if worst > 0:
            self.pads.append((len(self.items), worst, ins.text))
            while worst > 0:
                k = min(worst, 16)
                self.items.append(Ins(f"s_nop {k-1}"))
                worst -= k

    def label(self, name):
        self.items.append(Ins(name + ":"))

    def comment(self, text):
        self.items.append(Ins("; " + text))

    def _count(self, q, tags):
        idx = -1
        for i, t in enumerate(q):
            if t in tags:
                idx = i
        return None if idx < 0 else len(q) - 1 - idx

    def wait(self, vm=None, lg=None):
        parts = []
        if vm is not None:
            n = 0 if vm == "all" else self._count(self.vm, vm if isinstance(vm, (list, tuple, set)) and not isinstance(vm, tuple) else [vm])
            if n is not None:
                assert n <= 63, n
                parts.append(f"vmcnt({n})")
                self.vm = self.vm[len(self.vm) - n:] if n else []
        if lg is not None:
            n = 0 if lg == "all" else self._count(self.lg, lg if isinstance(lg, list) else [lg])
            if n is not None:
                n = min(n, 15)
                parts.append(f"lgkmcnt({n})")
                self.lg = self.lg[len(self.lg) - n:] if n else []
        if parts:
            self("s_waitcnt " + " ".join(parts))

    def reset_counts(self):
        self.vm = []
        self.lg = []

    def text(self):
        out = []
        for i in self.items:
            out.append(("    " + i.text) if i.is_ins or i.text.startswith(";") else i.text)
        return "\n".join(out) + "\n"


def vr(a, n=1):
    return f"v{a}" if n == 1 else f"v[{a}:{a+n-1}]"


def sr(a, n=1):
    return f"s{a}" if n == 1 else f"s[{a}:{a+n-1}]"
```

```python
import sys, math, struct
from asmlib import Asm, vr, sr

NAME = "recurrent_scan__softmax_full_mha__dense_activation_squared_relu__prompt"
OPT = dict(stamps=0, rot=4, force_slow=0, prio=1, spin=1 << 18, up=3, touch=0, pf=68, tit=13, f2it=8, j8=4, j9=7, cprio=1, cp2=1)
for arg in sys.argv[2:]:
    k, v = arg.split("=")
    OPT[k] = int(v, 0)

WS_KV = 0
WS_H = 4 << 20
WS_O = WS_H + 64 * 86 * 1024
WS_FL = WS_O + (2 << 20)
WS_TS = 13 << 20
WS_SIZE = 14 << 20
SLOT = 24576
L_WQ = 49152
L_QX = 147456
L_STATS = 155648
L_CSP = 157696
L_FLG = 160768
L_W1 = [81920 + 12288 * i for i in range(5)] + [12288 * i for i in range(3)]
L_CMB = 98304
L_WO = 98304
L_PART = 0
L_PB = 65536
NI = 10
P_X, P_WQKV, P_WO, P_W1, P_B1, P_W2, P_B2, P_OUT, P_DBG, P_WS = 4, 6, 8, 12, 14, 16, 18, 20, 22, 24
R_X, R_WQKV, R_WO, R_W1, R_W2, R_OUT, R_WS, R_B1, R_B2, R_DBG = 28, 32, 36, 40, 44, 48, 52, 56, 60, 64
sW, sWQ, sRB, sCB, sROT = 68, 69, 70, 71, 72
sT = [73, 74, 75, 76, 77, 78, 79]
sVM = 26
sLINE = 3
sT0 = 10
sSTAMP = 80
vL, vHH, vL31, vTR = 252, 253, 254, 255


def f32(x):
    return "0x%08x" % struct.unpack("<I", struct.pack("<f", x))[0]


a = Asm()


STSETS = {
    0: dict(H=["start", "bar8", "x", "f1seen", "bar11", "x", "attst", "attend", "g1", "f3seen", "end"],
            C=["start", "c0", "c7", "kvst", "f1sent", "ffnend", "attst", "attend", "g1", "x", "end"]),
    1: dict(H=["start", "bar8", "h8b", "h9", "h10", "h11", "bar11", "x", "f1seen", "attst", "end"],
            C=["start", "c0", "c7", "kvst", "c8b", "c9", "f1sent", "c10", "c11", "attst", "end"]),
    2: dict(H=["start", "attend", "barc", "ost", "a6", "g1", "x", "f3seen", "g3", "wost", "end"],
            C=["start", "attend", "barc", "ost", "a6", "g1", "pw", "gate", "g3", "fin", "end"]),
    3: dict(H=["start", "hk", "hi2", "hw3", "ha3", "hi3", "hw4", "ha4", "hi4", "hup", "end"],
            C=["start", "c0", "ca3", "cp3", "ca4", "cp4", "ca5", "cp5", "cp2", "c7", "end"]),
    4: dict(H=["start", "h9", "h9a", "h9b", "h9c", "h10", "h10a", "h10b", "h10c", "h11", "end"],
            C=["start", "i27", "i33", "i39", "i45", "i49", "i57", "i65", "i73", "i90", "end"]),
    5: dict(H=["start", "attst", "t20", "t32", "t33", "t40", "t50", "t56", "t60", "attend", "end"],
            C=["start", "attst", "t20", "t32", "t33", "t40", "t50", "t56", "t60", "attend", "end"]),
    6: dict(H=["start"] + ["x"] * 9 + ["end"], C=["start"] + ["x"] * 9 + ["end"]),
    7: dict(H=["start", "h9", "h10", "h11", "f1seen", "x", "x", "x", "x", "attst", "end"],
            C=["start", "c8b", "i23", "i32", "i48", "i63", "i90", "ffnend", "kvl", "attst", "end"]),
    8: dict(H=["start", "attst", "t1", "t2", "t4", "t6", "t8", "t10", "t16", "t24", "end"],
            C=["start", "attst", "t1", "t2", "t4", "t6", "t8", "t10", "t16", "t24", "end"]),
    9: dict(H=["start"] + [f"ha{i}" for i in range(8)] + ["hk", "end"], C=["start"] + [f"cp{i}" for i in range(8)] + ["kvst", "end"]),
    10: dict(H=["start"] + [f"hw{i}" for i in range(8)] + ["hk", "end"], C=["start"] + [f"ca{i}" for i in range(8)] + ["kvst", "end"]),
    11: dict(H=["start", "p1", "p2", "p3", "p4", "hk", "hd0", "hup", "x", "x", "end"], C=["start", "p1", "q1", "q2", "q3", "q4", "ca0", "x", "x", "x", "end"]),
}
role = ["HC"]


def stamp(name):
    if not OPT["stamps"]:
        return
    st = STSETS[OPT.get("st", 0)]
    idx = {st[r].index(name) for r in role[0] if name in st[r]}
    for i in idx:
        a(f"{'s_memtime' if OPT['stamps'] == 2 else 's_memrealtime'} {sr(sSTAMP + 2*i, 2)}")


def cop(c, n):
    return c if isinstance(c, str) else vr(c, n)


def mfma32(d, x, y, c):
    a(f"v_mfma_f32_32x32x16_bf16 {vr(d,16)}, {vr(x,4)}, {vr(y,4)}, {cop(c,16)}")


def mfma16(d, x, y, c):
    a(f"v_mfma_f32_16x16x32_bf16 {vr(d,4)}, {vr(x,4)}, {vr(y,4)}, {cop(c,4)}")


def mfma4(d, x, c):
    a(f"v_mfma_f32_4x4x4_16b_bf16 {vr(d,4)}, {vr(x,2)}, {vr(x,2)}, {cop(c,4)}")


def smf(d, x, y, idx):
    a(f"v_smfmac_f32_32x32x32_bf16 {vr(d,16)}, {vr(x,4)}, {vr(y,8)}, {vr(idx)}")


def srd(r, p, n):
    a(f"""s_mov_b32 {sr(r)}, {sr(p)}
          s_mov_b32 {sr(r+1)}, {sr(p+1)}
          s_mov_b32 {sr(r+2)}, {n}
          s_mov_b32 {sr(r+3)}, 0x20000""")


filler, fill = [], [0]


def dma(voff, r, soff, lds, tag, pre=None):
    a(f"s_add_u32 m0, {sr(lds[0])}, {lds[1]}")
    if pre:
        a(pre)
    a(f"buffer_load_dwordx4 {vr(voff)}, {sr(r,4)}, {sr(soff)} offen lds", vm=tag)
    for _ in range(fill[0]):
        if filler:
            a(filler.pop(0))


class Ptr:
    def __init__(self, reg, base=0):
        self.reg, self.base = reg, base

    def off(self, addr):
        if not 0 <= addr - self.base <= 65535:
            a(f"v_add_u32 {vr(self.reg)}, {(addr - self.base) & 0xffffffff}, {vr(self.reg)}")
            self.base = addr
        return addr - self.base


def tr(dst, p, addr, tag):
    o = p.off(addr)
    a(f"ds_read_b64_tr_b16 {vr(dst,2)}, {vr(p.reg)} offset:{o}", lg=tag)


def rd128(dst, p, addr, tag):
    o = p.off(addr)
    a(f"ds_read_b128 {vr(dst,4)}, {vr(p.reg)} offset:{o}", lg=tag)


def split3_ops(x, bias, d0, d1, t0, t1, mask):
    l = [f"v_cvt_pk_bf16_f32 {vr(t0)}, {vr(x)}, {vr(x)}",
         f"v_lshlrev_b32 {vr(t0)}, 16, {vr(t0)}",
         f"v_sub_f32 {vr(t0)}, {vr(x)}, {vr(t0)}",
         f"v_cvt_pk_bf16_f32 {vr(d0)}, {vr(x)}, {vr(t0)}",
         f"v_and_b32 {vr(t1)}, 0xffff0000, {vr(d0)}",
         f"v_sub_f32 {vr(t1)}, {vr(t0)}, {vr(t1)}",
         f"v_cvt_pk_bf16_f32 {vr(d1)}, {vr(t1)}, {bias}"]
    if mask is not None:
        l += [f"v_and_b32 {vr(d0)}, {vr(d0)}, {vr(mask)}", f"v_and_b32 {vr(d1)}, {vr(d1)}, {vr(mask)}"]
    return l


def emit(l):
    for x in l:
        a(x)


uid = [0]


def poll(load, nreg, reg, first_done=False, expect=None):
    uid[0] += 1
    L, D, C = f"L_poll{uid[0]}", f"L_polld{uid[0]}", f"L_pollc{uid[0]}"
    a(f"s_mov_b32 {sr(sT[6])}, {OPT['spin']}")
    if first_done:
        a(f"s_branch {C}")
    a.label(L)
    for l in load.split("\n"):
        a.raw(l)
    a("s_waitcnt vmcnt(0)")
    a.label(C)
    if nreg == 4:
        a(f"""v_min_u32 {vr(reg)}, {vr(reg)}, {vr(reg+1)}
              v_min3_u32 {vr(reg)}, {vr(reg)}, {vr(reg+2)}, {vr(reg+3)}""")
    a(f"""{f"v_cmp_eq_u32 vcc, 0, {vr(reg)}" if expect is None else f"v_cmp_gt_u32 vcc, {expect}, {vr(reg)}"}
          s_nop 1
          s_cmp_eq_u64 vcc, 0
          s_cbranch_scc1 {D}
          s_sub_u32 {sr(sT[6])}, {sr(sT[6])}, 1
          s_cmp_lg_u32 {sr(sT[6])}, 0
          s_cbranch_scc1 {L}""")
    a.label(D)


def set_flag(soff, tmp, imm=0):
    sv = list(a.vm)
    a(f"""s_mov_b64 exec, 1
          v_mov_b32 {vr(tmp)}, 1
          buffer_store_dword {vr(tmp)}, off, {sr(R_WS,4)}, {sr(soff)} offset:{imm} sc1
          s_mov_b64 exec, -1""")
    a.vm = sv


def tr_addr(dst, hmul, rowbytes, tmp):
    a(f"""v_bfe_u32 {vr(tmp)}, {vr(vL)}, 2, 2
          v_mad_u32_u24 {vr(tmp)}, {vr(vHH)}, {hmul}, {vr(tmp)}
          v_mul_u32_u24 {vr(tmp)}, {rowbytes}, {vr(tmp)}
          v_add_u32 {vr(dst)}, {vr(tmp)}, {vr(vTR)}""")


def tr_addr128(d0, d1, hmul, tmp):
    tr_addr(d0, hmul, 128, tmp)
    a(f"""v_bfe_u32 {vr(tmp)}, {vr(vL)}, 3, 1
          v_lshl_add_u32 {vr(d0)}, {vr(tmp)}, 6, {vr(d0)}
          v_xor_b32 {vr(d1)}, 64, {vr(d0)}""")


def wdma_voff(dst, stride, tmp):
    a(f"""v_bfe_u32 {vr(tmp)}, {vr(vL)}, 4, 1
          v_lshlrev_b32 {vr(tmp)}, 2, {vr(tmp)}
          v_and_b32 {vr(dst)}, 7, {vr(vL)}
          v_xor_b32 {vr(dst)}, {vr(dst)}, {vr(tmp)}
          v_lshlrev_b32 {vr(dst)}, 4, {vr(dst)}
          v_lshrrev_b32 {vr(tmp)}, 3, {vr(vL)}
          v_mul_u32_u24 {vr(tmp)}, {stride}, {vr(tmp)}
          v_add_u32 {vr(dst)}, {vr(dst)}, {vr(tmp)}""")


def make_sel(d, tmp):
    a(f"""v_lshrrev_b32 {vr(tmp)}, 2, {vr(vL)}
          v_xor_b32 {vr(tmp)}, {vr(tmp)}, {vr(vL)}
          v_bfe_u32 {vr(tmp)}, {vr(tmp)}, 2, 1
          v_add_u32 {vr(tmp)}, -1, {vr(tmp)}
          v_and_b32 {vr(d)}, 0x3f803f80, {vr(tmp)}
          v_mov_b32 {vr(d+1)}, {vr(d)}
          v_mov_b32 {vr(d+2)}, {vr(d)}
          v_mov_b32 {vr(d+3)}, {vr(d)}""")


def other_srds():
    srd(R_WO, P_WO, 512 * 512 * 2)
    srd(R_W1, P_W1, 512 * 1376 * 2)
    srd(R_W2, P_W2, 1376 * 512 * 2)
    srd(R_OUT, P_OUT, 2048 * 512 * 2)
    srd(R_WS, P_WS, WS_SIZE)
    srd(R_B1, P_B1, 1376 * 2)
    srd(R_B2, P_B2, 512 * 2)
    srd(R_DBG, P_DBG, 256)
    a(f"""s_mul_i32 {sr(sT0)}, {sr(sCB)}, 3
          s_min_u32 {sr(sT0)}, {sr(sT0)}, 40
          s_lshl_b32 {sr(sLINE)}, {sr(sRB)}, 4
          s_add_u32 {sr(sLINE)}, {sr(sLINE)}, {sr(sCB)}
          s_lshl_b32 {sr(sLINE)}, {sr(sLINE)}, 7
          s_add_u32 {sr(sLINE)}, {sr(sLINE)}, {WS_FL}
          s_mov_b32 {sr(sVM)}, 0xffff
          s_mov_b32 {sr(sVM+1)}, 0xffff""")


class Rec:
    def __init__(self):
        self.l = []

    def __call__(self, text, vm=None, lg=None):
        assert vm is None and lg is None
        self.l += [x.strip() for x in text.strip().split("\n") if x.strip()]

    def comment(self, t):
        pass


def record(fn):
    global a
    keep, a = a, Rec()
    fn()
    l, a = a.l, keep
    return l


O = [0, 16, 32, 48]
S = [64, 80]
Q = [96, 100, 104, 108]
KB = [112, 116, 120]
VB = [124, 132, 140]
HF = 148
vIDX, vL16, vVO, vWD, vFL, vDUM = 236, 237, 238, 239, 240, 251
vFP = 244
sKV, sIT, sH0, sW2, sLA, sKS, sO, sOUT, sF1, sHS = 4, 5, 6, 7, 12, 13, 14, 15, 16, 17
sU, sU2 = sT[0], sT[1]


def att_addr_v(tmp):
    a(f"""v_lshlrev_b32 {vr(vL16)}, 4, {vr(vL)}
          v_and_b32 {vr(vVO)}, 15, {vr(vL)}
          v_lshlrev_b32 {vr(vVO)}, 4, {vr(vVO)}
          v_lshl_add_u32 {vr(vVO)}, {vr(vHH)}, 8, {vr(vVO)}
          v_mov_b32 {vr(vIDX)}, 0xdddddddd""")
    wdma_voff(vWD, 1024, tmp)


def att_addr_s(u, u2):
    a(f"""s_lshr_b32 {sr(u)}, {sr(sW)}, 2
          s_lshl_b32 {sr(u2)}, {sr(sCB)}, 1
          s_add_u32 {sr(u2)}, {sr(u2)}, {sr(u)}
          s_lshl_b32 {sr(sKV)}, {sr(u2)}, 17
          s_lshl_b32 {sr(sO)}, {sr(u2)}, 10
          s_lshl_b32 {sr(u2)}, {sr(sWQ)}, 11
          s_add_u32 {sr(sKV)}, {sr(sKV)}, {sr(u2)}
          s_mov_b32 {sr(sIT)}, {sr(sKV)}
          s_lshl_b32 {sr(u2)}, {sr(sRB)}, 2
          s_add_u32 {sr(u2)}, {sr(u2)}, {sr(sWQ)}
          s_lshl_b32 {sr(u2)}, {sr(u2)}, 15
          s_add_u32 {sr(sO)}, {sr(sO)}, {sr(u2)}
          s_add_u32 {sr(sO)}, {sr(sO)}, {WS_O}""")
    a(f"""s_lshr_b32 {sr(u)}, {sr(sW)}, 1
          s_mul_i32 {sr(sKS)}, {sr(u)}, 22
          s_lshl_b32 {sr(sLA)}, {sr(sW)}, 10
          s_and_b32 {sr(u)}, {sr(sW)}, 1
          s_lshl_b32 {sr(sW2)}, {sr(sKS)}, 1
          s_add_u32 {sr(sW2)}, {sr(sW2)}, {sr(u)}
          s_lshl_b32 {sr(sW2)}, {sr(sW2)}, 13
          s_lshr_b32 {sr(u2)}, {sr(sCB)}, 1
          s_lshl_b32 {sr(u2)}, {sr(u2)}, 7
          s_add_u32 {sr(sW2)}, {sr(sW2)}, {sr(u2)}
          s_add_u32 {sr(sW2)}, {sr(sW2)}, {(NI-1)*16384}
          s_and_b32 {sr(sH0)}, {sr(sCB)}, 1
          s_lshl_b32 {sr(sOUT)}, {sr(sRB)}, 1
          s_add_u32 {sr(sOUT)}, {sr(sOUT)}, {sr(sH0)}
          s_lshl_b32 {sr(sH0)}, {sr(sOUT)}, 1
          s_add_u32 {sr(sH0)}, {sr(sH0)}, {sr(u)}
          s_mul_i32 {sr(sH0)}, {sr(sH0)}, {86*1024}
          s_add_u32 {sr(sH0)}, {sr(sH0)}, {WS_H}
          s_lshl_b32 {sr(sOUT)}, {sr(sOUT)}, 3
          s_add_u32 {sr(sOUT)}, {sr(sOUT)}, {sr(sWQ)}
          s_lshl_b32 {sr(sOUT)}, {sr(sOUT)}, 13
          s_add_u32 {sr(sOUT)}, {sr(sOUT)}, {sr(u2)}
          s_and_b32 {sr(sF1)}, {sr(sCB)}, 14
          s_lshl_b32 {sr(sF1)}, {sr(sF1)}, 7
          s_add_u32 {sr(sF1)}, {sr(sF1)}, {WS_FL}""")


def q_reads():
    a(f"""s_lshl_b32 {sr(sU)}, {sr(sW)}, 10
          s_add_u32 {sr(sU)}, {sr(sU)}, {L_QX}
          v_lshl_add_u32 {vr(vFP)}, {vr(vL)}, 4, {sr(sU)}""")
    for j in range(4):
        if j:
            a(f"v_xor_b32 {vr(vFP+j)}, {j*1024}, {vr(vFP)}")
        a(f"ds_read_b128 {vr(Q[j],4)}, {vr(vFP+j)}", lg="q")


def att_init():
    a.comment("rows 16 and 20 of the V operand are ones (row sums), the other spare rows are zero")
    a(f"""v_and_b32 {vr(VB[0])}, 27, {vr(vL)}
          v_cmp_eq_u32 vcc, 16, {vr(VB[0])}
          v_mov_b32 {vr(VB[0]+1)}, 0x3f803f80
          v_cndmask_b32 {vr(VB[0])}, 0, {vr(VB[0]+1)}, vcc
          v_cndmask_b32 {vr(VB[0]+1)}, 0, {vr(VB[0]+1)}, vcc""")
    for i in range(2, 24, 2):
        a(f"v_mov_b64 {vr(VB[0]+i,2)}, {vr(VB[0],2)}")


def o_zero():
    for j in range(4):
        for i in range(0, 16, 2):
            a(f"v_mov_b64 {vr(O[j]+i,2)}, 0")


XB = OPT.get("xb", 4)


def kbuf(i):
    if 3 <= i < 3 + XB:
        return HF + 32 + 4 * (i - 3)
    return KB[(i if i < 3 else i - XB) % 3]


def vbuf(i):
    if 3 <= i < 3 + XB:
        return HF + 8 * (i - 3)
    return VB[(i if i < 3 else i - XB) % 3]


def xb_init():
    for i in range(0, 8 * XB, 2):
        a(f"v_mov_b64 {vr(HF+i,2)}, {vr(vFP,2)}")


def kv_next():
    a(f"s_add_u32 {sr(sIT)}, {sr(sIT)}, 8192")


def kvload(i, step=True):
    if i >= 16:
        return
    a(f"buffer_load_dwordx4 {vr(kbuf(i),4)}, {vr(vL16)}, {sr(R_WS,4)}, {sr(sIT)} offen sc1", vm=("k", i))
    a(f"s_mov_b64 exec, {sr(sVM,2)}")
    a(f"buffer_load_dwordx4 {vr(vbuf(i),4)}, {vr(vVO)}, {sr(R_WS,4)}, {sr(sIT)} offen offset:1024 sc1", vm=("v", i))
    a(f"buffer_load_dwordx4 {vr(vbuf(i)+4,4)}, {vr(vVO)}, {sr(R_WS,4)}, {sr(sIT)} offen offset:1536 sc1", vm=("v", i))
    a("s_mov_b64 exec, -1")
    if step:
        kv_next()


def f1_addr(d, tmp):
    a(f"""v_lshrrev_b32 {vr(d)}, 1, {vr(vL31)}
          v_and_b32 {vr(tmp)}, 1, {vr(vL)}
          v_lshlrev_b32 {vr(tmp)}, 7, {vr(tmp)}
          v_lshl_add_u32 {vr(d)}, {vr(d)}, 11, {vr(tmp)}""")


def f1_load(d, ad):
    return f"buffer_load_dwordx4 {vr(d,4)}, {vr(ad)}, {sr(R_WS,4)}, {sr(sF1)} offen sc1"


hVX, hVW, hVQ, hV1 = 172, 151, 153, 154
hGO, hF1 = 158, 159
hT = [162, 163, 164, 165]
hP = 168
sXB, sWB, sLX, sLW, sA, sB_ = sT[0], sT[1], sT[2], sT[3], sT[4], sT[5]
ROTS = {4: f"s_and_b32 {sr(sROT)}, s2, 7",
        5: f"s_and_b32 {sr(sROT)}, s2, 6",
        6: f"s_andn2_b32 {sr(sROT)}, 7, s2",
        7: f"s_lshl2_add_u32 {sr(sROT)}, {sr(sA)}, s2\ns_and_b32 {sr(sROT)}, {sr(sROT)}, 6"}
a.label(NAME + "_kernel")
a(f"""s_load_dwordx2 {sr(R_X,2)}, s[0:1], 0
      s_load_dwordx2 {sr(R_WQKV,2)}, s[0:1], 8
      s_cmpk_ge_u32 s2, 256
      s_cbranch_scc1 L_end
      v_readfirstlane_b32 {sr(sW)}, v0""")
stamp("start")
a(f"""s_lshr_b32 {sr(sRB)}, s2, 1
      s_and_b32 {sr(sRB)}, {sr(sRB)}, 15
      {f"s_andn2_b32 {sr(sA)}, 1, s2" if OPT.get("qf", 1) else f"s_and_b32 {sr(sA)}, s2, 1"}
      s_lshr_b32 {sr(sCB)}, s2, 5
      s_lshl1_add_u32 {sr(sCB)}, {sr(sCB)}, {sr(sA)}
      {ROTS[OPT["rot"]]}
      s_lshr_b32 {sr(sW)}, {sr(sW)}, 6
      s_mov_b32 {sr(R_X+3)}, 0x20000
      s_lshl_b32 {sr(R_X+2)}, 1, 21
      s_cmp_ge_u32 {sr(sW)}, 4
      s_cbranch_scc1 L_C""")


def common_setup():
    a(f"""s_load_dwordx16 s[4:19], s[0:1], 0
          s_load_dwordx4 s[20:23], s[0:1], 64
          s_load_dwordx2 s[24:25], s[0:1], 80
          v_and_b32 {vr(vL)}, 63, v0
          v_bfe_u32 {vr(vHH)}, v0, 5, 1
          v_and_b32 {vr(vL31)}, 31, v0
          v_bfe_u32 v1, v0, 4, 1
          v_and_b32 v2, 3, v0
          v_lshlrev_b32 v2, 3, v2
          v_lshl_add_u32 {vr(vTR)}, v1, 5, v2
          s_and_b32 {sr(sWQ)}, {sr(sW)}, 3
          s_lshr_b32 {sr(sT[6])}, {sr(sCB)}, 3
          s_and_b32 {sr(sCB)}, {sr(sCB)}, 7
          s_lshl1_add_u32 {sr(sCB)}, {sr(sCB)}, {sr(sT[6])}""")


role[0] = "H"
a(f"""s_movk_i32 {sr(sLX)}, 0x70
      v_lshlrev_b32 v4, 4, v0
      v_and_b32 v2, 56, v0
      v_xor_b32 v1, v4, v2
      v_and_b32 v1, {sr(sLX)}, v1
      v_lshl_add_u32 {vr(hVX)}, v2, 7, v1
      v_xor_b32 {vr(hVX+1)}, 64, {vr(hVX)}
      s_lshl2_add_u32 {sr(sA)}, {sr(sRB)}, {sr(sW)}
      s_lshl_b32 {sr(sA)}, {sr(sA)}, 8
      s_add_u32 {sr(sA)}, {sr(sA)}, {sr(sROT)}
      s_lshl_b32 {sr(sA)}, {sr(sA)}, 7
      s_lshl_b32 m0, {sr(sW)}, 12
      v_lshlrev_b32 v3, 2, v0
      v_and_b32 v3, 64, v3
      v_xor_b32 v3, v3, v4
      v_and_b32 v3, {sr(sLX)}, v3
      s_movk_i32 {sr(sLW)}, 384
      v_mad_u32_u24 {vr(hVW)}, v2, {sr(sLW)}, v3
      s_lshl2_add_u32 {sr(sB_)}, {sr(sROT)}, {sr(sW)}
      s_mulk_i32 {sr(sB_)}, 384
      s_add_u32 {sr(sB_)}, {sr(sB_)}, {sr(sCB)}
      s_lshl_b32 {sr(sB_)}, {sr(sB_)}, 7
      s_mov_b32 {sr(R_WQKV+3)}, {sr(R_X+3)}
      s_lshl1_add_u32 {sr(sLX)}, {sr(sW)}, 15
      s_waitcnt lgkmcnt(0)""")
for i in range(4):
    a(f"buffer_load_dwordx4 {vr(hVX+(i&1))}, {sr(R_X,4)}, {sr(sA)} offen offset:{i*1024} lds", vm=("c", 0))
    if i < 3:
        a(f"s_addk_i32 {sr(sA)}, 7168")
a(f"""s_lshl_b32 m0, {sr(sLX)}, 10
      s_lshl_b32 {sr(R_WQKV+2)}, 3, 19""")
a(f"buffer_load_dwordx4 {vr(hVW)}, {sr(R_WQKV,4)}, {sr(sB_)} offen offset:1024 lds", vm=("c", 0))
a(f"s_addk_i32 {sr(sB_)}, {8*3072-1024}")
a(f"buffer_load_dwordx4 {vr(hVW)}, {sr(R_WQKV,4)}, {sr(sB_)} offen offset:2048 lds", vm=("c", 0))
a.label("L_first")
stamp("hd0")
a(f"""s_lshl2_add_u32 {sr(sA)}, {sr(sRB)}, {sr(sW)}
      s_lshl_b32 {sr(sA)}, {sr(sA)}, 15
      v_add_u32 {vr(hVX)}, {sr(sA)}, {vr(hVX)}
      v_xor_b32 {vr(hVX+1)}, 64, {vr(hVX)}
      v_add_u32 {vr(hVX+2)}, {2*7168}, {vr(hVX)}
      v_add_u32 {vr(hVX+3)}, {3*7168}, {vr(hVX+1)}
      v_add_u32 {vr(hVX+1)}, 7168, {vr(hVX+1)}
      s_mul_i32 {sr(sB_)}, {sr(sW)}, 384
      s_add_u32 {sr(sB_)}, {sr(sB_)}, {sr(sCB)}
      s_add_u32 {sr(sB_)}, {sr(sB_)}, 8
      s_lshl_b32 {sr(sB_)}, {sr(sB_)}, 7
      v_add_u32 {vr(hVW)}, {sr(sB_)}, {vr(hVW)}
      v_add_u32 {vr(hVW+1)}, {8*3072-1024}, {vr(hVW)}
      s_lshl_b32 {sr(sLX)}, {sr(sW)}, 12
      s_lshl_b32 {sr(sLW)}, {sr(sW)}, 11
      s_add_u32 {sr(sXB)}, {sr(sROT)}, 1
      s_and_b32 {sr(sXB)}, {sr(sXB)}, 7
      s_lshl_b32 {sr(sXB)}, {sr(sXB)}, 7""")


def dmao(voff, r, soff, off, tag):
    a(f"buffer_load_dwordx4 {vr(voff)}, {sr(r,4)}, {sr(soff)} offen offset:{off} lds", vm=tag)
    for _ in range(fill[0]):
        if filler:
            a(filler.pop(0))


def next_chunk():
    a(f"""s_add_u32 {sr(sXB)}, {sr(sXB)}, 128
          s_and_b32 {sr(sXB)}, {sr(sXB)}, 0x3ff""")


def issue_chunk(c):
    base = (c % 6) * SLOT
    a(f"""s_add_u32 m0, {sr(sLX)}, {base}
          s_mul_i32 {sr(sA)}, {sr(sXB)}, 1536""")
    for i in range(4):
        dmao(hVX + i, R_X, sXB, i * 1024, ("c", c))
    a(f"s_add_u32 m0, {sr(sLW)}, {base + 16384}")
    next_chunk()
    for i in range(2):
        dmao(hVW + i, R_WQKV, sA, i * 1024, ("c", c))


sQB, s1B, sLQ, sL1 = 2, 11, 8, 9


def issue_wq(c):
    a(f"""s_add_u32 m0, {sr(sLQ)}, {L_WQ + c * 4096}
          s_mul_i32 {sr(sA)}, {sr(sXB)}, 1536""")
    dmao(hVQ, R_WQKV, sA, 0, "wq")
    next_chunk()


def issue_w1(c):
    a(f"""s_add_u32 m0, {sr(sL1)}, {L_W1[c]}
          s_mul_i32 {sr(sA)}, {sr(sXB)}, 1376""")
    for p in range(3):
        dmao(hV1 + p, R_W1, sA, p * 1024, ("w1", c))
    if c < 7:
        next_chunk()


def h_setup2():
    att_addr_s(18, 19)
    a(f"s_mov_b32 {sr(sHS)}, {WS_SIZE}")
    att_addr_v(hT[0])
    att_init()
    f1_addr(hF1, hT[0])


def h_setup():
    u = sT[6]
    other_srds()
    a(f"""s_mul_i32 {sr(sQB)}, {sr(sWQ)}, {16*3072}
          s_lshl_b32 {sr(u)}, {sr(sCB)}, 6
          s_add_u32 {sr(sQB)}, {sr(sQB)}, {sr(u)}
          s_mul_i32 {sr(s1B)}, {sr(sWQ)}, {16*2752}
          s_lshl_b32 {sr(u)}, {sr(sT0)}, 6
          s_add_u32 {sr(s1B)}, {sr(s1B)}, {sr(u)}
          s_lshl_b32 {sr(sLQ)}, {sr(sWQ)}, 10
          s_mul_i32 {sr(sL1)}, {sr(sWQ)}, 3072
          v_lshrrev_b32 {vr(hT[0])}, 2, {vr(vL)}
          v_mul_u32_u24 {vr(hT[0])}, 3072, {vr(hT[0])}
          v_and_b32 {vr(hVQ)}, 3, {vr(vL)}
          v_lshl_add_u32 {vr(hVQ)}, {vr(hVQ)}, 4, {vr(hT[0])}
          v_add_u32 {vr(hVQ)}, {sr(sQB)}, {vr(hVQ)}""")
    for p in range(3):
        a(f"""v_add_u32 {vr(hT[0])}, {64*p}, {vr(vL)}
              v_mul_u32_u24 {vr(hT[1])}, 171, {vr(hT[0])}
              v_lshrrev_b32 {vr(hT[1])}, 11, {vr(hT[1])}
              v_mul_u32_u24 {vr(hT[2])}, {2752 - 192}, {vr(hT[1])}
              v_lshl_add_u32 {vr(hV1+p)}, {vr(vL)}, 4, {vr(hT[2])}
              v_add_u32 {vr(hV1+p)}, {sr(s1B)}, {vr(hV1+p)}""")
    if not OPT.get("late", 1):
        h_setup2()
        o_zero()
    a(f"""v_and_b32 {vr(hGO)}, 15, {vr(vL)}
          v_lshlrev_b32 {vr(hGO)}, 2, {vr(hGO)}""")


UP = OPT["up"]
filler += record(common_setup) + ["s_waitcnt lgkmcnt(0)"] + (["s_memtime s[0:1]"] if OPT["stamps"] else []) + record(h_setup)
fill[0] = OPT.get("fill", 8)
for c in range(1, UP):
    issue_chunk(c)
emit(filler)
filler.clear()
stamp("hup")
jobs = [(max(0, c - 5), ("c", c), lambda c=c: issue_chunk(c)) for c in range(UP, 8)]


jobs += [(3 if c < 6 else 4, ("q", c), lambda c=c: issue_wq(c)) for c in range(8)]
jobs += [(g, ("w", c), lambda c=c: issue_w1(c)) for c, g in enumerate([4, 5, 5, 6, 6, 7, 7, 8])]


def run_jobs(upto):
    while any(j[1] == upto for j in jobs):
        jobs.pop(0)[2]()


QS = [int(c) for c in str(OPT.get("qs", 333))]
goload = f"buffer_load_dword {vr(hP)}, {vr(hGO)}, {sr(R_DBG,4)}, 0 offen sc1"
for n in range(8):
    stamp(f"hw{n}")
    a.wait(vm=("c", n))
    stamp(f"ha{n}")
    a("s_barrier")
    if n == 7:
        a("s_mov_b64 exec, 0xffff")
        a(goload, vm="go")
        a("s_mov_b64 exec, -1")
    for _ in range(1 if jobs[0][1][0] == "c" else QS.pop(0)):
        assert jobs[0][0] <= n
        jobs.pop(0)[2]()
    stamp(f"hi{n}")
a("s_barrier")
stamp("bar8")
run_jobs(("q", 7))
run_jobs(("w", OPT.get("j7", 1)))
if OPT.get("late", 1):
    h_setup2()
a.wait(vm=["wq", "go"])
a("s_mov_b64 exec, 0xffff")
poll(goload, 1, hP, first_done=True)
a("s_mov_b64 exec, -1")
stamp("h8b")
a("s_barrier")
run_jobs(("w", OPT.get("j8", 3)))
a.wait(vm=("w1", 1))
stamp("h9")
a("s_barrier")
a("s_barrier")
run_jobs(("w", OPT.get("j9", 5)))
a.wait(vm=("w1", 3))
stamp("h10")
a("s_barrier")
run_jobs(("w", 7))
a("s_mov_b32 exec_hi, 0")
a(f1_load(hP, hF1), vm="f1")
a("s_mov_b64 exec, -1")
a.wait(vm=("w1", 7))
stamp("h11")
a("s_barrier")
stamp("bar11")
q_reads()
a.wait(lg="all")
a("s_barrier")
a.wait(vm="all")
a("s_mov_b32 exec_hi, 0")
poll(f1_load(hP, hF1), 4, hP, first_done=True)
a("s_mov_b64 exec, -1")
stamp("f1seen")
a(f"v_mov_b64 {vr(vFP,2)}, {vr(VB[0],2)}")
kvload(0)
kvload(1)
kvload(2)
xb_init()
if OPT.get("late", 1):
    o_zero()
if OPT["prio"]:
    a("s_setprio 2")
att_vm = list(a.vm)
a("s_branch L_ATT")

a.label("L_C")
role[0] = "C"
a.reset_counts()
XR = lambda s: 4 * s
cACC = [160, 176, 192]
cSET = [128 + 8 * j for j in range(4)]
cSUM, cSQ, cSEL = 208, [212, 216], 244
cXa, cWa, cRS = 224, [228, 232], 236
cXA, cWP, cVO, cR = 240, [224, 228], 220, 248
cKC = [192, 196]
cT = [249, 250]
if OPT.get("cprio", 0):
    a("s_setprio 1")
stamp("q1")
a("s_getpc_b64 s[74:75]")
a.label("L_pc")
a(f"""s_sub_u32 s74, s74, L_pc-{NAME}_kernel
      s_subb_u32 s75, s75, 0
      s_lshr_b32 {sr(sT[0])}, s2, 3
      s_lshl_b32 {sr(sT[0])}, {sr(sT[0])}, 7
      v_bfe_u32 v1, v0, 4, 4
      v_lshl_add_u32 v1, v1, 12, {sr(sT[0])}
      v_min_u32 v1, L_end-{NAME}_kernel, v1
      s_mov_b32 exec_lo, 0x10001
      s_mov_b32 exec_hi, 0x10001
      global_load_dword {vr(vDUM)}, v1, s[74:75]
      s_mov_b64 exec, -1""")
common_setup()
a(f"""v_bfe_u32 {vr(cT[0])}, {vr(vL)}, 1, 3
      v_xor_b32 {vr(cT[0])}, {vr(cT[0])}, {vr(vHH)}
      v_lshlrev_b32 {vr(cT[0])}, 4, {vr(cT[0])}
      v_lshl_add_u32 {vr(cXA)}, {vr(vL31)}, 7, {vr(cT[0])}
      s_mul_i32 {sr(sT[0])}, {sr(sWQ)}, {4096 + 32}
      v_xor_b32 {vr(cXA)}, {sr(sT[0])}, {vr(cXA)}
      v_xor_b32 {vr(cXA+1)}, 32, {vr(cXA)}
      v_xor_b32 {vr(cXA+2)}, 64, {vr(cXA)}
      v_xor_b32 {vr(cXA+3)}, 0x60, {vr(cXA)}""")
tr_addr128(cWP[0], cWP[1], 8, cT[0])
a(f"s_lshl_b32 {sr(sT[0])}, {sr(sWQ)}, 11")
for t in range(2):
    a(f"v_add_u32 {vr(cWP[t])}, {sr(sT[0])}, {vr(cWP[t])}")
    for j in range(1, 4):
        a(f"v_xor_b32 {vr(cWP[t]+j)}, {2048*j}, {vr(cWP[t])}")
make_sel(cSEL, cT[0])
a(f"""v_mov_b32 {vr(cWa[1]+2)}, 0
      v_mov_b32 {vr(cWa[1]+3)}, 0
      v_mov_b32 {vr(cRS)}, 0
      v_mov_b32 {vr(cRS+1)}, 0
      v_mov_b32 {vr(cRS+2)}, 0x3f803f80
      v_mov_b32 {vr(cRS+3)}, 0x3f80
      v_lshlrev_b32 v221, 4, {vr(vL31)}
      v_add_u32 v221, {L_CSP}, v221
      s_lshl_b32 {sr(sT[0])}, {sr(sWQ)}, 2
      v_add_u32 v222, {sr(sT[0])}, v221
      s_add_u32 {sr(sT[0])}, {sr(sT[0])}, {L_FLG}
      v_mov_b32 {vr(cT[0])}, {sr(sT[0])}
      ds_write_b32 {vr(cT[0])}, {vr(cRS)}
      s_waitcnt lgkmcnt(0)""")
if OPT["stamps"]:
    a("s_memtime s[0:1]")
stamp("q2")
other_srds()
att_addr_s(sT[0], sT[1])
a(f"""s_lshl_b32 {sr(sHS)}, {sr(sRB)}, 2
      s_add_u32 {sr(sHS)}, {sr(sHS)}, {sr(sWQ)}
      s_mul_i32 {sr(sHS)}, {sr(sHS)}, {86*1024}
      s_lshl_b32 {sr(sT[0])}, {sr(sT0)}, 11
      s_add_u32 {sr(sHS)}, {sr(sHS)}, {sr(sT[0])}
      s_add_u32 {sr(sHS)}, {sr(sHS)}, {WS_H}""")
a(f"""s_cmp_lg_u32 {sr(sWQ)}, 0
      s_cbranch_scc1 L_C1
      s_cmp_lg_u32 {sr(sRB)}, {sr(sCB)}
      s_cbranch_scc1 L_C1
      s_and_b32 {sr(sT[0])}, {sr(sLINE)}, 0xfffff800
      v_lshrrev_b32 v1, 2, {vr(vL)}
      v_and_b32 v3, 3, {vr(vL)}
      v_lshlrev_b32 v3, 4, v3
      v_lshl_add_u32 v1, v1, 7, v3
      v_mov_b32 v4, 0
      v_mov_b32 v5, 0
      v_mov_b32 v6, 0
      v_mov_b32 v7, 0
      buffer_store_dwordx4 v[4:7], v1, {sr(R_WS,4)}, {sr(sT[0])} offen sc1
      s_lshl_b32 {sr(sT[0])}, {sr(sRB)}, 2
      s_waitcnt vmcnt(0)
      s_mov_b64 exec, 1
      v_mov_b32 v3, 1
      buffer_store_dword v3, off, {sr(R_DBG,4)}, {sr(sT[0])} sc1
      s_mov_b64 exec, -1""")
a.label("L_C1")
stamp("q3")
PF = OPT.get("pf", 15)
if PF:
    a.comment("L2 prefetch of this workgroup's share of the lines its XCD neighbours also stream later")
    a(f"""s_mov_b32 {sr(R_WQKV+2)}, {512*1536*2}
          s_mov_b32 {sr(R_WQKV+3)}, 0x20000""")
    u, u2, u3 = sT[0], sT[1], sT[2]
    a(f"""s_lshr_b32 {sr(u3)}, {sr(sRB)}, 2
          s_cmp_eq_u32 {sr(sWQ)}, 1
          s_cbranch_scc1 L_pf1
          s_cmp_eq_u32 {sr(sWQ)}, 2
          s_cbranch_scc1 L_pf2
          s_cmp_eq_u32 {sr(sWQ)}, 3
          s_cbranch_scc1 L_pf3""")
    if PF & 16:
        a(f"""s_lshl_b32 {sr(u)}, s2, 13
              v_lshlrev_b32 v1, 7, {vr(vL)}
              buffer_load_dword {vr(vDUM)}, v1, {sr(R_X,4)}, {sr(u)} offen""")
    if PF & 1:
        a(f"""s_and_b32 {sr(u)}, {sr(sCB)}, 7
              s_lshl_b32 {sr(u2)}, {sr(sRB)}, 3
              s_add_u32 {sr(u)}, {sr(u)}, {sr(u2)}
              s_lshl_b32 {sr(u)}, {sr(u)}, 14
              s_add_u32 {sr(u2)}, {sr(sROT)}, 4
              v_lshrrev_b32 v1, 4, {vr(vL)}
              v_add_u32 v1, {sr(u2)}, v1
              v_and_b32 v1, 7, v1
              v_lshlrev_b32 v1, 7, v1
              v_and_b32 v2, 15, {vr(vL)}
              v_lshl_add_u32 v1, v2, 10, v1
              buffer_load_dword {vr(vDUM)}, v1, {sr(R_X,4)}, {sr(u)} offen""")
    a("s_branch L_pfd")
    a.label("L_pf1")
    if PF & 32:
        a(f"""s_mul_i32 {sr(u)}, s2, 6144
              v_lshlrev_b32 v1, 7, {vr(vL)}
              s_mov_b32 exec_hi, 0xffff
              buffer_load_dword {vr(vDUM)}, v1, {sr(R_WQKV,4)}, {sr(u)} offen
              s_mov_b64 exec, -1""")
    if PF & 2:
        a(f"""s_and_b32 {sr(u)}, {sr(sCB)}, 1
              s_add_u32 {sr(u)}, {sr(u)}, 1
              s_lshl_b32 {sr(u)}, {sr(u)}, 10
              s_lshr_b32 {sr(u2)}, {sr(sCB)}, 1
              s_lshl_b32 {sr(u2)}, {sr(u2)}, 7
              s_add_u32 {sr(u)}, {sr(u)}, {sr(u2)}
              s_mul_i32 {sr(u2)}, {sr(u3)}, {16*3072}
              s_add_u32 {sr(u)}, {sr(u)}, {sr(u2)}
              s_add_u32 {sr(u2)}, {sr(sROT)}, 4
              v_lshrrev_b32 v1, 4, {vr(vL)}
              v_add_u32 v1, {sr(u2)}, v1
              v_and_b32 v1, 7, v1
              v_and_b32 v2, 15, {vr(vL)}
              v_lshl_add_u32 v1, v1, 6, v2
              v_mul_u32_u24 v1, 3072, v1
              buffer_load_dword {vr(vDUM)}, v1, {sr(R_WQKV,4)}, {sr(u)} offen""")
    a("s_branch L_pfd")
    a.label("L_pf2")
    if PF & 4:
        a(f"""s_and_b32 {sr(u)}, {sr(sCB)}, 1
              s_lshl_b32 {sr(u2)}, {sr(u3)}, 1
              s_add_u32 {sr(u)}, {sr(u)}, {sr(u2)}
              s_mul_i32 {sr(u)}, {sr(u)}, {64*3072}
              s_lshl_b32 {sr(u2)}, {sr(sCB)}, 6
              s_add_u32 {sr(u)}, {sr(u)}, {sr(u2)}
              v_mul_u32_u24 v1, 3072, {vr(vL)}
              buffer_load_dword {vr(vDUM)}, v1, {sr(R_WQKV,4)}, {sr(u)} offen""")
    a("s_branch L_pfd")
    a.label("L_pf3")
    if PF & 64:
        a(f"""s_mul_i32 {sr(u)}, s2, 5504
              v_lshlrev_b32 v1, 7, {vr(vL)}
              s_mov_b32 exec_hi, 0x7ff
              buffer_load_dword {vr(vDUM)}, v1, {sr(R_W1,4)}, {sr(u)} offen
              s_mov_b64 exec, -1""")
    if PF & 8:
        a(f"""s_mul_i32 {sr(u)}, {sr(u3)}, {128*2752}
              s_lshl_b32 {sr(u2)}, {sr(sT0)}, 6
              s_add_u32 {sr(u)}, {sr(u)}, {sr(u2)}
              s_add_u32 {sr(u2)}, {sr(u)}, {64*2752}
              v_mul_u32_u24 v1, 2752, {vr(vL)}
              buffer_load_dword {vr(vDUM)}, v1, {sr(R_W1,4)}, {sr(u)} offen
              buffer_load_dword {vr(vDUM)}, v1, {sr(R_W1,4)}, {sr(u)} offen offset:128
              buffer_load_dword {vr(vDUM)}, v1, {sr(R_W1,4)}, {sr(u2)} offen
              buffer_load_dword {vr(vDUM)}, v1, {sr(R_W1,4)}, {sr(u2)} offen offset:128""")
    a.label("L_pfd")
    stamp("q4")
a.reset_counts()
a(f"""s_lshr_b32 {sr(sT[0])}, {sr(sCB)}, 1
      s_lshl_b32 {sr(sT[0])}, {sr(sT[0])}, 19
      s_lshl_b32 {sr(sT[1])}, {sr(sRB)}, 2
      s_add_u32 {sr(sT[1])}, {sr(sT[1])}, {sr(sWQ)}
      s_lshl_b32 {sr(sT[1])}, {sr(sT[1])}, 11
      s_add_u32 {sr(sT[2])}, {sr(sT[0])}, {sr(sT[1])}
      s_bitcmp1_b32 {sr(sCB)}, 0
      s_cbranch_scc1 L_CV""")


def kv_path(isV):
    px = [Ptr(cXA + j) for j in range(4)]
    pw = [[Ptr(cWP[t] + j) for j in range(4)] for t in range(2)]

    def rx(n, j):
        rd128(XR(4 * n + j), px[j], (n % 6) * SLOT, ("r", n, j))

    def rw(n, j, t):
        for u in range(0 if OPT.get("norw") and n > 0 else 2):
            tr(cSET[j] + 4 * t + 2 * u, pw[t][j], (n % 6) * SLOT + 16384 + u * 512, ("r", n, j))

    def main(n, j, t):
        if OPT.get("nomain") and n > 0:
            return
        c = "0" if (n == 0 and j == 0) else cACC[t]
        if isV:
            mfma32(cACC[t], XR(4 * n + j), cSET[j] + 4 * t, c)
        else:
            mfma32(cACC[t], cSET[j] + 4 * t, XR(4 * n + j), c)

    def s16(n, j):
        mfma16(cSUM, cSEL, XR(4 * n + j), "0" if (n == 0 and j == 0) else cSUM)

    def s4(n, j, h):
        mfma4(cSQ[h], XR(4 * n + j) + 2 * h, "0" if (n == 0 and j == 0) else cSQ[h])

    def small(n, j):
        if OPT.get("nosmall") and n > 0:
            return
        s16(n, j)
        s4(n, j, 0)
        s4(n, j, 1)

    if isV:
        a(f"""v_bfe_u32 {vr(cT[0])}, {vr(vL)}, 4, 1
              v_lshlrev_b32 {vr(cT[0])}, 17, {vr(cT[0])}
              v_lshl_add_u32 {vr(cT[0])}, {vr(vHH)}, 8, {vr(cT[0])}
              v_and_b32 {vr(cVO)}, 15, {vr(vL)}
              v_lshl_add_u32 {vr(cVO)}, {vr(cVO)}, 4, {vr(cT[0])}""")
    else:
        a.comment("key slot = lane with bits 2 and 3 swapped")
        a(f"""v_and_b32 {vr(cVO)}, 0x33, {vr(vL)}
              v_bfe_u32 {vr(cT[0])}, {vr(vL)}, 2, 1
              v_lshl_add_u32 {vr(cVO)}, {vr(cT[0])}, 3, {vr(cVO)}
              v_bfe_u32 {vr(cT[0])}, {vr(vL)}, 3, 1
              v_lshl_add_u32 {vr(cVO)}, {vr(cT[0])}, 2, {vr(cVO)}
              v_lshlrev_b32 {vr(cVO)}, 4, {vr(cVO)}""")
    def rd(n, j):
        rx(n, j)
        rw(n, j, 0)
        rw(n, j, 1)

    for n in range(8):
        stamp(f"ca{n}")
        a("s_barrier")
        stamp(f"cp{n}")
        if n == 0:
            stamp("c0")
        if n == 7:
            stamp("c7")
        if n == 0:
            rd(0, 0)
            rd(0, 1)
            rd(0, 2)
        else:
            main(n - 1, 2, 0)
            rx(n, 0)
            rw(n, 0, 0)
            main(n - 1, 2, 1)
            rw(n, 0, 1)
            main(n - 1, 3, 0)
            rx(n, 1)
            rw(n, 1, 0)
            main(n - 1, 3, 1)
            rw(n, 1, 1)
            for j in range(4):
                s16(n - 1, j)
                if j == 0:
                    rx(n, 2)
                elif j < 3:
                    rw(n, 2, j - 1)
                s4(n - 1, j, 0)
                s4(n - 1, j, 1)
        a.wait(lg=("r", n, 0))
        main(n, 0, 0)
        rx(n, 3)
        rw(n, 3, 0)
        main(n, 0, 1)
        rw(n, 3, 1)
        for t in range(2):
            mfma16(cKC[t], cSEL, cSET[0] + 4 * t, "0" if n == 0 else cKC[t])
        a.wait(lg=("r", n, 1))
        if n < 7:
            main(n, 1, 0)
            main(n, 1, 1)
            a.wait(lg=("r", n, 3))
    small(7, 0)
    small(7, 1)
    a.wait(lg=("r", 7, 3))
    s16(7, 2)
    a(f"ds_write_b32 v222, {vr(cKC[0])}", lg="k")
    a(f"ds_write_b32 v222, {vr(cKC[1])} offset:512", lg="k")
    s4(7, 2, 0)
    s4(7, 2, 1)
    small(7, 3)
    main(7, 1, 0)
    a.wait(lg="all")
    a("s_barrier")
    a("s_setprio 1")
    CS = cSET[0]
    T0, T1 = cT
    T2, T3, T4 = 223, 221, 222
    a(f"ds_read_b128 {vr(CS,4)}, {vr(T3)}", lg="cs")
    a(f"ds_read_b128 {vr(CS+4,4)}, {vr(T3)} offset:512", lg="cs")
    ops = [f"v_and_b32 {vr(T0)}, 3, {vr(vL)}",
           f"v_cmp_eq_u32 vcc, 1, {vr(T0)}",
           f"v_cmp_eq_u32 s[76:77], 2, {vr(T0)}",
           f"v_cmp_eq_u32 s[78:79], 3, {vr(T0)}"]
    ops += [f"v_add_f32 {vr(cSQ[0]+i)}, {vr(cSQ[0]+i)}, {vr(cSQ[1]+i)}" for i in range(4)]
    ops += [f"v_cndmask_b32 {vr(T0)}, {vr(cSQ[0])}, {vr(cSQ[0]+1)}, vcc",
            f"v_cndmask_b32 {vr(T0)}, {vr(T0)}, {vr(cSQ[0]+2)}, s[76:77]",
            f"v_cndmask_b32 {vr(T0)}, {vr(T0)}, {vr(cSQ[0]+3)}, s[78:79]",
            f"v_mov_b32 {vr(T1)}, {vr(T0)}",
            f"v_mul_f32 {vr(T2)}, {f32(1/512)}, {vr(cSUM)}",
            f"v_cvt_pk_bf16_f32 {vr(cXa)}, -{vr(T2)}, -{vr(T2)}",
            f"v_permlane32_swap_b32 {vr(T0)}, {vr(T1)}",
            f"v_add_f32 {vr(T0)}, {vr(T0)}, {vr(T1)}",
            f"v_mul_f32 {vr(T0)}, {f32(1/512)}, {vr(T0)}",
            f"v_fma_f32 {vr(T0)}, -{vr(T2)}, {vr(T2)}, {vr(T0)}",
            f"v_max_f32 {vr(T0)}, 0, {vr(T0)}",
            f"v_cvt_pk_bf16_f32 {vr(T0)}, {vr(T0)}, {vr(T0)}",
            f"v_lshlrev_b32 {vr(T0)}, 16, {vr(T0)}",
            f"v_add_f32 {vr(T0)}, {f32(1e-5)}, {vr(T0)}",
            f"v_cvt_pk_bf16_f32 {vr(T0)}, {vr(T0)}, {vr(T0)}",
            f"v_lshlrev_b32 {vr(T0)}, 16, {vr(T0)}",
            f"v_sqrt_f32 {vr(T0)}, {vr(T0)}",
            "WAITCS",
            f"v_add_f32 {vr(CS)}, {vr(CS)}, {vr(CS+1)}",
            f"v_cvt_pk_bf16_f32 {vr(cXa+1)}, -{vr(T2)}, {vr(T0)}",
            f"v_and_b32 {vr(T0)}, 0xffff0000, {vr(cXa+1)}",
            f"v_rcp_f32 {vr(cR)}, {vr(T0)}",
            f"v_add_f32 {vr(CS+2)}, {vr(CS+2)}, {vr(CS+3)}",
            f"v_add_f32 {vr(CS)}, {vr(CS)}, {vr(CS+2)}"]
    ops += split3_ops(cR, "0", cXa + 2, cXa + 3, T0, T1, None)
    ops += [f"s_lshl_b32 {sr(sT[0])}, {sr(sWQ)}, 9",
            f"s_add_u32 {sr(sT[0])}, {sr(sT[0])}, {L_STATS - L_CSP}",
            f"v_add_u32 {vr(T3)}, {sr(sT[0])}, {vr(T3)}",
            f"v_add_u32 {vr(T4)}, -1, {vr(vHH)}",
            "WSTAT"]
    ops += [f"v_and_b32 {vr(cXa+i)}, {vr(cXa+i)}, {vr(T4)}" for i in range(4)]
    ops += [f"v_mov_b64 {vr(cWa[0]+2,2)}, 0"]
    ops += split3_ops(CS, "0", cWa[0], cWa[0] + 1, T0, T1, None)
    rest = [(1, 1), (2, 0), (2, 1), (3, 0), (3, 1)]
    for i, op in enumerate(ops):
        if i % 6 == 2 and rest:
            j, t = rest.pop(0)
            main(7, j, t)
        if op == "WAITCS":
            a.wait(lg="cs")
        elif op == "WSTAT":
            a(f"ds_write_b32 {vr(T3)}, {vr(cXa+1)} offset:4", lg="st")
        else:
            a(op)
    assert not rest
    a(f"""v_add_f32 {vr(CS+4)}, {vr(CS+4)}, {vr(CS+5)}
          v_add_f32 {vr(CS+6)}, {vr(CS+6)}, {vr(CS+7)}""")
    if isV:
        mfma32(cACC[2], cXa, cRS, "0")
        mfma32(cACC[0], cXa, cWa[0], cACC[0])
    else:
        mfma32(cACC[0], cWa[0], cXa, cACC[0])
    a(f"v_add_f32 {vr(CS+4)}, {vr(CS+4)}, {vr(CS+6)}")
    emit(split3_ops(CS + 4, "0", cWa[1], cWa[1] + 1, T0, T1, None))
    if isV:
        mfma32(cACC[1], cXa, cWa[1], cACC[1])
    else:
        mfma32(cACC[1], cWa[1], cXa, cACC[1])
    for t in range(2):
        for u in range(2):
            b = cACC[t] + 8 * u
            for i in range(8):
                a(f"v_mul_f32 {vr(b+i)}, {vr(b+i)}, {vr(cACC[2]+8*u+i) if isV else vr(cR)}")
            p = cSET[0] + 8 * t + 4 * u
            for i in range(4):
                a(f"v_cvt_pk_bf16_f32 {vr(p+i)}, {vr(b+2*i)}, {vr(b+2*i+1)}")
            if isV:
                if u == 0:
                    a(f"s_add_u32 {sr(sT[3])}, {sr(sT[2])}, {2*t*131072}")
                a(f"buffer_store_dwordx4 {vr(p,4)}, {vr(cVO)}, {sr(R_WS,4)}, {sr(sT[3])} offen offset:{1024+512*u} sc1", vm="kv")
            else:
                a(f"s_add_u32 {sr(sT[3])}, {sr(sT[2])}, {(2*t+u)*131072}")
                a(f"buffer_store_dwordx4 {vr(p,4)}, {vr(cVO)}, {sr(R_WS,4)}, {sr(sT[3])} offen sc1", vm="kv")


kv_path(False)
a("s_branch L_C2")
a.label("L_CV")
a.reset_counts()
kv_path(True)
a.label("L_C2")
stamp("kvst")
cQA, RING = 208, 128
cWF = [208, 212, 216]
cPS, cPA = cWa[1], vDUM
cQC, cFB, cFC = 160, 204, [0, 4, 8]
cF1A, cF1, cBI, cP3, cFL = 64, 68, 72, 76, 88
tr_addr(cXA, 8, 64, cT[0])
a(f"""s_lshl_b32 {sr(sT[0])}, {sr(sWQ)}, 10
      s_add_u32 {sr(sT[0])}, {sr(sT[0])}, {L_WQ}
      v_add_u32 {vr(cXA)}, {sr(sT[0])}, {vr(cXA)}""")
for j in range(1, 4):
    a(f"v_xor_b32 {vr(cXA+j)}, {1024*j}, {vr(cXA)}")
pq = [Ptr(cXA + j, L_WQ) for j in range(4)]
pf = [Ptr(cXA + j, L_W1[0]) for j in range(4)]
a(f"s_setprio {OPT.get('cp2', 0)}")
a("s_barrier")
stamp("c8b")
LA = 6


def t_read(i):
    if i >= 128:
        return
    for u in range(2):
        if i < 32:
            tr(RING + 4 * (i & 7) + 2 * u, pq[i & 3], L_WQ + (i >> 2) * 4096 + u * 256, ("tw", i))
        else:
            k, t = divmod(i - 32, 3)
            tr(RING + 4 * (i & 7) + 2 * u, pf[k & 3], L_W1[k >> 2] + t * 64 + u * 768, ("tw", i))


def sum4(p):
    return [f"v_add_f32 {vr(p)}, {vr(p)}, {vr(p+1)}", f"v_add_f32 {vr(p+2)}, {vr(p+2)}, {vr(p+3)}", f"v_add_f32 {vr(p)}, {vr(p)}, {vr(p+2)}"]


side = []


def side_ops(n):
    for _ in range(n):
        if not side:
            return
        op = side.pop(0)
        if isinstance(op, tuple):
            a.wait(lg=op[1])
        elif callable(op):
            op()
        elif op:
            a(op)


F1S, B11 = OPT.get("f1s", 24), OPT.get("b11", 68)
at = {}


def sched(i, ops):
    at.setdefault(i, []).extend(ops)


sched(2, record(lambda: tr_addr(cFB, 8, 192, cT[0])))
for j in range(4):
    sched(5 + 2 * j, [f"s_xor_b32 {sr(20+j)}, {sr(sWQ)}, {j}", f"s_mul_i32 {sr(20+j)}, {sr(20+j)}, 3072", f"s_add_u32 {sr(20+j)}, {sr(20+j)}, {L_W1[0]}"])
    sched(22 + j, [f"v_add_u32 {vr(cXA+j)}, {sr(20+j)}, {vr(cFB)}"])
sched(26, ["s_waitcnt vmcnt(4)", f"v_lshlrev_b32 {vr(cPA)}, 4, {vr(vL31)}", f"v_add_u32 {vr(cPA)}, {L_CSP + 1024}, {vr(cPA)}",
           f"s_lshl_b32 {sr(sT[0])}, {sr(sWQ)}, 2", f"v_add_u32 {vr(cT[0])}, {sr(sT[0])}, {vr(cPA)}"])
sched(30, [lambda: a(f"ds_write_b32 {vr(cT[0])}, {vr(cQC)}", lg="qc")])
q2 = [lambda: a(f"ds_read_b128 {vr(cPS,4)}, {vr(cPA)}", lg="ps"),
      f"s_lshl_b32 {sr(sT[0])}, {sr(sWQ)}, 10", f"s_add_u32 {sr(sT[0])}, {sr(sT[0])}, {L_QX}", "", "", "", ("W", "ps")]
q2 += sum4(cPS) + split3_ops(cPS, "0", cWa[0], cWa[0] + 1, cT[0], cT[1], None)
q2 += [f"v_lshl_add_u32 {vr(cT[1])}, {vr(vL)}, 4, {sr(sT[0])}",
       lambda: mfma32(cQA, cWa[0], cXa, cQA),
       f"v_mul_f32 {vr(cT[0])}, {f32(0.25*math.log2(math.e))}, {vr(cR)}",
       "", "", "", ""]
q2 += [f"v_mul_f32 {vr(cQA+i)}, {vr(cQA+i)}, {vr(cT[0])}" for i in range(16)]
for u in range(2):
    q2 += [f"v_cvt_pk_bf16_f32 {vr(cQA+4*u+i)}, {vr(cQA+8*u+2*i)}, {vr(cQA+8*u+2*i+1)}" for i in range(4)]
    q2 += [lambda u=u: a(f"ds_write_b128 {vr(cT[1])}, {vr(cQA+4*u,4)} offset:{u*4096}", lg="qx")]
sched(33, q2)
sched(76, record(lambda: att_addr_v(cT[0])) + [f"v_mov_b64 {vr(cWF[k]+2,2)}, 0" for k in range(3)])
sched(84, [x for x in record(o_zero)[6:]])


def late_loads():
    a(f"""s_lshl_b32 {sr(sT[0])}, {sr(sT0)}, 6
          v_lshlrev_b32 {vr(cT[0])}, 1, {vr(vL31)}""")
    for t in range(3):
        a(f"buffer_load_ushort {vr(cBI+t)}, {vr(cT[0])}, {sr(R_B1,4)}, {sr(sT[0])} offen offset:{64*t}", vm="bias")


sched(98, [late_loads] + record(lambda: f1_addr(cF1A, cT[0])))
sched(106, [lambda: (a("s_mov_b32 exec_hi, 0"), a(f1_load(cF1, cF1A), vm="f1"), a("s_mov_b64 exec, -1"))])
sched(112, [f"s_lshl_b32 {sr(sT[0])}, {sr(sWQ)}, 2", f"v_add_u32 {vr(cT[0])}, {sr(sT[0])}, {vr(cPA)}",
            f"s_add_u32 {sr(sT[0])}, {sr(sT[0])}, {L_FLG}", f"v_mov_b32 {vr(cT[1])}, {sr(sT[0])}",
            f"v_mov_b32 {vr(cFL+4)}, {L_FLG}", lambda: a.wait(vm="bias")] + [f"v_lshlrev_b32 {vr(cBI+t)}, 16, {vr(cBI+t)}" for t in range(3)])
sched(119, [lambda t=t: a(f"ds_write_b32 {vr(cT[0])}, {vr(cFC[t])} offset:{512*(t+1)}", lg="fc") for t in range(2)])
sched(122, [lambda: a(f"ds_write_b32 {vr(cT[0])}, {vr(cFC[2])} offset:1536", lg="fc"),
            lambda: a(f"ds_write_b32 {vr(cT[1])}, {vr(cT[1])}", lg="fc")])
sched(123, record(o_zero)[:4])


def part_reads():
    a(f"ds_read_b128 {vr(cFL,4)}, {vr(cFL+4)}", lg="p3")
    for t in range(3):
        a(f"ds_read_b128 {vr(cP3+4*t,4)}, {vr(cPA)} offset:{512*(t+1)}", lg="p3")


sched(125, [part_reads] + record(o_zero)[4:6])
for i in range(LA):
    t_read(i)
for i in range(128):
    a.wait(lg=("tw", i))
    fr = RING + 4 * (i & 7)
    if i < 32:
        mfma32(cQA, fr, XR(i), "0" if i == 0 else cQA)
        cs = (cQC, i == 0) if i % 4 == 0 else None
    else:
        k, t = divmod(i - 32, 3)
        mfma32(cACC[t], fr, XR(k), "0" if k == 0 else cACC[t])
        cs = (cFC[t], k == 3) if (k == 3 or (k >= 4 and k % 4 == 0)) else None
    if i + LA == 32:
        a("s_barrier")
        stamp("c9")
    if i == 33:
        a.wait(lg="qc")
        a("s_barrier")
    if i + LA == 56:
        a("s_barrier")
        stamp("c10")
    if i == B11:
        assert not side and 56 - LA < B11 <= 80 - LA
        a.wait(lg="qx")
        a("s_barrier")
        stamp("c11")
    if i == B11 + 5:
        a("s_barrier")
        a(f"s_setprio {OPT.get('cp3', 3)}")
    stamp(f"i{i}")
    t_read(i + LA)
    side += at.get(i, [])
    side_ops(2)
    if cs:
        mfma16(cs[0], cSEL, fr, "0" if cs[1] else cs[0])
    if i == F1S:
        a(f"""s_lshl_b32 {sr(sT[3])}, {sr(sWQ)}, 2
              s_add_u32 {sr(sT[3])}, {sr(sT[3])}, {sr(sLINE)}""")
        a.wait(vm="all")
        set_flag(sT[3], cRS)
        stamp("f1sent")
assert not side
stamp("ffnend")
a("s_setprio 3")
a(f"s_mov_b32 {sr(sT[6])}, {OPT['spin']}")
a.label("L_p3")
a.wait(lg="all")
a(f"""v_min_u32 {vr(cFL)}, {vr(cFL)}, {vr(cFL+1)}
      v_min3_u32 {vr(cFL)}, {vr(cFL)}, {vr(cFL+2)}, {vr(cFL+3)}
      v_cmp_eq_u32 vcc, 0, {vr(cFL)}
      s_nop 1
      s_cmp_eq_u64 vcc, 0
      s_cbranch_scc1 L_p3d""")
part_reads()
a(f"""s_sub_u32 {sr(sT[6])}, {sr(sT[6])}, 1
      s_cmp_lg_u32 {sr(sT[6])}, 0
      s_cbranch_scc1 L_p3""")
a.wait(lg="all")
a.label("L_p3d")
q_reads()
for t in range(3):
    emit(sum4(cP3 + 4 * t) + split3_ops(cP3 + 4 * t, vr(cBI + t), cWF[t], cWF[t] + 1, cT[0], cT[1], None))
    if t:
        mfma32(cACC[t - 1], cWF[t - 1], cXa, cACC[t - 1])
a.wait(vm="all")
a("s_mov_b32 exec_hi, 0")
poll(f1_load(cF1, cF1A), 4, cF1, first_done=True)
a("s_mov_b64 exec, -1")
mfma32(cACC[2], cWF[2], cXa, cACC[2])
att_init()
a(f"v_mov_b64 {vr(vFP,2)}, {vr(VB[0],2)}")
kvload(0)
kvload(1)
kvload(2)
stamp("kvl")
HSP = OPT.get("hsp", 1)


def hstore(n):
    if n == 4:
        a(f"s_add_u32 {sr(sHS)}, {sr(sHS)}, 4096")
    a(f"buffer_store_dwordx4 {vr(208+4*n,4)}, {vr(vL16)}, {sr(R_WS,4)}, {sr(sHS)} offen offset:{1024*(n&3)} sc1", vm="h")


for t in range(3):
    for u in range(2):
        b = cACC[t] + 8 * u
        for i in range(8):
            a(f"v_max_f32 {vr(b+i)}, 0, {vr(b+i)}")
        for i in range(8):
            a(f"v_mul_f32 {vr(b+i)}, {vr(b+i)}, {vr(b+i)}")
        p = 208 + 8 * t + 4 * u
        for i in range(4):
            a(f"v_cvt_pk_bf16_f32 {vr(p+i)}, {vr(b+2*i)}, {vr(b+2*i+1)}")
        if not HSP:
            hstore(2 * t + u)
assert HSP
xb_init()
a.wait(lg="all")
assert a.vm == att_vm

a.label("L_ATT")
role[0] = "HC"
a.wait(vm=("v", 0))
stamp("attst")


def hload(i):
    a(f"buffer_load_dwordx4 {vr(HF+4*(i%12),4)}, {vr(vL16)}, {sr(R_WS,4)}, {sr(sH0)} offen offset:{(i%4)*1024} sc1", vm=("hf", i))


def h_next(i):
    a(f"s_add_u32 {sr(sH0)}, {sr(sH0)}, 4096")
    if i == 20:
        a(f"s_min_u32 {sr(sH0)}, {sr(sH0)}, {sr(sKS)}")


def f2_check():
    a(f"""v_and_b32 {vr(vFL)}, 15, {vr(vL)}
          v_lshlrev_b32 {vr(vFL)}, 7, {vr(vFL)}
          s_and_b32 {sr(sU2)}, {sr(sLINE)}, 0xfffff800
          s_mov_b64 exec, 0xffff""")
    poll(f"buffer_load_dwordx4 {vr(vFP,4)}, {vr(vFL)}, {sr(R_WS,4)}, {sr(sU2)} offen offset:16 sc1", 4, vFP)
    a("s_mov_b64 exec, -1")
    a.vm = []


def touch_idx():
    a(f"""s_lshr_b32 {sr(sU)}, {sr(sRB)}, 2
          s_lshl_b32 {sr(sU)}, {sr(sU)}, 1
          s_and_b32 {sr(sU2)}, {sr(sCB)}, 1
          s_add_u32 {sr(sU)}, {sr(sU)}, {sr(sU2)}
          s_lshl_b32 {sr(sU)}, {sr(sU)}, 3
          s_add_u32 {sr(sU)}, {sr(sU)}, {sr(sW)}
          s_and_b32 {sr(sU2)}, {sr(sOUT)}, 0x3ff
          v_lshlrev_b32 {vr(vFL)}, 10, {vr(vL)}""")


def touch_w2():
    a.comment("pull a share of the W2 rows streamed inside the attention loop into L2")
    touch_idx()
    a(f"""s_lshr_b32 {sr(sT[3])}, {sr(sU)}, 4
          s_mul_i32 {sr(sT[3])}, {sr(sT[3])}, {(352-160)*1024}
          s_mul_i32 {sr(sU)}, {sr(sU)}, {10*1024}
          s_add_u32 {sr(sU)}, {sr(sU)}, {sr(sT[3])}
          s_add_u32 {sr(sU)}, {sr(sU)}, {sr(sU2)}
          s_mov_b64 exec, 0x3ff""")
    a(f"buffer_load_dword {vr(vDUM)}, {vr(vFL)}, {sr(R_W2,4)}, {sr(sU)} offen", vm="t")
    a("s_mov_b64 exec, -1")


def touch_wo():
    a.comment("pull a share of the Wo column block into L2")
    touch_idx()
    a(f"""s_lshl_b32 {sr(sU)}, {sr(sU)}, 13
          s_add_u32 {sr(sU)}, {sr(sU)}, {sr(sU2)}
          s_mov_b64 exec, 0xff""")
    a(f"buffer_load_dword {vr(vDUM)}, {vr(vFL)}, {sr(R_WO,4)}, {sr(sU)} offen", vm="t")
    a("s_mov_b64 exec, -1")


extras = {}


def put(it, tile, slot, fn):
    extras.setdefault((it, tile, slot), []).append(fn)


for i in range(3, 16):
    if i < 3 + XB:
        put(0, i - 3, 2, lambda i=i: kvload(i))
    else:
        it = i - XB - 2 if i < XB + 6 else i - 2
        put(it, 0, 0, lambda i=i: kvload(i, False))
        put(it, 0, 1, kv_next)


def f2_signal():
    a(f"""s_cmp_lt_u32 {sr(sW)}, 4
          s_cbranch_scc1 L_nof2
          s_lshl_b32 {sr(sU)}, {sr(sW)}, 2
          s_add_u32 {sr(sU)}, {sr(sU)}, {sr(sLINE)}""")
    keep = list(a.vm)
    a.wait(vm="h")
    a.vm = keep
    set_flag(sU, vFL)
    a(f"s_setprio {2 if OPT['prio'] else 0}")
    a.label("L_nof2")


if HSP:
    a.comment("waves 4-7 publish h one fragment at a time; waves 0-3 run the same stores out of range (dropped)")
    for n in range(6):
        put((XB + n * HSP) // 4, (XB + n * HSP) % 4, 2, lambda n=n: hstore(n))
    F2S = XB + 5 * HSP + OPT.get("f2d", 10)
    put(F2S // 4, F2S % 4, 1, f2_signal)
else:
    put(2, 3, 1, f2_signal)
put(OPT.get("tw2", 2), 2, 1, touch_w2)
put(OPT["tit"], 2, 1, touch_wo)
F2IT = OPT["f2it"]
put(F2IT, 0, 2, f2_check)


def marker_check():
    a.comment("the W1 image may be overwritten once all four compute waves have set their marker words")
    a(f"""v_mov_b32 {vr(vFL)}, {L_FLG}
          s_mov_b32 {sr(sT[6])}, {OPT['spin']}""")
    a.label("L_mk")
    a(f"ds_read_b128 {vr(vFP,4)}, {vr(vFL)}", lg="mk")
    a.wait(lg="all")
    a(f"""v_min_u32 {vr(vFP)}, {vr(vFP)}, {vr(vFP+1)}
          v_min3_u32 {vr(vFP)}, {vr(vFP)}, {vr(vFP+2)}, {vr(vFP+3)}
          v_cmp_eq_u32 vcc, 0, {vr(vFP)}
          s_sub_u32 {sr(sT[6])}, {sr(sT[6])}, 1
          s_cmp_eq_u64 vcc, 0
          s_cbranch_scc1 L_mkd
          s_cmp_lg_u32 {sr(sT[6])}, 0
          s_cbranch_scc1 L_mk""")
    a.label("L_mkd")


WIT = OPT.get("wit", 4)
put(WIT, 0, 2, marker_check)
for i in range(12):
    put(WIT + i // 3, 1 + i % 3, 2, lambda i=i: dma(vWD, R_W2, sW2, (sLA, i * 8192), "w2a", f"s_add_u32 {sr(sW2)}, {sr(sW2)}, 16384"))
FA, WF, vSDV, vWD2 = [196, 212], 228, 249, 247
vB0, vB1, vC0, vC1 = 241, 242, 243, 248
sWR, sRG = 18, 19


def ring_addr():
    tr_addr128(vB0, vB1, 4, vFL)
    a(f"""s_mul_i32 {sr(sRG)}, {sr(sW)}, 7168
          s_add_u32 {sr(sRG)}, {sr(sRG)}, {L_CMB}
          v_add_u32 {vr(vC0)}, {sr(sRG)}, {vr(vB0)}
          v_add_u32 {vr(vC1)}, {sr(sRG)}, {vr(vB1)}
          s_lshl_b32 {sr(sWR)}, {sr(sKS)}, 14
          s_and_b32 {sr(sU2)}, {sr(sOUT)}, 0x3ff
          s_add_u32 {sr(sWR)}, {sr(sWR)}, {sr(sU2)}
          s_sub_u32 {sr(sWR)}, {sr(sWR)}, 16384
          s_lshl_b32 {sr(sU2)}, {sr(sKS)}, 10
          s_add_u32 {sr(sKS)}, {sr(sH0)}, {84*1024}
          s_add_u32 {sr(sH0)}, {sr(sH0)}, {sr(sU2)}""")


def ring_m0(k):
    if k < NI:
        a(f"s_add_u32 m0, {sr(sRG)}, {(k % 3) * 2048}")


def ring_so(k):
    if k < NI:
        a(f"s_add_u32 {sr(sWR)}, {sr(sWR)}, 16384")


def ring_dma(k):
    if k < NI:
        a(f"buffer_load_dwordx4 {vr(vWD)}, {sr(R_W2,4)}, {sr(sWR)} offen lds", vm=("rg", k))
        a(f"buffer_load_dwordx4 {vr(vWD2)}, {sr(R_W2,4)}, {sr(sWR)} offen offset:1024 lds", vm=("rg", k))


def ring_read(k, ct):
    for u in range(2):
        a(f"ds_read_b64_tr_b16 {vr(WF+4*ct+2*u,2)}, {vr((vC0, vC1)[ct])} offset:{(k%3)*2048+u*1024}", lg=("wf", k, ct))


def sd_read():
    a(f"""s_and_b32 {sr(sU2)}, {sr(sCB)}, 1
          s_lshl_b32 {sr(sU2)}, {sr(sU2)}, 3
          s_add_u32 {sr(sU2)}, {sr(sU2)}, {sr(sWQ)}
          s_lshl_b32 {sr(sU2)}, {sr(sU2)}, 7
          s_add_u32 {sr(sU2)}, {sr(sU2)}, {L_STATS}
          v_lshrrev_b32 {vr(vFL)}, 3, {vr(vL)}
          v_lshl_add_u32 {vr(vFL)}, {vr(vFL)}, 4, {sr(sU2)}""")
    a(f"ds_read_b32 {vr(vSDV)}, {vr(vFL)} offset:4", lg="sd")
    a(f"ds_read_b32 {vr(vSDV+1)}, {vr(vFL)} offset:516", lg="sd")


def putt(t, slot, fn):
    put(t // 4, t % 4, slot, fn)


put(F2IT - 1, 1, 0, ring_addr)
put(F2IT - 1, 2, 0, sd_read)
FT0 = 4 * (15 - NI // 2)
T2 = 4 * F2IT
assert FT0 - T2 >= 8 and WIT + 4 <= F2IT
putt(T2, 2, lambda: a(f"v_add_u32 {vr(vWD2)}, {8192-1024}, {vr(vWD)}"))
for k in range(3):
    putt(T2 + 1 + 2 * k, 0, lambda k=k: (ring_m0(k), ring_so(k)))
    putt(T2 + 1 + 2 * k, 2, lambda k=k: (ring_dma(k), hload(4 * k)))
    putt(T2 + 2 + 2 * k, 2, lambda k=k: (hload(4 * k + 1), hload(4 * k + 2), hload(4 * k + 3)))
    putt(T2 + 3 + 2 * k, 1, lambda k=k: h_next(4 * k + 4))
for k in range(NI):
    t = FT0 + 2 * k
    putt(t - 1, 3 if k else 2, lambda k=k: (a.wait(vm=("rg", k)), ring_read(k, 0)))
    putt(t, 3, lambda k=k: ring_read(k, 1))
    putt(t, 2, lambda k=k: ring_m0(k + 3))
    putt(t + 1, 1, lambda k=k: ring_so(k + 3))
    putt(t + 1, 2, lambda k=k: ring_dma(k + 3))
for k in range(NI):
    t = FT0 + 2 * k
    putt(t + 3, 2, lambda k=k: hload(k + 12))
    if (k + 13) % 4 == 0:
        putt(t + 5, 0, lambda k=k: h_next(k + 13))
if OPT["prio"]:
    P1, P0 = OPT.get("p1", 46), OPT.get("p0", 60)
    put(P1 // 4, P1 % 4, 1, lambda: a("s_setprio 1"))
    put(P0 // 4, P0 % 4, 1, lambda: a("s_setprio 0"))


def run_extras(it, tile, slot):
    for fn in extras.get((it, tile, slot), []):
        fn()


def exps(b, lo, hi):
    for i in range(lo, hi):
        a(f"v_exp_f32 {vr(b+i)}, {vr(b+i)}")


ORD = [1, 2, 3, 0]
T = [64 + i for i in range(32)]
CA = vbuf(13)
VS = vbuf(15)
assert 3 + XB <= F2IT


def cmb_addr(j):
    a(f"""s_xor_b32 {sr(sU)}, {sr(sW)}, {j}
          s_mul_i32 {sr(sU)}, {sr(sU)}, 7168
          s_add_u32 {sr(sU)}, {sr(sU)}, {L_CMB + max(j-1, 0)*2304}
          v_add_u32 {vr(CA+2*j)}, {sr(sU)}, {vr(vL16)}
          v_lshl_add_u32 {vr(CA+2*j+1)}, {vr(vL)}, 2, {sr(sU)}""")


def cmb_write(j):
    o = (j - 1) * 2304
    a(f"ds_write_b128 {vr(CA)}, {vr(O[j],4)} offset:{o}", lg="c")
    a(f"ds_write_b128 {vr(CA)}, {vr(O[j]+4,4)} offset:{o+1024}", lg="c")
    a(f"ds_write_b32 {vr(CA+1)}, {vr(O[j]+8)} offset:{o+2048}", lg="c")


def w_addr():
    a(f"""s_and_b32 {sr(sU)}, {sr(sLA)}, 0xfffff800
          v_add_u32 {vr(vC0)}, {sr(sU)}, {vr(vB0)}
          v_add_u32 {vr(vC1)}, {sr(sU)}, {vr(vB1)}""")


put(15, 0, 0, w_addr)
for j in range(4):
    put(15, j // 2, 1 + j % 2, lambda j=j: cmb_addr(j))
put(15, 2, 0, lambda: cmb_write(1))
put(15, 3, 0, lambda: cmb_write(2))
mfma32(S[0], KB[0], Q[ORD[0]], "0")
for t in range(64):
    it, j = t // 4, t % 4
    X, Y = S[t & 1], S[(t + 1) & 1]
    stamp(f"t{t}")
    exps(X, 0, 2)
    if t > 0:
        pit, pj = (t - 1) // 4, (t - 1) % 4
        smf(O[ORD[pj]], vbuf(pit) + 4, Y + 8, vIDX)
    if j == 3:
        a.wait(vm=("v", it + 1))
    run_extras(it, j, 0)
    exps(X, 2, 5)
    if t < 63:
        nit, nj = (t + 1) // 4, (t + 1) % 4
        mfma32(Y, kbuf(nit), Q[ORD[nj]], "0")
    run_extras(it, j, 1)
    ff = FT0 <= t < FT0 + 2 * NI
    exps(X, 5, 10 if ff else 11)
    smf(O[ORD[j]], vbuf(it), X, vIDX)
    if ff:
        k, ct = divmod(t - FT0, 2)
        a.wait(vm=("hf", k), lg=("wf", k, ct))
    run_extras(it, j, 2)
    if t == 63:
        cmb_write(3)
    if ff:
        exps(X, 10, 14)
        mfma32(FA[ct], WF + 4 * ct, HF + 4 * k, "0" if k == 0 else FA[ct])
        run_extras(it, j, 3)
        exps(X, 14, 16)
    else:
        assert (it, j, 3) not in extras
        exps(X, 11, 16)
a.wait(vm="w2a", lg="all")
smf(O[0], vbuf(15) + 4, S[1] + 8, vIDX)
stamp("attend")

a("s_barrier")
stamp("barc")
for j in range(1, 4):
    a(f"ds_read_b128 {vr(O[j],4)}, {vr(CA+2*j)}", lg=("c", j))
    a(f"ds_read_b128 {vr(O[j]+4,4)}, {vr(CA+2*j)} offset:1024", lg=("c", j))
    a(f"ds_read_b32 {vr(O[j]+8)}, {vr(CA+2*j+1)} offset:2048", lg=("c", j))
for j in range(1, 4):
    a.wait(lg=("c", j))
    for i in range(9):
        a(f"v_add_f32 {vr(O[0]+i)}, {vr(O[0]+i)}, {vr(O[j]+i)}")
a(f"""v_add_f32 {vr(T[2])}, |{vr(O[0])}|, |{vr(O[0]+1)}|
      v_add_f32 {vr(T[3])}, |{vr(O[0]+2)}|, |{vr(O[0]+3)}|
      v_cmp_nle_f32 vcc, {f32(2.0**-64)}, {vr(O[0]+8)}
      v_add_f32 {vr(T[2])}, |{vr(O[0]+4)}|, {vr(T[2])}
      s_mov_b64 s[76:77], vcc
      v_add_f32 {vr(T[3])}, |{vr(O[0]+5)}|, {vr(T[3])}
      v_cmp_nge_f32 vcc, {f32(2.0**64)}, {vr(O[0]+8)}
      v_add_f32 {vr(T[2])}, |{vr(O[0]+6)}|, {vr(T[2])}
      s_or_b64 s[76:77], s[76:77], vcc
      v_add_f32 {vr(T[3])}, |{vr(O[0]+7)}|, {vr(T[3])}
      v_add_f32 {vr(T[2])}, {vr(T[2])}, {vr(T[3])}
      v_cmp_nge_f32 vcc, {f32(2.0**126)}, {vr(T[2])}
      s_or_b64 s[76:77], s[76:77], vcc""")
a("s_branch L_SLOW" if OPT["force_slow"] else "s_cbranch_scc1 L_SLOW")
a.label("L_NORM")
a(f"v_rcp_f32 {vr(T[2])}, {vr(O[0]+8)}")
WR = 32
pC = [Ptr(vC0), Ptr(vC1)]


def w_read(i, addr, tag):
    for ct in range(2):
        for u in range(2):
            tr(WR + 8 * (i & 3) + 4 * ct + 2 * u, pC[ct], addr + u * 1024, (tag, i))


w_read(0, 0, "f")
for i in range(8):
    a(f"v_mul_f32 {vr(O[0]+i)}, {vr(O[0]+i)}, {vr(T[2])}")
for i in range(4):
    a(f"v_cvt_pk_bf16_f32 {vr(T[4]+i)}, {vr(O[0]+2*i)}, {vr(O[0]+2*i+1)}")
a(f"buffer_store_dwordx4 {vr(T[4],4)}, {vr(vL16)}, {sr(R_WS,4)}, {sr(sO)} offen sc1", vm="o")
stamp("ost")
w_read(1, 8192, "f")
sWoS = sT[3]
a(f"""s_lshl_b32 {sr(sWoS)}, {sr(sW)}, 13
      s_and_b32 {sr(sU2)}, {sr(sOUT)}, 0x3ff
      s_add_u32 {sr(sWoS)}, {sr(sWoS)}, {sr(sU2)}
      s_sub_u32 {sr(sWoS)}, {sr(sWoS)}, 0x10000
      s_cmp_ge_u32 {sr(sW)}, 4
      s_barrier
      s_cbranch_scc1 L_TC""")

vOUT, vPW, vPR = T[8], T[10], T[14]
vX, vB2 = 128, 136
AF, PF3 = OPT.get("af", 5), OPT.get("pf3", 10)
pw_addr = [f"v_and_b32 {vr(vFL)}, 7, {vr(vL)}",
           f"v_xor_b32 {vr(vPW)}, {vr(vFL)}, {vr(vHH)}",
           f"v_lshlrev_b32 {vr(vPW)}, 4, {vr(vPW)}",
           f"v_lshl_add_u32 {vr(vPW)}, {vr(vL31)}, 8, {vr(vPW)}",
           f"s_lshl_b32 {sr(sU2)}, {sr(sW)}, 13",
           f"v_add_u32 {vr(vPW)}, {sr(sU2)}, {vr(vPW)}",
           f"v_xor_b32 {vr(vPW+1)}, 32, {vr(vPW)}",
           f"v_xor_b32 {vr(vPW+2)}, 64, {vr(vPW)}",
           f"v_xor_b32 {vr(vPW+3)}, 0x60, {vr(vPW)}"]
assert L_PART == 0


def stage(ops, hook, flag):
    global side
    side = list(ops)
    for p in pC:
        p.base = 0
    for i in range(12):
        k = NI + i
        a.wait(vm=("hf", k), lg=("f", i))
        mfma32(FA[0], WR + 8 * (i & 3), HF + 4 * (k % 12), FA[0])
        if i + 2 < 12:
            w_read(i + 2, (i + 2) * 8192, "f")
        hook(i, 0)
        mfma32(FA[1], WR + 8 * (i & 3) + 4, HF + 4 * (k % 12), FA[1])
        if i < 8:
            dma(vWD, R_WO, sWoS, (sLA, L_WO + i * 8192), "wo", f"s_add_u32 {sr(sWoS)}, {sr(sWoS)}, 0x10000")
        side_ops(5)
        if i == AF:
            a.wait(vm="o")
            a("s_barrier")
            flag()
            stamp("a6")
        elif i == 7 and AF < 7:
            a("s_barrier")
        hook(i, 1)
    assert not side


def pw1(acc, n):
    ct, g = n >> 2, n & 3
    a(f"ds_write_b128 {vr(vPW+g)}, {vr(acc[ct]+4*g,4)} offset:{ct*128}", lg="p")


sv = (list(a.vm), list(a.lg))
role[0] = "H"
f3load = f"v_mov_b32 {vr(vFP)}, 0\nbuffer_atomic_add {vr(vFP)}, off, {sr(R_WS,4)}, {sr(sT[5])} offset:32 sc0 sc1"
OF = [96 + 4 * i for i in range(13)] + [0, 4, 8]
oq = list(range(16))
h_ops = pw_addr + [
    f"s_lshr_b32 {sr(sU)}, {sr(sW)}, 1",
    f"s_lshl_b32 {sr(sU2)}, {sr(sU)}, 2",
    f"s_add_u32 {sr(sT[5])}, {sr(sLINE)}, {sr(sU2)}",
    f"s_lshr_b32 {sr(sU2)}, {sr(sCB)}, 3",
    f"s_xor_b32 {sr(sU2)}, {sr(sU2)}, {sr(sU)}",
    f"s_add_u32 s20, {sr(sU2)}, 7",
    f"s_lshr_b32 {sr(sT[2])}, {sr(sOUT)}, 16",
    f"s_lshl_b32 {sr(sT[2])}, {sr(sT[2])}, 1",
    f"s_and_b32 {sr(sU2)}, {sr(sW)}, 1",
    f"s_add_u32 {sr(sT[2])}, {sr(sT[2])}, {sr(sU2)}",
    f"s_lshl_b32 {sr(sT[2])}, {sr(sT[2])}, 1",
    f"s_add_u32 {sr(sT[2])}, {sr(sT[2])}, {sr(sU)}",
    f"s_lshl_b32 {sr(sT[2])}, {sr(sT[2])}, 14",
    f"s_add_u32 {sr(sT[2])}, {sr(sT[2])}, {WS_O}"]


def oload():
    if not oq:
        return
    i = oq.pop(0)
    a(f"buffer_load_dwordx4 {vr(OF[i],4)}, {vr(vL16)}, {sr(R_WS,4)}, {sr(sT[2])} offen offset:{(i&3)*1024} sc1", vm=("of", i))
    if i & 3 == 3 and i < 15:
        a(f"s_add_u32 {sr(sT[2])}, {sr(sT[2])}, 4096")


def h_flag():
    assert not side
    a("s_mov_b64 exec, 1")
    a(f3load, vm="f3")
    a("s_mov_b64 exec, -1")


def h_hook(i, h):
    if (i, h) == (PF3, 1):
        a.wait(vm="f3")
        a("s_mov_b64 exec, 1")
        poll(f3load, 1, vFP, first_done=True, expect="s20")
        a("s_mov_b64 exec, -1")
        stamp("f3seen")
        oload()
    if i > PF3 or (i, h) == (PF3, 1):
        oload()


assert PF3 >= max(AF, 7)
stage(h_ops, h_hook, h_flag)
stamp("g1")
a(f"""s_lshl_b32 {sr(sU2)}, {sr(sU)}, 15
      s_add_u32 {sr(sU2)}, {sr(sU2)}, {L_WO}
      v_add_u32 {vr(vC0)}, {sr(sU2)}, {vr(vB0)}
      v_add_u32 {vr(vC1)}, {sr(sU2)}, {vr(vB1)}""")
while len(oq) > 8:
    oload()
for n in range(8):
    pw1(FA, n)
    oload()
a.wait(vm="wo", lg="all")
a("s_barrier")
stamp("g3")
pC = [Ptr(vC0), Ptr(vC1)]
for i in range(3):
    w_read(i, i * 2048, "wo")
for g in range(4):
    a(f"v_add_u32 {vr(vPW+g)}, {L_PB - L_PART}, {vr(vPW+g)}")
for i in range(16):
    a.wait(vm=("of", i), lg=("wo", i))
    if i == 0:
        stamp("wost")
    mfma32(FA[0], WR + 8 * (i & 3), OF[i], "0" if i == 0 else FA[0])
    if i + 3 < 16:
        w_read(i + 3, (i + 3) * 2048, "wo")
    mfma32(FA[1], WR + 8 * (i & 3) + 4, OF[i], "0" if i == 0 else FA[1])
for n in range(8):
    pw1(FA, n)
a.wait(lg="all")
a("s_barrier")
a("s_branch L_DONE" if OPT["stamps"] else "s_endpgm")

a.label("L_TC")
role[0] = "C"
a.vm, a.lg = list(sv[0]), list(sv[1])
vR2 = vSDV
G, XU, PR, BU, TE = 0, 16, 148, T[16], 32
c_ops = pw_addr + [
    f"v_mov_b32 {vr(T[3])}, 1",
    f"v_lshlrev_b32 {vr(T[1])}, 7, {vr(vL)}",
    f"s_and_b32 {sr(sT[5])}, {sr(sLINE)}, 0xfffff800",
    f"s_lshr_b32 {sr(sU2)}, {sr(sCB)}, 3",
    f"s_lshl_b32 {sr(sU2)}, {sr(sU2)}, 2",
    f"s_add_u32 {sr(sT[5])}, {sr(sT[5])}, {sr(sU2)}",
    "s_mov_b64 s[20:21], 0xffff",
    f"s_bitset0_b32 s20, {sr(sCB)}",
    f"v_lshrrev_b32 {vr(T[2])}, 3, {vr(vL)}",
    f"v_lshlrev_b32 {vr(vPR)}, 1, {vr(vFL)}",
    f"v_xor_b32 {vr(vPR)}, {vr(vPR)}, {vr(T[2])}",
    f"v_lshlrev_b32 {vr(vPR)}, 4, {vr(vPR)}",
    f"v_lshl_add_u32 {vr(vPR)}, {vr(T[2])}, 8, {vr(vPR)}",
    f"s_lshl_b32 {sr(sU2)}, {sr(sWQ)}, 11",
    f"v_add_u32 {vr(vPR)}, {sr(sU2)}, {vr(vPR)}",
    f"v_xor_b32 {vr(vPR+1)}, 16, {vr(vPR)}",
    f"v_lshlrev_b32 {vr(T[9])}, 4, {vr(vFL)}",
    f"v_lshl_add_u32 {vr(vOUT)}, {vr(T[2])}, 10, {vr(T[9])}",
    f"s_and_b32 {sr(sU2)}, {sr(sOUT)}, 0x3ff",
    f"s_add_u32 {sr(sU)}, {sr(sOUT)}, 0x8000",
    lambda: a(f"buffer_load_dwordx4 {vr(vB2,4)}, {vr(T[9])}, {sr(R_B2,4)}, {sr(sU2)} offen", vm="fin"),
    lambda: a(f"buffer_load_dwordx4 {vr(vX,4)}, {vr(vOUT)}, {sr(R_X,4)}, {sr(sOUT)} offen", vm="fin"),
    lambda: a(f"buffer_load_dwordx4 {vr(vX+4,4)}, {vr(vOUT)}, {sr(R_X,4)}, {sr(sU)} offen", vm="fin")]
c_ops += [f"v_and_b32 {vr(vR2+r)}, 0xffff0000, {vr(vR2+r)}" for r in range(2)]
c_ops += [f"v_rcp_f32 {vr(vR2+r)}, {vr(vR2+r)}" for r in range(2)]
c_ops += [""] + [f"v_mul_f32 {vr(vR2+r)}, {vr(vR2+r)}, {vr(vR2+r)}" for r in range(2)]


def c_flag():
    a(f"""s_cmp_lg_u32 {sr(sW)}, 4
          s_cbranch_scc1 L_nof3""")
    keep = list(a.vm)
    a(f"""s_mov_b64 exec, s[20:21]
          buffer_atomic_add {vr(T[3])}, {vr(T[1])}, {sr(R_WS,4)}, {sr(sT[5])} offen offset:32 sc1
          s_mov_b64 exec, -1""")
    a.vm = keep
    a.label("L_nof3")


stage(c_ops, lambda i, h: None, c_flag)
stamp("g1")
a.wait(vm="fin")
for i in range(4):
    a(f"""v_lshlrev_b32 {vr(BU+2*i)}, 16, {vr(vB2+i)}
          v_and_b32 {vr(BU+2*i+1)}, 0xffff0000, {vr(vB2+i)}""")
for n in range(8):
    pw1(FA, n)
    a(f"""v_lshlrev_b32 {vr(XU+2*n)}, 16, {vr(vX+n)}
          v_and_b32 {vr(XU+2*n+1)}, 0xffff0000, {vr(vX+n)}""")
stamp("pw")
a.wait(vm="wo", lg="all")
a("s_barrier")
stamp("g3")


def p_read(r, kq):
    for h in range(2):
        d = G + 8 * r + 4 * h if kq == 0 else PR + 24 * r + 8 * (kq - 1) + 4 * h
        a(f"ds_read_b128 {vr(d,4)}, {vr(vPR+h)} offset:{r*8192+kq*16384}", lg=("p", r, kq))


for kq in range(4):
    p_read(0, kq)
for kq in range(3):
    p_read(1, kq)
a.wait(lg=("p", 0, 0))
p_read(1, 3)
for r in range(2):
    for kq in range(1, 4):
        a.wait(lg=("p", r, kq))
        for i in range(8):
            a(f"v_add_f32 {vr(G+8*r+i)}, {vr(G+8*r+i)}, {vr(PR+24*r+8*(kq-1)+i)}")
for i in range(16):
    a(f"v_fma_f32 {vr(G+i)}, {vr(G+i)}, {vr(vR2+i//8)}, {vr(BU+i%8)}")
for i in range(16):
    a(f"v_mul_f32 {vr(TE+i)}, {f32(-math.log2(math.e))}, {vr(G+i)}")
for i in range(16):
    a(f"v_exp_f32 {vr(TE+i)}, {vr(TE+i)}")
for i in range(16):
    a(f"v_add_f32 {vr(TE+i)}, 1.0, {vr(TE+i)}")
for i in range(16):
    a(f"v_rcp_f32 {vr(TE+i)}, {vr(TE+i)}")
for h in range(2):
    a(f"v_add_u32 {vr(vPR+h)}, {L_PB - L_PART}, {vr(vPR+h)}")
for i in range(16):
    a(f"v_mul_f32 {vr(G+i)}, {vr(G+i)}, {vr(TE+i)}")
stamp("gate")
a("s_barrier")
stamp("fin")
for r in range(2):
    for kh in range(2):
        for h in range(2):
            a(f"ds_read_b128 {vr(PR+16*r+8*kh+4*h,4)}, {vr(vPR+h)} offset:{r*8192+kh*16384}", lg=("p", r))
for r in range(2):
    a.wait(lg=("p", r))
    b = PR + 16 * r
    for i in range(8):
        a(f"v_add_f32 {vr(b+i)}, {vr(b+i)}, {vr(b+8+i)}")
    for i in range(8):
        a(f"v_fma_f32 {vr(b+i)}, {vr(b+i)}, {vr(G+8*r+i)}, {vr(XU+8*r+i)}")
    for i in range(4):
        a(f"v_cvt_pk_bf16_f32 {vr(TE+4*r+i)}, {vr(b+2*i)}, {vr(b+2*i+1)}")
    a(f"buffer_store_dwordx4 {vr(TE+4*r,4)}, {vr(vOUT)}, {sr(R_OUT,4)}, {sr(sU if r else sOUT)} offen")
a.label("L_DONE")
role[0] = "HC"
if OPT["stamps"]:
    stamp("end")
    a("s_memtime s[8:9]")
    a(f"""s_waitcnt lgkmcnt(0)
          s_sub_u32 s0, s8, s0
          s_sub_u32 {sr(sU)}, {sr(sLINE)}, {WS_FL}
          s_lshl_b32 {sr(sU)}, {sr(sU)}, 3
          s_lshl_b32 {sr(sU2)}, {sr(sW)}, 7
          s_add_u32 {sr(sU)}, {sr(sU)}, {sr(sU2)}
          s_add_u32 {sr(sU)}, {sr(sU)}, {WS_TS}
          s_mov_b64 exec, 1""")
    for i in range(11):
        a(f"v_mov_b32 {vr(i)}, {sr(sSTAMP+2*i)}")
    a("v_mov_b32 v11, s0")
    for i in range(3):
        a(f"buffer_store_dwordx4 {vr(4*i,4)}, off, {sr(R_WS,4)}, {sr(sU)} offset:{16*i}")
if OPT.get("amp") is not None:
    i = OPT["amp"]
    a(f"""s_cmp_lg_u32 {sr(sW)}, {OPT.get('ampw', 0)}
          s_cbranch_scc1 L_end
          s_sub_u32 s4, {sr(sSTAMP+2*i)}, {sr(sSTAMP)}
          s_lshl_b32 s4, s4, 2
          s_min_u32 s4, s4, 100000""")
    a.label("L_amp")
    a(f"""s_memrealtime s[6:7]
          s_waitcnt lgkmcnt(0)
          s_sub_u32 s6, s6, {sr(sSTAMP+20)}
          s_cmp_lt_u32 s6, s4
          s_cbranch_scc1 L_amp""")
a("s_endpgm")

a.label("L_SLOW")
a.reset_counts()
C = 16
M = T[2]
a(f"""s_nop 7
      s_lshr_b32 {sr(sU)}, {sr(sKV)}, 17
      s_lshl_b32 {sr(sU)}, {sr(sU)}, 17
      s_mov_b32 {sr(sU2)}, 64
      v_mov_b32 {vr(M)}, 0xff800000""")
a.label("L_S1")
a(f"""buffer_load_dwordx4 {vr(KB[0],4)}, {vr(vL16)}, {sr(R_WS,4)}, {sr(sU)} offen sc1
      s_waitcnt vmcnt(0)""")
mfma32(S[1], KB[0], Q[0], "0")
for i in range(8):
    a(f"v_max3_f32 {vr(M)}, {vr(M)}, {vr(S[1]+2*i)}, {vr(S[1]+2*i+1)}")
a(f"""s_add_u32 {sr(sU)}, {sr(sU)}, 2048
      s_sub_u32 {sr(sU2)}, {sr(sU2)}, 1
      s_cmp_lg_u32 {sr(sU2)}, 0
      s_cbranch_scc1 L_S1
      v_mov_b32 {vr(T[3])}, {vr(M)}
      s_nop 1
      v_permlane32_swap_b32 {vr(M)}, {vr(T[3])}
      v_max_f32 {vr(M)}, {vr(M)}, {vr(T[3])}
      s_sub_u32 {sr(sU)}, {sr(sU)}, 0x20000
      s_mov_b32 {sr(sU2)}, 64""")
for i in range(16):
    a(f"v_sub_f32 {vr(C+i)}, 0, {vr(M)}")
    a(f"v_mov_b32 {vr(O[0]+i)}, 0")
a.label("L_S2")
a(f"""buffer_load_dwordx4 {vr(KB[0],4)}, {vr(vL16)}, {sr(R_WS,4)}, {sr(sU)} offen sc1
      s_mov_b64 exec, {sr(sVM,2)}
      buffer_load_dwordx4 {vr(VS,4)}, {vr(vVO)}, {sr(R_WS,4)}, {sr(sU)} offen offset:1024 sc1
      buffer_load_dwordx4 {vr(VS+4,4)}, {vr(vVO)}, {sr(R_WS,4)}, {sr(sU)} offen offset:1536 sc1
      s_mov_b64 exec, -1
      s_waitcnt vmcnt(0)""")
mfma32(S[1], KB[0], Q[0], C)
exps(S[1], 0, 16)
smf(O[0], VS, S[1], vIDX)
smf(O[0], VS + 4, S[1] + 8, vIDX)
a(f"""s_add_u32 {sr(sU)}, {sr(sU)}, 2048
      s_sub_u32 {sr(sU2)}, {sr(sU2)}, 1
      s_cmp_lg_u32 {sr(sU2)}, 0
      s_cbranch_scc1 L_S2
      s_nop 15
      s_branch L_NORM""")
a.label("L_end")
a("s_endpgm")

ref = open(__file__.rsplit("/", 1)[0] + "/../cdna_kernels/" + NAME + ".s.ref").read().split("\n")
head = [l for l in ref if l.startswith(";") and "@launch" not in l]
if OPT["stamps"]:
    st = STSETS[OPT.get("st", 0)]
    head.append("; stamps H " + " ".join(st["H"]))
    head.append("; stamps C " + " ".join(st["C"]))
out = "\n".join(head) + f"""
; @launch grid=(256,1,1) block=(512,1,1) lds=163840
.amdgcn_target "amdgcn-amd-amdhsa--gfx950"
.text
.globl {NAME}_kernel
.p2align 8
.type {NAME}_kernel,@function
""" + a.text() + f""".section .rodata,"a"
.p2align 6
.amdhsa_kernel {NAME}_kernel
  .amdhsa_next_free_vgpr 256
  .amdhsa_next_free_sgpr 102
  .amdhsa_accum_offset 256
  .amdhsa_group_segment_fixed_size 0
  .amdhsa_kernarg_size 88
  .amdhsa_user_sgpr_count 2
  .amdhsa_user_sgpr_kernarg_segment_ptr 1
  .amdhsa_system_sgpr_workgroup_id_x 1
  .amdhsa_float_denorm_mode_32 3
.end_amdhsa_kernel
"""
open(sys.argv[1], "w").write(out)
if OPT.get("pads"):
    for p in a.pads:
        print("pad", p)
```

```python
import re

TRANS = ("v_exp_f32", "v_log_f32", "v_rcp_f32", "v_rsq_f32", "v_sqrt_f32", "v_sin_f32", "v_cos_f32")
_REG = re.compile(r"(?<![\w.])(-|\|)?([vsa])(?:\[(\d+):(\d+)\]|(\d+))(?![\w])")


def regs_of(tok):
    out = set()
    for m in _REG.finditer(tok):
        k = m.group(2)
        if m.group(3) is not None:
            out |= {(k, i) for i in range(int(m.group(3)), int(m.group(4)) + 1)}
        else:
            out.add((k, int(m.group(5))))
    if re.search(r"\bvcc\b", tok):
        out.add(("s", "vcc"))
    if re.search(r"\bm0\b", tok):
        out.add(("s", "m0"))
    return out


def passes(op):
    if "4x4x4" in op:
        return 2
    if "16x16" in op:
        return 4
    return 8


class Ins:
    def __init__(self, text):
        self.text = text
        t = text.split(";")[0].strip()
        self.is_ins = bool(t) and not t.endswith(":") and not t.startswith(".")
        self.op = ""
        self.kind = "other"
        self.dst = set()
        self.src = set()
        self.ab = set()
        self.c = set()
        self.data = set()
        self.states = 1
        if not self.is_ins:
            return
        parts = t.split(None, 1)
        op = self.op = parts[0]
        ops = [x.strip() for x in parts[1].split(",")] if len(parts) > 1 else []
        base = re.sub(r"_(e32|e64)$", "", op)
        self.base = base
        if op == "s_nop":
            self.states = int(ops[0], 0) + 1
        elif op.startswith("v_mfma"):
            self.kind = "mfma"
            self.dst = regs_of(ops[0])
            self.ab = regs_of(ops[1]) | regs_of(ops[2])
            self.c = regs_of(ops[3])
            self.src = self.ab | self.c
        elif op.startswith("v_smfmac"):
            self.kind = "mfma"
            self.dst = regs_of(ops[0])
            self.ab = regs_of(ops[1]) | regs_of(ops[2]) | regs_of(ops[3])
            self.c = set(self.dst)
            self.src = self.ab | self.c
        elif op.startswith("v_"):
            self.kind = "valu"
            self.dst = regs_of(ops[0])
            rest = ops[1:]
            if base in ("v_add_co_u32", "v_addc_co_u32"):
                self.dst |= regs_of(ops[1])
                rest = ops[2:]
            for o in rest:
                self.src |= regs_of(o)
            if base.startswith("v_permlane"):
                self.dst |= regs_of(ops[1])
                self.src |= regs_of(ops[0])
            if base.startswith("v_fmac") or base.startswith("v_dot2c"):
                self.src |= regs_of(ops[0])
        elif op.startswith("buffer_") or op.startswith("global_"):
            self.kind = "vmem"
            allr = set()
            for o in ops:
                allr |= regs_of(o)
            if re.search(r"\blds\b", t):
                self.src = allr | {("s", "m0")}
                self.dma = True
            elif "load" in op:
                self.dst = regs_of(ops[0])
                for o in ops[1:]:
                    self.src |= regs_of(o)
            else:
                self.src = allr
                if "atomic" in op and "sc0" in t:
                    self.dst = regs_of(ops[0])
                if "x3" in op or "x4" in op:
                    self.data = regs_of(ops[0] if op.startswith("buffer_") else ops[1])
        elif op.startswith("ds_"):
            self.kind = "ds"
            if "read" in op or "rtn" in op or "permute" in op or "swizzle" in op:
                self.dst = regs_of(ops[0])
                for o in ops[1:]:
                    self.src |= regs_of(o)
            else:
                for o in ops:
                    self.src |= regs_of(o)
        elif op.startswith("s_"):
            self.kind = "salu"
            if ops and not op.startswith(("s_cmp", "s_cbranch", "s_branch", "s_waitcnt", "s_barrier", "s_setprio", "s_bitcmp")):
                self.dst = regs_of(ops[0])
                for o in ops[1:]:
                    self.src |= regs_of(o)
                if op.startswith(("s_addk", "s_mulk", "s_bitset")):
                    self.src |= self.dst


def need(p, c):
    n = 0
    vd = {r for r in p.dst if r[0] in "va"}
    sd = {r for r in p.dst if r[0] == "s"}
    if p.kind == "valu":
        if c.kind == "mfma" and vd & c.src:
            n = max(n, 2)
        if c.kind == "valu":
            if p.base in TRANS and c.base not in TRANS and vd & c.src:
                n = max(n, 1)
            if c.base in ("v_readfirstlane_b32", "v_readlane_b32") and vd & c.src:
                n = max(n, 1)
            if (c.base.startswith("v_permlane") or "dpp" in c.text or "row_" in c.text or "quad_perm" in c.text) and vd & c.src:
                n = max(n, 2)
            if sd & c.src:
                n = max(n, 2)
            if ("sdwa" in p.text or "op_sel" in p.text) and vd & (c.src | c.dst):
                n = max(n, 1)
        if c.kind == "vmem" and sd & c.src:
            n = max(n, 5)
        if c.kind == "salu" and sd & c.src:
            n = max(n, 1)
    if p.kind == "mfma":
        k = {2: 0, 4: 1, 8: 2}[passes(p.op)]
        if c.kind == "mfma":
            if vd & c.ab:
                n = max(n, (5, 8, 12)[k])
            if vd & c.c:
                if c.c == vd and passes(c.op) == passes(p.op):
                    n = max(n, (2, 0, 0)[k])
                else:
                    n = max(n, (4, 6, 10)[k])
            elif vd & c.dst:
                n = max(n, (4, 6, 10)[k]) if passes(c.op) < passes(p.op) else n
        elif c.kind in ("valu", "vmem", "ds"):
            if vd & (c.src | c.dst):
                n = max(n, (5, 8, 12)[k])
            if c.kind == "valu" and p.c & c.dst:
                n = max(n, (1, 3, 7)[k])
    if p.kind == "vmem" and p.data:
        if c.kind in ("valu", "mfma") and p.data & c.dst:
            n = max(n, 2)
        elif p.data & c.dst:
            n = max(n, 1)
    if p.kind == "salu" and ("s", "m0") in p.dst and ("s", "m0") in c.src and c.kind == "vmem":
        n = max(n, 1)
    return n


class Asm:
    def __init__(self):
        self.items = []
        self.vm = []
        self.lg = []
        self.pads = []

    def raw(self, text):
        self.items.append(Ins(text))

    def __call__(self, text, vm=None, lg=None):
        for line in text.strip().split("\n"):
            line = line.strip()
            if not line:
                continue
            ins = Ins(line)
            if ins.is_ins:
                self._pad(ins)
                if ins.kind == "vmem":
                    self.vm.append(vm)
                    assert len(self.vm) <= 63, ("vm overflow", line)
                if ins.kind == "ds":
                    self.lg.append(lg)
                    assert len(self.lg) <= 15, ("lgkm overflow", line)
            self.items.append(ins)

    def _pad(self, ins):
        dist = 0
        worst = 0
        for p in reversed(self.items):
            if not p.is_ins:
                continue
            if dist >= 20:
                break
            n = need(p, ins)
            if n - dist > worst:
                worst = n - dist
            dist += p.states
        if worst > 0:
            self.pads.append((len(self.items), worst, ins.text))
            while worst > 0:
                k = min(worst, 16)
                self.items.append(Ins(f"s_nop {k-1}"))
                worst -= k

    def label(self, name):
        self.items.append(Ins(name + ":"))

    def comment(self, text):
        self.items.append(Ins("; " + text))

    def _count(self, q, tags):
        idx = -1
        for i, t in enumerate(q):
            if t in tags:
                idx = i
        return None if idx < 0 else len(q) - 1 - idx

    def wait(self, vm=None, lg=None):
        parts = []
        if vm is not None:
            n = 0 if vm == "all" else self._count(self.vm, vm if isinstance(vm, (list, tuple, set)) and not isinstance(vm, tuple) else [vm])
            if n is not None:
                assert n <= 63, n
                parts.append(f"vmcnt({n})")
                self.vm = self.vm[len(self.vm) - n:] if n else []
        if lg is not None:
            n = 0 if lg == "all" else self._count(self.lg, lg if isinstance(lg, list) else [lg])
            if n is not None:
                n = min(n, 15)
                parts.append(f"lgkmcnt({n})")
                self.lg = self.lg[len(self.lg) - n:] if n else []
        if parts:
            self("s_waitcnt " + " ".join(parts))

    def room(self, n):
        if len(self.lg) + n > 15:
            k = 15 - n
            self(f"s_waitcnt lgkmcnt({k})")
            self.lg = self.lg[len(self.lg) - k:]

    def reset_counts(self):
        self.vm = []
        self.lg = []

    def text(self):
        out = []
        for i in self.items:
            out.append(("    " + i.text) if i.is_ins or i.text.startswith(";") else i.text)
        return "\n".join(out) + "\n"


def vr(a, n=1):
    return f"v{a}" if n == 1 else f"v[{a}:{a+n-1}]"


def sr(a, n=1):
    return f"s{a}" if n == 1 else f"s[{a}:{a+n-1}]"
```

```python
import sys, math, struct
from asmlib import Asm, vr, sr

NAME = "recurrent_scan__softmax_full_mha__dense_activation_squared_relu__prompt"
OPT = dict(stamps=0, rot=7, force_slow=0, prio=1, spin=1 << 18, up=3, touch=0, pf=4, tit=13, f2it=8, j6=3, j7=3, j8=4, j9=5, b11=68, b11d=8, warm=1, cprio=1, cp2=1)
for arg in sys.argv[2:]:
    k, v = arg.split("=")
    OPT[k] = int(v, 0)

WS_KV = 0
WS_H = 4 << 20
WS_O = WS_H + 64 * 86 * 1024
WS_FL = WS_O + (2 << 20)
WS_TS = 13 << 20
WS_SIZE = 14 << 20
SLOT = 24576
L_WQ = 49152
L_QX = 147456
L_STATS = 155648
L_CSP = 157696
L_FLG = 160768
L_W1 = [81920 + 12288 * i for i in range(5)] + [12288 * i for i in range(3)]
L_CMB = 98304
L_WO = 98304
L_PART = 0
L_PB = 65536
NI = 10
P_X, P_WQKV, P_WO, P_W1, P_B1, P_W2, P_B2, P_OUT, P_DBG, P_WS = 4, 6, 8, 12, 14, 16, 18, 20, 22, 24
R_X, R_WQKV, R_WO, R_W1, R_W2, R_OUT, R_WS, R_B1, R_B2, R_DBG = 28, 32, 36, 40, 44, 48, 52, 56, 60, 64
sW, sWQ, sRB, sCB, sROT = 68, 69, 70, 71, 72
sT = [73, 74, 75, 76, 77, 78, 79]
sVM = 26
sLINE = 3
sT0 = 10
sSTAMP = 80
vL, vHH, vL31, vTR = 252, 253, 254, 255


def f32(x):
    return "0x%08x" % struct.unpack("<I", struct.pack("<f", x))[0]


a = Asm()


STSETS = {
    0: dict(H=["start", "bar8", "x", "f1seen", "bar11", "x", "attst", "attend", "g1", "f3seen", "end"],
            C=["start", "c0", "c7", "kvst", "f1sent", "ffnend", "attst", "attend", "g1", "x", "end"]),
    1: dict(H=["start", "bar8", "h8b", "h9", "h10", "h11", "bar11", "x", "f1seen", "attst", "end"],
            C=["start", "c0", "c7", "kvst", "i0", "c9", "f1sent", "c10", "c11", "attst", "end"]),
    2: dict(H=["start", "attend", "barc", "ost", "a6", "g1", "x", "f3seen", "g3", "wost", "end"],
            C=["start", "attend", "barc", "ost", "a6", "g1", "pw", "gate", "g3", "fin", "end"]),
    3: dict(H=["start", "hk", "hi2", "hw3", "ha3", "hi3", "hw4", "ha4", "hi4", "hup", "end"],
            C=["start", "c0", "ca3", "cp3", "ca4", "cp4", "ca5", "cp5", "cp2", "c7", "end"]),
    4: dict(H=["start", "h9", "h9a", "h9b", "h9c", "h10", "h10a", "h10b", "h10c", "h11", "end"],
            C=["start", "i27", "i33", "i39", "i45", "i49", "i57", "i65", "i73", "i90", "end"]),
    5: dict(H=["start", "attst", "t20", "t32", "t33", "t40", "t50", "t56", "t60", "attend", "end"],
            C=["start", "attst", "t20", "t32", "t33", "t40", "t50", "t56", "t60", "attend", "end"]),
    6: dict(H=["start"] + ["x"] * 9 + ["end"], C=["start"] + ["x"] * 9 + ["end"]),
    7: dict(H=["start", "h9", "h10", "h11", "f1seen", "x", "x", "x", "x", "attst", "end"],
            C=["start", "c8b", "i23", "i32", "i48", "i63", "i90", "ffnend", "kvl", "attst", "end"]),
    8: dict(H=["start", "attst", "t1", "t2", "t4", "t6", "t8", "t10", "t16", "t24", "end"],
            C=["start", "attst", "t1", "t2", "t4", "t6", "t8", "t10", "t16", "t24", "end"]),
    9: dict(H=["start"] + [f"ha{i}" for i in range(8)] + ["hk", "end"], C=["start"] + [f"cp{i}" for i in range(8)] + ["kvst", "end"]),
    10: dict(H=["start"] + [f"hw{i}" for i in range(8)] + ["hk", "end"], C=["start"] + [f"ca{i}" for i in range(8)] + ["kvst", "end"]),
    11: dict(H=["start", "p1", "p2", "p3", "p4", "hk", "hd0", "hup", "x", "x", "end"], C=["start", "p1", "q1", "q2", "q3", "q4", "ca0", "x", "x", "x", "end"]),
    12: dict(H=["start", "attst", "t10", "t19", "t20", "t27", "t28", "t32", "t33", "attend", "end"],
             C=["start", "attst", "t10", "t19", "t20", "t27", "t28", "t32", "t33", "attend", "end"]),
}
role = ["HC"]


def stamp(name):
    if not OPT["stamps"]:
        return
    st = STSETS[OPT.get("st", 0)]
    idx = {st[r].index(name) for r in role[0] if name in st[r]}
    for i in idx:
        a(f"{'s_memtime' if OPT['stamps'] == 2 else 's_memrealtime'} {sr(sSTAMP + 2*i, 2)}")


def cop(c, n):
    return c if isinstance(c, str) else vr(c, n)


def mfma32(d, x, y, c):
    a(f"v_mfma_f32_32x32x16_bf16 {vr(d,16)}, {vr(x,4)}, {vr(y,4)}, {cop(c,16)}")


def mfma16(d, x, y, c):
    a(f"v_mfma_f32_16x16x32_bf16 {vr(d,4)}, {vr(x,4)}, {vr(y,4)}, {cop(c,4)}")


def mfma4(d, x, c):
    a(f"v_mfma_f32_4x4x4_16b_bf16 {vr(d,4)}, {vr(x,2)}, {vr(x,2)}, {cop(c,4)}")


def smf(d, x, y, idx):
    a(f"v_smfmac_f32_32x32x32_bf16 {vr(d,16)}, {vr(x,4)}, {vr(y,8)}, {vr(idx)}")


def srd(r, p, n):
    a(f"""s_mov_b32 {sr(r)}, {sr(p)}
          s_mov_b32 {sr(r+1)}, {sr(p+1)}
          s_mov_b32 {sr(r+2)}, {n}
          s_mov_b32 {sr(r+3)}, 0x20000""")


filler, fill = [], [0]


def dma(voff, r, soff, lds, tag, pre=None):
    a(f"s_add_u32 m0, {sr(lds[0])}, {lds[1]}")
    if pre:
        a(pre)
    a(f"buffer_load_dwordx4 {vr(voff)}, {sr(r,4)}, {sr(soff)} offen lds", vm=tag)
    for _ in range(fill[0]):
        if filler:
            a(filler.pop(0))


class Ptr:
    def __init__(self, reg, base=0):
        self.reg, self.base = reg, base

    def off(self, addr):
        if not 0 <= addr - self.base <= 65535:
            a(f"v_add_u32 {vr(self.reg)}, {(addr - self.base) & 0xffffffff}, {vr(self.reg)}")
            self.base = addr
        return addr - self.base


def tr(dst, p, addr, tag):
    o = p.off(addr)
    a(f"ds_read_b64_tr_b16 {vr(dst,2)}, {vr(p.reg)} offset:{o}", lg=tag)


def rd128(dst, p, addr, tag):
    o = p.off(addr)
    a(f"ds_read_b128 {vr(dst,4)}, {vr(p.reg)} offset:{o}", lg=tag)


def split3_ops(x, bias, d0, d1, t0, t1, mask):
    l = [f"v_cvt_pk_bf16_f32 {vr(t0)}, {vr(x)}, {vr(x)}",
         f"v_lshlrev_b32 {vr(t0)}, 16, {vr(t0)}",
         f"v_sub_f32 {vr(t0)}, {vr(x)}, {vr(t0)}",
         f"v_cvt_pk_bf16_f32 {vr(d0)}, {vr(x)}, {vr(t0)}",
         f"v_and_b32 {vr(t1)}, 0xffff0000, {vr(d0)}",
         f"v_sub_f32 {vr(t1)}, {vr(t0)}, {vr(t1)}",
         f"v_cvt_pk_bf16_f32 {vr(d1)}, {vr(t1)}, {bias}"]
    if mask is not None:
        l += [f"v_and_b32 {vr(d0)}, {vr(d0)}, {vr(mask)}", f"v_and_b32 {vr(d1)}, {vr(d1)}, {vr(mask)}"]
    return l


def emit(l):
    for x in l:
        a(x)


uid = [0]


def poll(load, nreg, reg, first_done=False, expect=None):
    uid[0] += 1
    L, D, C = f"L_poll{uid[0]}", f"L_polld{uid[0]}", f"L_pollc{uid[0]}"
    a(f"s_mov_b32 {sr(sT[6])}, {OPT['spin']}")
    if first_done:
        a(f"s_branch {C}")
    a.label(L)
    for l in load.split("\n"):
        a.raw(l)
    a("s_waitcnt vmcnt(0)")
    a.label(C)
    if nreg == 4:
        a(f"""v_min_u32 {vr(reg)}, {vr(reg)}, {vr(reg+1)}
              v_min3_u32 {vr(reg)}, {vr(reg)}, {vr(reg+2)}, {vr(reg+3)}""")
    a(f"""{f"v_cmp_eq_u32 vcc, 0, {vr(reg)}" if expect is None else f"v_cmp_gt_u32 vcc, {expect}, {vr(reg)}"}
          s_nop 1
          s_cmp_eq_u64 vcc, 0
          s_cbranch_scc1 {D}
          s_sub_u32 {sr(sT[6])}, {sr(sT[6])}, 1
          s_cmp_lg_u32 {sr(sT[6])}, 0
          s_cbranch_scc1 {L}""")
    a.label(D)


def set_flag(soff, tmp, imm=0):
    sv = list(a.vm)
    a(f"""s_mov_b64 exec, 1
          v_mov_b32 {vr(tmp)}, 1
          buffer_store_dword {vr(tmp)}, off, {sr(R_WS,4)}, {sr(soff)} offset:{imm} sc1
          s_mov_b64 exec, -1""")
    a.vm = sv


def tr_addr(dst, hmul, rowbytes, tmp):
    a(f"""v_bfe_u32 {vr(tmp)}, {vr(vL)}, 2, 2
          v_mad_u32_u24 {vr(tmp)}, {vr(vHH)}, {hmul}, {vr(tmp)}
          v_mul_u32_u24 {vr(tmp)}, {rowbytes}, {vr(tmp)}
          v_add_u32 {vr(dst)}, {vr(tmp)}, {vr(vTR)}""")


def tr_addr128(d0, d1, hmul, tmp):
    tr_addr(d0, hmul, 128, tmp)
    a(f"""v_bfe_u32 {vr(tmp)}, {vr(vL)}, 3, 1
          v_lshl_add_u32 {vr(d0)}, {vr(tmp)}, 6, {vr(d0)}
          v_xor_b32 {vr(d1)}, 64, {vr(d0)}""")


def wdma_voff(dst, stride, tmp):
    a(f"""v_bfe_u32 {vr(tmp)}, {vr(vL)}, 4, 1
          v_lshlrev_b32 {vr(tmp)}, 2, {vr(tmp)}
          v_and_b32 {vr(dst)}, 7, {vr(vL)}
          v_xor_b32 {vr(dst)}, {vr(dst)}, {vr(tmp)}
          v_lshlrev_b32 {vr(dst)}, 4, {vr(dst)}
          v_lshrrev_b32 {vr(tmp)}, 3, {vr(vL)}
          v_mul_u32_u24 {vr(tmp)}, {stride}, {vr(tmp)}
          v_add_u32 {vr(dst)}, {vr(dst)}, {vr(tmp)}""")


def make_sel(d, tmp):
    a(f"""v_lshrrev_b32 {vr(tmp)}, 2, {vr(vL)}
          v_xor_b32 {vr(tmp)}, {vr(tmp)}, {vr(vL)}
          v_bfe_u32 {vr(tmp)}, {vr(tmp)}, 2, 1
          v_add_u32 {vr(tmp)}, -1, {vr(tmp)}
          v_and_b32 {vr(d)}, 0x3f803f80, {vr(tmp)}
          v_mov_b32 {vr(d+1)}, {vr(d)}
          v_mov_b32 {vr(d+2)}, {vr(d)}
          v_mov_b32 {vr(d+3)}, {vr(d)}""")


def other_srds():
    srd(R_WO, P_WO, 512 * 512 * 2)
    srd(R_W1, P_W1, 512 * 1376 * 2)
    srd(R_W2, P_W2, 1376 * 512 * 2)
    srd(R_OUT, P_OUT, 2048 * 512 * 2)
    srd(R_WS, P_WS, WS_SIZE)
    srd(R_B1, P_B1, 1376 * 2)
    srd(R_B2, P_B2, 512 * 2)
    srd(R_DBG, P_DBG, 256)
    a(f"""s_mul_i32 {sr(sT0)}, {sr(sCB)}, 3
          s_min_u32 {sr(sT0)}, {sr(sT0)}, 40
          s_lshl_b32 {sr(sLINE)}, {sr(sRB)}, 4
          s_add_u32 {sr(sLINE)}, {sr(sLINE)}, {sr(sCB)}
          s_lshl_b32 {sr(sLINE)}, {sr(sLINE)}, 7
          s_add_u32 {sr(sLINE)}, {sr(sLINE)}, {WS_FL}
          s_mov_b32 {sr(sVM)}, 0xffff
          s_mov_b32 {sr(sVM+1)}, 0xffff""")


class Rec:
    def __init__(self):
        self.l = []

    def __call__(self, text, vm=None, lg=None):
        assert vm is None and lg is None
        self.l += [x.strip() for x in text.strip().split("\n") if x.strip()]

    def comment(self, t):
        pass


def record(fn):
    global a
    keep, a = a, Rec()
    fn()
    l, a = a.l, keep
    return l


O = [0, 16, 32, 48]
S = [64, 80]
Q = [96, 100, 104, 108]
KB = [112, 116, 120]
VB = [124, 132, 140]
HF = 148
vIDX, vL16, vVO, vWD, vFL, vDUM = 236, 237, 238, 239, 240, 251
vFP = 244
sKV, sIT, sH0, sW2, sLA, sKS, sO, sOUT, sF1, sHS = 4, 5, 6, 7, 12, 13, 14, 15, 16, 17
sHS2 = 24
sU, sU2 = sT[0], sT[1]


def att_addr_v(tmp):
    a(f"""v_lshlrev_b32 {vr(vL16)}, 4, {vr(vL)}
          v_and_b32 {vr(vVO)}, 15, {vr(vL)}
          v_lshlrev_b32 {vr(vVO)}, 4, {vr(vVO)}
          v_lshl_add_u32 {vr(vVO)}, {vr(vHH)}, 8, {vr(vVO)}
          v_mov_b32 {vr(vIDX)}, 0xdddddddd""")
    wdma_voff(vWD, 1024, tmp)


def att_addr_s(u, u2):
    a(f"""s_lshr_b32 {sr(u)}, {sr(sW)}, 2
          s_lshl_b32 {sr(u2)}, {sr(sCB)}, 1
          s_add_u32 {sr(u2)}, {sr(u2)}, {sr(u)}
          s_lshl_b32 {sr(sKV)}, {sr(u2)}, 17
          s_lshl_b32 {sr(sO)}, {sr(u2)}, 10
          s_lshl_b32 {sr(u2)}, {sr(sWQ)}, 11
          s_add_u32 {sr(sKV)}, {sr(sKV)}, {sr(u2)}
          s_mov_b32 {sr(sIT)}, {sr(sKV)}
          s_lshl_b32 {sr(u2)}, {sr(sRB)}, 2
          s_add_u32 {sr(u2)}, {sr(u2)}, {sr(sWQ)}
          s_lshl_b32 {sr(u2)}, {sr(u2)}, 15
          s_add_u32 {sr(sO)}, {sr(sO)}, {sr(u2)}
          s_add_u32 {sr(sO)}, {sr(sO)}, {WS_O}""")
    a(f"""s_lshr_b32 {sr(u)}, {sr(sW)}, 1
          s_mul_i32 {sr(sKS)}, {sr(u)}, 22
          s_lshl_b32 {sr(sLA)}, {sr(sW)}, 10
          s_and_b32 {sr(u)}, {sr(sW)}, 1
          s_lshl_b32 {sr(sW2)}, {sr(sKS)}, 1
          s_add_u32 {sr(sW2)}, {sr(sW2)}, {sr(u)}
          s_lshl_b32 {sr(sW2)}, {sr(sW2)}, 13
          s_lshr_b32 {sr(u2)}, {sr(sCB)}, 1
          s_lshl_b32 {sr(u2)}, {sr(u2)}, 7
          s_add_u32 {sr(sW2)}, {sr(sW2)}, {sr(u2)}
          s_add_u32 {sr(sW2)}, {sr(sW2)}, {(NI-1)*16384}
          s_and_b32 {sr(sH0)}, {sr(sCB)}, 1
          s_lshl_b32 {sr(sOUT)}, {sr(sRB)}, 1
          s_add_u32 {sr(sOUT)}, {sr(sOUT)}, {sr(sH0)}
          s_lshl_b32 {sr(sH0)}, {sr(sOUT)}, 1
          s_add_u32 {sr(sH0)}, {sr(sH0)}, {sr(u)}
          s_mul_i32 {sr(sH0)}, {sr(sH0)}, {86*1024}
          s_add_u32 {sr(sH0)}, {sr(sH0)}, {WS_H}
          s_lshl_b32 {sr(sOUT)}, {sr(sOUT)}, 3
          s_add_u32 {sr(sOUT)}, {sr(sOUT)}, {sr(sWQ)}
          s_lshl_b32 {sr(sOUT)}, {sr(sOUT)}, 13
          s_add_u32 {sr(sOUT)}, {sr(sOUT)}, {sr(u2)}
          s_lshr_b32 {sr(sF1)}, {sr(sCB)}, 1
          s_and_b32 {sr(u)}, {sr(sRB)}, 3
          s_lshl2_add_u32 {sr(sF1)}, {sr(sF1)}, {sr(u)}
          s_lshl2_add_u32 {sr(sF1)}, {sr(sF1)}, {sr(sWQ)}
          s_lshl_b32 {sr(sF1)}, {sr(sF1)}, 8
          s_add_u32 {sr(sF1)}, {sr(sF1)}, {WS_FL}""")


def q_reads():
    a(f"""s_lshl_b32 {sr(sU)}, {sr(sW)}, 10
          s_add_u32 {sr(sU)}, {sr(sU)}, {L_QX}
          v_lshl_add_u32 {vr(vFP)}, {vr(vL)}, 4, {sr(sU)}""")
    for j in range(4):
        if j:
            a(f"v_xor_b32 {vr(vFP+j)}, {j*1024}, {vr(vFP)}")
        a(f"ds_read_b128 {vr(Q[j],4)}, {vr(vFP+j)}", lg="q")


def att_init():
    a.comment("rows 16 and 20 of the V operand are ones (row sums), the other spare rows are zero")
    a(f"""v_and_b32 {vr(VB[0])}, 27, {vr(vL)}
          v_cmp_eq_u32 vcc, 16, {vr(VB[0])}
          v_mov_b32 {vr(VB[0]+1)}, 0x3f803f80
          v_cndmask_b32 {vr(VB[0])}, 0, {vr(VB[0]+1)}, vcc
          v_cndmask_b32 {vr(VB[0]+1)}, 0, {vr(VB[0]+1)}, vcc""")
    for i in range(2, 24, 2):
        a(f"v_mov_b64 {vr(VB[0]+i,2)}, {vr(VB[0],2)}")


def o_zero():
    for j in range(4):
        for i in range(0, 16, 2):
            a(f"v_mov_b64 {vr(O[j]+i,2)}, 0")


XB = OPT.get("xb", 4)


def kbuf(i):
    if 3 <= i < 3 + XB:
        return HF + 32 + 4 * (i - 3)
    return KB[(i if i < 3 else i - XB) % 3]


def vbuf(i):
    if 3 <= i < 3 + XB:
        return HF + 8 * (i - 3)
    return VB[(i if i < 3 else i - XB) % 3]


def xb_init():
    for i in range(0, 8 * XB, 2):
        a(f"v_mov_b64 {vr(HF+i,2)}, {vr(vFP,2)}")


def kv_next():
    a(f"s_add_u32 {sr(sIT)}, {sr(sIT)}, 8192")


def kvload(i, step=True):
    if i >= 16:
        return
    a(f"buffer_load_dwordx4 {vr(kbuf(i),4)}, {vr(vL16)}, {sr(R_WS,4)}, {sr(sIT)} offen sc1", vm=("k", i))
    a(f"s_mov_b64 exec, {sr(sVM,2)}")
    a(f"buffer_load_dwordx4 {vr(vbuf(i),4)}, {vr(vVO)}, {sr(R_WS,4)}, {sr(sIT)} offen offset:1024 sc1", vm=("v", i))
    a(f"buffer_load_dwordx4 {vr(vbuf(i)+4,4)}, {vr(vVO)}, {sr(R_WS,4)}, {sr(sIT)} offen offset:1536 sc1", vm=("v", i))
    a("s_mov_b64 exec, -1")
    if step:
        kv_next()


def f1_load(d):
    return f"buffer_atomic_umax {vr(d)}, off, {sr(R_WS,4)}, {sr(sF1)} offset:48 sc0 sc1"


def f1_issue(d):
    a(f"""s_mov_b64 exec, 1
          v_mov_b32 {vr(d)}, 0""")
    a(f1_load(d), vm="f1")
    a("s_mov_b64 exec, -1")


def f1_check(d):
    a.comment("wait until the 32 producer waves of this head quad's key tiles 4*i + wq have arrived")
    a.wait(vm="all")
    a("s_mov_b64 exec, 1")
    poll(f1_load(d), 1, d, first_done=True, expect="32")
    a("s_mov_b64 exec, -1")


hVX, hVW, hVQ, hV1 = 172, 151, 153, 154
hGO, hF1 = 158, 159
hT = [162, 163, 164, 165]
hP = 168
sXB, sWB, sLX, sLW, sA, sB_ = sT[0], sT[1], sT[2], sT[3], sT[4], sT[5]
ROTS = {4: f"s_and_b32 {sr(sROT)}, s2, 7",
        5: f"s_and_b32 {sr(sROT)}, s2, 6",
        6: f"s_andn2_b32 {sr(sROT)}, 7, s2",
        7: f"s_lshl2_add_u32 {sr(sROT)}, {sr(sA)}, s2\ns_and_b32 {sr(sROT)}, {sr(sROT)}, 6"}
a.label(NAME + "_kernel")
a(f"""s_load_dwordx2 {sr(R_X,2)}, s[0:1], 0
      s_load_dwordx2 {sr(R_WQKV,2)}, s[0:1], 8
      v_readfirstlane_b32 {sr(sW)}, v0""")
stamp("start")
a(f"""s_lshr_b32 {sr(sRB)}, s2, 1
      s_and_b32 {sr(sRB)}, {sr(sRB)}, 15
      {f"s_andn2_b32 {sr(sA)}, 1, s2" if OPT.get("qf", 1) else f"s_and_b32 {sr(sA)}, s2, 1"}
      s_lshr_b32 {sr(sCB)}, s2, 5
      s_lshl1_add_u32 {sr(sCB)}, {sr(sCB)}, {sr(sA)}
      {ROTS[OPT["rot"]]}
      s_lshr_b32 {sr(sW)}, {sr(sW)}, 6
      s_mov_b32 {sr(R_X+3)}, 0x20000
      s_lshl_b32 {sr(R_X+2)}, 1, 21
      s_cmp_ge_u32 {sr(sW)}, 4
      s_cbranch_scc1 L_C""")


def common_setup():
    a(f"""s_load_dwordx16 s[4:19], s[0:1], 0
          s_load_dwordx4 s[20:23], s[0:1], 64
          s_load_dwordx2 s[24:25], s[0:1], 80
          v_and_b32 {vr(vL)}, 63, v0
          v_bfe_u32 {vr(vHH)}, v0, 5, 1
          v_and_b32 {vr(vL31)}, 31, v0
          v_bfe_u32 v1, v0, 4, 1
          v_and_b32 v2, 3, v0
          v_lshlrev_b32 v2, 3, v2
          v_lshl_add_u32 {vr(vTR)}, v1, 5, v2
          s_and_b32 {sr(sWQ)}, {sr(sW)}, 3
          s_lshr_b32 {sr(sT[6])}, {sr(sCB)}, 3
          s_and_b32 {sr(sCB)}, {sr(sCB)}, 7
          s_lshl1_add_u32 {sr(sCB)}, {sr(sCB)}, {sr(sT[6])}""")


role[0] = "H"
a(f"""s_movk_i32 {sr(sLX)}, 0x70
      v_lshlrev_b32 v4, 4, v0
      v_and_b32 v2, 56, v0
      v_xor_b32 v1, v4, v2
      v_and_b32 v1, {sr(sLX)}, v1
      v_lshl_add_u32 {vr(hVX)}, v2, 7, v1
      v_xor_b32 {vr(hVX+1)}, 64, {vr(hVX)}
      s_lshl2_add_u32 {sr(sA)}, {sr(sRB)}, {sr(sW)}
      s_lshl_b32 {sr(sA)}, {sr(sA)}, 8
      s_add_u32 {sr(sA)}, {sr(sA)}, {sr(sROT)}
      s_lshl_b32 {sr(sA)}, {sr(sA)}, 7
      s_lshl_b32 m0, {sr(sW)}, 12
      v_lshlrev_b32 v3, 2, v0
      v_and_b32 v3, 64, v3
      v_xor_b32 v3, v3, v4
      v_and_b32 v3, {sr(sLX)}, v3
      s_movk_i32 {sr(sLW)}, 384
      v_mad_u32_u24 {vr(hVW)}, v2, {sr(sLW)}, v3
      s_lshl2_add_u32 {sr(sB_)}, {sr(sROT)}, {sr(sW)}
      s_mulk_i32 {sr(sB_)}, 384
      s_add_u32 {sr(sB_)}, {sr(sB_)}, {sr(sCB)}
      s_lshl_b32 {sr(sB_)}, {sr(sB_)}, 7
      s_mov_b32 {sr(R_WQKV+3)}, {sr(R_X+3)}
      s_lshl1_add_u32 {sr(sLX)}, {sr(sW)}, 15
      s_waitcnt lgkmcnt(0)""")
for i in range(4):
    a(f"buffer_load_dwordx4 {vr(hVX+(i&1))}, {sr(R_X,4)}, {sr(sA)} offen offset:{i*1024} lds", vm=("c", 0))
    if i < 3:
        a(f"s_addk_i32 {sr(sA)}, 7168")
a(f"""s_lshl_b32 m0, {sr(sLX)}, 10
      s_lshl_b32 {sr(R_WQKV+2)}, 3, 19""")
a(f"buffer_load_dwordx4 {vr(hVW)}, {sr(R_WQKV,4)}, {sr(sB_)} offen offset:1024 lds", vm=("c", 0))
a(f"s_addk_i32 {sr(sB_)}, {8*3072-1024}")
a(f"buffer_load_dwordx4 {vr(hVW)}, {sr(R_WQKV,4)}, {sr(sB_)} offen offset:2048 lds", vm=("c", 0))
a("""s_cmpk_ge_u32 s2, 256
     s_cbranch_scc1 L_exit""")
stamp("hd0")
a(f"""s_lshl2_add_u32 {sr(sA)}, {sr(sRB)}, {sr(sW)}
      s_lshl_b32 {sr(sA)}, {sr(sA)}, 15
      v_add_u32 {vr(hVX)}, {sr(sA)}, {vr(hVX)}
      v_xor_b32 {vr(hVX+1)}, 64, {vr(hVX)}
      v_add_u32 {vr(hVX+2)}, {2*7168}, {vr(hVX)}
      v_add_u32 {vr(hVX+3)}, {3*7168}, {vr(hVX+1)}
      v_add_u32 {vr(hVX+1)}, 7168, {vr(hVX+1)}
      s_mul_i32 {sr(sB_)}, {sr(sW)}, 384
      s_add_u32 {sr(sB_)}, {sr(sB_)}, {sr(sCB)}
      s_add_u32 {sr(sB_)}, {sr(sB_)}, 8
      s_lshl_b32 {sr(sB_)}, {sr(sB_)}, 7
      v_add_u32 {vr(hVW)}, {sr(sB_)}, {vr(hVW)}
      v_add_u32 {vr(hVW+1)}, {8*3072-1024}, {vr(hVW)}
      s_lshl_b32 {sr(sLX)}, {sr(sW)}, 12
      s_lshl_b32 {sr(sLW)}, {sr(sW)}, 11
      s_add_u32 {sr(sXB)}, {sr(sROT)}, 1
      s_and_b32 {sr(sXB)}, {sr(sXB)}, 7
      s_lshl_b32 {sr(sXB)}, {sr(sXB)}, 7""")


def dmao(voff, r, soff, off, tag):
    a(f"buffer_load_dwordx4 {vr(voff)}, {sr(r,4)}, {sr(soff)} offen offset:{off} lds", vm=tag)
    for _ in range(fill[0]):
        if filler:
            a(filler.pop(0))


def next_chunk():
    a(f"""s_add_u32 {sr(sXB)}, {sr(sXB)}, 128
          s_and_b32 {sr(sXB)}, {sr(sXB)}, 0x3ff""")


def issue_chunk(c):
    base = (c % 6) * SLOT
    a(f"""s_add_u32 m0, {sr(sLX)}, {base}
          s_mul_i32 {sr(sA)}, {sr(sXB)}, 1536""")
    for i in range(4):
        dmao(hVX + i, R_X, sXB, i * 1024, ("c", c))
    a(f"s_add_u32 m0, {sr(sLW)}, {base + 16384}")
    next_chunk()
    for i in range(2):
        dmao(hVW + i, R_WQKV, sA, i * 1024, ("c", c))


sQB, s1B, sLQ, sL1 = 2, 11, 8, 9


def issue_wq(c):
    a(f"""s_add_u32 m0, {sr(sLQ)}, {L_WQ + c * 4096}
          s_mul_i32 {sr(sA)}, {sr(sXB)}, 1536""")
    dmao(hVQ, R_WQKV, sA, 0, ("wq", c))
    next_chunk()


def issue_w1(c):
    a(f"""s_add_u32 m0, {sr(sL1)}, {L_W1[c]}
          s_mul_i32 {sr(sA)}, {sr(sXB)}, 1376""")
    for p in range(3):
        dmao(hV1 + p, R_W1, sA, p * 1024, ("w1", c))
    if c < 7:
        next_chunk()


def h_setup2():
    att_addr_s(18, 19)
    a(f"s_mov_b32 {sr(sHS)}, {WS_SIZE}")
    a(f"s_mov_b32 {sr(sHS2)}, {WS_SIZE}")
    att_addr_v(hT[0])
    att_init()


def h_setup():
    u = sT[6]
    other_srds()
    a(f"""s_mul_i32 {sr(sQB)}, {sr(sWQ)}, {16*3072}
          s_lshl_b32 {sr(u)}, {sr(sCB)}, 6
          s_add_u32 {sr(sQB)}, {sr(sQB)}, {sr(u)}
          s_mul_i32 {sr(s1B)}, {sr(sWQ)}, {16*2752}
          s_lshl_b32 {sr(u)}, {sr(sT0)}, 6
          s_add_u32 {sr(s1B)}, {sr(s1B)}, {sr(u)}
          s_lshl_b32 {sr(sLQ)}, {sr(sWQ)}, 10
          s_mul_i32 {sr(sL1)}, {sr(sWQ)}, 3072
          v_lshrrev_b32 {vr(hT[0])}, 2, {vr(vL)}
          v_mul_u32_u24 {vr(hT[0])}, 3072, {vr(hT[0])}
          v_and_b32 {vr(hVQ)}, 3, {vr(vL)}
          v_lshl_add_u32 {vr(hVQ)}, {vr(hVQ)}, 4, {vr(hT[0])}
          v_add_u32 {vr(hVQ)}, {sr(sQB)}, {vr(hVQ)}""")
    for p in range(3):
        a(f"""v_add_u32 {vr(hT[0])}, {64*p}, {vr(vL)}
              v_mul_u32_u24 {vr(hT[1])}, 171, {vr(hT[0])}
              v_lshrrev_b32 {vr(hT[1])}, 11, {vr(hT[1])}
              v_mul_u32_u24 {vr(hT[2])}, {2752 - 192}, {vr(hT[1])}
              v_lshl_add_u32 {vr(hV1+p)}, {vr(vL)}, 4, {vr(hT[2])}
              v_add_u32 {vr(hV1+p)}, {sr(s1B)}, {vr(hV1+p)}""")
    if not OPT.get("late", 1):
        h_setup2()
        o_zero()
    a(f"""v_and_b32 {vr(hGO)}, 15, {vr(vL)}
          v_lshlrev_b32 {vr(hGO)}, 2, {vr(hGO)}""")


UP = OPT["up"]
filler += record(common_setup) + ["s_waitcnt lgkmcnt(0)"] + (["s_memtime s[0:1]"] if OPT["stamps"] else []) + record(h_setup)
fill[0] = OPT.get("fill", 8)
for c in range(1, UP):
    issue_chunk(c)
emit(filler)
filler.clear()
stamp("hup")
jobs = [(max(0, c - 5), ("c", c), lambda c=c: issue_chunk(c)) for c in range(UP, 8)]


jobs += [(3 if c < 6 else 4, ("q", c), lambda c=c: issue_wq(c)) for c in range(8)]
jobs += [(g, ("w", c), lambda c=c: issue_w1(c)) for c, g in enumerate([4, 5, 5, 6, 6, 7, 7, 8])]


def run_jobs(upto):
    while any(j[1] == upto for j in jobs):
        jobs.pop(0)[2]()


QS = [int(c) for c in str(OPT.get("qs", 441))]
goload = f"buffer_load_dword {vr(hP)}, {vr(hGO)}, {sr(R_DBG,4)}, 0 offen sc1"
for n in range(8):
    stamp(f"hw{n}")
    a.wait(vm=("c", n))
    stamp(f"ha{n}")
    a("s_barrier")
    if n == 7:
        a("s_mov_b64 exec, 0xffff")
        a(goload, vm="go")
        a("s_mov_b64 exec, -1")
    for _ in range(1 if jobs[0][1][0] == "c" else QS.pop(0)):
        assert jobs[0][0] <= n
        jobs.pop(0)[2]()
    stamp(f"hi{n}")
assert ("wq", 3) in a.vm
a.wait(vm=("wq", 3))
a("s_barrier")
stamp("bar8")
run_jobs(("q", 7))
run_jobs(("w", OPT.get("j6", 1)))
a.wait(vm=("wq", 7))
stamp("h8b")
a("s_barrier")
run_jobs(("w", OPT.get("j7", 1)))
if OPT.get("late", 1):
    h_setup2()
a.wait(vm=["go", ("w1", 1)])
a("s_mov_b64 exec, 0xffff")
poll(goload, 1, hP, first_done=True)
a("s_mov_b64 exec, -1")
stamp("h9")
a("s_barrier")
run_jobs(("w", OPT["j8"]))
a("s_barrier")
run_jobs(("w", OPT["j9"]))
a.wait(vm=("w1", 3))
stamp("h10")
a("s_barrier")
run_jobs(("w", 7))
a.wait(vm=("w1", OPT.get("g11", 5)))
stamp("h11")
a("s_barrier")
stamp("bar11")
f1_issue(hP)
q_reads()
a.wait(vm=("w1", 7), lg="all")
a("s_barrier")
f1_check(hP)
stamp("f1seen")
a(f"v_mov_b64 {vr(vFP,2)}, {vr(VB[0],2)}")
kvload(0)
kvload(1)
kvload(2)
xb_init()
if OPT.get("late", 1):
    o_zero()
if OPT["prio"]:
    a("s_setprio 2")
att_vm = list(a.vm)
a("s_branch L_ATT")

if OPT.get("alc", 1):
    a.raw(".p2align 12")
a.label("L_C")
role[0] = "C"
a.reset_counts()
a("""s_cmpk_ge_u32 s2, 256
     s_cbranch_scc1 L_exit""")
XR = lambda s: 4 * s
cACC = [160, 176, 192]
cSET = [128 + 8 * j for j in range(4)]
cSUM, cSQ, cSEL = 208, [212, 216], 244
cXa, cWa, cQC = 224, [228, 232], 236
cXA, cWP, cVO, cR = 240, [224, 228], 251, 248
cKC = [192, 196]
cM, cCR, cCW, cQB, cRW, cRR, cMK = 200, 201, 202, 203, 204, 205, 206
cDUM = cR
cT = [249, 250]
if OPT.get("cprio", 0):
    a("s_setprio 1")
stamp("q1")
a("s_getpc_b64 s[74:75]")
a.label("L_pc")
a(f"""s_sub_u32 s74, s74, L_pc-{NAME}_kernel
      s_subb_u32 s75, s75, 0
      s_lshr_b32 {sr(sT[0])}, s2, 3
      s_lshl_b32 {sr(sT[0])}, {sr(sT[0])}, 7
      v_bfe_u32 v1, v0, 4, 4
      v_lshl_add_u32 v1, v1, 12, {sr(sT[0])}
      v_min_u32 v1, L_end-{NAME}_kernel, v1
      s_mov_b32 exec_lo, 0x10001
      s_mov_b32 exec_hi, 0x10001
      global_load_dword {vr(cDUM)}, v1, s[74:75]
      s_mov_b64 exec, -1""")
common_setup()
a(f"""v_bfe_u32 {vr(cT[0])}, {vr(vL)}, 1, 3
      v_xor_b32 {vr(cT[0])}, {vr(cT[0])}, {vr(vHH)}
      v_lshlrev_b32 {vr(cT[0])}, 4, {vr(cT[0])}
      v_lshl_add_u32 {vr(cXA)}, {vr(vL31)}, 7, {vr(cT[0])}
      s_mul_i32 {sr(sT[0])}, {sr(sWQ)}, {4096 + 32}
      v_xor_b32 {vr(cXA)}, {sr(sT[0])}, {vr(cXA)}
      v_xor_b32 {vr(cXA+1)}, 32, {vr(cXA)}
      v_xor_b32 {vr(cXA+2)}, 64, {vr(cXA)}
      v_xor_b32 {vr(cXA+3)}, 0x60, {vr(cXA)}""")
tr_addr128(cWP[0], cWP[1], 8, cT[0])
a(f"s_lshl_b32 {sr(sT[0])}, {sr(sWQ)}, 11")
for t in range(2):
    a(f"v_add_u32 {vr(cWP[t])}, {sr(sT[0])}, {vr(cWP[t])}")
    for j in range(1, 4):
        a(f"v_xor_b32 {vr(cWP[t]+j)}, {2048*j}, {vr(cWP[t])}")
make_sel(cSEL, cT[0])
tr_addr(cQB, 8, 64, cT[0])
a(f"""v_mov_b64 {vr(cWa[1]+2,2)}, 0
      s_lshl_b32 {sr(sT[0])}, {sr(sWQ)}, 10
      s_add_u32 {sr(sT[0])}, {sr(sT[0])}, {L_WQ}
      v_add_u32 {vr(cQB)}, {sr(sT[0])}, {vr(cQB)}
      s_lshl_b32 {sr(sT[0])}, {sr(sWQ)}, 7
      s_add_u32 {sr(sT[0])}, {sr(sT[0])}, {L_STATS}
      v_lshl_add_u32 {vr(cRW)}, {vr(vL31)}, 2, {sr(sT[0])}
      v_lshl_add_u32 {vr(cRR)}, {vr(vHH)}, 4, {sr(sT[0])}
      v_add_u32 {vr(cMK)}, -1, {vr(vHH)}
      v_and_b32 {vr(cT[0])}, 3, {vr(vL)}
      v_cmp_eq_u32 vcc, 1, {vr(cT[0])}
      v_cmp_eq_u32 s[76:77], 2, {vr(cT[0])}
      v_cmp_eq_u32 s[78:79], 3, {vr(cT[0])}
      v_lshlrev_b32 {vr(cCR)}, 4, {vr(vL31)}
      v_add_u32 {vr(cCR)}, {L_CSP}, {vr(cCR)}
      s_lshl_b32 {sr(sT[0])}, {sr(sWQ)}, 2
      v_add_u32 {vr(cCW)}, {sr(sT[0])}, {vr(cCR)}
      s_add_u32 {sr(sT[0])}, {sr(sT[0])}, {L_FLG}
      v_mov_b32 {vr(cT[0])}, {sr(sT[0])}
      ds_write_b32 {vr(cT[0])}, {vr(cWa[1]+2)}
      s_waitcnt lgkmcnt(0)""")
if OPT["stamps"]:
    a("s_memtime s[0:1]")
stamp("q2")
other_srds()
a(f"""s_cmp_lg_u32 {sr(sWQ)}, 0
      s_cbranch_scc1 L_C1
      s_cmp_lg_u32 {sr(sRB)}, {sr(sCB)}
      s_cbranch_scc1 L_C1
      s_and_b32 {sr(sT[0])}, {sr(sLINE)}, 0xfffff800
      v_lshrrev_b32 v1, 2, {vr(vL)}
      v_and_b32 v3, 3, {vr(vL)}
      v_lshlrev_b32 v3, 4, v3
      v_lshl_add_u32 v1, v1, 7, v3
      v_mov_b32 v4, 0
      v_mov_b32 v5, 0
      v_mov_b32 v6, 0
      v_mov_b32 v7, 0
      buffer_store_dwordx4 v[4:7], v1, {sr(R_WS,4)}, {sr(sT[0])} offen sc1
      s_lshl_b32 {sr(sT[0])}, {sr(sRB)}, 2
      s_waitcnt vmcnt(0)
      s_mov_b64 exec, 1
      v_mov_b32 v3, 1
      buffer_store_dword v3, off, {sr(R_DBG,4)}, {sr(sT[0])} sc1
      s_mov_b64 exec, -1""")
a.label("L_C1")
stamp("q3")
PF = OPT.get("pf", 15)
if PF:
    a.comment("L2 prefetch of this workgroup's share of the lines its XCD neighbours also stream later")
    a(f"""s_mov_b32 {sr(R_WQKV+2)}, {512*1536*2}
          s_mov_b32 {sr(R_WQKV+3)}, 0x20000""")
    u, u2, u3 = sT[0], sT[1], sT[2]
    a(f"""s_lshr_b32 {sr(u3)}, {sr(sRB)}, 2
          s_cmp_eq_u32 {sr(sWQ)}, 1
          s_cbranch_scc1 L_pf1
          s_cmp_eq_u32 {sr(sWQ)}, 2
          s_cbranch_scc1 L_pf2
          s_cmp_eq_u32 {sr(sWQ)}, 3
          s_cbranch_scc1 L_pf3""")
    if PF & 16:
        a(f"""s_lshl_b32 {sr(u)}, s2, 13
              v_lshlrev_b32 v1, 7, {vr(vL)}
              buffer_load_dword {vr(cDUM)}, v1, {sr(R_X,4)}, {sr(u)} offen""")
    if PF & 1:
        a(f"""s_and_b32 {sr(u)}, {sr(sCB)}, 7
              s_lshl_b32 {sr(u2)}, {sr(sRB)}, 3
              s_add_u32 {sr(u)}, {sr(u)}, {sr(u2)}
              s_lshl_b32 {sr(u)}, {sr(u)}, 14
              s_add_u32 {sr(u2)}, {sr(sROT)}, 4
              v_lshrrev_b32 v1, 4, {vr(vL)}
              v_add_u32 v1, {sr(u2)}, v1
              v_and_b32 v1, 7, v1
              v_lshlrev_b32 v1, 7, v1
              v_and_b32 v2, 15, {vr(vL)}
              v_lshl_add_u32 v1, v2, 10, v1
              buffer_load_dword {vr(cDUM)}, v1, {sr(R_X,4)}, {sr(u)} offen""")
    a("s_branch L_pfd")
    a.label("L_pf1")
    if PF & 32:
        a(f"""s_mul_i32 {sr(u)}, s2, 6144
              v_lshlrev_b32 v1, 7, {vr(vL)}
              s_mov_b32 exec_hi, 0xffff
              buffer_load_dword {vr(cDUM)}, v1, {sr(R_WQKV,4)}, {sr(u)} offen
              s_mov_b64 exec, -1""")
    if PF & 2:
        a(f"""s_and_b32 {sr(u)}, {sr(sCB)}, 1
              s_add_u32 {sr(u)}, {sr(u)}, 1
              s_lshl_b32 {sr(u)}, {sr(u)}, 10
              s_lshr_b32 {sr(u2)}, {sr(sCB)}, 1
              s_lshl_b32 {sr(u2)}, {sr(u2)}, 7
              s_add_u32 {sr(u)}, {sr(u)}, {sr(u2)}
              s_mul_i32 {sr(u2)}, {sr(u3)}, {16*3072}
              s_add_u32 {sr(u)}, {sr(u)}, {sr(u2)}
              s_add_u32 {sr(u2)}, {sr(sROT)}, 4
              v_lshrrev_b32 v1, 4, {vr(vL)}
              v_add_u32 v1, {sr(u2)}, v1
              v_and_b32 v1, 7, v1
              v_and_b32 v2, 15, {vr(vL)}
              v_lshl_add_u32 v1, v1, 6, v2
              v_mul_u32_u24 v1, 3072, v1
              buffer_load_dword {vr(cDUM)}, v1, {sr(R_WQKV,4)}, {sr(u)} offen""")
    a("s_branch L_pfd")
    a.label("L_pf2")
    if PF & 4:
        a(f"""s_and_b32 {sr(u)}, {sr(sCB)}, 1
              s_lshl_b32 {sr(u2)}, {sr(u3)}, 1
              s_add_u32 {sr(u)}, {sr(u)}, {sr(u2)}
              s_mul_i32 {sr(u)}, {sr(u)}, {64*3072}
              s_lshl_b32 {sr(u2)}, {sr(sCB)}, 6
              s_add_u32 {sr(u)}, {sr(u)}, {sr(u2)}
              v_mul_u32_u24 v1, 3072, {vr(vL)}
              buffer_load_dword {vr(cDUM)}, v1, {sr(R_WQKV,4)}, {sr(u)} offen""")
    a("s_branch L_pfd")
    a.label("L_pf3")
    if PF & 64:
        a(f"""s_mul_i32 {sr(u)}, s2, 5504
              v_lshlrev_b32 v1, 7, {vr(vL)}
              s_mov_b32 exec_hi, 0x7ff
              buffer_load_dword {vr(cDUM)}, v1, {sr(R_W1,4)}, {sr(u)} offen
              s_mov_b64 exec, -1""")
    if PF & 8:
        a(f"""s_mul_i32 {sr(u)}, {sr(u3)}, {128*2752}
              s_lshl_b32 {sr(u2)}, {sr(sT0)}, 6
              s_add_u32 {sr(u)}, {sr(u)}, {sr(u2)}
              s_add_u32 {sr(u2)}, {sr(u)}, {64*2752}
              v_mul_u32_u24 v1, 2752, {vr(vL)}
              buffer_load_dword {vr(cDUM)}, v1, {sr(R_W1,4)}, {sr(u)} offen
              buffer_load_dword {vr(cDUM)}, v1, {sr(R_W1,4)}, {sr(u)} offen offset:128
              buffer_load_dword {vr(cDUM)}, v1, {sr(R_W1,4)}, {sr(u2)} offen
              buffer_load_dword {vr(cDUM)}, v1, {sr(R_W1,4)}, {sr(u2)} offen offset:128""")
    a.label("L_pfd")
    stamp("q4")
a.reset_counts()


def c_scalars():
    att_addr_s(sT[0], sT[1])
    a(f"""s_lshl_b32 {sr(sHS)}, {sr(sRB)}, 2
          s_add_u32 {sr(sHS)}, {sr(sHS)}, {sr(sWQ)}
          s_mul_i32 {sr(sHS)}, {sr(sHS)}, {86*1024}
          s_lshl_b32 {sr(sT[0])}, {sr(sT0)}, 11
          s_add_u32 {sr(sHS)}, {sr(sHS)}, {sr(sT[0])}
          s_add_u32 {sr(sHS)}, {sr(sHS)}, {WS_H}
          s_add_u32 {sr(sHS2)}, {sr(sHS)}, 4096""")
    a(f"""s_cmp_ge_u32 {sr(sCB)}, 14
          s_cselect_b32 {sr(sHS)}, {WS_SIZE}, {sr(sHS)}
          s_cmp_eq_u32 {sr(sCB)}, 15
          s_cselect_b32 {sr(sHS2)}, {WS_SIZE}, {sr(sHS2)}""")
    a(f"""s_lshr_b32 {sr(sT[0])}, {sr(sCB)}, 1
          s_lshl_b32 {sr(sT[0])}, {sr(sT[0])}, 19
          s_lshl_b32 {sr(sT[1])}, {sr(sRB)}, 2
          s_add_u32 {sr(sT[1])}, {sr(sT[1])}, {sr(sWQ)}
          s_lshl_b32 {sr(sT[1])}, {sr(sT[1])}, 11
          s_add_u32 {sr(sT[2])}, {sr(sT[0])}, {sr(sT[1])}
          s_bitcmp1_b32 {sr(sCB)}, 0
          s_cselect_b32 {sr(sT[0])}, 1024, 0
          s_add_u32 {sr(sT[2])}, {sr(sT[2])}, {sr(sT[0])}
          s_bitcmp1_b32 {sr(sCB)}, 0
          s_mov_b32 s8, 0x20000
          s_cselect_b32 s8, 512, s8
          s_sub_u32 s9, 0x40000, s8""")
    for j in range(4):
        a(f"""s_xor_b32 {sr(20+j)}, {sr(sWQ)}, {j}
              s_mul_i32 {sr(20+j)}, {sr(20+j)}, 3072
              s_add_u32 {sr(20+j)}, {sr(20+j)}, {L_W1[0]}""")


a(f"s_cmp_ge_u32 {sr(sWQ)}, 2")
WARM = OPT.get("warm", 0)
if WARM:
    a.comment("instruction-cache warm-up: with EXEC = 0 each wave hops over a few branch-only landing points and returns")
    a(f"""s_mov_b64 exec, 0
          s_cbranch_scc1 L_w23
          s_bitcmp1_b32 {sr(sWQ)}, 0
          s_cbranch_scc1 L_pad1
          s_branch L_pad0""")
    a.label("L_w23")
    a(f"""s_bitcmp1_b32 {sr(sWQ)}, 0
          s_cbranch_scc1 L_pad3
          s_branch L_pad2""")
    a.label("L_wret")
    a("s_mov_b64 exec, -1")
a(f"""s_bitcmp1_b32 {sr(sCB)}, 0
      s_cbranch_scc1 L_CV""")
ALIGN = OPT.get("align", 1)
if ALIGN:
    a("s_branch L_CK")
    a.raw(".p2align 12")
    a.label("L_CK")


cQA, RING = 208, 128
cWF = [208, 212, 216]
cPS, cPA = cWa[1], cVO
cFB, cFC = 250, [0, 4, 8]
cF1A, cF1, cBI, cP3, cFL = 64, 68, 72, 76, 88
pq = [Ptr(cXA + j, L_WQ) for j in range(4)]
pf = [Ptr(cXA + j, L_W1[0]) for j in range(4)]
LA = 6


def t_read(i):
    if i >= 128:
        return
    for u in range(2):
        if i < 32:
            tr(RING + 4 * (i & 7) + 2 * u, pq[i & 3], L_WQ + (i >> 2) * 4096 + u * 256, ("tw", i))
        else:
            k, t = divmod(i - 32, 3)
            tr(RING + 4 * (i & 7) + 2 * u, pf[k & 3], L_W1[k >> 2] + t * 64 + u * 768, ("tw", i))


def sum4(p):
    return [f"v_add_f32 {vr(p)}, {vr(p)}, {vr(p+1)}", f"v_add_f32 {vr(p+2)}, {vr(p+2)}, {vr(p+3)}", f"v_add_f32 {vr(p)}, {vr(p)}, {vr(p+2)}"]


side = []


def side_ops(n):
    for _ in range(n):
        if not side:
            return
        op = side.pop(0)
        if isinstance(op, tuple):
            a.wait(lg=op[1])
        elif callable(op):
            op()
        elif op:
            a(op)


def kv_aux():
    a(f"""s_bitcmp1_b32 {sr(sCB)}, 0
          s_cbranch_scc1 L_auxv""")
    for t in range(2):
        mfma32(cACC[t], cWa[t], cXa, cACC[t])
    keep = list(a.lg)
    a.wait(lg="dr")
    a.lg = keep
    a(f"""v_mov_b32 {vr(cACC[2])}, {vr(cR)}
          v_mov_b32 {vr(cACC[2]+1)}, {vr(cR)}""")
    for i in range(2, 16, 2):
        a(f"v_mov_b64 {vr(cACC[2]+i,2)}, {vr(cACC[2],2)}")
    a("s_branch L_auxd")
    a.label("L_auxv")
    for t in range(2):
        mfma32(cACC[t], cXa, cWa[t], cACC[t])
    a.label("L_auxd")


def kv_store(n):
    a(f"buffer_store_dwordx4 {vr(cACC[n>>1]+8*(n&1),4)}, {vr(cVO)}, {sr(R_WS,4)}, {sr(sT[2])} offen sc1", vm="kv")
    if n == 3:
        stamp("kvst")


def kv_epilogue():
    CS, (T0, T1) = cKC[0], cT
    ops = [f"v_add_f32 {vr(cSQ[0]+i)}, {vr(cSQ[0]+i)}, {vr(cSQ[1]+i)}" for i in range(4)]
    ops += [f"v_cndmask_b32 {vr(T0)}, {vr(cSQ[0])}, {vr(cSQ[0]+1)}, vcc",
            f"v_cndmask_b32 {vr(T0)}, {vr(T0)}, {vr(cSQ[0]+2)}, s[76:77]",
            f"v_cndmask_b32 {vr(T0)}, {vr(T0)}, {vr(cSQ[0]+3)}, s[78:79]",
            f"v_mov_b32 {vr(T1)}, {vr(T0)}",
            f"v_mul_f32 {vr(cM)}, {f32(1/512)}, {vr(cSUM)}",
            f"v_cvt_pk_bf16_f32 {vr(cXa)}, -{vr(cM)}, -{vr(cM)}",
            f"v_permlane32_swap_b32 {vr(T0)}, {vr(T1)}",
            f"v_add_f32 {vr(T0)}, {vr(T0)}, {vr(T1)}",
            f"v_mul_f32 {vr(T0)}, {f32(1/512)}, {vr(T0)}",
            f"v_fma_f32 {vr(T0)}, -{vr(cM)}, {vr(cM)}, {vr(T0)}",
            f"v_max_f32 {vr(T0)}, 0, {vr(T0)}",
            f"v_cvt_pk_bf16_f32 {vr(T0)}, {vr(T0)}, {vr(T0)}",
            f"v_lshlrev_b32 {vr(T0)}, 16, {vr(T0)}",
            f"v_add_f32 {vr(T0)}, {f32(1e-5)}, {vr(T0)}",
            f"v_cvt_pk_bf16_f32 {vr(T0)}, {vr(T0)}, {vr(T0)}",
            f"v_lshlrev_b32 {vr(T0)}, 16, {vr(T0)}",
            f"v_sqrt_f32 {vr(T0)}, {vr(T0)}",
            "s_waitcnt vmcnt(0)",
            f"v_cvt_pk_bf16_f32 {vr(cXa+1)}, -{vr(cM)}, {vr(T0)}",
            f"v_and_b32 {vr(T0)}, 0xffff0000, {vr(cXa+1)}",
            f"v_rcp_f32 {vr(cR)}, {vr(T0)}",
            f"v_and_b32 {vr(cXa)}, {vr(cXa)}, {vr(cMK)}",
            f"v_and_b32 {vr(cXa+1)}, {vr(cXa+1)}, {vr(cMK)}",
            lambda: a(f"ds_write_b32 {vr(cRW)}, {vr(cR)}", lg="st"),
            f"v_mov_b64 {vr(cXa+2,2)}, 0",
            f"v_mov_b64 {vr(cWa[0]+2,2)}, 0",
            ("W", "cs")]
    for t in range(2):
        ops += sum4(CS + 4 * t) + split3_ops(CS + 4 * t, "0", cWa[t], cWa[t] + 1, T0, T1, None)
    for g in range(4):
        ops += [lambda g=g: (a.room(1), a(f"ds_read_b128 {vr(cACC[2]+4*g,4)}, {vr(cRR)} offset:{32*g}", lg="dr"))]
    ops += [kv_aux] + record(lambda: tr_addr(cFB, 8, 192, T0)) + [("W", "dr")]
    for n in range(4):
        b = cACC[n >> 1] + 8 * (n & 1)
        ops += [f"v_mul_f32 {vr(b+i)}, {vr(b+i)}, {vr(cACC[2]+8*(n&1)+i)}" for i in range(8)]
        ops += [f"v_cvt_pk_bf16_f32 {vr(b+i)}, {vr(b+2*i)}, {vr(b+2*i+1)}" for i in range(4)]
        ops += [lambda n=n: kv_store(n)]
        if n < 3:
            ops += [f"s_add_u32 {sr(sT[2])}, {sr(sT[2])}, s{8 + (n & 1)}"]
    return ops


def kv_path(isV):
    cs_ops = record(c_scalars)
    assert len(cs_ops) <= 84
    px = [Ptr(cXA + j) for j in range(4)]
    pw = [[Ptr(cWP[t] + j) for j in range(4)] for t in range(2)]

    def rx(n, j):
        rd128(XR(4 * n + j), px[j], (n % 6) * SLOT, ("r", n, j))

    def rw(n, j, t):
        for u in range(0 if OPT.get("norw") and n > 0 else 2):
            tr(cSET[j] + 4 * t + 2 * u, pw[t][j], (n % 6) * SLOT + 16384 + u * 512, ("r", n, j))

    def main(n, j, t):
        if OPT.get("nomain") and n > 0:
            return
        c = "0" if (n == 0 and j == 0) else cACC[t]
        if isV:
            mfma32(cACC[t], XR(4 * n + j), cSET[j] + 4 * t, c)
        else:
            mfma32(cACC[t], cSET[j] + 4 * t, XR(4 * n + j), c)

    def s16(n, j):
        mfma16(cSUM, cSEL, XR(4 * n + j), "0" if (n == 0 and j == 0) else cSUM)

    def s4(n, j, h):
        mfma4(cSQ[h], XR(4 * n + j) + 2 * h, "0" if (n == 0 and j == 0) else cSQ[h])

    def small(n, j):
        if OPT.get("nosmall") and n > 0:
            return
        s16(n, j)
        s4(n, j, 0)
        s4(n, j, 1)

    if isV:
        a(f"""v_bfe_u32 {vr(cT[0])}, {vr(vL)}, 4, 1
              v_lshlrev_b32 {vr(cT[0])}, 17, {vr(cT[0])}
              v_lshl_add_u32 {vr(cT[0])}, {vr(vHH)}, 8, {vr(cT[0])}
              v_and_b32 {vr(cVO)}, 15, {vr(vL)}
              v_lshl_add_u32 {vr(cVO)}, {vr(cVO)}, 4, {vr(cT[0])}""")
    else:
        a.comment("key slot = lane with bits 2 and 3 swapped")
        a(f"""v_and_b32 {vr(cVO)}, 0x33, {vr(vL)}
              v_bfe_u32 {vr(cT[0])}, {vr(vL)}, 2, 1
              v_lshl_add_u32 {vr(cVO)}, {vr(cT[0])}, 3, {vr(cVO)}
              v_bfe_u32 {vr(cT[0])}, {vr(vL)}, 3, 1
              v_lshl_add_u32 {vr(cVO)}, {vr(cT[0])}, 2, {vr(cVO)}
              v_lshlrev_b32 {vr(cVO)}, 4, {vr(cVO)}""")
    def rd(n, j):
        rx(n, j)
        rw(n, j, 0)
        rw(n, j, 1)

    for n in range(8):
        stamp(f"ca{n}")
        a("s_barrier")
        stamp(f"cp{n}")
        if n == 0:
            stamp("c0")
        if n == 7:
            stamp("c7")
        if n == 0:
            rd(0, 0)
            rd(0, 1)
            rd(0, 2)
        else:
            main(n - 1, 2, 0)
            rx(n, 0)
            rw(n, 0, 0)
            main(n - 1, 2, 1)
            rw(n, 0, 1)
            main(n - 1, 3, 0)
            rx(n, 1)
            rw(n, 1, 0)
            main(n - 1, 3, 1)
            rw(n, 1, 1)
            for j in range(4):
                s16(n - 1, j)
                if j == 0:
                    rx(n, 2)
                elif j < 3:
                    rw(n, 2, j - 1)
                s4(n - 1, j, 0)
                s4(n - 1, j, 1)
        a.wait(lg=("r", n, 0))
        main(n, 0, 0)
        rx(n, 3)
        rw(n, 3, 0)
        main(n, 0, 1)
        rw(n, 3, 1)
        for t in range(2):
            mfma16(cKC[t], cSEL, cSET[0] + 4 * t, "0" if n == 0 else cKC[t])
        a.wait(lg=("r", n, 1))
        if n < 7:
            main(n, 1, 0)
            emit(cs_ops[12 * n:12 * n + 6])
            main(n, 1, 1)
            emit(cs_ops[12 * n + 6:12 * n + 12])
            a.wait(lg=("r", n, 3))
    small(7, 0)
    small(7, 1)
    a.wait(lg=("r", 7, 3))
    s16(7, 2)
    a(f"ds_write_b32 {vr(cCW)}, {vr(cKC[0])}", lg="k")
    a(f"ds_write_b32 {vr(cCW)}, {vr(cKC[1])} offset:512", lg="k")
    s4(7, 2, 0)
    s4(7, 2, 1)
    small(7, 3)
    main(7, 1, 0)
    a(f"v_mov_b32 {vr(cXA)}, {vr(cQB)}")
    for j in range(1, 4):
        a(f"v_xor_b32 {vr(cXA+j)}, {1024*j}, {vr(cQB)}")
    a.wait(lg="all")
    a("s_barrier")
    side[:] = kv_epilogue()
    main(7, 1, 1)
    a(f"ds_read_b128 {vr(cKC[0],4)}, {vr(cCR)}", lg="cs")
    a(f"ds_read_b128 {vr(cKC[1],4)}, {vr(cCR)} offset:512", lg="cs")
    t_read(0)
    side_ops(2)
    for n, (j, t) in enumerate([(2, 0), (2, 1), (3, 0), (3, 1)]):
        main(7, j, t)
        t_read(n + 1)
        side_ops(4)
    t_read(5)


kv_path(False)
a("s_branch L_C2")
if ALIGN:
    a.raw(".p2align 12")
a.label("L_CV")
a.reset_counts()
kv_path(True)
if ALIGN:
    a("s_branch L_C2")
    a.raw(".p2align 12")
a.label("L_C2")
F1S, B11 = OPT.get("f1s", 49), OPT.get("b11", 68)
at = {}


def sched(i, ops):
    at.setdefault(i, []).extend(ops)


sched(27, [f"v_lshlrev_b32 {vr(cPA)}, 4, {vr(vL31)}", f"v_add_u32 {vr(cPA)}, {L_CSP + 1024}, {vr(cPA)}",
           f"s_lshl_b32 {sr(sT[0])}, {sr(sWQ)}, 2", f"v_add_u32 {vr(cT[0])}, {sr(sT[0])}, {vr(cPA)}"])
sched(30, [lambda: a(f"ds_write_b32 {vr(cT[0])}, {vr(cQC)}", lg="qc")])
q2 = [lambda: a(f"ds_read_b128 {vr(cPS,4)}, {vr(cPA)}", lg="ps"),
      f"s_lshl_b32 {sr(sT[0])}, {sr(sWQ)}, 10", f"s_add_u32 {sr(sT[0])}, {sr(sT[0])}, {L_QX}", "", "", "", ("W", "ps")]
q2 += sum4(cPS) + split3_ops(cPS, "0", cWa[0], cWa[0] + 1, cT[0], cT[1], None)
q2 += [f"v_lshl_add_u32 {vr(cT[1])}, {vr(vL)}, 4, {sr(sT[0])}",
       lambda: mfma32(cQA, cWa[0], cXa, cQA),
       f"v_mul_f32 {vr(cT[0])}, {f32(0.25*math.log2(math.e))}, {vr(cR)}",
       "", "", "", ""]
q2 += [f"v_mul_f32 {vr(cQA+i)}, {vr(cQA+i)}, {vr(cT[0])}" for i in range(16)]
for u in range(2):
    q2 += [f"v_cvt_pk_bf16_f32 {vr(cQA+4*u+i)}, {vr(cQA+8*u+2*i)}, {vr(cQA+8*u+2*i+1)}" for i in range(4)]
    q2 += [lambda u=u: a(f"ds_write_b128 {vr(cT[1])}, {vr(cQA+4*u,4)} offset:{u*4096}", lg="qx")]
sched(33, q2)
sched(76, record(lambda: att_addr_v(cT[0])) + [f"v_mov_b64 {vr(cWF[k]+2,2)}, 0" for k in range(3)])
sched(84, [x for x in record(o_zero)[6:]])


def late_loads():
    a(f"""s_lshl_b32 {sr(sT[0])}, {sr(sT0)}, 6
          v_lshlrev_b32 {vr(cT[0])}, 1, {vr(vL31)}""")
    for t in range(3):
        a(f"buffer_load_ushort {vr(cBI+t)}, {vr(cT[0])}, {sr(R_B1,4)}, {sr(sT[0])} offen offset:{64*t}", vm="bias")


sched(98, [late_loads])
sched(106, [lambda: f1_issue(cF1)])
sched(112, [f"s_lshl_b32 {sr(sT[0])}, {sr(sWQ)}, 2", f"v_add_u32 {vr(cT[0])}, {sr(sT[0])}, {vr(cPA)}",
            f"s_add_u32 {sr(sT[0])}, {sr(sT[0])}, {L_FLG}", f"v_mov_b32 {vr(cT[1])}, {sr(sT[0])}",
            f"v_mov_b32 {vr(cFL+4)}, {L_FLG}", lambda: a.wait(vm="bias")] + [f"v_lshlrev_b32 {vr(cBI+t)}, 16, {vr(cBI+t)}" for t in range(3)])
sched(119, [lambda t=t: a(f"ds_write_b32 {vr(cT[0])}, {vr(cFC[t])} offset:{512*(t+1)}", lg="fc") for t in range(2)])
sched(122, [lambda: a(f"ds_write_b32 {vr(cT[0])}, {vr(cFC[2])} offset:1536", lg="fc"),
            lambda: a(f"ds_write_b32 {vr(cT[1])}, {vr(cT[1])}", lg="fc")])
sched(123, record(o_zero)[:4])


def part_reads():
    a(f"ds_read_b128 {vr(cFL,4)}, {vr(cFL+4)}", lg="p3")
    for t in range(3):
        a(f"ds_read_b128 {vr(cP3+4*t,4)}, {vr(cPA)} offset:{512*(t+1)}", lg="p3")


sched(125, [part_reads] + record(o_zero)[4:6])
ER = OPT.get("er", 4)
for i in range(128):
    a.wait(lg=("tw", i))
    fr = RING + 4 * (i & 7)
    if i < 32:
        mfma32(cQA, fr, XR(i), "0" if i == 0 else cQA)
        cs = (cQC, i == 0) if i % 4 == 0 else None
    else:
        k, t = divmod(i - 32, 3)
        mfma32(cACC[t], fr, XR(k), "0" if k == 0 else cACC[t])
        cs = (cFC[t], k == 3) if (k == 3 or (k >= 4 and k % 4 == 0)) else None
    if i + LA == 16:
        a("s_barrier")
    if i + LA == 32:
        a("s_barrier")
        stamp("c9")
    if i == 33:
        a.wait(lg="qc")
        a("s_barrier")
    if i + LA == 56:
        a("s_barrier")
        stamp("c10")
    if i == B11:
        assert not side and 56 - LA < B11 <= 80 - LA
        a.wait(lg="qx")
        a("s_barrier")
        stamp("c11")
    if i == B11 + OPT.get('b11d', 5):
        a("s_barrier")
        a(f"s_setprio {OPT.get('cp3', 3)}")
    stamp(f"i{i}")
    a.room(2)
    t_read(i + LA)
    if 22 <= i < 26:
        a(f"v_add_u32 {vr(cXA+i-22)}, {sr(20+i-22)}, {vr(cFB)}")
    if i == 27:
        assert not side
    side += at.get(i, [])
    side_ops(ER if i < 27 else 2)
    if cs:
        mfma16(cs[0], cSEL, fr, "0" if cs[1] else cs[0])
    if i == F1S:
        assert F1S >= 31 and WS_FL % 4096 == 0
        a(f"""s_and_b32 {sr(sT[3])}, {sr(sF1)}, 0xfffff3ff
              v_mov_b32 {vr(cQC)}, 1
              v_lshlrev_b32 {vr(cQC+1)}, 10, {vr(vL)}""")
        a.wait(vm="all")
        a(f"""s_mov_b64 exec, 15
              buffer_atomic_add {vr(cQC)}, {vr(cQC+1)}, {sr(R_WS,4)}, {sr(sT[3])} offen offset:48 sc1
              s_mov_b64 exec, -1""")
        stamp("f1sent")
assert not side
stamp("ffnend")
a("s_setprio 3")
a(f"s_mov_b32 {sr(sT[6])}, {OPT['spin']}")
a.label("L_p3")
a.wait(lg="all")
a(f"""v_min_u32 {vr(cFL)}, {vr(cFL)}, {vr(cFL+1)}
      v_min3_u32 {vr(cFL)}, {vr(cFL)}, {vr(cFL+2)}, {vr(cFL+3)}
      v_cmp_eq_u32 vcc, 0, {vr(cFL)}
      s_nop 1
      s_cmp_eq_u64 vcc, 0
      s_cbranch_scc1 L_p3d""")
part_reads()
a(f"""s_sub_u32 {sr(sT[6])}, {sr(sT[6])}, 1
      s_cmp_lg_u32 {sr(sT[6])}, 0
      s_cbranch_scc1 L_p3""")
a.wait(lg="all")
a.label("L_p3d")
q_reads()
for t in range(3):
    emit(sum4(cP3 + 4 * t) + split3_ops(cP3 + 4 * t, vr(cBI + t), cWF[t], cWF[t] + 1, cT[0], cT[1], None))
    if t:
        mfma32(cACC[t - 1], cWF[t - 1], cXa, cACC[t - 1])
f1_check(cF1)
mfma32(cACC[2], cWF[2], cXa, cACC[2])
att_init()
a(f"v_mov_b64 {vr(vFP,2)}, {vr(VB[0],2)}")
kvload(0)
kvload(1)
kvload(2)
stamp("kvl")
HSP = OPT.get("hsp", 1)


def hstore(n):
    a(f"buffer_store_dwordx4 {vr(208+4*n,4)}, {vr(vL16)}, {sr(R_WS,4)}, {sr(sHS if n < 4 else sHS2)} offen offset:{1024*(n&3)} sc1", vm="h")


for t in range(3):
    for u in range(2):
        b = cACC[t] + 8 * u
        for i in range(8):
            a(f"v_max_f32 {vr(b+i)}, 0, {vr(b+i)}")
        for i in range(8):
            a(f"v_mul_f32 {vr(b+i)}, {vr(b+i)}, {vr(b+i)}")
        p = 208 + 8 * t + 4 * u
        for i in range(4):
            a(f"v_cvt_pk_bf16_f32 {vr(p+i)}, {vr(b+2*i)}, {vr(b+2*i+1)}")
        if not HSP:
            hstore(2 * t + u)
assert HSP
xb_init()
a.wait(lg="all")
assert a.vm == att_vm

a.label("L_ATT")
role[0] = "HC"
a.wait(vm=("v", 0))
stamp("attst")


def hload(i):
    a(f"buffer_load_dwordx4 {vr(HF+4*(i%12),4)}, {vr(vL16)}, {sr(R_WS,4)}, {sr(sH0)} offen offset:{(i%4)*1024} sc1", vm=("hf", i))


def h_next(i):
    a(f"s_add_u32 {sr(sH0)}, {sr(sH0)}, 4096")
    if i == 20:
        a(f"s_min_u32 {sr(sH0)}, {sr(sH0)}, {sr(sKS)}")


def f2_check():
    a(f"""v_and_b32 {vr(vFL)}, 15, {vr(vL)}
          v_lshlrev_b32 {vr(vFL)}, 7, {vr(vFL)}
          s_and_b32 {sr(sU2)}, {sr(sLINE)}, 0xfffff800
          s_mov_b64 exec, 0xffff""")
    poll(f"buffer_load_dwordx4 {vr(vFP,4)}, {vr(vFL)}, {sr(R_WS,4)}, {sr(sU2)} offen offset:16 sc1", 4, vFP)
    a("s_mov_b64 exec, -1")
    a.vm = []


def touch_idx():
    a(f"""s_lshr_b32 {sr(sU)}, {sr(sRB)}, 2
          s_lshl_b32 {sr(sU)}, {sr(sU)}, 1
          s_and_b32 {sr(sU2)}, {sr(sCB)}, 1
          s_add_u32 {sr(sU)}, {sr(sU)}, {sr(sU2)}
          s_lshl_b32 {sr(sU)}, {sr(sU)}, 3
          s_add_u32 {sr(sU)}, {sr(sU)}, {sr(sW)}
          s_and_b32 {sr(sU2)}, {sr(sOUT)}, 0x3ff
          v_lshlrev_b32 {vr(vFL)}, 10, {vr(vL)}""")


def touch_w2():
    a.comment("pull a share of the W2 rows streamed inside the attention loop into L2")
    touch_idx()
    a(f"""s_lshr_b32 {sr(sT[3])}, {sr(sU)}, 4
          s_mul_i32 {sr(sT[3])}, {sr(sT[3])}, {(352-160)*1024}
          s_mul_i32 {sr(sU)}, {sr(sU)}, {10*1024}
          s_add_u32 {sr(sU)}, {sr(sU)}, {sr(sT[3])}
          s_add_u32 {sr(sU)}, {sr(sU)}, {sr(sU2)}
          s_mov_b64 exec, 0x3ff""")
    a(f"buffer_load_dword {vr(vDUM)}, {vr(vFL)}, {sr(R_W2,4)}, {sr(sU)} offen", vm="t")
    a("s_mov_b64 exec, -1")


def touch_wo():
    a.comment("pull a share of the Wo column block into L2")
    touch_idx()
    a(f"""s_lshl_b32 {sr(sU)}, {sr(sU)}, 13
          s_add_u32 {sr(sU)}, {sr(sU)}, {sr(sU2)}
          s_mov_b64 exec, 0xff""")
    a(f"buffer_load_dword {vr(vDUM)}, {vr(vFL)}, {sr(R_WO,4)}, {sr(sU)} offen", vm="t")
    a("s_mov_b64 exec, -1")


extras = {}


def put(it, tile, slot, fn):
    extras.setdefault((it, tile, slot), []).append(fn)


for i in range(3, 16):
    if i < 3 + XB:
        put(0, i - 3, 2, lambda i=i: kvload(i))
    else:
        it = i - XB - 2 if i < XB + 6 else i - 2
        put(it, 0, 0, lambda i=i: kvload(i, False))
        put(it, 0, 1, kv_next)


def f2_signal():
    a(f"""s_cmp_lt_u32 {sr(sW)}, 4
          s_cbranch_scc1 L_nof2
          s_lshl_b32 {sr(sU)}, {sr(sW)}, 2
          s_add_u32 {sr(sU)}, {sr(sU)}, {sr(sLINE)}""")
    keep = list(a.vm)
    a.wait(vm="h")
    a.vm = keep
    set_flag(sU, vFL)
    a(f"s_setprio {2 if OPT['prio'] else 0}")
    a.label("L_nof2")


if HSP:
    a.comment("waves 4-7 publish h one fragment at a time; waves 0-3 run the same stores out of range (dropped)")
    for n in range(6):
        put((XB + n * HSP) // 4, (XB + n * HSP) % 4, 2, lambda n=n: hstore(n))
    F2S = XB + 5 * HSP + OPT.get("f2d", 10)
    put(F2S // 4, F2S % 4, 1, f2_signal)
else:
    put(2, 3, 1, f2_signal)
put(OPT.get("tw2", 2), 2, 1, touch_w2)
put(OPT["tit"], 2, 1, touch_wo)
F2IT = OPT["f2it"]
put(F2IT, 0, 2, f2_check)


def marker_check():
    a.comment("the W1 image may be overwritten once all four compute waves have set their marker words")
    a(f"""v_mov_b32 {vr(vFL)}, {L_FLG}
          s_mov_b32 {sr(sT[6])}, {OPT['spin']}""")
    a.label("L_mk")
    a(f"ds_read_b128 {vr(vFP,4)}, {vr(vFL)}", lg="mk")
    a.wait(lg="all")
    a(f"""v_min_u32 {vr(vFP)}, {vr(vFP)}, {vr(vFP+1)}
          v_min3_u32 {vr(vFP)}, {vr(vFP)}, {vr(vFP+2)}, {vr(vFP+3)}
          v_cmp_eq_u32 vcc, 0, {vr(vFP)}
          s_sub_u32 {sr(sT[6])}, {sr(sT[6])}, 1
          s_cmp_eq_u64 vcc, 0
          s_cbranch_scc1 L_mkd
          s_cmp_lg_u32 {sr(sT[6])}, 0
          s_cbranch_scc1 L_mk""")
    a.label("L_mkd")


WIT = OPT.get("wit", 4)
put(WIT, 0, 2, marker_check)
for i in range(12):
    put(WIT + i // 3, 1 + i % 3, 2, lambda i=i: dma(vWD, R_W2, sW2, (sLA, i * 8192), "w2a", f"s_add_u32 {sr(sW2)}, {sr(sW2)}, 16384"))
FA, WF, vSDV, vWD2 = [196, 212], 228, 249, 247
vB0, vB1, vC0, vC1 = 241, 242, 243, 248
sWR, sRG = 18, 19


def ring_addr():
    tr_addr128(vB0, vB1, 4, vFL)
    a(f"""s_mul_i32 {sr(sRG)}, {sr(sW)}, 7168
          s_add_u32 {sr(sRG)}, {sr(sRG)}, {L_CMB}
          v_add_u32 {vr(vC0)}, {sr(sRG)}, {vr(vB0)}
          v_add_u32 {vr(vC1)}, {sr(sRG)}, {vr(vB1)}
          s_lshl_b32 {sr(sWR)}, {sr(sKS)}, 14
          s_and_b32 {sr(sU2)}, {sr(sOUT)}, 0x3ff
          s_add_u32 {sr(sWR)}, {sr(sWR)}, {sr(sU2)}
          s_sub_u32 {sr(sWR)}, {sr(sWR)}, 16384
          s_lshl_b32 {sr(sU2)}, {sr(sKS)}, 10
          s_add_u32 {sr(sKS)}, {sr(sH0)}, {84*1024}
          s_add_u32 {sr(sH0)}, {sr(sH0)}, {sr(sU2)}""")


def ring_m0(k):
    if k < NI:
        a(f"s_add_u32 m0, {sr(sRG)}, {(k % 3) * 2048}")


def ring_so(k):
    if k < NI:
        a(f"s_add_u32 {sr(sWR)}, {sr(sWR)}, 16384")


def ring_dma(k):
    if k < NI:
        a(f"buffer_load_dwordx4 {vr(vWD)}, {sr(R_W2,4)}, {sr(sWR)} offen lds", vm=("rg", k))
        a(f"buffer_load_dwordx4 {vr(vWD2)}, {sr(R_W2,4)}, {sr(sWR)} offen offset:1024 lds", vm=("rg", k))


def ring_read(k, ct):
    for u in range(2):
        a(f"ds_read_b64_tr_b16 {vr(WF+4*ct+2*u,2)}, {vr((vC0, vC1)[ct])} offset:{(k%3)*2048+u*1024}", lg=("wf", k, ct))


def sd_read():
    a(f"""s_and_b32 {sr(sU2)}, {sr(sCB)}, 1
          s_lshl3_add_u32 {sr(sU2)}, {sr(sU2)}, {sr(sWQ)}
          s_lshl_b32 {sr(sU2)}, {sr(sU2)}, 5
          s_add_u32 {sr(sU2)}, {sr(sU2)}, {L_STATS}
          v_lshrrev_b32 {vr(vFL)}, 3, {vr(vL)}
          v_lshl_add_u32 {vr(vFL)}, {vr(vFL)}, 2, {sr(sU2)}""")
    a(f"ds_read_b32 {vr(vSDV)}, {vr(vFL)}", lg="sd")
    a(f"ds_read_b32 {vr(vSDV+1)}, {vr(vFL)} offset:128", lg="sd")


def putt(t, slot, fn):
    put(t // 4, t % 4, slot, fn)


put(F2IT - 1, 1, 0, ring_addr)
put(F2IT - 1, 2, 0, sd_read)
FT0 = 4 * (15 - NI // 2)
T2 = 4 * F2IT
assert FT0 - T2 >= 8 and WIT + 4 <= F2IT
putt(T2, 2, lambda: a(f"v_add_u32 {vr(vWD2)}, {8192-1024}, {vr(vWD)}"))
for k in range(3):
    putt(T2 + 1 + 2 * k, 0, lambda k=k: (ring_m0(k), ring_so(k)))
    putt(T2 + 1 + 2 * k, 2, lambda k=k: (ring_dma(k), hload(4 * k)))
    putt(T2 + 2 + 2 * k, 2, lambda k=k: (hload(4 * k + 1), hload(4 * k + 2), hload(4 * k + 3)))
    putt(T2 + 3 + 2 * k, 1, lambda k=k: h_next(4 * k + 4))
for k in range(NI):
    t = FT0 + 2 * k
    putt(t - 1, 3 if k else 2, lambda k=k: (a.wait(vm=("rg", k)), ring_read(k, 0)))
    putt(t, 3, lambda k=k: ring_read(k, 1))
    putt(t, 2, lambda k=k: ring_m0(k + 3))
    putt(t + 1, 1, lambda k=k: ring_so(k + 3))
    putt(t + 1, 2, lambda k=k: ring_dma(k + 3))
for k in range(NI):
    t = FT0 + 2 * k
    putt(t + 3, 2, lambda k=k: hload(k + 12))
    if (k + 13) % 4 == 0:
        putt(t + 5, 0, lambda k=k: h_next(k + 13))
if OPT["prio"]:
    P1, P0 = OPT.get("p1", 46), OPT.get("p0", 60)
    put(P1 // 4, P1 % 4, 1, lambda: a("s_setprio 1"))
    put(P0 // 4, P0 % 4, 1, lambda: a("s_setprio 0"))


def run_extras(it, tile, slot):
    for fn in extras.get((it, tile, slot), []):
        fn()


def exps(b, lo, hi):
    for i in range(lo, hi):
        a(f"v_exp_f32 {vr(b+i)}, {vr(b+i)}")


ORD = [1, 2, 3, 0]
T = [64 + i for i in range(32)]
CA = vbuf(13)
VS = vbuf(15)
assert 3 + XB <= F2IT


def cmb_addr(j):
    a(f"""s_xor_b32 {sr(sU)}, {sr(sW)}, {j}
          s_mul_i32 {sr(sU)}, {sr(sU)}, 7168
          s_add_u32 {sr(sU)}, {sr(sU)}, {L_CMB + max(j-1, 0)*2304}
          v_add_u32 {vr(CA+2*j)}, {sr(sU)}, {vr(vL16)}
          v_lshl_add_u32 {vr(CA+2*j+1)}, {vr(vL)}, 2, {sr(sU)}""")


def cmb_write(j):
    o = (j - 1) * 2304
    a(f"ds_write_b128 {vr(CA)}, {vr(O[j],4)} offset:{o}", lg="c")
    a(f"ds_write_b128 {vr(CA)}, {vr(O[j]+4,4)} offset:{o+1024}", lg="c")
    a(f"ds_write_b32 {vr(CA+1)}, {vr(O[j]+8)} offset:{o+2048}", lg="c")


def w_addr():
    a(f"""s_and_b32 {sr(sU)}, {sr(sLA)}, 0xfffff800
          v_add_u32 {vr(vC0)}, {sr(sU)}, {vr(vB0)}
          v_add_u32 {vr(vC1)}, {sr(sU)}, {vr(vB1)}""")


put(15, 0, 0, w_addr)
for j in range(4):
    put(15, j // 2, 1 + j % 2, lambda j=j: cmb_addr(j))
put(15, 2, 0, lambda: cmb_write(1))
put(15, 3, 0, lambda: cmb_write(2))
mfma32(S[0], KB[0], Q[ORD[0]], "0")
for t in range(64):
    it, j = t // 4, t % 4
    X, Y = S[t & 1], S[(t + 1) & 1]
    stamp(f"t{t}")
    exps(X, 0, 2)
    if t > 0:
        pit, pj = (t - 1) // 4, (t - 1) % 4
        smf(O[ORD[pj]], vbuf(pit) + 4, Y + 8, vIDX)
    if j == 3:
        a.wait(vm=("v", it + 1))
    run_extras(it, j, 0)
    exps(X, 2, 5)
    if t < 63:
        nit, nj = (t + 1) // 4, (t + 1) % 4
        mfma32(Y, kbuf(nit), Q[ORD[nj]], "0")
    run_extras(it, j, 1)
    ff = FT0 <= t < FT0 + 2 * NI
    exps(X, 5, 10 if ff else 11)
    smf(O[ORD[j]], vbuf(it), X, vIDX)
    if ff:
        k, ct = divmod(t - FT0, 2)
        a.wait(vm=("hf", k), lg=("wf", k, ct))
    run_extras(it, j, 2)
    if t == 63:
        cmb_write(3)
    if ff:
        exps(X, 10, 14)
        mfma32(FA[ct], WF + 4 * ct, HF + 4 * k, "0" if k == 0 else FA[ct])
        run_extras(it, j, 3)
        exps(X, 14, 16)
    else:
        assert (it, j, 3) not in extras
        exps(X, 11, 16)
a.wait(vm="w2a", lg="all")
smf(O[0], vbuf(15) + 4, S[1] + 8, vIDX)
stamp("attend")

a("s_barrier")
stamp("barc")
for j in range(1, 4):
    a(f"ds_read_b128 {vr(O[j],4)}, {vr(CA+2*j)}", lg=("c", j))
    a(f"ds_read_b128 {vr(O[j]+4,4)}, {vr(CA+2*j)} offset:1024", lg=("c", j))
    a(f"ds_read_b32 {vr(O[j]+8)}, {vr(CA+2*j+1)} offset:2048", lg=("c", j))
for j in range(1, 4):
    a.wait(lg=("c", j))
    for i in range(9):
        a(f"v_add_f32 {vr(O[0]+i)}, {vr(O[0]+i)}, {vr(O[j]+i)}")
a(f"""v_add_f32 {vr(T[2])}, |{vr(O[0])}|, |{vr(O[0]+1)}|
      v_add_f32 {vr(T[3])}, |{vr(O[0]+2)}|, |{vr(O[0]+3)}|
      v_cmp_nle_f32 vcc, {f32(2.0**-64)}, {vr(O[0]+8)}
      v_add_f32 {vr(T[2])}, |{vr(O[0]+4)}|, {vr(T[2])}
      s_mov_b64 s[76:77], vcc
      v_add_f32 {vr(T[3])}, |{vr(O[0]+5)}|, {vr(T[3])}
      v_cmp_nge_f32 vcc, {f32(2.0**64)}, {vr(O[0]+8)}
      v_add_f32 {vr(T[2])}, |{vr(O[0]+6)}|, {vr(T[2])}
      s_or_b64 s[76:77], s[76:77], vcc
      v_add_f32 {vr(T[3])}, |{vr(O[0]+7)}|, {vr(T[3])}
      v_add_f32 {vr(T[2])}, {vr(T[2])}, {vr(T[3])}
      v_cmp_nge_f32 vcc, {f32(2.0**126)}, {vr(T[2])}
      s_or_b64 s[76:77], s[76:77], vcc""")
a("s_branch L_SLOW" if OPT["force_slow"] else "s_cbranch_scc1 L_SLOW")
a.label("L_NORM")
a(f"v_rcp_f32 {vr(T[2])}, {vr(O[0]+8)}")
WR = 32
pC = [Ptr(vC0), Ptr(vC1)]


def w_read(i, addr, tag):
    for ct in range(2):
        for u in range(2):
            tr(WR + 8 * (i & 3) + 4 * ct + 2 * u, pC[ct], addr + u * 1024, (tag, i))


w_read(0, 0, "f")
for i in range(8):
    a(f"v_mul_f32 {vr(O[0]+i)}, {vr(O[0]+i)}, {vr(T[2])}")
for i in range(4):
    a(f"v_cvt_pk_bf16_f32 {vr(T[4]+i)}, {vr(O[0]+2*i)}, {vr(O[0]+2*i+1)}")
a(f"buffer_store_dwordx4 {vr(T[4],4)}, {vr(vL16)}, {sr(R_WS,4)}, {sr(sO)} offen sc1", vm="o")
stamp("ost")
w_read(1, 8192, "f")
sWoS = sT[3]
a(f"""s_lshl_b32 {sr(sWoS)}, {sr(sW)}, 13
      s_and_b32 {sr(sU2)}, {sr(sOUT)}, 0x3ff
      s_add_u32 {sr(sWoS)}, {sr(sWoS)}, {sr(sU2)}
      s_sub_u32 {sr(sWoS)}, {sr(sWoS)}, 0x10000
      s_cmp_ge_u32 {sr(sW)}, 4
      s_barrier
      s_cbranch_scc1 L_TC""")

vOUT, vPW, vPR = T[8], T[10], T[14]
vX, vB2 = 128, 136
AF, PF3 = OPT.get("af", 5), OPT.get("pf3", 10)
pw_addr = [f"v_and_b32 {vr(vFL)}, 7, {vr(vL)}",
           f"v_xor_b32 {vr(vPW)}, {vr(vFL)}, {vr(vHH)}",
           f"v_lshlrev_b32 {vr(vPW)}, 4, {vr(vPW)}",
           f"v_lshl_add_u32 {vr(vPW)}, {vr(vL31)}, 8, {vr(vPW)}",
           f"s_lshl_b32 {sr(sU2)}, {sr(sW)}, 13",
           f"v_add_u32 {vr(vPW)}, {sr(sU2)}, {vr(vPW)}",
           f"v_xor_b32 {vr(vPW+1)}, 32, {vr(vPW)}",
           f"v_xor_b32 {vr(vPW+2)}, 64, {vr(vPW)}",
           f"v_xor_b32 {vr(vPW+3)}, 0x60, {vr(vPW)}"]
assert L_PART == 0


def stage(ops, hook, flag):
    global side
    side = list(ops)
    for p in pC:
        p.base = 0
    for i in range(12):
        k = NI + i
        a.wait(vm=("hf", k), lg=("f", i))
        mfma32(FA[0], WR + 8 * (i & 3), HF + 4 * (k % 12), FA[0])
        if i + 2 < 12:
            w_read(i + 2, (i + 2) * 8192, "f")
        hook(i, 0)
        mfma32(FA[1], WR + 8 * (i & 3) + 4, HF + 4 * (k % 12), FA[1])
        if i < 8:
            dma(vWD, R_WO, sWoS, (sLA, L_WO + i * 8192), "wo", f"s_add_u32 {sr(sWoS)}, {sr(sWoS)}, 0x10000")
        side_ops(5)
        if i == AF:
            a.wait(vm="o")
            a("s_barrier")
            flag()
            stamp("a6")
        elif i == 7 and AF < 7:
            a("s_barrier")
        hook(i, 1)
    assert not side


def pw1(acc, n):
    ct, g = n >> 2, n & 3
    a(f"ds_write_b128 {vr(vPW+g)}, {vr(acc[ct]+4*g,4)} offset:{ct*128}", lg="p")


sv = (list(a.vm), list(a.lg))
role[0] = "H"
f3load = f"v_mov_b32 {vr(vFP)}, 0\nbuffer_atomic_add {vr(vFP)}, off, {sr(R_WS,4)}, {sr(sT[5])} offset:32 sc0 sc1"
OF = [96 + 4 * i for i in range(13)] + [0, 4, 8]
oq = list(range(16))
h_ops = pw_addr + [
    f"s_lshr_b32 {sr(sU)}, {sr(sW)}, 1",
    f"s_lshl_b32 {sr(sU2)}, {sr(sU)}, 2",
    f"s_add_u32 {sr(sT[5])}, {sr(sLINE)}, {sr(sU2)}",
    f"s_lshr_b32 {sr(sU2)}, {sr(sCB)}, 3",
    f"s_xor_b32 {sr(sU2)}, {sr(sU2)}, {sr(sU)}",
    f"s_add_u32 s20, {sr(sU2)}, 7",
    f"s_lshr_b32 {sr(sT[2])}, {sr(sOUT)}, 16",
    f"s_lshl_b32 {sr(sT[2])}, {sr(sT[2])}, 1",
    f"s_and_b32 {sr(sU2)}, {sr(sW)}, 1",
    f"s_add_u32 {sr(sT[2])}, {sr(sT[2])}, {sr(sU2)}",
    f"s_lshl_b32 {sr(sT[2])}, {sr(sT[2])}, 1",
    f"s_add_u32 {sr(sT[2])}, {sr(sT[2])}, {sr(sU)}",
    f"s_lshl_b32 {sr(sT[2])}, {sr(sT[2])}, 14",
    f"s_add_u32 {sr(sT[2])}, {sr(sT[2])}, {WS_O}"]


def oload():
    if not oq:
        return
    i = oq.pop(0)
    a(f"buffer_load_dwordx4 {vr(OF[i],4)}, {vr(vL16)}, {sr(R_WS,4)}, {sr(sT[2])} offen offset:{(i&3)*1024} sc1", vm=("of", i))
    if i & 3 == 3 and i < 15:
        a(f"s_add_u32 {sr(sT[2])}, {sr(sT[2])}, 4096")


def h_flag():
    assert not side


PIS = [int(c) for c in str(OPT.get("pis", 579))]


def f3_read(n, tag=None):
    if tag:
        a(f"v_mov_b32 {vr(vFP+n)}, 0")
    a(f"buffer_atomic_umax {vr(vFP+n)}, off, {sr(R_WS,4)}, {sr(sT[5])} offset:32 sc0 sc1", vm=tag)


def h_hook(i, h):
    if h == 1 and i in PIS:
        if i == PIS[0]:
            a.comment("staggered reads of the arrival counter of this wave's other producers (own stores were drained at a barrier)")
        a("s_mov_b64 exec, 1")
        f3_read(PIS.index(i), ("f3", PIS.index(i)))
        a("s_mov_b64 exec, -1")
    if (i, h) == (PF3, 1):
        N = len(PIS)
        a.wait(vm="wo")
        a(f"""s_mov_b64 exec, 1
              s_mov_b32 {sr(sT[6])}, {OPT['spin']}""")
        a.label("L_f3")
        for n in range(N):
            a(f"""s_waitcnt vmcnt({N-1})
                  v_cmp_gt_u32 vcc, s20, {vr(vFP+n)}
                  s_nop 1
                  s_cmp_eq_u64 vcc, 0
                  s_cbranch_scc1 L_f3d""")
            f3_read(n)
        a(f"""s_sub_u32 {sr(sT[6])}, {sr(sT[6])}, 1
              s_cmp_lg_u32 {sr(sT[6])}, 0
              s_cbranch_scc1 L_f3""")
        a.label("L_f3d")
        a.vm = []
        a("s_mov_b64 exec, -1")
        stamp("f3seen")
        oload()
    if i > PF3 or (i, h) == (PF3, 1):
        oload()


assert max(PIS) <= PF3 and min(PIS) >= 4
assert PF3 >= max(AF, 7)
stage(h_ops, h_hook, h_flag)
stamp("g1")
a(f"""s_lshl_b32 {sr(sU2)}, {sr(sU)}, 15
      s_add_u32 {sr(sU2)}, {sr(sU2)}, {L_WO}
      v_add_u32 {vr(vC0)}, {sr(sU2)}, {vr(vB0)}
      v_add_u32 {vr(vC1)}, {sr(sU2)}, {vr(vB1)}""")
while len(oq) > 8:
    oload()
for n in range(8):
    pw1(FA, n)
    oload()
a.wait(vm="wo", lg="all")
a("s_barrier")
stamp("g3")
pC = [Ptr(vC0), Ptr(vC1)]
for i in range(3):
    w_read(i, i * 2048, "wo")
for g in range(4):
    a(f"v_add_u32 {vr(vPW+g)}, {L_PB - L_PART}, {vr(vPW+g)}")
for i in range(16):
    a.wait(vm=("of", i), lg=("wo", i))
    if i == 0:
        stamp("wost")
    mfma32(FA[0], WR + 8 * (i & 3), OF[i], "0" if i == 0 else FA[0])
    if i + 3 < 16:
        w_read(i + 3, (i + 3) * 2048, "wo")
    mfma32(FA[1], WR + 8 * (i & 3) + 4, OF[i], "0" if i == 0 else FA[1])
for n in range(8):
    pw1(FA, n)
a.wait(lg="all")
a("s_barrier")
a("s_branch L_DONE" if OPT["stamps"] else "s_endpgm")

a.label("L_TC")
role[0] = "C"
a.vm, a.lg = list(sv[0]), list(sv[1])
vR2 = vSDV
G, XU, PR, BU, TE = 0, 16, 148, T[16], 32
c_ops = pw_addr + [
    f"v_mov_b32 {vr(T[3])}, 1",
    f"v_lshlrev_b32 {vr(T[1])}, 7, {vr(vL)}",
    f"s_and_b32 {sr(sT[5])}, {sr(sLINE)}, 0xfffff800",
    f"s_lshr_b32 {sr(sU2)}, {sr(sCB)}, 3",
    f"s_lshl_b32 {sr(sU2)}, {sr(sU2)}, 2",
    f"s_add_u32 {sr(sT[5])}, {sr(sT[5])}, {sr(sU2)}",
    "s_mov_b64 s[20:21], 0xffff",
    f"s_bitset0_b32 s20, {sr(sCB)}",
    f"v_lshrrev_b32 {vr(T[2])}, 3, {vr(vL)}",
    f"v_lshlrev_b32 {vr(vPR)}, 1, {vr(vFL)}",
    f"v_xor_b32 {vr(vPR)}, {vr(vPR)}, {vr(T[2])}",
    f"v_lshlrev_b32 {vr(vPR)}, 4, {vr(vPR)}",
    f"v_lshl_add_u32 {vr(vPR)}, {vr(T[2])}, 8, {vr(vPR)}",
    f"s_lshl_b32 {sr(sU2)}, {sr(sWQ)}, 11",
    f"v_add_u32 {vr(vPR)}, {sr(sU2)}, {vr(vPR)}",
    f"v_xor_b32 {vr(vPR+1)}, 16, {vr(vPR)}",
    f"v_lshlrev_b32 {vr(T[9])}, 4, {vr(vFL)}",
    f"v_lshl_add_u32 {vr(vOUT)}, {vr(T[2])}, 10, {vr(T[9])}",
    f"s_and_b32 {sr(sU2)}, {sr(sOUT)}, 0x3ff",
    f"s_add_u32 {sr(sU)}, {sr(sOUT)}, 0x8000",
    lambda: a(f"buffer_load_dwordx4 {vr(vB2,4)}, {vr(T[9])}, {sr(R_B2,4)}, {sr(sU2)} offen", vm="fin"),
    lambda: a(f"buffer_load_dwordx4 {vr(vX,4)}, {vr(vOUT)}, {sr(R_X,4)}, {sr(sOUT)} offen", vm="fin"),
    lambda: a(f"buffer_load_dwordx4 {vr(vX+4,4)}, {vr(vOUT)}, {sr(R_X,4)}, {sr(sU)} offen", vm="fin")]
c_ops += [f"v_mul_f32 {vr(vR2+r)}, {vr(vR2+r)}, {vr(vR2+r)}" for r in range(2)]


def c_flag():
    a(f"""s_cmp_lg_u32 {sr(sW)}, 4
          s_cbranch_scc1 L_nof3""")
    keep = list(a.vm)
    a(f"""s_mov_b64 exec, s[20:21]
          buffer_atomic_add {vr(T[3])}, {vr(T[1])}, {sr(R_WS,4)}, {sr(sT[5])} offen offset:32 sc1
          s_mov_b64 exec, -1""")
    a.vm = keep
    a.label("L_nof3")


stage(c_ops, lambda i, h: None, c_flag)
stamp("g1")
a.wait(vm="fin")
for i in range(4):
    a(f"""v_lshlrev_b32 {vr(BU+2*i)}, 16, {vr(vB2+i)}
          v_and_b32 {vr(BU+2*i+1)}, 0xffff0000, {vr(vB2+i)}""")
for n in range(8):
    pw1(FA, n)
    a(f"""v_lshlrev_b32 {vr(XU+2*n)}, 16, {vr(vX+n)}
          v_and_b32 {vr(XU+2*n+1)}, 0xffff0000, {vr(vX+n)}""")
stamp("pw")
a.wait(vm="wo", lg="all")
a("s_barrier")
stamp("g3")


def p_read(r, kq):
    for h in range(2):
        d = G + 8 * r + 4 * h if kq == 0 else PR + 24 * r + 8 * (kq - 1) + 4 * h
        a(f"ds_read_b128 {vr(d,4)}, {vr(vPR+h)} offset:{r*8192+kq*16384}", lg=("p", r, kq))


for kq in range(4):
    p_read(0, kq)
for kq in range(3):
    p_read(1, kq)
a.wait(lg=("p", 0, 0))
p_read(1, 3)
for r in range(2):
    for kq in range(1, 4):
        a.wait(lg=("p", r, kq))
        for i in range(8):
            a(f"v_add_f32 {vr(G+8*r+i)}, {vr(G+8*r+i)}, {vr(PR+24*r+8*(kq-1)+i)}")
for i in range(16):
    a(f"v_fma_f32 {vr(G+i)}, {vr(G+i)}, {vr(vR2+i//8)}, {vr(BU+i%8)}")
for i in range(16):
    a(f"v_mul_f32 {vr(TE+i)}, {f32(-math.log2(math.e))}, {vr(G+i)}")
for i in range(16):
    a(f"v_exp_f32 {vr(TE+i)}, {vr(TE+i)}")
for i in range(16):
    a(f"v_add_f32 {vr(TE+i)}, 1.0, {vr(TE+i)}")
for i in range(16):
    a(f"v_rcp_f32 {vr(TE+i)}, {vr(TE+i)}")
for h in range(2):
    a(f"v_add_u32 {vr(vPR+h)}, {L_PB - L_PART}, {vr(vPR+h)}")
for i in range(16):
    a(f"v_mul_f32 {vr(G+i)}, {vr(G+i)}, {vr(TE+i)}")
stamp("gate")
a("s_barrier")
stamp("fin")
for r in range(2):
    for kh in range(2):
        for h in range(2):
            a(f"ds_read_b128 {vr(PR+16*r+8*kh+4*h,4)}, {vr(vPR+h)} offset:{r*8192+kh*16384}", lg=("p", r))
for r in range(2):
    a.wait(lg=("p", r))
    b = PR + 16 * r
    for i in range(8):
        a(f"v_add_f32 {vr(b+i)}, {vr(b+i)}, {vr(b+8+i)}")
    for i in range(8):
        a(f"v_fma_f32 {vr(b+i)}, {vr(b+i)}, {vr(G+8*r+i)}, {vr(XU+8*r+i)}")
    for i in range(4):
        a(f"v_cvt_pk_bf16_f32 {vr(TE+4*r+i)}, {vr(b+2*i)}, {vr(b+2*i+1)}")
    a(f"buffer_store_dwordx4 {vr(TE+4*r,4)}, {vr(vOUT)}, {sr(R_OUT,4)}, {sr(sU if r else sOUT)} offen")
a.label("L_DONE")
role[0] = "HC"
if OPT["stamps"]:
    stamp("end")
    a("s_memtime s[8:9]")
    a(f"""s_waitcnt lgkmcnt(0)
          s_sub_u32 s0, s8, s0
          s_sub_u32 {sr(sU)}, {sr(sLINE)}, {WS_FL}
          s_lshl_b32 {sr(sU)}, {sr(sU)}, 3
          s_lshl_b32 {sr(sU2)}, {sr(sW)}, 7
          s_add_u32 {sr(sU)}, {sr(sU)}, {sr(sU2)}
          s_add_u32 {sr(sU)}, {sr(sU)}, {WS_TS}
          s_mov_b64 exec, 1""")
    for i in range(11):
        a(f"v_mov_b32 {vr(i)}, {sr(sSTAMP+2*i)}")
    a("v_mov_b32 v11, s0")
    for i in range(3):
        a(f"buffer_store_dwordx4 {vr(4*i,4)}, off, {sr(R_WS,4)}, {sr(sU)} offset:{16*i}")
if OPT.get("amp") is not None:
    i = OPT["amp"]
    a(f"""s_cmp_lg_u32 {sr(sW)}, {OPT.get('ampw', 0)}
          s_cbranch_scc1 L_end
          s_sub_u32 s4, {sr(sSTAMP+2*i)}, {sr(sSTAMP)}
          s_lshl_b32 s4, s4, 2
          s_min_u32 s4, s4, 100000""")
    a.label("L_amp")
    a(f"""s_memrealtime s[6:7]
          s_waitcnt lgkmcnt(0)
          s_sub_u32 s6, s6, {sr(sSTAMP+20)}
          s_cmp_lt_u32 s6, s4
          s_cbranch_scc1 L_amp""")
a("s_endpgm")

a.label("L_SLOW")
a.reset_counts()
C = 16
M = T[2]
a(f"""s_nop 7
      s_lshr_b32 {sr(sU)}, {sr(sKV)}, 17
      s_lshl_b32 {sr(sU)}, {sr(sU)}, 17
      s_mov_b32 {sr(sU2)}, 64
      v_mov_b32 {vr(M)}, 0xff800000""")
a.label("L_S1")
a(f"""buffer_load_dwordx4 {vr(KB[0],4)}, {vr(vL16)}, {sr(R_WS,4)}, {sr(sU)} offen sc1
      s_waitcnt vmcnt(0)""")
mfma32(S[1], KB[0], Q[0], "0")
for i in range(8):
    a(f"v_max3_f32 {vr(M)}, {vr(M)}, {vr(S[1]+2*i)}, {vr(S[1]+2*i+1)}")
a(f"""s_add_u32 {sr(sU)}, {sr(sU)}, 2048
      s_sub_u32 {sr(sU2)}, {sr(sU2)}, 1
      s_cmp_lg_u32 {sr(sU2)}, 0
      s_cbranch_scc1 L_S1
      v_mov_b32 {vr(T[3])}, {vr(M)}
      s_nop 1
      v_permlane32_swap_b32 {vr(M)}, {vr(T[3])}
      v_max_f32 {vr(M)}, {vr(M)}, {vr(T[3])}
      s_sub_u32 {sr(sU)}, {sr(sU)}, 0x20000
      s_mov_b32 {sr(sU2)}, 64""")
for i in range(16):
    a(f"v_sub_f32 {vr(C+i)}, 0, {vr(M)}")
    a(f"v_mov_b32 {vr(O[0]+i)}, 0")
a.label("L_S2")
a(f"""buffer_load_dwordx4 {vr(KB[0],4)}, {vr(vL16)}, {sr(R_WS,4)}, {sr(sU)} offen sc1
      s_mov_b64 exec, {sr(sVM,2)}
      buffer_load_dwordx4 {vr(VS,4)}, {vr(vVO)}, {sr(R_WS,4)}, {sr(sU)} offen offset:1024 sc1
      buffer_load_dwordx4 {vr(VS+4,4)}, {vr(vVO)}, {sr(R_WS,4)}, {sr(sU)} offen offset:1536 sc1
      s_mov_b64 exec, -1
      s_waitcnt vmcnt(0)""")
mfma32(S[1], KB[0], Q[0], C)
exps(S[1], 0, 16)
smf(O[0], VS, S[1], vIDX)
smf(O[0], VS + 4, S[1] + 8, vIDX)
a(f"""s_add_u32 {sr(sU)}, {sr(sU)}, 2048
      s_sub_u32 {sr(sU2)}, {sr(sU2)}, 1
      s_cmp_lg_u32 {sr(sU2)}, 0
      s_cbranch_scc1 L_S2
      s_nop 15
      s_branch L_NORM""")
a.label("L_exit")
a("s_waitcnt vmcnt(0) lgkmcnt(0)")
a.label("L_end")
a("s_endpgm")


def add_pads():
    import subprocess, tempfile, os, re
    from asmlib import Ins
    items = a.items
    start = next(i for i, x in enumerate(items) if x.text == "L_C2:")
    stop = next(i for i, x in enumerate(items) if x.text == "L_SLOW:")
    body = [x for x in items[start:stop] if x.is_ins]
    src = '.amdgcn_target "amdgcn-amd-amdhsa--gfx950"\n.text\n' + "\n".join(
        re.sub(r"\bL_\w+", "0", x.text) if x.op.startswith(("s_cbranch", "s_branch")) else x.text for x in body) + "\n"
    with tempfile.TemporaryDirectory() as d:
        open(d + "/t.s", "w").write(src)
        subprocess.run(["clang", "-x", "assembler", "-target", "amdgcn-amd-amdhsa", "-mcpu=gfx950", "-c", d + "/t.s", "-o", d + "/t.o"], check=True)
        dis = subprocess.run(["llvm-objdump", "-d", "--mcpu=gfx950", d + "/t.o"], capture_output=True, text=True, check=True).stdout
    sizes = [4 * len(m.group(1).split()) for m in re.finditer(r"// [0-9A-F]{12}: ([0-9A-F ]+)", dis)]
    assert len(sizes) == len(body)
    out, off, page, k, where, force = [], 0, 0, 0, [], False
    for x in items[start:stop]:
        if x.is_ins:
            if off >= page * 4096 or force:
                if off >= page * 4096:
                    page += 1
                force = False
                where.append(len(out))
                out += [None, None]
                off += 4
            off += sizes[k]
            k += 1
        elif x.text == "L_TC:":
            force = True
        out.append(x)
    n = len(where)
    assert n >= 4
    for j, w in enumerate(where):
        out[w] = Ins(f"L_pad{j}:")
        out[w + 1] = Ins(f"s_cbranch_execz {'L_pad%d' % (j + 4) if j + 4 < n else 'L_wret'}")
    a.items = items[:start] + out + items[stop:]


if WARM:
    assert ALIGN
    add_pads()
ref = open(__file__.rsplit("/", 1)[0] + "/../cdna_kernels/" + NAME + ".s.ref").read().split("\n")
head = [l for l in ref if l.startswith(";") and "@launch" not in l]
if OPT["stamps"]:
    st = STSETS[OPT.get("st", 0)]
    head.append("; stamps H " + " ".join(st["H"]))
    head.append("; stamps C " + " ".join(st["C"]))
out = "\n".join(head) + f"""
; @launch grid=(256,1,1) block=(512,1,1) lds=163840
.amdgcn_target "amdgcn-amd-amdhsa--gfx950"
.text
.globl {NAME}_kernel
.p2align 8
.type {NAME}_kernel,@function
""" + a.text() + f""".section .rodata,"a"
.p2align 6
.amdhsa_kernel {NAME}_kernel
  .amdhsa_next_free_vgpr 256
  .amdhsa_next_free_sgpr 102
  .amdhsa_accum_offset 256
  .amdhsa_group_segment_fixed_size 0
  .amdhsa_kernarg_size 88
  .amdhsa_user_sgpr_count 2
  .amdhsa_user_sgpr_kernarg_segment_ptr 1
  .amdhsa_system_sgpr_workgroup_id_x 1
  .amdhsa_float_denorm_mode_32 3
.end_amdhsa_kernel
"""
open(sys.argv[1], "w").write(out)
if OPT.get("pads"):
    for p in a.pads:
        print("pad", p)
```

```python
import sys, math, struct
from asmlib import Asm, vr, sr

NAME = "recurrent_scan__softmax_full_mha__dense_activation_squared_relu__prompt"
OPT = dict(stamps=0, rot=7, force_slow=0, prio=1, spin=1 << 18, up=3, touch=0, pf=4, tit=13, f2it=8, j6=3, j7=3, j8=4, j9=5, b11=68, b11d=8, warm=1, cprio=1, cp2=1)
for arg in sys.argv[2:]:
    k, v = arg.split("=")
    OPT[k] = int(v, 0)

WS_KV = 0
WS_H = 4 << 20
WS_O = WS_H + 64 * 86 * 1024
WS_FL = WS_O + (2 << 20)
WS_TS = 13 << 20
WS_SIZE = 14 << 20
SLOT = 24576
L_WQ = 49152
L_QX = 147456
L_STATS = 155648
L_CSP = 157696
L_FLG = 160768
L_W1 = [81920 + 12288 * i for i in range(5)] + [12288 * i for i in range(3)]
L_CMB = 98304
L_WO = 98304
L_PART = 0
L_PB = 65536
NI = 10
P_X, P_WQKV, P_WO, P_W1, P_B1, P_W2, P_B2, P_OUT, P_DBG, P_WS = 4, 6, 8, 12, 14, 16, 18, 20, 22, 24
R_X, R_WQKV, R_WO, R_W1, R_W2, R_OUT, R_WS, R_B1, R_B2, R_DBG = 28, 32, 36, 40, 44, 48, 52, 56, 60, 64
sW, sWQ, sRB, sCB, sROT = 68, 69, 70, 71, 72
sT = [73, 74, 75, 76, 77, 78, 79]
sVM = 26
sLINE = 3
sT0 = 10
sSTAMP = 80
vL, vHH, vL31, vTR = 252, 253, 254, 255


def f32(x):
    return "0x%08x" % struct.unpack("<I", struct.pack("<f", x))[0]


a = Asm()


STSETS = {
    0: dict(H=["start", "bar8", "x", "f1seen", "bar11", "x", "attst", "attend", "g1", "f3seen", "end"],
            C=["start", "c0", "c7", "kvst", "f1sent", "ffnend", "attst", "attend", "g1", "x", "end"]),
    1: dict(H=["start", "bar8", "h8b", "h9", "h10", "h11", "bar11", "x", "f1seen", "attst", "end"],
            C=["start", "c0", "c7", "kvst", "i0", "c9", "f1sent", "c10", "c11", "attst", "end"]),
    2: dict(H=["start", "attend", "barc", "ost", "a6", "g1", "x", "f3seen", "g3", "wost", "end"],
            C=["start", "attend", "barc", "ost", "a6", "g1", "pw", "gate", "g3", "fin", "end"]),
    3: dict(H=["start", "hk", "hi2", "hw3", "ha3", "hi3", "hw4", "ha4", "hi4", "hup", "end"],
            C=["start", "c0", "ca3", "cp3", "ca4", "cp4", "ca5", "cp5", "cp2", "c7", "end"]),
    4: dict(H=["start", "h9", "h9a", "h9b", "h9c", "h10", "h10a", "h10b", "h10c", "h11", "end"],
            C=["start", "i27", "i33", "i39", "i45", "i49", "i57", "i65", "i73", "i90", "end"]),
    5: dict(H=["start", "attst", "t20", "t32", "t33", "t40", "t50", "t56", "t60", "attend", "end"],
            C=["start", "attst", "t20", "t32", "t33", "t40", "t50", "t56", "t60", "attend", "end"]),
    6: dict(H=["start"] + ["x"] * 9 + ["end"], C=["start"] + ["x"] * 9 + ["end"]),
    7: dict(H=["start", "h9", "h10", "h11", "f1seen", "x", "x", "x", "x", "attst", "end"],
            C=["start", "c8b", "i23", "i32", "i48", "i63", "i90", "ffnend", "kvl", "attst", "end"]),
    8: dict(H=["start", "attst", "t1", "t2", "t4", "t6", "t8", "t10", "t16", "t24", "end"],
            C=["start", "attst", "t1", "t2", "t4", "t6", "t8", "t10", "t16", "t24", "end"]),
    9: dict(H=["start"] + [f"ha{i}" for i in range(8)] + ["hk", "end"], C=["start"] + [f"cp{i}" for i in range(8)] + ["kvst", "end"]),
    10: dict(H=["start"] + [f"hw{i}" for i in range(8)] + ["hk", "end"], C=["start"] + [f"ca{i}" for i in range(8)] + ["kvst", "end"]),
    11: dict(H=["start", "p1", "p2", "p3", "p4", "hk", "hd0", "hup", "x", "x", "end"], C=["start", "p1", "q1", "q2", "q3", "q4", "ca0", "x", "x", "x", "end"]),
    12: dict(H=["start", "attst", "t10", "t19", "t20", "t27", "t28", "t32", "t33", "attend", "end"],
             C=["start", "attst", "t10", "t19", "t20", "t27", "t28", "t32", "t33", "attend", "end"]),
}
role = ["HC"]


def stamp(name):
    if not OPT["stamps"]:
        return
    st = STSETS[OPT.get("st", 0)]
    idx = {st[r].index(name) for r in role[0] if name in st[r]}
    for i in idx:
        a(f"{'s_memtime' if OPT['stamps'] == 2 else 's_memrealtime'} {sr(sSTAMP + 2*i, 2)}")


def cop(c, n):
    return c if isinstance(c, str) else vr(c, n)


def mfma32(d, x, y, c):
    a(f"v_mfma_f32_32x32x16_bf16 {vr(d,16)}, {vr(x,4)}, {vr(y,4)}, {cop(c,16)}")


def mfma16(d, x, y, c):
    a(f"v_mfma_f32_16x16x32_bf16 {vr(d,4)}, {vr(x,4)}, {vr(y,4)}, {cop(c,4)}")


def mfma4(d, x, c):
    a(f"v_mfma_f32_4x4x4_16b_bf16 {vr(d,4)}, {vr(x,2)}, {vr(x,2)}, {cop(c,4)}")


def smf(d, x, y, idx):
    a(f"v_smfmac_f32_32x32x32_bf16 {vr(d,16)}, {vr(x,4)}, {vr(y,8)}, {vr(idx)}")


def srd(r, p, n):
    a(f"""s_mov_b32 {sr(r)}, {sr(p)}
          s_mov_b32 {sr(r+1)}, {sr(p+1)}
          s_mov_b32 {sr(r+2)}, {n}
          s_mov_b32 {sr(r+3)}, 0x20000""")


filler, fill = [], [0]


def dma(voff, r, soff, lds, tag, pre=None):
    a(f"s_add_u32 m0, {sr(lds[0])}, {lds[1]}")
    if pre:
        a(pre)
    a(f"buffer_load_dwordx4 {vr(voff)}, {sr(r,4)}, {sr(soff)} offen lds", vm=tag)
    for _ in range(fill[0]):
        if filler:
            a(filler.pop(0))


class Ptr:
    def __init__(self, reg, base=0):
        self.reg, self.base = reg, base

    def off(self, addr):
        if not 0 <= addr - self.base <= 65535:
            a(f"v_add_u32 {vr(self.reg)}, {(addr - self.base) & 0xffffffff}, {vr(self.reg)}")
            self.base = addr
        return addr - self.base


def tr(dst, p, addr, tag):
    o = p.off(addr)
    a(f"ds_read_b64_tr_b16 {vr(dst,2)}, {vr(p.reg)} offset:{o}", lg=tag)


def rd128(dst, p, addr, tag):
    o = p.off(addr)
    a(f"ds_read_b128 {vr(dst,4)}, {vr(p.reg)} offset:{o}", lg=tag)


def split3_ops(x, bias, d0, d1, t0, t1, mask):
    l = [f"v_cvt_pk_bf16_f32 {vr(t0)}, {vr(x)}, {vr(x)}",
         f"v_lshlrev_b32 {vr(t0)}, 16, {vr(t0)}",
         f"v_sub_f32 {vr(t0)}, {vr(x)}, {vr(t0)}",
         f"v_cvt_pk_bf16_f32 {vr(d0)}, {vr(x)}, {vr(t0)}",
         f"v_and_b32 {vr(t1)}, 0xffff0000, {vr(d0)}",
         f"v_sub_f32 {vr(t1)}, {vr(t0)}, {vr(t1)}",
         f"v_cvt_pk_bf16_f32 {vr(d1)}, {vr(t1)}, {bias}"]
    if mask is not None:
        l += [f"v_and_b32 {vr(d0)}, {vr(d0)}, {vr(mask)}", f"v_and_b32 {vr(d1)}, {vr(d1)}, {vr(mask)}"]
    return l


def emit(l):
    for x in l:
        a(x)


uid = [0]


def poll(load, nreg, reg, first_done=False, expect=None):
    uid[0] += 1
    L, D, C = f"L_poll{uid[0]}", f"L_polld{uid[0]}", f"L_pollc{uid[0]}"
    a(f"s_mov_b32 {sr(sT[6])}, {OPT['spin']}")
    if first_done:
        a(f"s_branch {C}")
    a.label(L)
    for l in load.split("\n"):
        a.raw(l)
    a("s_waitcnt vmcnt(0)")
    a.label(C)
    if nreg == 4:
        a(f"""v_min_u32 {vr(reg)}, {vr(reg)}, {vr(reg+1)}
              v_min3_u32 {vr(reg)}, {vr(reg)}, {vr(reg+2)}, {vr(reg+3)}""")
    a(f"""{f"v_cmp_eq_u32 vcc, 0, {vr(reg)}" if expect is None else f"v_cmp_gt_u32 vcc, {expect}, {vr(reg)}"}
          s_nop 1
          s_cmp_eq_u64 vcc, 0
          s_cbranch_scc1 {D}
          s_sub_u32 {sr(sT[6])}, {sr(sT[6])}, 1
          s_cmp_lg_u32 {sr(sT[6])}, 0
          s_cbranch_scc1 {L}""")
    a.label(D)


def set_flag(soff, tmp, imm=0):
    sv = list(a.vm)
    a(f"""s_mov_b64 exec, 1
          v_mov_b32 {vr(tmp)}, 1
          buffer_store_dword {vr(tmp)}, off, {sr(R_WS,4)}, {sr(soff)} offset:{imm} sc1
          s_mov_b64 exec, -1""")
    a.vm = sv


def tr_addr(dst, hmul, rowbytes, tmp):
    a(f"""v_bfe_u32 {vr(tmp)}, {vr(vL)}, 2, 2
          v_mad_u32_u24 {vr(tmp)}, {vr(vHH)}, {hmul}, {vr(tmp)}
          v_mul_u32_u24 {vr(tmp)}, {rowbytes}, {vr(tmp)}
          v_add_u32 {vr(dst)}, {vr(tmp)}, {vr(vTR)}""")


def tr_addr128(d0, d1, hmul, tmp):
    tr_addr(d0, hmul, 128, tmp)
    a(f"""v_bfe_u32 {vr(tmp)}, {vr(vL)}, 3, 1
          v_lshl_add_u32 {vr(d0)}, {vr(tmp)}, 6, {vr(d0)}
          v_xor_b32 {vr(d1)}, 64, {vr(d0)}""")


def wdma_voff(dst, stride, tmp):
    a(f"""v_bfe_u32 {vr(tmp)}, {vr(vL)}, 4, 1
          v_lshlrev_b32 {vr(tmp)}, 2, {vr(tmp)}
          v_and_b32 {vr(dst)}, 7, {vr(vL)}
          v_xor_b32 {vr(dst)}, {vr(dst)}, {vr(tmp)}
          v_lshlrev_b32 {vr(dst)}, 4, {vr(dst)}
          v_lshrrev_b32 {vr(tmp)}, 3, {vr(vL)}
          v_mul_u32_u24 {vr(tmp)}, {stride}, {vr(tmp)}
          v_add_u32 {vr(dst)}, {vr(dst)}, {vr(tmp)}""")


def make_sel(d, tmp):
    a(f"""v_lshrrev_b32 {vr(tmp)}, 2, {vr(vL)}
          v_xor_b32 {vr(tmp)}, {vr(tmp)}, {vr(vL)}
          v_bfe_u32 {vr(tmp)}, {vr(tmp)}, 2, 1
          v_add_u32 {vr(tmp)}, -1, {vr(tmp)}
          v_and_b32 {vr(d)}, 0x3f803f80, {vr(tmp)}
          v_mov_b32 {vr(d+1)}, {vr(d)}
          v_mov_b32 {vr(d+2)}, {vr(d)}
          v_mov_b32 {vr(d+3)}, {vr(d)}""")


def other_srds():
    srd(R_WO, P_WO, 512 * 512 * 2)
    srd(R_W1, P_W1, 512 * 1376 * 2)
    srd(R_W2, P_W2, 1376 * 512 * 2)
    srd(R_OUT, P_OUT, 2048 * 512 * 2)
    srd(R_WS, P_WS, WS_SIZE)
    srd(R_B1, P_B1, 1376 * 2)
    srd(R_B2, P_B2, 512 * 2)
    srd(R_DBG, P_DBG, 256)
    a(f"""s_xor_b32 {sr(sT0)}, {sr(sCB)}, {OPT.get("cx", 2)}
          s_mul_i32 {sr(sT0)}, {sr(sT0)}, 3
          s_lshl_b32 {sr(sLINE)}, {sr(sRB)}, 4
          s_add_u32 {sr(sLINE)}, {sr(sLINE)}, {sr(sCB)}
          s_lshl_b32 {sr(sLINE)}, {sr(sLINE)}, 7
          s_add_u32 {sr(sLINE)}, {sr(sLINE)}, {WS_FL}
          s_mov_b32 {sr(sVM)}, 0xffff
          s_mov_b32 {sr(sVM+1)}, 0xffff""")


class Rec:
    def __init__(self):
        self.l = []

    def __call__(self, text, vm=None, lg=None):
        assert vm is None and lg is None
        self.l += [x.strip() for x in text.strip().split("\n") if x.strip()]

    def comment(self, t):
        pass


def record(fn):
    global a
    keep, a = a, Rec()
    fn()
    l, a = a.l, keep
    return l


O = [0, 16, 32, 48]
S = [64, 80]
Q = [96, 100, 104, 108]
KB = [112, 116, 120]
VB = [124, 132, 140]
HF = 148
vIDX, vL16, vVO, vWD, vFL, vDUM = 236, 237, 238, 239, 240, 251
vFP = 244
sKV, sIT, sH0, sW2, sLA, sKS, sO, sOUT, sF1, sHS = 4, 5, 6, 7, 12, 13, 14, 15, 16, 17
sHS2 = 24
sU, sU2 = sT[0], sT[1]


def att_addr_v(tmp):
    a(f"""v_lshlrev_b32 {vr(vL16)}, 4, {vr(vL)}
          v_and_b32 {vr(vVO)}, 15, {vr(vL)}
          v_lshlrev_b32 {vr(vVO)}, 4, {vr(vVO)}
          v_lshl_add_u32 {vr(vVO)}, {vr(vHH)}, 8, {vr(vVO)}
          v_mov_b32 {vr(vIDX)}, 0xdddddddd""")
    wdma_voff(vWD, 1024, tmp)


def att_addr_s(u, u2):
    a(f"""s_lshr_b32 {sr(u)}, {sr(sW)}, 2
          s_lshl_b32 {sr(u2)}, {sr(sCB)}, 1
          s_add_u32 {sr(u2)}, {sr(u2)}, {sr(u)}
          s_lshl_b32 {sr(sKV)}, {sr(u2)}, 17
          s_lshl_b32 {sr(sO)}, {sr(u2)}, 10
          s_lshl_b32 {sr(u2)}, {sr(sWQ)}, 11
          s_add_u32 {sr(sKV)}, {sr(sKV)}, {sr(u2)}
          s_mov_b32 {sr(sIT)}, {sr(sKV)}
          s_lshl_b32 {sr(u2)}, {sr(sRB)}, 2
          s_add_u32 {sr(u2)}, {sr(u2)}, {sr(sWQ)}
          s_lshl_b32 {sr(u2)}, {sr(u2)}, 15
          s_add_u32 {sr(sO)}, {sr(sO)}, {sr(u2)}
          s_add_u32 {sr(sO)}, {sr(sO)}, {WS_O}""")
    a(f"""s_lshr_b32 {sr(u)}, {sr(sW)}, 1
          s_mul_i32 {sr(sKS)}, {sr(u)}, 22
          s_lshl_b32 {sr(sLA)}, {sr(sW)}, 10
          s_and_b32 {sr(u)}, {sr(sW)}, 1
          s_lshl_b32 {sr(sW2)}, {sr(sKS)}, 1
          s_add_u32 {sr(sW2)}, {sr(sW2)}, {sr(u)}
          s_lshl_b32 {sr(sW2)}, {sr(sW2)}, 13
          s_lshr_b32 {sr(u2)}, {sr(sCB)}, 1
          s_lshl_b32 {sr(u2)}, {sr(u2)}, 7
          s_add_u32 {sr(sW2)}, {sr(sW2)}, {sr(u2)}
          s_add_u32 {sr(sW2)}, {sr(sW2)}, {(NI-1)*16384}
          s_and_b32 {sr(sH0)}, {sr(sCB)}, 1
          s_lshl_b32 {sr(sOUT)}, {sr(sRB)}, 1
          s_add_u32 {sr(sOUT)}, {sr(sOUT)}, {sr(sH0)}
          s_lshl_b32 {sr(sH0)}, {sr(sOUT)}, 1
          s_add_u32 {sr(sH0)}, {sr(sH0)}, {sr(u)}
          s_mul_i32 {sr(sH0)}, {sr(sH0)}, {86*1024}
          s_add_u32 {sr(sH0)}, {sr(sH0)}, {WS_H}
          s_lshl_b32 {sr(sOUT)}, {sr(sOUT)}, 3
          s_add_u32 {sr(sOUT)}, {sr(sOUT)}, {sr(sWQ)}
          s_lshl_b32 {sr(sOUT)}, {sr(sOUT)}, 13
          s_add_u32 {sr(sOUT)}, {sr(sOUT)}, {sr(u2)}
          s_lshr_b32 {sr(sF1)}, {sr(sCB)}, 1
          s_and_b32 {sr(u)}, {sr(sRB)}, 3
          s_lshl2_add_u32 {sr(sF1)}, {sr(sF1)}, {sr(u)}
          s_lshl2_add_u32 {sr(sF1)}, {sr(sF1)}, {sr(sWQ)}
          s_lshl_b32 {sr(sF1)}, {sr(sF1)}, 8
          s_add_u32 {sr(sF1)}, {sr(sF1)}, {WS_FL}""")


def q_reads():
    a(f"""s_lshl_b32 {sr(sU)}, {sr(sW)}, 10
          s_add_u32 {sr(sU)}, {sr(sU)}, {L_QX}
          v_lshl_add_u32 {vr(vFP)}, {vr(vL)}, 4, {sr(sU)}""")
    for j in range(4):
        if j:
            a(f"v_xor_b32 {vr(vFP+j)}, {j*1024}, {vr(vFP)}")
        a(f"ds_read_b128 {vr(Q[j],4)}, {vr(vFP+j)}", lg="q")


def att_init():
    a.comment("rows 16 and 20 of the V operand are ones (row sums), the other spare rows are zero")
    a(f"""v_and_b32 {vr(VB[0])}, 27, {vr(vL)}
          v_cmp_eq_u32 vcc, 16, {vr(VB[0])}
          v_mov_b32 {vr(VB[0]+1)}, 0x3f803f80
          v_cndmask_b32 {vr(VB[0])}, 0, {vr(VB[0]+1)}, vcc
          v_cndmask_b32 {vr(VB[0]+1)}, 0, {vr(VB[0]+1)}, vcc""")
    for i in range(2, 24, 2):
        a(f"v_mov_b64 {vr(VB[0]+i,2)}, {vr(VB[0],2)}")


def o_zero():
    for j in range(4):
        for i in range(0, 16, 2):
            a(f"v_mov_b64 {vr(O[j]+i,2)}, 0")


XB = OPT.get("xb", 4)


def kbuf(i):
    if 3 <= i < 3 + XB:
        return HF + 32 + 4 * (i - 3)
    return KB[(i if i < 3 else i - XB) % 3]


def vbuf(i):
    if 3 <= i < 3 + XB:
        return HF + 8 * (i - 3)
    return VB[(i if i < 3 else i - XB) % 3]


def xb_init(src=vFP):
    for i in range(0, 8 * XB, 2):
        a(f"v_mov_b64 {vr(HF+i,2)}, {vr(src,2)}")


def kv_next():
    a(f"s_add_u32 {sr(sIT)}, {sr(sIT)}, 8192")


def kvload(i, step=True):
    if i >= 16:
        return
    a(f"buffer_load_dwordx4 {vr(kbuf(i),4)}, {vr(vL16)}, {sr(R_WS,4)}, {sr(sIT)} offen sc1", vm=("k", i))
    a(f"s_mov_b64 exec, {sr(sVM,2)}")
    a(f"buffer_load_dwordx4 {vr(vbuf(i),4)}, {vr(vVO)}, {sr(R_WS,4)}, {sr(sIT)} offen offset:1024 sc1", vm=("v", i))
    a(f"buffer_load_dwordx4 {vr(vbuf(i)+4,4)}, {vr(vVO)}, {sr(R_WS,4)}, {sr(sIT)} offen offset:1536 sc1", vm=("v", i))
    a("s_mov_b64 exec, -1")
    if step:
        kv_next()


def f1_load(d):
    return f"buffer_atomic_umax {vr(d)}, off, {sr(R_WS,4)}, {sr(sF1)} offset:48 sc0 sc1"


def f1_issue(d):
    a(f"""s_mov_b64 exec, 1
          v_mov_b32 {vr(d)}, 0""")
    a(f1_load(d), vm="f1")
    a("s_mov_b64 exec, -1")


def f1_check(d):
    a.comment("wait until the 32 producer waves of this head quad's key tiles 4*i + wq have arrived")
    a.wait(vm="all")
    a("s_mov_b64 exec, 1")
    poll(f1_load(d), 1, d, first_done=True, expect="32")
    a("s_mov_b64 exec, -1")


hVX, hVW, hVQ, hV1 = 172, 151, 153, 154
hGO, hF1 = 158, 159
hT = [162, 163, 164, 165]
hP = 168
sXB, sWB, sLX, sLW, sA, sB_ = sT[0], sT[1], sT[2], sT[3], sT[4], sT[5]
ROTS = {4: f"s_and_b32 {sr(sROT)}, s2, 7",
        5: f"s_and_b32 {sr(sROT)}, s2, 6",
        6: f"s_andn2_b32 {sr(sROT)}, 7, s2",
        7: f"s_lshl2_add_u32 {sr(sROT)}, {sr(sA)}, s2\ns_and_b32 {sr(sROT)}, {sr(sROT)}, 6"}
a.label(NAME + "_kernel")
a(f"""s_load_dwordx2 {sr(R_X,2)}, s[0:1], 0
      s_load_dwordx2 {sr(R_WQKV,2)}, s[0:1], 8
      v_readfirstlane_b32 {sr(sW)}, v0""")
stamp("start")
a(f"""s_lshr_b32 {sr(sRB)}, s2, 1
      s_and_b32 {sr(sRB)}, {sr(sRB)}, 15
      {f"s_andn2_b32 {sr(sA)}, 1, s2" if OPT.get("qf", 1) else f"s_and_b32 {sr(sA)}, s2, 1"}
      s_lshr_b32 {sr(sCB)}, s2, 5
      s_lshl1_add_u32 {sr(sCB)}, {sr(sCB)}, {sr(sA)}
      {ROTS[OPT["rot"]]}
      s_lshr_b32 {sr(sW)}, {sr(sW)}, 6
      s_mov_b32 {sr(R_X+3)}, 0x20000
      s_lshl_b32 {sr(R_X+2)}, 1, 21
      s_cmp_ge_u32 {sr(sW)}, 4
      s_cbranch_scc1 L_C""")


def common_setup():
    a(f"""s_load_dwordx16 s[4:19], s[0:1], 0
          s_load_dwordx4 s[20:23], s[0:1], 64
          s_load_dwordx2 s[24:25], s[0:1], 80
          v_and_b32 {vr(vL)}, 63, v0
          v_bfe_u32 {vr(vHH)}, v0, 5, 1
          v_and_b32 {vr(vL31)}, 31, v0
          v_bfe_u32 v1, v0, 4, 1
          v_and_b32 v2, 3, v0
          v_lshlrev_b32 v2, 3, v2
          v_lshl_add_u32 {vr(vTR)}, v1, 5, v2
          s_and_b32 {sr(sWQ)}, {sr(sW)}, 3
          s_lshr_b32 {sr(sT[6])}, {sr(sCB)}, 3
          s_and_b32 {sr(sCB)}, {sr(sCB)}, 7
          s_lshl1_add_u32 {sr(sCB)}, {sr(sCB)}, {sr(sT[6])}""")


role[0] = "H"
a(f"""s_movk_i32 {sr(sLX)}, 0x70
      v_lshlrev_b32 v4, 4, v0
      v_and_b32 v2, 56, v0
      v_xor_b32 v1, v4, v2
      v_and_b32 v1, {sr(sLX)}, v1
      v_lshl_add_u32 {vr(hVX)}, v2, 7, v1
      v_xor_b32 {vr(hVX+1)}, 64, {vr(hVX)}
      s_lshl2_add_u32 {sr(sA)}, {sr(sRB)}, {sr(sW)}
      s_lshl_b32 {sr(sA)}, {sr(sA)}, 8
      s_add_u32 {sr(sA)}, {sr(sA)}, {sr(sROT)}
      s_lshl_b32 {sr(sA)}, {sr(sA)}, 7
      s_lshl_b32 m0, {sr(sW)}, 12
      v_lshlrev_b32 v3, 2, v0
      v_and_b32 v3, 64, v3
      v_xor_b32 v3, v3, v4
      v_and_b32 v3, {sr(sLX)}, v3
      s_movk_i32 {sr(sLW)}, 384
      v_mad_u32_u24 {vr(hVW)}, v2, {sr(sLW)}, v3
      s_lshl2_add_u32 {sr(sB_)}, {sr(sROT)}, {sr(sW)}
      s_mulk_i32 {sr(sB_)}, 384
      s_add_u32 {sr(sB_)}, {sr(sB_)}, {sr(sCB)}
      s_lshl_b32 {sr(sB_)}, {sr(sB_)}, 7
      s_mov_b32 {sr(R_WQKV+3)}, {sr(R_X+3)}
      s_lshl1_add_u32 {sr(sLX)}, {sr(sW)}, 15
      s_waitcnt lgkmcnt(0)""")
for i in range(4):
    a(f"buffer_load_dwordx4 {vr(hVX+(i&1))}, {sr(R_X,4)}, {sr(sA)} offen offset:{i*1024} lds", vm=("c", 0))
    if i < 3:
        a(f"s_addk_i32 {sr(sA)}, 7168")
a(f"""s_lshl_b32 m0, {sr(sLX)}, 10
      s_lshl_b32 {sr(R_WQKV+2)}, 3, 19""")
a(f"buffer_load_dwordx4 {vr(hVW)}, {sr(R_WQKV,4)}, {sr(sB_)} offen offset:1024 lds", vm=("c", 0))
a(f"s_addk_i32 {sr(sB_)}, {8*3072-1024}")
a(f"buffer_load_dwordx4 {vr(hVW)}, {sr(R_WQKV,4)}, {sr(sB_)} offen offset:2048 lds", vm=("c", 0))
a("""s_cmpk_ge_u32 s2, 256
     s_cbranch_scc1 L_exit""")
stamp("hd0")
a(f"""s_lshl2_add_u32 {sr(sA)}, {sr(sRB)}, {sr(sW)}
      s_lshl_b32 {sr(sA)}, {sr(sA)}, 15
      v_add_u32 {vr(hVX)}, {sr(sA)}, {vr(hVX)}
      v_xor_b32 {vr(hVX+1)}, 64, {vr(hVX)}
      v_add_u32 {vr(hVX+2)}, {2*7168}, {vr(hVX)}
      v_add_u32 {vr(hVX+3)}, {3*7168}, {vr(hVX+1)}
      v_add_u32 {vr(hVX+1)}, 7168, {vr(hVX+1)}
      s_mul_i32 {sr(sB_)}, {sr(sW)}, 384
      s_add_u32 {sr(sB_)}, {sr(sB_)}, {sr(sCB)}
      s_add_u32 {sr(sB_)}, {sr(sB_)}, 8
      s_lshl_b32 {sr(sB_)}, {sr(sB_)}, 7
      v_add_u32 {vr(hVW)}, {sr(sB_)}, {vr(hVW)}
      v_add_u32 {vr(hVW+1)}, {8*3072-1024}, {vr(hVW)}
      s_lshl_b32 {sr(sLX)}, {sr(sW)}, 12
      s_lshl_b32 {sr(sLW)}, {sr(sW)}, 11
      s_add_u32 {sr(sXB)}, {sr(sROT)}, 1
      s_and_b32 {sr(sXB)}, {sr(sXB)}, 7
      s_lshl_b32 {sr(sXB)}, {sr(sXB)}, 7""")


def dmao(voff, r, soff, off, tag):
    a(f"buffer_load_dwordx4 {vr(voff)}, {sr(r,4)}, {sr(soff)} offen offset:{off} lds", vm=tag)
    for _ in range(fill[0]):
        if filler:
            a(filler.pop(0))


def next_chunk():
    a(f"""s_add_u32 {sr(sXB)}, {sr(sXB)}, 128
          s_and_b32 {sr(sXB)}, {sr(sXB)}, 0x3ff""")


def issue_chunk(c):
    base = (c % 6) * SLOT
    a(f"""s_add_u32 m0, {sr(sLX)}, {base}
          s_mul_i32 {sr(sA)}, {sr(sXB)}, 1536""")
    for i in range(4):
        dmao(hVX + i, R_X, sXB, i * 1024, ("c", c))
    a(f"s_add_u32 m0, {sr(sLW)}, {base + 16384}")
    next_chunk()
    for i in range(2):
        dmao(hVW + i, R_WQKV, sA, i * 1024, ("c", c))


sQB, s1B, sLQ, sL1 = 2, 11, 8, 9


def issue_wq(c):
    a(f"""s_add_u32 m0, {sr(sLQ)}, {L_WQ + c * 4096}
          s_mul_i32 {sr(sA)}, {sr(sXB)}, 1536""")
    dmao(hVQ, R_WQKV, sA, 0, ("wq", c))
    next_chunk()


def issue_w1(c):
    a(f"""s_add_u32 m0, {sr(sL1)}, {L_W1[c]}
          s_mul_i32 {sr(sA)}, {sr(sXB)}, 1376""")
    for p in range(3):
        dmao(hV1 + p, R_W1, sA, p * 1024, ("w1", c))
    if c < 7:
        next_chunk()


def h_setup2():
    att_addr_s(18, 19)
    a(f"s_mov_b32 {sr(sHS)}, {WS_SIZE}")
    a(f"s_mov_b32 {sr(sHS2)}, {WS_SIZE}")
    att_addr_v(hT[0])
    att_init()


def h_setup():
    u = sT[6]
    other_srds()
    a(f"""s_mul_i32 {sr(sQB)}, {sr(sWQ)}, {16*3072}
          s_lshl_b32 {sr(u)}, {sr(sCB)}, 6
          s_add_u32 {sr(sQB)}, {sr(sQB)}, {sr(u)}
          s_mul_i32 {sr(s1B)}, {sr(sWQ)}, {16*2752}
          s_lshl_b32 {sr(u)}, {sr(sT0)}, 6
          s_add_u32 {sr(s1B)}, {sr(s1B)}, {sr(u)}
          s_lshl_b32 {sr(sLQ)}, {sr(sWQ)}, 10
          s_mul_i32 {sr(sL1)}, {sr(sWQ)}, 3072
          v_lshrrev_b32 {vr(hT[0])}, 2, {vr(vL)}
          v_mul_u32_u24 {vr(hT[0])}, 3072, {vr(hT[0])}
          v_and_b32 {vr(hVQ)}, 3, {vr(vL)}
          v_lshl_add_u32 {vr(hVQ)}, {vr(hVQ)}, 4, {vr(hT[0])}
          v_add_u32 {vr(hVQ)}, {sr(sQB)}, {vr(hVQ)}
          s_sub_i32 {sr(u)}, 43, {sr(sT0)}
          s_lshl_b32 {sr(u)}, {sr(u)}, 2
          v_mov_b32 {vr(hT[3])}, 0x40000000""")
    for p in range(3):
        a(f"""v_add_u32 {vr(hT[0])}, {64*p}, {vr(vL)}
              v_mul_u32_u24 {vr(hT[1])}, 171, {vr(hT[0])}
              v_lshrrev_b32 {vr(hT[1])}, 11, {vr(hT[1])}
              v_mul_u32_u24 {vr(hT[2])}, {2752 - 192}, {vr(hT[1])}
              v_lshl_add_u32 {vr(hV1+p)}, {vr(vL)}, 4, {vr(hT[2])}
              v_mul_u32_u24 {vr(hT[1])}, 12, {vr(hT[1])}
              v_sub_u32 {vr(hT[1])}, {vr(hT[0])}, {vr(hT[1])}
              v_cmp_gt_i32 vcc, {sr(u)}, {vr(hT[1])}
              v_add_u32 {vr(hV1+p)}, {sr(s1B)}, {vr(hV1+p)}
              v_cndmask_b32 {vr(hV1+p)}, {vr(hT[3])}, {vr(hV1+p)}, vcc""")
    if not OPT.get("late", 1):
        h_setup2()
        o_zero()
    a(f"""v_and_b32 {vr(hGO)}, 15, {vr(vL)}
          v_lshlrev_b32 {vr(hGO)}, 2, {vr(hGO)}""")


UP = OPT["up"]
filler += record(common_setup) + ["s_waitcnt lgkmcnt(0)"] + (["s_memtime s[0:1]"] if OPT["stamps"] else []) + record(h_setup)
fill[0] = OPT.get("fill", 10)
for c in range(1, UP):
    issue_chunk(c)
emit(filler)
filler.clear()
stamp("hup")
jobs = [(max(0, c - 5), ("c", c), lambda c=c: issue_chunk(c)) for c in range(UP, 8)]


jobs += [(3 if c < 6 else 4, ("q", c), lambda c=c: issue_wq(c)) for c in range(8)]
jobs += [(g, ("w", c), lambda c=c: issue_w1(c)) for c, g in enumerate([4, 5, 5, 6, 6, 7, 7, 8])]


def run_jobs(upto):
    while any(j[1] == upto for j in jobs):
        jobs.pop(0)[2]()


QS = [int(c) for c in str(OPT.get("qs", 441))]
goload = f"buffer_load_dword {vr(hP)}, {vr(hGO)}, {sr(R_DBG,4)}, 0 offen sc1"
for n in range(8):
    stamp(f"hw{n}")
    a.wait(vm=("c", n))
    stamp(f"ha{n}")
    a("s_barrier")
    if n == 7:
        a("s_mov_b64 exec, 0xffff")
        a(goload, vm="go")
        a("s_mov_b64 exec, -1")
    for _ in range(1 if jobs[0][1][0] == "c" else QS.pop(0)):
        assert jobs[0][0] <= n
        jobs.pop(0)[2]()
    stamp(f"hi{n}")
assert ("wq", 3) in a.vm
a.wait(vm=("wq", 3))
a("s_barrier")
stamp("bar8")
run_jobs(("q", 7))
run_jobs(("w", OPT.get("j6", 1)))
a.wait(vm=("wq", 7))
stamp("h8b")
a("s_barrier")
run_jobs(("w", OPT.get("j7", 1)))
if OPT.get("late", 1):
    h_setup2()
a.wait(vm=["go", ("w1", 1)])
a("s_mov_b64 exec, 0xffff")
poll(goload, 1, hP, first_done=True)
a("s_mov_b64 exec, -1")
stamp("h9")
a("s_barrier")
run_jobs(("w", OPT["j8"]))
a("s_barrier")
run_jobs(("w", OPT["j9"]))
a.wait(vm=("w1", 3))
stamp("h10")
a("s_barrier")
run_jobs(("w", 7))
a.wait(vm=("w1", OPT.get("g11", 5)))
stamp("h11")
a("s_barrier")
stamp("bar11")
f1_issue(hP)
q_reads()
a.wait(vm=("w1", 7), lg="all")
a("s_barrier")
f1_check(hP)
stamp("f1seen")
a(f"v_mov_b64 {vr(vFP,2)}, {vr(VB[0],2)}")
kvload(0)
kvload(1)
kvload(2)
xb_init()
if OPT.get("late", 1):
    o_zero()
if OPT["prio"]:
    a("s_setprio 2")
att_vm = list(a.vm)
a("s_branch L_ATT")

if OPT.get("alc", 1):
    a.raw(".p2align 12")
a.label("L_C")
role[0] = "C"
a.reset_counts()
a("""s_cmpk_ge_u32 s2, 256
     s_cbranch_scc1 L_exit""")
XR = lambda s: 4 * s
cACC = [160, 176, 192]
cSET = [128 + 8 * j for j in range(4)]
cSUM, cSQ, cSEL = 208, [212, 216], 244
cXa, cWa, cQC = 224, [228, 232], 236
cXA, cWP, cVO, cR = 240, [224, 228], 251, 248
cKC = [192, 196]
cM, cCR, cCW, cQB, cRW, cRR, cMK = 200, 201, 202, 203, 204, 205, 206
cDUM = cR
cT = [249, 250]
if OPT.get("cprio", 0):
    a("s_setprio 1")
stamp("q1")
a("s_getpc_b64 s[74:75]")
a.label("L_pc")
a(f"""s_sub_u32 s74, s74, L_pc-{NAME}_kernel
      s_subb_u32 s75, s75, 0
      s_lshr_b32 {sr(sT[0])}, s2, 3
      s_lshl_b32 {sr(sT[0])}, {sr(sT[0])}, 7
      v_bfe_u32 v1, v0, 4, 4
      v_lshl_add_u32 v1, v1, 12, {sr(sT[0])}
      v_min_u32 v1, L_end-{NAME}_kernel, v1
      s_mov_b32 exec_lo, 0x10001
      s_mov_b32 exec_hi, 0x10001
      global_load_dword {vr(cDUM)}, v1, s[74:75]
      s_mov_b64 exec, -1""")
common_setup()
a(f"""v_bfe_u32 {vr(cT[0])}, {vr(vL)}, 1, 3
      v_xor_b32 {vr(cT[0])}, {vr(cT[0])}, {vr(vHH)}
      v_lshlrev_b32 {vr(cT[0])}, 4, {vr(cT[0])}
      v_lshl_add_u32 {vr(cXA)}, {vr(vL31)}, 7, {vr(cT[0])}
      s_mul_i32 {sr(sT[0])}, {sr(sWQ)}, {4096 + 32}
      v_xor_b32 {vr(cXA)}, {sr(sT[0])}, {vr(cXA)}
      v_xor_b32 {vr(cXA+1)}, 32, {vr(cXA)}
      v_xor_b32 {vr(cXA+2)}, 64, {vr(cXA)}
      v_xor_b32 {vr(cXA+3)}, 0x60, {vr(cXA)}""")
tr_addr128(cWP[0], cWP[1], 8, cT[0])
a(f"s_lshl_b32 {sr(sT[0])}, {sr(sWQ)}, 11")
for t in range(2):
    a(f"v_add_u32 {vr(cWP[t])}, {sr(sT[0])}, {vr(cWP[t])}")
    for j in range(1, 4):
        a(f"v_xor_b32 {vr(cWP[t]+j)}, {2048*j}, {vr(cWP[t])}")
make_sel(cSEL, cT[0])
tr_addr(cQB, 8, 64, cT[0])
a(f"""v_mov_b64 {vr(cWa[1]+2,2)}, 0
      s_lshl_b32 {sr(sT[0])}, {sr(sWQ)}, 10
      s_add_u32 {sr(sT[0])}, {sr(sT[0])}, {L_WQ}
      v_add_u32 {vr(cQB)}, {sr(sT[0])}, {vr(cQB)}
      s_lshl_b32 {sr(sT[0])}, {sr(sWQ)}, 7
      s_add_u32 {sr(sT[0])}, {sr(sT[0])}, {L_STATS}
      v_lshl_add_u32 {vr(cRW)}, {vr(vL31)}, 2, {sr(sT[0])}
      v_lshl_add_u32 {vr(cRR)}, {vr(vHH)}, 4, {sr(sT[0])}
      v_add_u32 {vr(cMK)}, -1, {vr(vHH)}
      v_and_b32 {vr(cT[0])}, 3, {vr(vL)}
      v_cmp_eq_u32 vcc, 1, {vr(cT[0])}
      v_cmp_eq_u32 s[76:77], 2, {vr(cT[0])}
      v_cmp_eq_u32 s[78:79], 3, {vr(cT[0])}
      v_lshlrev_b32 {vr(cCR)}, 4, {vr(vL31)}
      v_add_u32 {vr(cCR)}, {L_CSP}, {vr(cCR)}
      s_lshl_b32 {sr(sT[0])}, {sr(sWQ)}, 2
      v_add_u32 {vr(cCW)}, {sr(sT[0])}, {vr(cCR)}
      s_add_u32 {sr(sT[0])}, {sr(sT[0])}, {L_FLG}
      v_mov_b32 {vr(cT[0])}, {sr(sT[0])}
      ds_write_b32 {vr(cT[0])}, {vr(cWa[1]+2)}
      ds_write_b32 {vr(cT[0])}, {vr(cWa[1]+2)} offset:16
      s_waitcnt lgkmcnt(0)""")
if OPT["stamps"]:
    a("s_memtime s[0:1]")
stamp("q2")
other_srds()
a(f"""s_cmp_lg_u32 {sr(sWQ)}, 0
      s_cbranch_scc1 L_C1
      s_cmp_lg_u32 {sr(sRB)}, {sr(sCB)}
      s_cbranch_scc1 L_C1
      s_and_b32 {sr(sT[0])}, {sr(sLINE)}, 0xfffff800
      v_lshrrev_b32 v1, 2, {vr(vL)}
      v_and_b32 v3, 3, {vr(vL)}
      v_lshlrev_b32 v3, 4, v3
      v_lshl_add_u32 v1, v1, 7, v3
      v_mov_b32 v4, 0
      v_mov_b32 v5, 0
      v_mov_b32 v6, 0
      v_mov_b32 v7, 0
      buffer_store_dwordx4 v[4:7], v1, {sr(R_WS,4)}, {sr(sT[0])} offen sc1
      s_lshl_b32 {sr(sT[0])}, {sr(sRB)}, 2
      s_waitcnt vmcnt(0)
      s_mov_b64 exec, 1
      v_mov_b32 v3, 1
      buffer_store_dword v3, off, {sr(R_DBG,4)}, {sr(sT[0])} sc1
      s_mov_b64 exec, -1""")
a.label("L_C1")
stamp("q3")
PF = OPT.get("pf", 15)
if PF:
    a.comment("L2 prefetch of this workgroup's share of the lines its XCD neighbours also stream later")
    a(f"""s_mov_b32 {sr(R_WQKV+2)}, {512*1536*2}
          s_mov_b32 {sr(R_WQKV+3)}, 0x20000""")
    u, u2, u3 = sT[0], sT[1], sT[2]
    a(f"""s_lshr_b32 {sr(u3)}, {sr(sRB)}, 2
          s_cmp_eq_u32 {sr(sWQ)}, 1
          s_cbranch_scc1 L_pf1
          s_cmp_eq_u32 {sr(sWQ)}, 2
          s_cbranch_scc1 L_pf2
          s_cmp_eq_u32 {sr(sWQ)}, 3
          s_cbranch_scc1 L_pf3""")
    if PF & 16:
        a(f"""s_lshl_b32 {sr(u)}, s2, 13
              v_lshlrev_b32 v1, 7, {vr(vL)}
              buffer_load_dword {vr(cDUM)}, v1, {sr(R_X,4)}, {sr(u)} offen""")
    if PF & 1:
        a(f"""s_and_b32 {sr(u)}, {sr(sCB)}, 7
              s_lshl_b32 {sr(u2)}, {sr(sRB)}, 3
              s_add_u32 {sr(u)}, {sr(u)}, {sr(u2)}
              s_lshl_b32 {sr(u)}, {sr(u)}, 14
              s_add_u32 {sr(u2)}, {sr(sROT)}, 4
              v_lshrrev_b32 v1, 4, {vr(vL)}
              v_add_u32 v1, {sr(u2)}, v1
              v_and_b32 v1, 7, v1
              v_lshlrev_b32 v1, 7, v1
              v_and_b32 v2, 15, {vr(vL)}
              v_lshl_add_u32 v1, v2, 10, v1
              buffer_load_dword {vr(cDUM)}, v1, {sr(R_X,4)}, {sr(u)} offen""")
    a("s_branch L_pfd")
    a.label("L_pf1")
    if PF & 32:
        a(f"""s_mul_i32 {sr(u)}, s2, 6144
              v_lshlrev_b32 v1, 7, {vr(vL)}
              s_mov_b32 exec_hi, 0xffff
              buffer_load_dword {vr(cDUM)}, v1, {sr(R_WQKV,4)}, {sr(u)} offen
              s_mov_b64 exec, -1""")
    if PF & 2:
        a(f"""s_and_b32 {sr(u)}, {sr(sCB)}, 1
              s_add_u32 {sr(u)}, {sr(u)}, 1
              s_lshl_b32 {sr(u)}, {sr(u)}, 10
              s_lshr_b32 {sr(u2)}, {sr(sCB)}, 1
              s_lshl_b32 {sr(u2)}, {sr(u2)}, 7
              s_add_u32 {sr(u)}, {sr(u)}, {sr(u2)}
              s_mul_i32 {sr(u2)}, {sr(u3)}, {16*3072}
              s_add_u32 {sr(u)}, {sr(u)}, {sr(u2)}
              s_add_u32 {sr(u2)}, {sr(sROT)}, 4
              v_lshrrev_b32 v1, 4, {vr(vL)}
              v_add_u32 v1, {sr(u2)}, v1
              v_and_b32 v1, 7, v1
              v_and_b32 v2, 15, {vr(vL)}
              v_lshl_add_u32 v1, v1, 6, v2
              v_mul_u32_u24 v1, 3072, v1
              buffer_load_dword {vr(cDUM)}, v1, {sr(R_WQKV,4)}, {sr(u)} offen""")
    a("s_branch L_pfd")
    a.label("L_pf2")
    if PF & 4:
        a(f"""s_and_b32 {sr(u)}, {sr(sCB)}, 1
              s_lshl_b32 {sr(u2)}, {sr(u3)}, 1
              s_add_u32 {sr(u)}, {sr(u)}, {sr(u2)}
              s_mul_i32 {sr(u)}, {sr(u)}, {64*3072}
              s_lshl_b32 {sr(u2)}, {sr(sCB)}, 6
              s_add_u32 {sr(u)}, {sr(u)}, {sr(u2)}
              v_mul_u32_u24 v1, 3072, {vr(vL)}
              buffer_load_dword {vr(cDUM)}, v1, {sr(R_WQKV,4)}, {sr(u)} offen""")
    a("s_branch L_pfd")
    a.label("L_pf3")
    if PF & 64:
        a(f"""s_mul_i32 {sr(u)}, s2, 5504
              v_lshlrev_b32 v1, 7, {vr(vL)}
              s_mov_b32 exec_hi, 0x7ff
              buffer_load_dword {vr(cDUM)}, v1, {sr(R_W1,4)}, {sr(u)} offen
              s_mov_b64 exec, -1""")
    if PF & 8:
        a(f"""s_mul_i32 {sr(u)}, {sr(u3)}, {128*2752}
              s_lshl_b32 {sr(u2)}, {sr(sT0)}, 6
              s_add_u32 {sr(u)}, {sr(u)}, {sr(u2)}
              s_add_u32 {sr(u2)}, {sr(u)}, {64*2752}
              v_mul_u32_u24 v1, 2752, {vr(vL)}
              buffer_load_dword {vr(cDUM)}, v1, {sr(R_W1,4)}, {sr(u)} offen
              buffer_load_dword {vr(cDUM)}, v1, {sr(R_W1,4)}, {sr(u)} offen offset:128
              buffer_load_dword {vr(cDUM)}, v1, {sr(R_W1,4)}, {sr(u2)} offen
              buffer_load_dword {vr(cDUM)}, v1, {sr(R_W1,4)}, {sr(u2)} offen offset:128""")
    a.label("L_pfd")
    stamp("q4")
a.reset_counts()


def c_scalars():
    att_addr_s(sT[0], sT[1])
    a(f"""s_lshl_b32 {sr(sHS)}, {sr(sRB)}, 2
          s_add_u32 {sr(sHS)}, {sr(sHS)}, {sr(sWQ)}
          s_mul_i32 {sr(sHS)}, {sr(sHS)}, {86*1024}
          s_lshl_b32 {sr(sT[0])}, {sr(sT0)}, 11
          s_add_u32 {sr(sHS)}, {sr(sHS)}, {sr(sT[0])}
          s_add_u32 {sr(sHS)}, {sr(sHS)}, {WS_H}
          s_add_u32 {sr(sHS2)}, {sr(sHS)}, 2048""")
    a(f"""s_cmp_ge_u32 {sr(sT0)}, 43
          s_cselect_b32 {sr(sHS)}, {WS_SIZE}, {sr(sHS)}
          s_cmp_ge_u32 {sr(sT0)}, 42
          s_cselect_b32 {sr(sHS2)}, {WS_SIZE}, {sr(sHS2)}""")
    a(f"""s_lshr_b32 {sr(sT[0])}, {sr(sCB)}, 1
          s_lshl_b32 {sr(sT[0])}, {sr(sT[0])}, 19
          s_lshl_b32 {sr(sT[1])}, {sr(sRB)}, 2
          s_add_u32 {sr(sT[1])}, {sr(sT[1])}, {sr(sWQ)}
          s_lshl_b32 {sr(sT[1])}, {sr(sT[1])}, 11
          s_add_u32 {sr(sT[2])}, {sr(sT[0])}, {sr(sT[1])}
          s_bitcmp1_b32 {sr(sCB)}, 0
          s_cselect_b32 {sr(sT[0])}, 1024, 0
          s_add_u32 {sr(sT[2])}, {sr(sT[2])}, {sr(sT[0])}
          s_bitcmp1_b32 {sr(sCB)}, 0
          s_mov_b32 s8, 0x20000
          s_cselect_b32 s8, 512, s8
          s_sub_u32 s9, 0x40000, s8""")
    for j in range(4):
        a(f"""s_xor_b32 {sr(20+j)}, {sr(sWQ)}, {j}
              s_mul_i32 {sr(20+j)}, {sr(20+j)}, 3072
              s_add_u32 {sr(20+j)}, {sr(20+j)}, {L_W1[0]}""")


a(f"s_cmp_ge_u32 {sr(sWQ)}, 2")
WARM = OPT.get("warm", 0)
if WARM:
    a.comment("instruction-cache warm-up: with EXEC = 0 each wave hops over a few branch-only landing points and returns")
    a(f"""s_mov_b64 exec, 0
          s_cbranch_scc1 L_w23
          s_bitcmp1_b32 {sr(sWQ)}, 0
          s_cbranch_scc1 L_pad1
          s_branch L_pad0""")
    a.label("L_w23")
    a(f"""s_bitcmp1_b32 {sr(sWQ)}, 0
          s_cbranch_scc1 L_pad3
          s_branch L_pad2""")
    a.label("L_wret")
    a("s_mov_b64 exec, -1")
a(f"""s_bitcmp1_b32 {sr(sCB)}, 0
      s_cbranch_scc1 L_CV""")
ALIGN = OPT.get("align", 1)
if ALIGN:
    a("s_branch L_CK")
    a.raw(".p2align 12")
    a.label("L_CK")


cQA, RING = 208, 128
cWF = [208, 212, 216]
cPS, cPA = cWa[1], cVO
cFB, cFC = 250, [0, 4, 8]
cF1, cBI, cP3, cFL = 67, 64, 12, 80
FORD = [(k, t) for k in list(range(17)) + [20, 24, 28, 17, 18, 19] for t in range(3)]
FORD += [(k, t) for t in range(3) for k in (21, 22, 23, 25, 26, 27, 29, 30, 31)]
pq = [Ptr(cXA + j, L_WQ) for j in range(4)]
pf = [Ptr(cXA + j, L_W1[0]) for j in range(4)]
LA = 6


def t_read(i):
    if i >= 128:
        return
    for u in range(2):
        if i < 32:
            tr(RING + 4 * (i & 7) + 2 * u, pq[i & 3], L_WQ + (i >> 2) * 4096 + u * 256, ("tw", i))
        else:
            k, t = FORD[i - 32]
            tr(RING + 4 * (i & 7) + 2 * u, pf[k & 3], L_W1[k >> 2] + t * 64 + u * 768, ("tw", i))


def sum4(p):
    return [f"v_add_f32 {vr(p)}, {vr(p)}, {vr(p+1)}", f"v_add_f32 {vr(p+2)}, {vr(p+2)}, {vr(p+3)}", f"v_add_f32 {vr(p)}, {vr(p)}, {vr(p+2)}"]


side = []


def side_ops(n):
    for _ in range(n):
        if not side:
            return
        op = side.pop(0)
        if isinstance(op, tuple):
            a.wait(lg=op[1])
        elif callable(op):
            op()
        elif op:
            a(op)


def kv_aux():
    a(f"""s_bitcmp1_b32 {sr(sCB)}, 0
          s_cbranch_scc1 L_auxv""")
    for t in range(2):
        mfma32(cACC[t], cWa[t], cXa, cACC[t])
    keep = list(a.lg)
    a.wait(lg="dr")
    a.lg = keep
    a(f"""v_mov_b32 {vr(cACC[2])}, {vr(cR)}
          v_mov_b32 {vr(cACC[2]+1)}, {vr(cR)}""")
    for i in range(2, 16, 2):
        a(f"v_mov_b64 {vr(cACC[2]+i,2)}, {vr(cACC[2],2)}")
    a("s_branch L_auxd")
    a.label("L_auxv")
    for t in range(2):
        mfma32(cACC[t], cXa, cWa[t], cACC[t])
    a.label("L_auxd")


def kv_store(n):
    a(f"buffer_store_dwordx4 {vr(cACC[n>>1]+8*(n&1),4)}, {vr(cVO)}, {sr(R_WS,4)}, {sr(sT[2])} offen sc1", vm="kv")
    if n == 3:
        stamp("kvst")


def kv_epilogue():
    CS, (T0, T1) = cKC[0], cT
    ops = [f"v_add_f32 {vr(cSQ[0]+i)}, {vr(cSQ[0]+i)}, {vr(cSQ[1]+i)}" for i in range(4)]
    ops += [f"v_cndmask_b32 {vr(T0)}, {vr(cSQ[0])}, {vr(cSQ[0]+1)}, vcc",
            f"v_cndmask_b32 {vr(T0)}, {vr(T0)}, {vr(cSQ[0]+2)}, s[76:77]",
            f"v_cndmask_b32 {vr(T0)}, {vr(T0)}, {vr(cSQ[0]+3)}, s[78:79]",
            f"v_mov_b32 {vr(T1)}, {vr(T0)}",
            f"v_mul_f32 {vr(cM)}, {f32(1/512)}, {vr(cSUM)}",
            f"v_cvt_pk_bf16_f32 {vr(cXa)}, -{vr(cM)}, -{vr(cM)}",
            f"v_permlane32_swap_b32 {vr(T0)}, {vr(T1)}",
            f"v_add_f32 {vr(T0)}, {vr(T0)}, {vr(T1)}",
            f"v_mul_f32 {vr(T0)}, {f32(1/512)}, {vr(T0)}",
            f"v_fma_f32 {vr(T0)}, -{vr(cM)}, {vr(cM)}, {vr(T0)}",
            f"v_max_f32 {vr(T0)}, 0, {vr(T0)}",
            f"v_cvt_pk_bf16_f32 {vr(T0)}, {vr(T0)}, {vr(T0)}",
            f"v_lshlrev_b32 {vr(T0)}, 16, {vr(T0)}",
            f"v_add_f32 {vr(T0)}, {f32(1e-5)}, {vr(T0)}",
            f"v_cvt_pk_bf16_f32 {vr(T0)}, {vr(T0)}, {vr(T0)}",
            f"v_lshlrev_b32 {vr(T0)}, 16, {vr(T0)}",
            f"v_sqrt_f32 {vr(T0)}, {vr(T0)}",
            "s_waitcnt vmcnt(0)",
            f"v_cvt_pk_bf16_f32 {vr(cXa+1)}, -{vr(cM)}, {vr(T0)}",
            f"v_and_b32 {vr(T0)}, 0xffff0000, {vr(cXa+1)}",
            f"v_rcp_f32 {vr(cR)}, {vr(T0)}",
            f"v_and_b32 {vr(cXa)}, {vr(cXa)}, {vr(cMK)}",
            f"v_and_b32 {vr(cXa+1)}, {vr(cXa+1)}, {vr(cMK)}",
            lambda: a(f"ds_write_b32 {vr(cRW)}, {vr(cR)}", lg="st"),
            f"v_mov_b64 {vr(cXa+2,2)}, 0",
            f"v_mov_b64 {vr(cWa[0]+2,2)}, 0",
            ("W", "cs")]
    for t in range(2):
        ops += sum4(CS + 4 * t) + split3_ops(CS + 4 * t, "0", cWa[t], cWa[t] + 1, T0, T1, None)
    for g in range(4):
        ops += [lambda g=g: (a.room(1), a(f"ds_read_b128 {vr(cACC[2]+4*g,4)}, {vr(cRR)} offset:{32*g}", lg="dr"))]
    ops += [kv_aux] + record(lambda: tr_addr(cFB, 8, 192, T0)) + [("W", "dr")]
    for n in range(4):
        b = cACC[n >> 1] + 8 * (n & 1)
        ops += [f"v_mul_f32 {vr(b+i)}, {vr(b+i)}, {vr(cACC[2]+8*(n&1)+i)}" for i in range(8)]
        ops += [f"v_cvt_pk_bf16_f32 {vr(b+i)}, {vr(b+2*i)}, {vr(b+2*i+1)}" for i in range(4)]
        ops += [lambda n=n: kv_store(n)]
        if n < 3:
            ops += [f"s_add_u32 {sr(sT[2])}, {sr(sT[2])}, s{8 + (n & 1)}"]
    return ops


def kv_path(isV):
    cs_ops = record(c_scalars)
    assert len(cs_ops) <= 84
    px = [Ptr(cXA + j) for j in range(4)]
    pw = [[Ptr(cWP[t] + j) for j in range(4)] for t in range(2)]

    def rx(n, j):
        rd128(XR(4 * n + j), px[j], (n % 6) * SLOT, ("r", n, j))

    def rw(n, j, t):
        for u in range(0 if OPT.get("norw") and n > 0 else 2):
            tr(cSET[j] + 4 * t + 2 * u, pw[t][j], (n % 6) * SLOT + 16384 + u * 512, ("r", n, j))

    def main(n, j, t):
        if OPT.get("nomain") and n > 0:
            return
        c = "0" if (n == 0 and j == 0) else cACC[t]
        if isV:
            mfma32(cACC[t], XR(4 * n + j), cSET[j] + 4 * t, c)
        else:
            mfma32(cACC[t], cSET[j] + 4 * t, XR(4 * n + j), c)

    def s16(n, j):
        mfma16(cSUM, cSEL, XR(4 * n + j), "0" if (n == 0 and j == 0) else cSUM)

    def s4(n, j, h):
        mfma4(cSQ[h], XR(4 * n + j) + 2 * h, "0" if (n == 0 and j == 0) else cSQ[h])

    def small(n, j):
        if OPT.get("nosmall") and n > 0:
            return
        s16(n, j)
        s4(n, j, 0)
        s4(n, j, 1)

    if isV:
        a(f"""v_bfe_u32 {vr(cT[0])}, {vr(vL)}, 4, 1
              v_lshlrev_b32 {vr(cT[0])}, 17, {vr(cT[0])}
              v_lshl_add_u32 {vr(cT[0])}, {vr(vHH)}, 8, {vr(cT[0])}
              v_and_b32 {vr(cVO)}, 15, {vr(vL)}
              v_lshl_add_u32 {vr(cVO)}, {vr(cVO)}, 4, {vr(cT[0])}""")
    else:
        a.comment("key slot = lane with bits 2 and 3 swapped")
        a(f"""v_and_b32 {vr(cVO)}, 0x33, {vr(vL)}
              v_bfe_u32 {vr(cT[0])}, {vr(vL)}, 2, 1
              v_lshl_add_u32 {vr(cVO)}, {vr(cT[0])}, 3, {vr(cVO)}
              v_bfe_u32 {vr(cT[0])}, {vr(vL)}, 3, 1
              v_lshl_add_u32 {vr(cVO)}, {vr(cT[0])}, 2, {vr(cVO)}
              v_lshlrev_b32 {vr(cVO)}, 4, {vr(cVO)}""")
    def rd(n, j):
        rx(n, j)
        rw(n, j, 0)
        rw(n, j, 1)

    for n in range(8):
        stamp(f"ca{n}")
        a("s_barrier")
        stamp(f"cp{n}")
        if n == 0:
            stamp("c0")
        if n == 7:
            stamp("c7")
        if n == 0:
            rd(0, 0)
            rd(0, 1)
            rd(0, 2)
        else:
            main(n - 1, 2, 0)
            rx(n, 0)
            rw(n, 0, 0)
            main(n - 1, 2, 1)
            rw(n, 0, 1)
            main(n - 1, 3, 0)
            rx(n, 1)
            rw(n, 1, 0)
            main(n - 1, 3, 1)
            rw(n, 1, 1)
            for j in range(4):
                s16(n - 1, j)
                if j == 0:
                    rx(n, 2)
                elif j < 3:
                    rw(n, 2, j - 1)
                s4(n - 1, j, 0)
                s4(n - 1, j, 1)
        a.wait(lg=("r", n, 0))
        main(n, 0, 0)
        rx(n, 3)
        rw(n, 3, 0)
        main(n, 0, 1)
        rw(n, 3, 1)
        for t in range(2):
            mfma16(cKC[t], cSEL, cSET[0] + 4 * t, "0" if n == 0 else cKC[t])
        a.wait(lg=("r", n, 1))
        if n < 7:
            main(n, 1, 0)
            emit(cs_ops[12 * n:12 * n + 6])
            main(n, 1, 1)
            emit(cs_ops[12 * n + 6:12 * n + 12])
            a.wait(lg=("r", n, 3))
    small(7, 0)
    small(7, 1)
    a.wait(lg=("r", 7, 3))
    s16(7, 2)
    a(f"ds_write_b32 {vr(cCW)}, {vr(cKC[0])}", lg="k")
    a(f"ds_write_b32 {vr(cCW)}, {vr(cKC[1])} offset:512", lg="k")
    s4(7, 2, 0)
    s4(7, 2, 1)
    small(7, 3)
    main(7, 1, 0)
    a(f"v_mov_b32 {vr(cXA)}, {vr(cQB)}")
    for j in range(1, 4):
        a(f"v_xor_b32 {vr(cXA+j)}, {1024*j}, {vr(cQB)}")
    a.wait(lg="all")
    a("s_barrier")
    side[:] = kv_epilogue()
    main(7, 1, 1)
    a(f"ds_read_b128 {vr(cKC[0],4)}, {vr(cCR)}", lg="cs")
    a(f"ds_read_b128 {vr(cKC[1],4)}, {vr(cCR)} offset:512", lg="cs")
    t_read(0)
    side_ops(2)
    for n, (j, t) in enumerate([(2, 0), (2, 1), (3, 0), (3, 1)]):
        main(7, j, t)
        t_read(n + 1)
        side_ops(4)
    t_read(5)


kv_path(False)
a("s_branch L_C2")
if ALIGN:
    a.raw(".p2align 12")
a.label("L_CV")
a.reset_counts()
kv_path(True)
if ALIGN:
    a("s_branch L_C2")
    a.raw(".p2align 12")
a.label("L_C2")
F1S, B11 = OPT.get("f1s", 49), OPT.get("b11", 68)
at = {}


def sched(i, ops):
    at.setdefault(i, []).extend(ops)


sched(27, [f"v_lshlrev_b32 {vr(cPA)}, 4, {vr(vL31)}", f"v_add_u32 {vr(cPA)}, {L_CSP + 1024}, {vr(cPA)}",
           f"s_lshl_b32 {sr(sT[0])}, {sr(sWQ)}, 2", f"v_add_u32 {vr(cT[0])}, {sr(sT[0])}, {vr(cPA)}"])
sched(30, [lambda: a(f"ds_write_b32 {vr(cT[0])}, {vr(cQC)}", lg="qc")])
q2 = [lambda: a(f"ds_read_b128 {vr(cPS,4)}, {vr(cPA)}", lg="ps"),
      f"s_lshl_b32 {sr(sT[0])}, {sr(sWQ)}, 10", f"s_add_u32 {sr(sT[0])}, {sr(sT[0])}, {L_QX}", "", "", "", ("W", "ps")]
q2 += sum4(cPS) + split3_ops(cPS, "0", cWa[0], cWa[0] + 1, cT[0], cT[1], None)
q2 += [f"v_lshl_add_u32 {vr(cT[1])}, {vr(vL)}, 4, {sr(sT[0])}",
       lambda: mfma32(cQA, cWa[0], cXa, cQA),
       f"v_mul_f32 {vr(cT[0])}, {f32(0.25*math.log2(math.e))}, {vr(cR)}",
       "", "", "", ""]
q2 += [f"v_mul_f32 {vr(cQA+i)}, {vr(cQA+i)}, {vr(cT[0])}" for i in range(16)]
for u in range(2):
    q2 += [f"v_cvt_pk_bf16_f32 {vr(cQA+4*u+i)}, {vr(cQA+8*u+2*i)}, {vr(cQA+8*u+2*i+1)}" for i in range(4)]
    q2 += [lambda u=u: a(f"ds_write_b128 {vr(cT[1])}, {vr(cQA+4*u,4)} offset:{u*4096}", lg="qx")]
sched(33, q2)
sched(58, record(lambda: att_addr_v(cT[0])))
sched(B11 + 1, [f"v_mov_b64 {vr(cWF[k]+2,2)}, 0" for k in range(3)]
      + [f"s_lshl_b32 {sr(sT[0])}, {sr(sWQ)}, 2", f"v_add_u32 {vr(cPS+1)}, {sr(sT[0])}, {vr(cPA)}",
         f"s_add_u32 {sr(sT[0])}, {sr(sT[0])}, {L_FLG}", f"v_mov_b32 {vr(cPS+2)}, {sr(sT[0])}", f"v_mov_b32 {vr(cPS)}, {L_FLG}",
         f"s_lshl_b32 {sr(sT[0])}, {sr(sT0)}, 6", f"v_lshlrev_b32 {vr(cT[0])}, 1, {vr(vL31)}"])
oz = record(o_zero)


def late_loads():
    for t in range(3):
        a(f"buffer_load_ushort {vr(cBI+t)}, {vr(cT[0])}, {sr(R_B1,4)}, {sr(sT[0])} offen offset:{64*t}", vm="bias")


def dsw(text):
    a.room(1)
    a(text, lg="fc")


def part_reads():
    a.room(4)
    a(f"ds_read_b128 {vr(cFL,4)}, {vr(cPS)}", lg="p3")
    for t in range(3):
        a(f"ds_read_b128 {vr(cP3+4*t,4)}, {vr(cPA)} offset:{512*(t+1)}", lg="p3")


def part_check():
    a.comment("column-sum partials of the other three waves are complete once their marker words are set")
    a(f"s_mov_b32 {sr(sT[6])}, {OPT['spin']}")
    a.wait(vm="bias", lg="p3")
    keep = list(a.lg)
    a.label("L_p3")
    a(f"""v_min_u32 {vr(cFL)}, {vr(cFL)}, {vr(cFL+1)}
          v_min3_u32 {vr(cFL)}, {vr(cFL)}, {vr(cFL+2)}, {vr(cFL+3)}
          v_cmp_eq_u32 vcc, 0, {vr(cFL)}
          s_sub_u32 {sr(sT[6])}, {sr(sT[6])}, 1
          s_cmp_eq_u64 vcc, 0
          s_cbranch_scc1 L_p3d""")
    part_reads()
    a.wait(lg="all")
    a(f"""s_cmp_lg_u32 {sr(sT[6])}, 0
          s_cbranch_scc1 L_p3""")
    a.label("L_p3d")
    a.lg = keep


def h_epi(t):
    ops = []
    for u in range(2):
        b = cACC[t] + 8 * u
        ops += [f"v_max_f32 {vr(b+i)}, 0, {vr(b+i)}" for i in range(8)]
        if t == 2 and OPT.get("pk"):
            ops += [f"v_pk_mul_f32 {vr(b+i,2)}, {vr(b+i,2)}, {vr(b+i,2)}" for i in range(0, 8, 2)]
        else:
            ops += [f"v_mul_f32 {vr(b+i)}, {vr(b+i)}, {vr(b+i)}" for i in range(8)]
        ops += [f"v_cvt_pk_bf16_f32 {vr(208+8*t+4*u+i)}, {vr(b+2*i)}, {vr(b+2*i+1)}" for i in range(4)]
    return ops


sched(80, oz[12:18])
sched(83, [late_loads] + oz[18:])
sched(93, [lambda t=t: dsw(f"ds_write_b32 {vr(cPS+1)}, {vr(cFC[t])} offset:{512*(t+1)}") for t in range(3)]
      + [lambda: dsw(f"ds_write_b32 {vr(cPS+2)}, {vr(cPS+2)}")] + oz[:5])
sched(96, [part_reads, oz[5]])
w3 = [part_check, "", ""]
for t in range(3):
    w3 += [f"v_lshlrev_b32 {vr(cBI+t)}, 16, {vr(cBI+t)}"] + sum4(cP3 + 4 * t)
    w3 += split3_ops(cP3 + 4 * t, vr(cBI + t), cWF[t], cWF[t] + 1, cT[0], cT[1], None)
    w3 += [oz[6 + 2 * t], oz[7 + 2 * t], lambda t=t: mfma32(cACC[t], cWF[t], cXa, cACC[t])]
w3.insert(3 + 2 * 14, lambda: f1_issue(cF1))
sched(99, w3)
sched(112, h_epi(0) + h_epi(1))
ER = OPT.get("er", 4)
for i in range(128):
    a.wait(lg=("tw", i))
    fr = RING + 4 * (i & 7)
    if i < 32:
        mfma32(cQA, fr, XR(i), "0" if i == 0 else cQA)
        cs = (cQC, i == 0) if i % 4 == 0 else None
    else:
        k, t = FORD[i - 32]
        mfma32(cACC[t], fr, XR(k), "0" if k == 0 else cACC[t])
        cs = (cFC[t], k == 3) if (k == 3 or (k >= 4 and k % 4 == 0)) else None
    if i + LA == 16:
        a("s_barrier")
    if i + LA == 32:
        a("s_barrier")
        stamp("c9")
    if i == 33:
        a.wait(lg="qc")
        a("s_barrier")
    if i + LA == 56:
        a("s_barrier")
        stamp("c10")
    if i == B11:
        assert not side and 56 - LA < B11 <= 80 - LA
        a.wait(lg="qx")
        a("s_barrier")
        stamp("c11")
    if i == B11 + OPT.get('b11d', 5):
        assert i <= 80
        a("s_barrier")
        a(f"s_setprio {OPT.get('cp3', 3)}")
    stamp(f"i{i}")
    a.room(2)
    t_read(i + LA)
    if 22 <= i < 26:
        a(f"v_add_u32 {vr(cXA+i-22)}, {sr(20+i-22)}, {vr(cFB)}")
    if i == 27:
        assert not side
    side += at.get(i, [])
    if i == OPT.get("cp4", -1):
        a("s_setprio 3")
    if i in (93, 96, 99):
        assert len(side) == len(at[i])
    side_ops(ER if i < 27 else 2 if i < 92 else OPT.get("er2", 4) if i < 122 else 5)
    if i <= 121:
        assert len(side) >= 40 or i < 112
    if cs:
        mfma16(cs[0], cSEL, fr, "0" if cs[1] else cs[0])
    if i == F1S:
        assert F1S >= 31 and WS_FL % 4096 == 0
        a(f"""s_and_b32 {sr(sT[3])}, {sr(sF1)}, 0xfffff3ff
              v_mov_b32 {vr(cQC)}, 1
              v_lshlrev_b32 {vr(cQC+1)}, 10, {vr(vL)}""")
        a.wait(vm="all")
        a(f"""s_mov_b64 exec, 15
              buffer_atomic_add {vr(cQC)}, {vr(cQC+1)}, {sr(R_WS,4)}, {sr(sT[3])} offen offset:48 sc1
              s_mov_b64 exec, -1""")
        stamp("f1sent")
stamp("ffnend")
a("s_setprio 3")
f1_check(cF1)
att_init()
a(f"v_mov_b64 {vr(cPS,2)}, {vr(VB[0],2)}")
kvload(0)
kvload(1)
kvload(2)
stamp("kvl")
q_reads()
dsw(f"ds_write_b32 {vr(cPS+2)}, {vr(cPS+2)} offset:16")
HSP = OPT.get("hsp", 1)


def hstore(n):
    a(f"buffer_store_dwordx4 {vr(208+4*n,4)}, {vr(vL16)}, {sr(R_WS,4)}, {sr(sHS if n < 2 else sHS2)} offen offset:{1024*(n if n < 2 else n-2)} sc1", vm="h")


side += h_epi(2)
side_ops(len(side))
xb_init(cPS)
a.wait(lg="all")
assert a.vm == att_vm

a.label("L_ATT")
role[0] = "HC"
a.wait(vm=("v", 0))
stamp("attst")


def hload(i):
    a(f"buffer_load_dwordx4 {vr(HF+4*(i%12),4)}, {vr(vL16)}, {sr(R_WS,4)}, {sr(sH0)} offen offset:{(i%4)*1024} sc1", vm=("hf", i))


def h_next(i):
    a(f"s_add_u32 {sr(sH0)}, {sr(sH0)}, 4096")
    if i == 20:
        a(f"s_min_u32 {sr(sH0)}, {sr(sH0)}, {sr(sKS)}")


f2load = f"buffer_atomic_umax {vr(vFP)}, off, {sr(R_WS,4)}, {sr(sT[4])} offset:52 sc0 sc1"


def f2_addr():
    a(f"""s_lshr_b32 {sr(sT[4])}, {sr(sOUT)}, 16
          s_and_b32 {sr(sU2)}, {sr(sW)}, 1
          s_lshl1_add_u32 {sr(sT[4])}, {sr(sT[4])}, {sr(sU2)}
          s_bfe_u32 {sr(sU2)}, {sr(sCB)}, 0x20001
          s_lshl2_add_u32 {sr(sT[4])}, {sr(sT[4])}, {sr(sU2)}
          s_lshl_b32 {sr(sT[4])}, {sr(sT[4])}, 7
          s_add_u32 {sr(sT[4])}, {sr(sT[4])}, {WS_FL}
          v_mov_b32 {vr(vFP)}, 0""")


def f2_issue():
    a("s_mov_b64 exec, 1")
    a(f2load, vm="f2")
    a("s_mov_b64 exec, -1")


def f2_check():
    a.comment("wait until the 16 producers of this wave's h row tile have arrived")
    a.wait(vm="f2")
    a("s_mov_b64 exec, 1")
    poll(f2load, 1, vFP, first_done=True, expect="16")
    a("s_mov_b64 exec, -1")


def touch_idx():
    a(f"""s_lshr_b32 {sr(sU)}, {sr(sRB)}, 2
          s_lshl_b32 {sr(sU)}, {sr(sU)}, 1
          s_and_b32 {sr(sU2)}, {sr(sCB)}, 1
          s_add_u32 {sr(sU)}, {sr(sU)}, {sr(sU2)}
          s_lshl_b32 {sr(sU)}, {sr(sU)}, 3
          s_add_u32 {sr(sU)}, {sr(sU)}, {sr(sW)}
          s_and_b32 {sr(sU2)}, {sr(sOUT)}, 0x3ff
          v_lshlrev_b32 {vr(vFL)}, 10, {vr(vL)}""")


def touch_w2():
    a.comment("pull a share of the W2 rows streamed inside the attention loop into L2")
    touch_idx()
    a(f"""s_lshr_b32 {sr(sT[3])}, {sr(sU)}, 4
          s_mul_i32 {sr(sT[3])}, {sr(sT[3])}, {(352-160)*1024}
          s_mul_i32 {sr(sU)}, {sr(sU)}, {10*1024}
          s_add_u32 {sr(sU)}, {sr(sU)}, {sr(sT[3])}
          s_add_u32 {sr(sU)}, {sr(sU)}, {sr(sU2)}
          s_mov_b64 exec, 0x3ff""")
    a(f"buffer_load_dword {vr(vDUM)}, {vr(vFL)}, {sr(R_W2,4)}, {sr(sU)} offen", vm="t")
    a("s_mov_b64 exec, -1")


def touch_wo():
    a.comment("pull a share of the Wo column block into L2")
    touch_idx()
    a(f"""s_lshl_b32 {sr(sU)}, {sr(sU)}, 13
          s_add_u32 {sr(sU)}, {sr(sU)}, {sr(sU2)}
          s_mov_b64 exec, 0xff""")
    a(f"buffer_load_dword {vr(vDUM)}, {vr(vFL)}, {sr(R_WO,4)}, {sr(sU)} offen", vm="t")
    a("s_mov_b64 exec, -1")


extras = {}


def put(it, tile, slot, fn):
    extras.setdefault((it, tile, slot), []).append(fn)


for i in range(3, 16):
    if i < 3 + XB:
        put(0, i - 3, 2, lambda i=i: kvload(i))
    else:
        it = i - XB - 2 if i < XB + 6 else i - 2
        put(it, 0, 0, lambda i=i: kvload(i, False))
        put(it, 0, 1, kv_next)


def f2_signal():
    a.comment("waves 4-7 count themselves in the four replicas of their row tile's h counter")
    a(f"""s_cmp_lt_u32 {sr(sW)}, 4
          s_cbranch_scc1 L_nof2
          s_lshl2_add_u32 {sr(sU)}, {sr(sRB)}, {sr(sWQ)}
          s_lshl_b32 {sr(sU)}, {sr(sU)}, 9
          s_add_u32 {sr(sU)}, {sr(sU)}, {WS_FL}
          v_mov_b32 {vr(vFP)}, 1
          v_lshlrev_b32 {vr(vFL)}, 7, {vr(vL)}""")
    keep = list(a.vm)
    a.wait(vm="h")
    a(f"""s_mov_b64 exec, 15
          buffer_atomic_add {vr(vFP)}, {vr(vFL)}, {sr(R_WS,4)}, {sr(sU)} offen offset:52 sc1
          s_mov_b64 exec, -1""")
    a.vm = keep
    a(f"s_setprio {2 if OPT['prio'] else 0}")
    a.label("L_nof2")


if HSP:
    a.comment("waves 4-7 publish h one fragment at a time; waves 0-3 run the same stores out of range (dropped)")
    for n in range(6):
        put((XB + n * HSP) // 4, (XB + n * HSP) % 4, 2, lambda n=n: hstore(n))
    F2S = XB + 5 * HSP + OPT.get("f2d", 10)
    put(F2S // 4, F2S % 4, 1, f2_signal)
else:
    put(2, 3, 1, f2_signal)
put(OPT.get("tw2", 2), 2, 1, touch_w2)
put(OPT["tit"], 2, 1, touch_wo)
F2IT = OPT["f2it"]
F2I = 4 * F2IT - OPT.get("f2i", 4)
assert F2I - 1 > F2S
put((F2I - 1) // 4, (F2I - 1) % 4, 1, f2_addr)
put(F2I // 4, F2I % 4, 2, f2_issue)
put(F2IT, 0, 2, f2_check)


def marker_check():
    a.comment("the W1 image may be overwritten once all four compute waves have set their marker words")
    a(f"""v_mov_b32 {vr(vFL)}, {L_FLG}
          s_mov_b32 {sr(sT[6])}, {OPT['spin']}""")
    a.label("L_mk")
    a(f"ds_read_b128 {vr(vFP,4)}, {vr(vFL)} offset:16", lg="mk")
    a.wait(lg="all")
    a(f"""v_min_u32 {vr(vFP)}, {vr(vFP)}, {vr(vFP+1)}
          v_min3_u32 {vr(vFP)}, {vr(vFP)}, {vr(vFP+2)}, {vr(vFP+3)}
          v_cmp_eq_u32 vcc, 0, {vr(vFP)}
          s_sub_u32 {sr(sT[6])}, {sr(sT[6])}, 1
          s_cmp_eq_u64 vcc, 0
          s_cbranch_scc1 L_mkd
          s_cmp_lg_u32 {sr(sT[6])}, 0
          s_cbranch_scc1 L_mk""")
    a.label("L_mkd")


WIT = OPT.get("wit", 4)
put(WIT, 0, 2, marker_check)
for i in range(12):
    put(WIT + i // 3, 1 + i % 3, 2, lambda i=i: dma(vWD, R_W2, sW2, (sLA, i * 8192), "w2a", f"s_add_u32 {sr(sW2)}, {sr(sW2)}, 16384"))
FA, WF, vSDV, vWD2 = [196, 212], 228, 249, 247
vB0, vB1, vC0, vC1 = 241, 242, 243, 248
sWR, sRG = 18, 19


def ring_addr():
    tr_addr128(vB0, vB1, 4, vFL)
    a(f"""s_mul_i32 {sr(sRG)}, {sr(sW)}, 7168
          s_add_u32 {sr(sRG)}, {sr(sRG)}, {L_CMB}
          v_add_u32 {vr(vC0)}, {sr(sRG)}, {vr(vB0)}
          v_add_u32 {vr(vC1)}, {sr(sRG)}, {vr(vB1)}
          s_lshl_b32 {sr(sWR)}, {sr(sKS)}, 14
          s_and_b32 {sr(sU2)}, {sr(sOUT)}, 0x3ff
          s_add_u32 {sr(sWR)}, {sr(sWR)}, {sr(sU2)}
          s_sub_u32 {sr(sWR)}, {sr(sWR)}, 16384
          s_lshl_b32 {sr(sU2)}, {sr(sKS)}, 10
          s_add_u32 {sr(sKS)}, {sr(sH0)}, {84*1024}
          s_add_u32 {sr(sH0)}, {sr(sH0)}, {sr(sU2)}""")


def ring_m0(k):
    if k < NI:
        a(f"s_add_u32 m0, {sr(sRG)}, {(k % 3) * 2048}")


def ring_so(k):
    if k < NI:
        a(f"s_add_u32 {sr(sWR)}, {sr(sWR)}, 16384")


def ring_dma(k):
    if k < NI:
        a(f"buffer_load_dwordx4 {vr(vWD)}, {sr(R_W2,4)}, {sr(sWR)} offen lds", vm=("rg", k))
        a(f"buffer_load_dwordx4 {vr(vWD2)}, {sr(R_W2,4)}, {sr(sWR)} offen offset:1024 lds", vm=("rg", k))


def ring_read(k, ct):
    for u in range(2):
        a(f"ds_read_b64_tr_b16 {vr(WF+4*ct+2*u,2)}, {vr((vC0, vC1)[ct])} offset:{(k%3)*2048+u*1024}", lg=("wf", k, ct))


def sd_read():
    a(f"""s_and_b32 {sr(sU2)}, {sr(sCB)}, 1
          s_lshl3_add_u32 {sr(sU2)}, {sr(sU2)}, {sr(sWQ)}
          s_lshl_b32 {sr(sU2)}, {sr(sU2)}, 5
          s_add_u32 {sr(sU2)}, {sr(sU2)}, {L_STATS}
          v_lshrrev_b32 {vr(vFL)}, 3, {vr(vL)}
          v_lshl_add_u32 {vr(vFL)}, {vr(vFL)}, 2, {sr(sU2)}""")
    a(f"ds_read_b32 {vr(vSDV)}, {vr(vFL)}", lg="sd")
    a(f"ds_read_b32 {vr(vSDV+1)}, {vr(vFL)} offset:128", lg="sd")


def putt(t, slot, fn):
    put(t // 4, t % 4, slot, fn)


put(F2IT - 1, 1, 0, ring_addr)
put(F2IT - 1, 2, 0, sd_read)
FT0 = 4 * (15 - NI // 2)
T2 = 4 * F2IT
assert FT0 - T2 >= 8 and WIT + 4 <= F2IT
putt(T2, 2, lambda: a(f"v_add_u32 {vr(vWD2)}, {8192-1024}, {vr(vWD)}"))
for k in range(3):
    putt(T2 + 1 + 2 * k, 0, lambda k=k: (ring_m0(k), ring_so(k)))
    putt(T2 + 1 + 2 * k, 2, lambda k=k: (ring_dma(k), hload(4 * k)))
    putt(T2 + 2 + 2 * k, 2, lambda k=k: (hload(4 * k + 1), hload(4 * k + 2), hload(4 * k + 3)))
    putt(T2 + 3 + 2 * k, 1, lambda k=k: h_next(4 * k + 4))
for k in range(NI):
    t = FT0 + 2 * k
    putt(t - 1, 3 if k else 2, lambda k=k: (a.wait(vm=("rg", k)), ring_read(k, 0)))
    putt(t, 3, lambda k=k: ring_read(k, 1))
    putt(t, 2, lambda k=k: ring_m0(k + 3))
    putt(t + 1, 1, lambda k=k: ring_so(k + 3))
    putt(t + 1, 2, lambda k=k: ring_dma(k + 3))
for k in range(NI):
    t = FT0 + 2 * k
    putt(t + 3, 2, lambda k=k: hload(k + 12))
    if (k + 13) % 4 == 0:
        putt(t + 5, 0, lambda k=k: h_next(k + 13))
if OPT["prio"]:
    P1, P0 = OPT.get("p1", 46), OPT.get("p0", 60)
    put(P1 // 4, P1 % 4, 1, lambda: a("s_setprio 1"))
    put(P0 // 4, P0 % 4, 1, lambda: a("s_setprio 0"))


def run_extras(it, tile, slot):
    for fn in extras.get((it, tile, slot), []):
        fn()


def exps(b, lo, hi):
    for i in range(lo, hi):
        a(f"v_exp_f32 {vr(b+i)}, {vr(b+i)}")


ORD = [1, 2, 3, 0]
T = [64 + i for i in range(32)]
CA = vbuf(13)
VS = vbuf(15)
assert 3 + XB <= F2IT


def cmb_addr(j):
    a(f"""s_xor_b32 {sr(sU)}, {sr(sW)}, {j}
          s_mul_i32 {sr(sU)}, {sr(sU)}, 7168""")


def cmb_addr2(j):
    a(f"""s_add_u32 {sr(sU)}, {sr(sU)}, {L_CMB}
          v_add_u32 {vr(CA+j)}, {sr(sU)}, {vr(vL16)}""")


def cmb_write(j):
    o = (j - 1) * 2048
    a(f"ds_write_b128 {vr(CA)}, {vr(O[j],4)} offset:{o}", lg="c")
    a(f"ds_write_b128 {vr(CA)}, {vr(O[j]+4,4)} offset:{o+1024}", lg="c")
    a(f"ds_write_b32 {vr(CA)}, {vr(O[j]+8)} offset:{6144+4*j}", lg="c")


def w_addr():
    a(f"""s_and_b32 {sr(sU)}, {sr(sLA)}, 0xfffff800
          v_add_u32 {vr(vC0)}, {sr(sU)}, {vr(vB0)}
          v_add_u32 {vr(vC1)}, {sr(sU)}, {vr(vB1)}""")


vOUT, vX, vB2 = vFP + 1, vbuf(14), kbuf(14)
assert vB2 != KB[0] and vX not in (CA, VS)


def fin_addr():
    a(f"""v_and_b32 {vr(vFL)}, 0x70, {vr(vL16)}
          v_lshrrev_b32 {vr(vOUT)}, 3, {vr(vL)}
          v_lshl_add_u32 {vr(vOUT)}, {vr(vOUT)}, 10, {vr(vFL)}""")


def fin_loads():
    a(f"buffer_load_dwordx4 {vr(vX,4)}, {vr(vOUT)}, {sr(R_X,4)}, {sr(sOUT)} offen", vm="fin")
    a(f"buffer_load_dwordx4 {vr(vX+4,4)}, {vr(vOUT)}, {sr(R_X,4)}, s22 offen", vm="fin")
    a(f"buffer_load_dwordx4 {vr(vB2,4)}, {vr(vFL)}, {sr(R_B2,4)}, s23 offen", vm="fin")


put(14, 1, 0, lambda: a(f"""s_add_u32 s22, {sr(sOUT)}, 0x8000
                            s_and_b32 s23, {sr(sOUT)}, 0x3ff"""))
put(14, 2, 0, fin_addr)
put(15, 0, 0, fin_loads)
put(15, 0, 0, w_addr)
put(15, 0, 1, lambda: a(f"v_add_u32 {vr(CA)}, {sr(sRG)}, {vr(vL16)}"))
for j, (p, q) in enumerate([((0, 2), (1, 0)), ((1, 2), (2, 1)), ((2, 2), (3, 1))]):
    put(15, *p, lambda j=j: cmb_addr(j + 1))
    put(15, *q, lambda j=j: cmb_addr2(j + 1))
put(15, 2, 0, lambda: cmb_write(1))
put(15, 3, 0, lambda: cmb_write(2))
mfma32(S[0], KB[0], Q[ORD[0]], "0")
for t in range(64):
    it, j = t // 4, t % 4
    X, Y = S[t & 1], S[(t + 1) & 1]
    stamp(f"t{t}")
    exps(X, 0, 2)
    if t > 0:
        pit, pj = (t - 1) // 4, (t - 1) % 4
        smf(O[ORD[pj]], vbuf(pit) + 4, Y + 8, vIDX)
    if j == 3:
        a.wait(vm=("v", it + 1))
    run_extras(it, j, 0)
    exps(X, 2, 5)
    if t < 63:
        nit, nj = (t + 1) // 4, (t + 1) % 4
        mfma32(Y, kbuf(nit), Q[ORD[nj]], "0")
    run_extras(it, j, 1)
    ff = FT0 <= t < FT0 + 2 * NI
    exps(X, 5, 10 if ff else 11)
    smf(O[ORD[j]], vbuf(it), X, vIDX)
    if ff:
        k, ct = divmod(t - FT0, 2)
        a.wait(vm=("hf", k), lg=("wf", k, ct))
    run_extras(it, j, 2)
    if t == 63:
        cmb_write(3)
    if ff:
        exps(X, 10, 14)
        mfma32(FA[ct], WF + 4 * ct, HF + 4 * k, "0" if k == 0 else FA[ct])
        run_extras(it, j, 3)
        exps(X, 14, 16)
    else:
        assert (it, j, 3) not in extras
        exps(X, 11, 16)
a.wait(vm="w2a", lg="all")
smf(O[0], vbuf(15) + 4, S[1] + 8, vIDX)
stamp("attend")

a("s_barrier")
stamp("barc")
for j in range(1, 4):
    a(f"ds_read_b32 {vr(O[j]+8)}, {vr(CA+j)} offset:{6144+4*j}", lg="cl")
for j in range(1, 4):
    a(f"ds_read_b128 {vr(O[j],4)}, {vr(CA+j)} offset:{(j-1)*2048}", lg=("c", j))
    a(f"ds_read_b128 {vr(O[j]+4,4)}, {vr(CA+j)} offset:{(j-1)*2048+1024}", lg=("c", j))
a.wait(lg="cl")
a(f"""v_add_f32 {vr(O[1]+8)}, {vr(O[1]+8)}, {vr(O[2]+8)}
      v_add_f32 {vr(O[0]+8)}, {vr(O[0]+8)}, {vr(O[3]+8)}
      v_add_f32 {vr(O[0]+8)}, {vr(O[0]+8)}, {vr(O[1]+8)}
      v_rcp_f32 {vr(T[2])}, {vr(O[0]+8)}
      v_cmp_nle_f32 vcc, {f32(2.0**-64)}, {vr(O[0]+8)}""")
for j in range(1, 4):
    a.wait(lg=("c", j))
    if j == 1:
        a(f"""s_mov_b64 s[76:77], vcc
              v_cmp_nge_f32 vcc, {f32(2.0**64)}, {vr(O[0]+8)}""")
    if j == 2:
        a("s_or_b64 s[76:77], s[76:77], vcc")
    for i in range(8):
        a(f"v_add_f32 {vr(O[0]+i)}, {vr(O[0]+i)}, {vr(O[j]+i)}")


def norm_store():
    for i in range(8):
        a(f"v_mul_f32 {vr(O[0]+i)}, {vr(O[0]+i)}, {vr(T[2])}")
    for i in range(4):
        a(f"v_cvt_pk_bf16_f32 {vr(T[4]+i)}, {vr(O[0]+2*i)}, {vr(O[0]+2*i+1)}")
    a(f"buffer_store_dwordx4 {vr(T[4],4)}, {vr(vL16)}, {sr(R_WS,4)}, {sr(sO)} offen sc1", vm="o")


WR = 32
pC = [Ptr(vC0), Ptr(vC1)]


def w_read(i, addr, tag):
    for ct in range(2):
        for u in range(2):
            tr(WR + 8 * (i & 3) + 4 * ct + 2 * u, pC[ct], addr + u * 1024, (tag, i))


norm_store()
stamp("ost")
w_read(0, 0, "f")
w_read(1, 8192, "f")
a(f"""v_add_f32 {vr(T[2])}, |{vr(O[0])}|, |{vr(O[0]+1)}|
      v_add_f32 {vr(T[3])}, |{vr(O[0]+2)}|, |{vr(O[0]+3)}|
      v_add_f32 {vr(T[2])}, |{vr(O[0]+4)}|, {vr(T[2])}
      v_add_f32 {vr(T[3])}, |{vr(O[0]+5)}|, {vr(T[3])}
      v_add_f32 {vr(T[2])}, |{vr(O[0]+6)}|, {vr(T[2])}
      v_add_f32 {vr(T[3])}, |{vr(O[0]+7)}|, {vr(T[3])}
      v_add_f32 {vr(T[2])}, {vr(T[2])}, {vr(T[3])}
      v_cmp_nge_f32 vcc, {f32(2.0**126)}, {vr(T[2])}
      s_or_b64 s[76:77], s[76:77], vcc""")
a("s_branch L_SLOW" if OPT["force_slow"] else "s_cbranch_scc1 L_SLOW")
a.label("L_NORM")
sWoS = sT[3]
a(f"""s_lshl_b32 {sr(sWoS)}, {sr(sW)}, 13
      s_and_b32 {sr(sU2)}, {sr(sOUT)}, 0x3ff
      s_add_u32 {sr(sWoS)}, {sr(sWoS)}, {sr(sU2)}
      s_sub_u32 {sr(sWoS)}, {sr(sWoS)}, 0x10000
      s_cmp_ge_u32 {sr(sW)}, 4
      s_barrier
      s_cbranch_scc1 L_TC""")

vPW, vPR = T[10], T[14]
AF, PF3 = OPT.get("af", 4), OPT.get("pf3", 10)
pw_addr = [f"v_and_b32 {vr(vFL)}, 7, {vr(vL)}",
           f"v_xor_b32 {vr(vPW)}, {vr(vFL)}, {vr(vHH)}",
           f"v_lshlrev_b32 {vr(vPW)}, 4, {vr(vPW)}",
           f"v_lshl_add_u32 {vr(vPW)}, {vr(vL31)}, 8, {vr(vPW)}",
           f"s_lshl_b32 {sr(sU2)}, {sr(sW)}, 13",
           f"v_add_u32 {vr(vPW)}, {sr(sU2)}, {vr(vPW)}",
           f"v_xor_b32 {vr(vPW+1)}, 32, {vr(vPW)}",
           f"v_xor_b32 {vr(vPW+2)}, 64, {vr(vPW)}",
           f"v_xor_b32 {vr(vPW+3)}, 0x60, {vr(vPW)}"]
assert L_PART == 0


def stage(ops, hook, flag):
    global side
    side = list(ops)
    wq_ = list(range(8))
    for p in pC:
        p.base = 0
    for i in range(12):
        k = NI + i
        a.wait(vm=("hf", k), lg=("f", i))
        mfma32(FA[0], WR + 8 * (i & 3), HF + 4 * (k % 12), FA[0])
        if i + 2 < 12:
            w_read(i + 2, (i + 2) * 8192, "f")
        hook(i, 0)
        if wq_ and i > AF:
            dma(vWD, R_WO, sWoS, (sLA, L_WO + wq_.pop(0) * 8192), "wo", f"s_add_u32 {sr(sWoS)}, {sr(sWoS)}, 0x10000")
        mfma32(FA[1], WR + 8 * (i & 3) + 4, HF + 4 * (k % 12), FA[1])
        if wq_ and i >= OPT.get('wo0', 0):
            dma(vWD, R_WO, sWoS, (sLA, L_WO + wq_.pop(0) * 8192), "wo", f"s_add_u32 {sr(sWoS)}, {sr(sWoS)}, 0x10000")
        side_ops(5)
        if i == AF:
            a.wait(vm="o")
            a("s_barrier")
            flag()
            stamp("a6")
        elif i == 7 and AF < 7:
            a("s_barrier")
        hook(i, 1)
    assert not side


def pw1(acc, n):
    ct, g = n >> 2, n & 3
    a(f"ds_write_b128 {vr(vPW+g)}, {vr(acc[ct]+4*g,4)} offset:{ct*128}", lg="p")


sv = (list(a.vm), list(a.lg))
role[0] = "H"
f3load = f"v_mov_b32 {vr(vFP)}, 0\nbuffer_atomic_add {vr(vFP)}, off, {sr(R_WS,4)}, {sr(sT[5])} offset:32 sc0 sc1"
OF = [96 + 4 * i for i in range(13)] + [0, 4, 8]
oq = list(range(16))
h_ops = pw_addr + [
    f"s_lshr_b32 {sr(sU)}, {sr(sW)}, 1",
    f"s_lshl_b32 {sr(sU2)}, {sr(sU)}, 2",
    f"s_add_u32 {sr(sT[5])}, {sr(sLINE)}, {sr(sU2)}",
    f"s_lshr_b32 {sr(sU2)}, {sr(sCB)}, 3",
    f"s_xor_b32 {sr(sU2)}, {sr(sU2)}, {sr(sU)}",
    f"s_add_u32 s20, {sr(sU2)}, 7",
    f"s_lshr_b32 {sr(sT[2])}, {sr(sOUT)}, 16",
    f"s_lshl_b32 {sr(sT[2])}, {sr(sT[2])}, 1",
    f"s_and_b32 {sr(sU2)}, {sr(sW)}, 1",
    f"s_add_u32 {sr(sT[2])}, {sr(sT[2])}, {sr(sU2)}",
    f"s_lshl_b32 {sr(sT[2])}, {sr(sT[2])}, 1",
    f"s_add_u32 {sr(sT[2])}, {sr(sT[2])}, {sr(sU)}",
    f"s_lshl_b32 {sr(sT[2])}, {sr(sT[2])}, 14",
    f"s_add_u32 {sr(sT[2])}, {sr(sT[2])}, {WS_O}"]


def oload():
    if not oq:
        return
    i = oq.pop(0)
    a(f"buffer_load_dwordx4 {vr(OF[i],4)}, {vr(vL16)}, {sr(R_WS,4)}, {sr(sT[2])} offen offset:{(i&3)*1024} sc1", vm=("of", i))
    if i & 3 == 3 and i < 15:
        a(f"s_add_u32 {sr(sT[2])}, {sr(sT[2])}, 4096")


def h_flag():
    pass


PIS = [int(c) for c in str(OPT.get("pis", 579))]


def f3_read(n, tag=None):
    if tag:
        a(f"v_mov_b32 {vr(vFP+n)}, 0")
    a(f"buffer_atomic_umax {vr(vFP+n)}, off, {sr(R_WS,4)}, {sr(sT[5])} offset:32 sc0 sc1", vm=tag)


def h_hook(i, h):
    if h == 1 and i in PIS:
        if i == PIS[0]:
            a.comment("staggered reads of the arrival counter of this wave's other producers (own stores were drained at a barrier)")
        a("s_mov_b64 exec, 1")
        f3_read(PIS.index(i), ("f3", PIS.index(i)))
        a("s_mov_b64 exec, -1")
    if (i, h) == (PF3, 1):
        N = len(PIS)
        a.wait(vm="wo")
        a(f"""s_mov_b64 exec, 1
              s_mov_b32 {sr(sT[6])}, {OPT['spin']}""")
        a.label("L_f3")
        for n in range(N):
            a(f"""s_waitcnt vmcnt({N-1})
                  v_cmp_gt_u32 vcc, s20, {vr(vFP+n)}
                  s_nop 1
                  s_cmp_eq_u64 vcc, 0
                  s_cbranch_scc1 L_f3d""")
            f3_read(n)
        a(f"""s_sub_u32 {sr(sT[6])}, {sr(sT[6])}, 1
              s_cmp_lg_u32 {sr(sT[6])}, 0
              s_cbranch_scc1 L_f3""")
        a.label("L_f3d")
        a.vm = []
        a("s_mov_b64 exec, -1")
        stamp("f3seen")
        oload()
    if i > PF3 or (i, h) == (PF3, 1):
        oload()


assert max(PIS) <= PF3 and min(PIS) >= 4
assert PF3 >= max(AF, 7)
stage(h_ops, h_hook, h_flag)
stamp("g1")
a(f"""s_lshl_b32 {sr(sU2)}, {sr(sU)}, 15
      s_add_u32 {sr(sU2)}, {sr(sU2)}, {L_WO}
      v_add_u32 {vr(vC0)}, {sr(sU2)}, {vr(vB0)}
      v_add_u32 {vr(vC1)}, {sr(sU2)}, {vr(vB1)}""")
while len(oq) > 8:
    oload()
for n in range(8):
    pw1(FA, n)
    oload()
a.wait(vm="wo", lg="all")
a("s_barrier")
stamp("g3")
pC = [Ptr(vC0), Ptr(vC1)]
for i in range(3):
    w_read(i, i * 2048, "wo")
for g in range(4):
    a(f"v_add_u32 {vr(vPW+g)}, {L_PB - L_PART}, {vr(vPW+g)}")
for i in range(16):
    a.wait(vm=("of", i), lg=("wo", i))
    if i == 0:
        stamp("wost")
    mfma32(FA[0], WR + 8 * (i & 3), OF[i], "0" if i == 0 else FA[0])
    if i + 3 < 16:
        w_read(i + 3, (i + 3) * 2048, "wo")
    if i < 12:
        mfma32(FA[1], WR + 8 * (i & 3) + 4, OF[i], "0" if i == 0 else FA[1])
for i in range(12, 16):
    mfma32(FA[1], WR + 8 * (i & 3) + 4, OF[i], FA[1])
    if i == 12:
        a("s_nop 4")
    if i == 13:
        a("s_nop 4")
        pw1(FA, 0)
    if i == 14:
        pw1(FA, 1)
for n in range(2, 8):
    pw1(FA, n)
a.wait(lg="all")
a("s_barrier")
a("s_branch L_DONE" if OPT["stamps"] else "s_endpgm")

a.label("L_TC")
role[0] = "C"
a.vm, a.lg = list(sv[0]), list(sv[1])
vR2 = vSDV
G, XU, PR, BU, TE = 0, 16, 148, T[16], 32
c_ops = pw_addr[:1] + [
    f"v_lshrrev_b32 {vr(T[2])}, 3, {vr(vL)}",
    f"v_mov_b32 {vr(T[3])}, 1",
    f"v_lshlrev_b32 {vr(T[1])}, 7, {vr(vL)}",
    f"s_and_b32 {sr(sT[5])}, {sr(sLINE)}, 0xfffff800",
    f"s_lshr_b32 {sr(sU2)}, {sr(sCB)}, 3",
    f"s_lshl2_add_u32 {sr(sT[5])}, {sr(sU2)}, {sr(sT[5])}",
    f"s_lshl_b32 {sr(sU2)}, {sr(sWQ)}, 2",
    "s_mov_b32 s21, 0",
    f"s_lshl_b32 s20, 15, {sr(sU2)}",
    f"s_bitset0_b32 s20, {sr(sCB)}"] + pw_addr[1:] + [
    f"v_lshlrev_b32 {vr(vPR)}, 1, {vr(vFL)}",
    f"v_xor_b32 {vr(vPR)}, {vr(vPR)}, {vr(T[2])}",
    f"v_lshlrev_b32 {vr(vPR)}, 4, {vr(vPR)}",
    f"v_lshl_add_u32 {vr(vPR)}, {vr(T[2])}, 8, {vr(vPR)}",
    f"s_lshl_b32 {sr(sU2)}, {sr(sWQ)}, 11",
    f"v_add_u32 {vr(vPR)}, {sr(sU2)}, {vr(vPR)}",
    f"v_xor_b32 {vr(vPR+1)}, 16, {vr(vPR)}"]
c_ops += [f"v_mul_f32 {vr(vR2+r)}, {vr(vR2+r)}, {vr(vR2+r)}" for r in range(2)]
c_ops += [lambda: a.wait(vm="fin")]
for i in range(4):
    c_ops += [f"v_lshlrev_b32 {vr(BU+2*i)}, 16, {vr(vB2+i)}", f"v_and_b32 {vr(BU+2*i+1)}, 0xffff0000, {vr(vB2+i)}"]
for n in range(8):
    c_ops += [f"v_lshlrev_b32 {vr(XU+2*n)}, 16, {vr(vX+n)}", f"v_and_b32 {vr(XU+2*n+1)}, 0xffff0000, {vr(vX+n)}"]
assert AF >= 2


def c_flag():
    a.comment("add one to this half's arrival counter in the line of every other workgroup of the row block (4 per wave)")
    a("s_mov_b64 exec, s[20:21]")
    a(f"buffer_atomic_add {vr(T[3])}, {vr(T[1])}, {sr(R_WS,4)}, {sr(sT[5])} offen offset:32 sc1", vm="f3s")
    a("s_mov_b64 exec, -1")


stage(c_ops, lambda i, h: None, c_flag)
stamp("g1")
for n in range(8):
    pw1(FA, n)
stamp("pw")
a.wait(vm="wo", lg="all")
a("s_barrier")
stamp("g3")


def p_read(r, kq):
    for h in range(2):
        d = G + 8 * r + 4 * h if kq == 0 else PR + 24 * r + 8 * (kq - 1) + 4 * h
        a(f"ds_read_b128 {vr(d,4)}, {vr(vPR+h)} offset:{r*8192+kq*16384}", lg=("p", r, kq))


for kq in range(4):
    p_read(0, kq)
for kq in range(3):
    p_read(1, kq)
a.wait(lg=("p", 0, 0))
p_read(1, 3)
for r in range(2):
    for kq in range(1, 4):
        a.wait(lg=("p", r, kq))
        for i in range(8):
            a(f"v_add_f32 {vr(G+8*r+i)}, {vr(G+8*r+i)}, {vr(PR+24*r+8*(kq-1)+i)}")
for i in range(16):
    a(f"v_fma_f32 {vr(G+i)}, {vr(G+i)}, {vr(vR2+i//8)}, {vr(BU+i%8)}")
for i in range(16):
    a(f"v_mul_f32 {vr(TE+i)}, {f32(-math.log2(math.e))}, {vr(G+i)}")
for i in range(16):
    a(f"v_exp_f32 {vr(TE+i)}, {vr(TE+i)}")
for i in range(16):
    a(f"v_add_f32 {vr(TE+i)}, 1.0, {vr(TE+i)}")
for i in range(16):
    a(f"v_rcp_f32 {vr(TE+i)}, {vr(TE+i)}")
for h in range(2):
    a(f"v_add_u32 {vr(vPR+h)}, {L_PB - L_PART}, {vr(vPR+h)}")
for i in range(16):
    a(f"v_mul_f32 {vr(G+i)}, {vr(G+i)}, {vr(TE+i)}")
stamp("gate")
a("s_barrier")
stamp("fin")
for r in range(2):
    for kh in range(2):
        for h in range(2):
            a(f"ds_read_b128 {vr(PR+16*r+8*kh+4*h,4)}, {vr(vPR+h)} offset:{r*8192+kh*16384}", lg=("p", r))
for r in range(2):
    a.wait(lg=("p", r))
    b = PR + 16 * r
    for i in range(8):
        a(f"v_add_f32 {vr(b+i)}, {vr(b+i)}, {vr(b+8+i)}")
    for i in range(8):
        a(f"v_fma_f32 {vr(b+i)}, {vr(b+i)}, {vr(G+8*r+i)}, {vr(XU+8*r+i)}")
    for i in range(4):
        a(f"v_cvt_pk_bf16_f32 {vr(TE+4*r+i)}, {vr(b+2*i)}, {vr(b+2*i+1)}")
    a(f"buffer_store_dwordx4 {vr(TE+4*r,4)}, {vr(vOUT)}, {sr(R_OUT,4)}, {sr(22 if r else sOUT)} offen sc1 nt")
a.label("L_DONE")
role[0] = "HC"
if OPT["stamps"]:
    stamp("end")
    a("s_memtime s[8:9]")
    a(f"""s_waitcnt lgkmcnt(0)
          s_sub_u32 s0, s8, s0
          s_sub_u32 {sr(sU)}, {sr(sLINE)}, {WS_FL}
          s_lshl_b32 {sr(sU)}, {sr(sU)}, 3
          s_lshl_b32 {sr(sU2)}, {sr(sW)}, 7
          s_add_u32 {sr(sU)}, {sr(sU)}, {sr(sU2)}
          s_add_u32 {sr(sU)}, {sr(sU)}, {WS_TS}
          s_mov_b64 exec, 1""")
    for i in range(11):
        a(f"v_mov_b32 {vr(i)}, {sr(sSTAMP+2*i)}")
    a("v_mov_b32 v11, s0")
    for i in range(3):
        a(f"buffer_store_dwordx4 {vr(4*i,4)}, off, {sr(R_WS,4)}, {sr(sU)} offset:{16*i}")
if OPT.get("amp") is not None:
    i = OPT["amp"]
    a(f"""s_cmp_lg_u32 {sr(sW)}, {OPT.get('ampw', 0)}
          s_cbranch_scc1 L_end
          s_sub_u32 s4, {sr(sSTAMP+2*i)}, {sr(sSTAMP)}
          s_lshl_b32 s4, s4, 2
          s_min_u32 s4, s4, 100000""")
    a.label("L_amp")
    a(f"""s_memrealtime s[6:7]
          s_waitcnt lgkmcnt(0)
          s_sub_u32 s6, s6, {sr(sSTAMP+20)}
          s_cmp_lt_u32 s6, s4
          s_cbranch_scc1 L_amp""")
a("s_endpgm")

a.label("L_SLOW")
a.reset_counts()
C = 16
M = T[2]
a(f"""s_nop 7
      s_lshr_b32 {sr(sU)}, {sr(sKV)}, 17
      s_lshl_b32 {sr(sU)}, {sr(sU)}, 17
      s_mov_b32 {sr(sU2)}, 64
      v_mov_b32 {vr(M)}, 0xff800000""")
a.label("L_S1")
a(f"""buffer_load_dwordx4 {vr(KB[0],4)}, {vr(vL16)}, {sr(R_WS,4)}, {sr(sU)} offen sc1
      s_waitcnt vmcnt(0)""")
mfma32(S[1], KB[0], Q[0], "0")
for i in range(8):
    a(f"v_max3_f32 {vr(M)}, {vr(M)}, {vr(S[1]+2*i)}, {vr(S[1]+2*i+1)}")
a(f"""s_add_u32 {sr(sU)}, {sr(sU)}, 2048
      s_sub_u32 {sr(sU2)}, {sr(sU2)}, 1
      s_cmp_lg_u32 {sr(sU2)}, 0
      s_cbranch_scc1 L_S1
      v_mov_b32 {vr(T[3])}, {vr(M)}
      s_nop 1
      v_permlane32_swap_b32 {vr(M)}, {vr(T[3])}
      v_max_f32 {vr(M)}, {vr(M)}, {vr(T[3])}
      s_sub_u32 {sr(sU)}, {sr(sU)}, 0x20000
      s_mov_b32 {sr(sU2)}, 64""")
for i in range(16):
    a(f"v_sub_f32 {vr(C+i)}, 0, {vr(M)}")
    a(f"v_mov_b32 {vr(O[0]+i)}, 0")
a.label("L_S2")
a(f"""buffer_load_dwordx4 {vr(KB[0],4)}, {vr(vL16)}, {sr(R_WS,4)}, {sr(sU)} offen sc1
      s_mov_b64 exec, {sr(sVM,2)}
      buffer_load_dwordx4 {vr(VS,4)}, {vr(vVO)}, {sr(R_WS,4)}, {sr(sU)} offen offset:1024 sc1
      buffer_load_dwordx4 {vr(VS+4,4)}, {vr(vVO)}, {sr(R_WS,4)}, {sr(sU)} offen offset:1536 sc1
      s_mov_b64 exec, -1
      s_waitcnt vmcnt(0)""")
mfma32(S[1], KB[0], Q[0], C)
exps(S[1], 0, 16)
smf(O[0], VS, S[1], vIDX)
smf(O[0], VS + 4, S[1] + 8, vIDX)
a(f"""s_add_u32 {sr(sU)}, {sr(sU)}, 2048
      s_sub_u32 {sr(sU2)}, {sr(sU2)}, 1
      s_cmp_lg_u32 {sr(sU2)}, 0
      s_cbranch_scc1 L_S2
      s_nop 15
      v_rcp_f32 {vr(T[2])}, {vr(O[0]+8)}""")
norm_store()
a("s_branch L_NORM")
a.label("L_exit")
a("s_waitcnt vmcnt(0) lgkmcnt(0)")
a.label("L_end")
a("s_endpgm")


def add_pads():
    import subprocess, tempfile, os, re
    from asmlib import Ins
    items = a.items
    start = next(i for i, x in enumerate(items) if x.text == "L_C2:")
    stop = next(i for i, x in enumerate(items) if x.text == "L_SLOW:")
    body = [x for x in items[start:stop] if x.is_ins]
    src = '.amdgcn_target "amdgcn-amd-amdhsa--gfx950"\n.text\n' + "\n".join(
        re.sub(r"\bL_\w+", "0", x.text) if x.op.startswith(("s_cbranch", "s_branch")) else x.text for x in body) + "\n"
    with tempfile.TemporaryDirectory() as d:
        open(d + "/t.s", "w").write(src)
        subprocess.run(["clang", "-x", "assembler", "-target", "amdgcn-amd-amdhsa", "-mcpu=gfx950", "-c", d + "/t.s", "-o", d + "/t.o"], check=True)
        dis = subprocess.run(["llvm-objdump", "-d", "--mcpu=gfx950", d + "/t.o"], capture_output=True, text=True, check=True).stdout
    sizes = [4 * len(m.group(1).split()) for m in re.finditer(r"// [0-9A-F]{12}: ([0-9A-F ]+)", dis)]
    assert len(sizes) == len(body)
    out, off, page, k, where, force = [], 0, 0, 0, [], False
    for x in items[start:stop]:
        if x.is_ins:
            if off >= page * 4096 or force:
                if off >= page * 4096:
                    page += 1
                force = False
                where.append(len(out))
                out += [None, None]
                off += 4
            off += sizes[k]
            k += 1
        elif x.text == "L_TC:":
            force = True
        out.append(x)
    n = len(where)
    assert n >= 4
    for j, w in enumerate(where):
        out[w] = Ins(f"L_pad{j}:")
        out[w + 1] = Ins(f"s_cbranch_execz {'L_pad%d' % (j + 4) if j + 4 < n else 'L_wret'}")
    a.items = items[:start] + out + items[stop:]


if WARM:
    assert ALIGN
    add_pads()
ref = open(__file__.rsplit("/", 1)[0] + "/../cdna_kernels/" + NAME + ".s.ref").read().split("\n")
head = [l for l in ref if l.startswith(";") and "@launch" not in l]
if OPT["stamps"]:
    st = STSETS[OPT.get("st", 0)]
    head.append("; stamps H " + " ".join(st["H"]))
    head.append("; stamps C " + " ".join(st["C"]))
out = "\n".join(head) + f"""
; @launch grid=(256,1,1) block=(512,1,1) lds=163840
.amdgcn_target "amdgcn-amd-amdhsa--gfx950"
.text
.globl {NAME}_kernel
.p2align 8
.type {NAME}_kernel,@function
""" + a.text() + f""".section .rodata,"a"
.p2align 6
.amdhsa_kernel {NAME}_kernel
  .amdhsa_next_free_vgpr 256
  .amdhsa_next_free_sgpr 102
  .amdhsa_accum_offset 256
  .amdhsa_group_segment_fixed_size 0
  .amdhsa_kernarg_size 88
  .amdhsa_user_sgpr_count 2
  .amdhsa_user_sgpr_kernarg_segment_ptr 1
  .amdhsa_system_sgpr_workgroup_id_x 1
  .amdhsa_float_denorm_mode_32 3
.end_amdhsa_kernel
"""
open(sys.argv[1], "w").write(out)
if OPT.get("pads"):
    for p in a.pads:
        print("pad", p)
```

```python
import sys, math, struct
from asmlib import Asm, vr, sr

NAME = "recurrent_scan__softmax_full_mha__dense_activation_squared_relu__prompt"
OPT = dict(stamps=0, rot=7, force_slow=0, prio=1, spin=1 << 18, up=3, touch=0, pf=4, tit=13, f2it=8, j6=3, j7=3, j8=4, j9=5, b11=68, b11d=8, warm=1, cprio=1, cp2=1)
for arg in sys.argv[2:]:
    k, v = arg.split("=")
    OPT[k] = int(v, 0)

WS_KV = 0
WS_H = 4 << 20
WS_O = WS_H + 64 * 86 * 1024
WS_FL = WS_O + (2 << 20)
WS_TS = 13 << 20
WS_SIZE = 14 << 20
SLOT = 24576
L_WQ = 49152
L_QX = 147456
L_STATS = 155648
L_CSP = 157696
L_FLG = 160768
L_W1 = [81920 + 12288 * i for i in range(5)] + [12288 * i for i in range(3)]
L_CMB = 98304
L_WO = 98304
L_PART = 0
L_PB = 65536
NI = 10
P_X, P_WQKV, P_WO, P_W1, P_B1, P_W2, P_B2, P_OUT, P_DBG, P_WS = 4, 6, 8, 12, 14, 16, 18, 20, 22, 24
R_X, R_WQKV, R_WO, R_W1, R_W2, R_OUT, R_WS, R_B1, R_B2, R_DBG = 28, 32, 36, 40, 44, 48, 52, 56, 60, 64
sW, sWQ, sRB, sCB, sROT = 68, 69, 70, 71, 72
sT = [73, 74, 75, 76, 77, 78, 79]
sVM = 26
sLINE = 3
sT0 = 10
sSTAMP = 80
vL, vHH, vL31, vTR = 252, 253, 254, 255


def f32(x):
    return "0x%08x" % struct.unpack("<I", struct.pack("<f", x))[0]


a = Asm()


STSETS = {
    0: dict(H=["start", "bar8", "x", "f1seen", "bar11", "x", "attst", "attend", "g1", "f3seen", "end"],
            C=["start", "c0", "c7", "kvst", "f1sent", "ffnend", "attst", "attend", "g1", "x", "end"]),
    1: dict(H=["start", "bar8", "h8b", "h9", "h10", "h11", "bar11", "x", "f1seen", "attst", "end"],
            C=["start", "c0", "c7", "kvst", "i0", "c9", "f1sent", "c10", "c11", "attst", "end"]),
    2: dict(H=["start", "attend", "barc", "ost", "a6", "g1", "x", "f3seen", "g3", "wost", "end"],
            C=["start", "attend", "barc", "ost", "a6", "g1", "pw", "gate", "g3", "fin", "end"]),
    3: dict(H=["start", "hk", "hi2", "hw3", "ha3", "hi3", "hw4", "ha4", "hi4", "hup", "end"],
            C=["start", "c0", "ca3", "cp3", "ca4", "cp4", "ca5", "cp5", "cp2", "c7", "end"]),
    4: dict(H=["start", "h9", "h9a", "h9b", "h9c", "h10", "h10a", "h10b", "h10c", "h11", "end"],
            C=["start", "i27", "i33", "i39", "i45", "i49", "i57", "i65", "i73", "i90", "end"]),
    5: dict(H=["start", "attst", "t20", "t32", "t33", "t40", "t50", "t56", "t60", "attend", "end"],
            C=["start", "attst", "t20", "t32", "t33", "t40", "t50", "t56", "t60", "attend", "end"]),
    6: dict(H=["start"] + ["x"] * 9 + ["end"], C=["start"] + ["x"] * 9 + ["end"]),
    7: dict(H=["start", "h9", "h10", "h11", "f1seen", "x", "x", "x", "x", "attst", "end"],
            C=["start", "c8b", "i23", "i32", "i48", "i63", "i90", "ffnend", "kvl", "attst", "end"]),
    8: dict(H=["start", "attst", "t1", "t2", "t4", "t6", "t8", "t10", "t16", "t24", "end"],
            C=["start", "attst", "t1", "t2", "t4", "t6", "t8", "t10", "t16", "t24", "end"]),
    9: dict(H=["start"] + [f"ha{i}" for i in range(8)] + ["hk", "end"], C=["start"] + [f"cp{i}" for i in range(8)] + ["kvst", "end"]),
    10: dict(H=["start"] + [f"hw{i}" for i in range(8)] + ["hk", "end"], C=["start"] + [f"ca{i}" for i in range(8)] + ["kvst", "end"]),
    11: dict(H=["start", "p1", "p2", "p3", "p4", "hk", "hd0", "hup", "x", "x", "end"], C=["start", "p1", "q1", "q2", "q3", "q4", "ca0", "x", "x", "x", "end"]),
    12: dict(H=["start", "attst", "t10", "t19", "t20", "t27", "t28", "t32", "t33", "attend", "end"],
             C=["start", "attst", "t10", "t19", "t20", "t27", "t28", "t32", "t33", "attend", "end"]),
}
role = ["HC"]


def stamp(name):
    if not OPT["stamps"]:
        return
    st = STSETS[OPT.get("st", 0)]
    idx = {st[r].index(name) for r in role[0] if name in st[r]}
    for i in idx:
        a(f"{'s_memtime' if OPT['stamps'] == 2 else 's_memrealtime'} {sr(sSTAMP + 2*i, 2)}")


def cop(c, n):
    return c if isinstance(c, str) else vr(c, n)


def mfma32(d, x, y, c):
    a(f"v_mfma_f32_32x32x16_bf16 {vr(d,16)}, {vr(x,4)}, {vr(y,4)}, {cop(c,16)}")


def mfma16(d, x, y, c):
    a(f"v_mfma_f32_16x16x32_bf16 {vr(d,4)}, {vr(x,4)}, {vr(y,4)}, {cop(c,4)}")


def mfma4(d, x, c):
    a(f"v_mfma_f32_4x4x4_16b_bf16 {vr(d,4)}, {vr(x,2)}, {vr(x,2)}, {cop(c,4)}")


def smf(d, x, y, idx):
    a(f"v_smfmac_f32_32x32x32_bf16 {vr(d,16)}, {vr(x,4)}, {vr(y,8)}, {vr(idx)}")


def srd(r, p, n):
    a(f"""s_mov_b32 {sr(r)}, {sr(p)}
          s_mov_b32 {sr(r+1)}, {sr(p+1)}
          s_mov_b32 {sr(r+2)}, {n}
          s_mov_b32 {sr(r+3)}, 0x20000""")


filler, fill = [], [0]


def dma(voff, r, soff, lds, tag, pre=None):
    a(f"s_add_u32 m0, {sr(lds[0])}, {lds[1]}")
    if pre:
        a(pre)
    a(f"buffer_load_dwordx4 {vr(voff)}, {sr(r,4)}, {sr(soff)} offen lds", vm=tag)
    for _ in range(fill[0]):
        if filler:
            a(filler.pop(0))


class Ptr:
    def __init__(self, reg, base=0):
        self.reg, self.base = reg, base

    def off(self, addr):
        if not 0 <= addr - self.base <= 65535:
            a(f"v_add_u32 {vr(self.reg)}, {(addr - self.base) & 0xffffffff}, {vr(self.reg)}")
            self.base = addr
        return addr - self.base


def tr(dst, p, addr, tag):
    o = p.off(addr)
    a(f"ds_read_b64_tr_b16 {vr(dst,2)}, {vr(p.reg)} offset:{o}", lg=tag)


def rd128(dst, p, addr, tag):
    o = p.off(addr)
    a(f"ds_read_b128 {vr(dst,4)}, {vr(p.reg)} offset:{o}", lg=tag)


def split3_ops(x, bias, d0, d1, t0, t1, mask):
    l = [f"v_cvt_pk_bf16_f32 {vr(t0)}, {vr(x)}, {vr(x)}",
         f"v_lshlrev_b32 {vr(t0)}, 16, {vr(t0)}",
         f"v_sub_f32 {vr(t0)}, {vr(x)}, {vr(t0)}",
         f"v_cvt_pk_bf16_f32 {vr(d0)}, {vr(x)}, {vr(t0)}",
         f"v_and_b32 {vr(t1)}, 0xffff0000, {vr(d0)}",
         f"v_sub_f32 {vr(t1)}, {vr(t0)}, {vr(t1)}",
         f"v_cvt_pk_bf16_f32 {vr(d1)}, {vr(t1)}, {bias}"]
    if mask is not None:
        l += [f"v_and_b32 {vr(d0)}, {vr(d0)}, {vr(mask)}", f"v_and_b32 {vr(d1)}, {vr(d1)}, {vr(mask)}"]
    return l


def emit(l):
    for x in l:
        a(x)


uid = [0]


def poll(load, nreg, reg, first_done=False, expect=None):
    uid[0] += 1
    L, D, C = f"L_poll{uid[0]}", f"L_polld{uid[0]}", f"L_pollc{uid[0]}"
    a(f"s_mov_b32 {sr(sT[6])}, {OPT['spin']}")
    if first_done:
        a(f"s_branch {C}")
    a.label(L)
    for l in load.split("\n"):
        a.raw(l)
    a("s_waitcnt vmcnt(0)")
    a.label(C)
    if nreg == 4:
        a(f"""v_min_u32 {vr(reg)}, {vr(reg)}, {vr(reg+1)}
              v_min3_u32 {vr(reg)}, {vr(reg)}, {vr(reg+2)}, {vr(reg+3)}""")
    a(f"""{f"v_cmp_eq_u32 vcc, 0, {vr(reg)}" if expect is None else f"v_cmp_gt_u32 vcc, {expect}, {vr(reg)}"}
          s_nop 1
          s_cmp_eq_u64 vcc, 0
          s_cbranch_scc1 {D}
          s_sub_u32 {sr(sT[6])}, {sr(sT[6])}, 1
          s_cmp_lg_u32 {sr(sT[6])}, 0
          s_cbranch_scc1 {L}""")
    a.label(D)


def set_flag(soff, tmp, imm=0):
    sv = list(a.vm)
    a(f"""s_mov_b64 exec, 1
          v_mov_b32 {vr(tmp)}, 1
          buffer_store_dword {vr(tmp)}, off, {sr(R_WS,4)}, {sr(soff)} offset:{imm} sc1
          s_mov_b64 exec, -1""")
    a.vm = sv


def tr_addr(dst, hmul, rowbytes, tmp):
    a(f"""v_bfe_u32 {vr(tmp)}, {vr(vL)}, 2, 2
          v_mad_u32_u24 {vr(tmp)}, {vr(vHH)}, {hmul}, {vr(tmp)}
          v_mul_u32_u24 {vr(tmp)}, {rowbytes}, {vr(tmp)}
          v_add_u32 {vr(dst)}, {vr(tmp)}, {vr(vTR)}""")


def tr_addr128(d0, d1, hmul, tmp):
    tr_addr(d0, hmul, 128, tmp)
    a(f"""v_bfe_u32 {vr(tmp)}, {vr(vL)}, 3, 1
          v_lshl_add_u32 {vr(d0)}, {vr(tmp)}, 6, {vr(d0)}
          v_xor_b32 {vr(d1)}, 64, {vr(d0)}""")


def wdma_voff(dst, stride, tmp):
    a(f"""v_bfe_u32 {vr(tmp)}, {vr(vL)}, 4, 1
          v_lshlrev_b32 {vr(tmp)}, 2, {vr(tmp)}
          v_and_b32 {vr(dst)}, 7, {vr(vL)}
          v_xor_b32 {vr(dst)}, {vr(dst)}, {vr(tmp)}
          v_lshlrev_b32 {vr(dst)}, 4, {vr(dst)}
          v_lshrrev_b32 {vr(tmp)}, 3, {vr(vL)}
          v_mul_u32_u24 {vr(tmp)}, {stride}, {vr(tmp)}
          v_add_u32 {vr(dst)}, {vr(dst)}, {vr(tmp)}""")


def make_sel(d, tmp):
    a(f"""v_lshrrev_b32 {vr(tmp)}, 2, {vr(vL)}
          v_xor_b32 {vr(tmp)}, {vr(tmp)}, {vr(vL)}
          v_bfe_u32 {vr(tmp)}, {vr(tmp)}, 2, 1
          v_add_u32 {vr(tmp)}, -1, {vr(tmp)}
          v_and_b32 {vr(d)}, 0x3f803f80, {vr(tmp)}
          v_mov_b32 {vr(d+1)}, {vr(d)}
          v_mov_b32 {vr(d+2)}, {vr(d)}
          v_mov_b32 {vr(d+3)}, {vr(d)}""")


def other_srds():
    srd(R_WO, P_WO, 512 * 512 * 2)
    srd(R_W1, P_W1, 512 * 1376 * 2)
    srd(R_W2, P_W2, 1376 * 512 * 2)
    srd(R_OUT, P_OUT, 2048 * 512 * 2)
    srd(R_WS, P_WS, WS_SIZE)
    srd(R_B1, P_B1, 1376 * 2)
    srd(R_B2, P_B2, 512 * 2)
    srd(R_DBG, P_DBG, 256)
    a(f"""s_xor_b32 {sr(sT0)}, {sr(sCB)}, {OPT.get("cx", 2)}
          s_mul_i32 {sr(sT0)}, {sr(sT0)}, 3
          s_lshl_b32 {sr(sLINE)}, {sr(sRB)}, 4
          s_add_u32 {sr(sLINE)}, {sr(sLINE)}, {sr(sCB)}
          s_lshl_b32 {sr(sLINE)}, {sr(sLINE)}, 7
          s_add_u32 {sr(sLINE)}, {sr(sLINE)}, {WS_FL}
          s_mov_b32 {sr(sVM)}, 0xffff
          s_mov_b32 {sr(sVM+1)}, 0xffff""")


class Rec:
    def __init__(self):
        self.l = []

    def __call__(self, text, vm=None, lg=None):
        assert vm is None and lg is None
        self.l += [x.strip() for x in text.strip().split("\n") if x.strip()]

    def comment(self, t):
        pass


def record(fn):
    global a
    keep, a = a, Rec()
    fn()
    l, a = a.l, keep
    return l


O = [0, 16, 32, 48]
S = [64, 80]
Q = [96, 100, 104, 108]
KB = [112, 116, 120]
VB = [124, 132, 140]
HF = 148
vIDX, vL16, vVO, vWD, vFL, vDUM = 236, 237, 238, 239, 240, 251
vFP = 244
sKV, sIT, sH0, sW2, sLA, sKS, sO, sOUT, sF1, sHS = 4, 5, 6, 7, 12, 13, 14, 15, 16, 17
sHS2 = 24
sU, sU2 = sT[0], sT[1]


def att_addr_v(tmp):
    a(f"""v_lshlrev_b32 {vr(vL16)}, 4, {vr(vL)}
          v_and_b32 {vr(vVO)}, 15, {vr(vL)}
          v_lshlrev_b32 {vr(vVO)}, 4, {vr(vVO)}
          v_lshl_add_u32 {vr(vVO)}, {vr(vHH)}, 8, {vr(vVO)}
          v_mov_b32 {vr(vIDX)}, 0xdddddddd""")
    wdma_voff(vWD, 1024, tmp)


def att_addr_s(u, u2):
    a(f"""s_lshr_b32 {sr(u)}, {sr(sW)}, 2
          s_lshl_b32 {sr(u2)}, {sr(sCB)}, 1
          s_add_u32 {sr(u2)}, {sr(u2)}, {sr(u)}
          s_lshl_b32 {sr(sKV)}, {sr(u2)}, 17
          s_lshl_b32 {sr(sO)}, {sr(u2)}, 10
          s_lshl_b32 {sr(u2)}, {sr(sWQ)}, 11
          s_add_u32 {sr(sKV)}, {sr(sKV)}, {sr(u2)}
          s_mov_b32 {sr(sIT)}, {sr(sKV)}
          s_lshl_b32 {sr(u2)}, {sr(sRB)}, 2
          s_add_u32 {sr(u2)}, {sr(u2)}, {sr(sWQ)}
          s_lshl_b32 {sr(u2)}, {sr(u2)}, 15
          s_add_u32 {sr(sO)}, {sr(sO)}, {sr(u2)}
          s_add_u32 {sr(sO)}, {sr(sO)}, {WS_O}""")
    a(f"""s_lshr_b32 {sr(u)}, {sr(sW)}, 1
          s_mul_i32 {sr(sKS)}, {sr(u)}, 22
          s_lshl_b32 {sr(sLA)}, {sr(sW)}, 10
          s_and_b32 {sr(u)}, {sr(sW)}, 1
          s_lshl_b32 {sr(sW2)}, {sr(sKS)}, 1
          s_add_u32 {sr(sW2)}, {sr(sW2)}, {sr(u)}
          s_lshl_b32 {sr(sW2)}, {sr(sW2)}, 13
          s_lshr_b32 {sr(u2)}, {sr(sCB)}, 1
          s_lshl_b32 {sr(u2)}, {sr(u2)}, 7
          s_add_u32 {sr(sW2)}, {sr(sW2)}, {sr(u2)}
          s_add_u32 {sr(sW2)}, {sr(sW2)}, {(NI-1)*16384}
          s_and_b32 {sr(sH0)}, {sr(sCB)}, 1
          s_lshl_b32 {sr(sOUT)}, {sr(sRB)}, 1
          s_add_u32 {sr(sOUT)}, {sr(sOUT)}, {sr(sH0)}
          s_lshl_b32 {sr(sH0)}, {sr(sOUT)}, 1
          s_add_u32 {sr(sH0)}, {sr(sH0)}, {sr(u)}
          s_mul_i32 {sr(sH0)}, {sr(sH0)}, {86*1024}
          s_add_u32 {sr(sH0)}, {sr(sH0)}, {WS_H}
          s_lshl_b32 {sr(sOUT)}, {sr(sOUT)}, 3
          s_add_u32 {sr(sOUT)}, {sr(sOUT)}, {sr(sWQ)}
          s_lshl_b32 {sr(sOUT)}, {sr(sOUT)}, 13
          s_add_u32 {sr(sOUT)}, {sr(sOUT)}, {sr(u2)}
          s_lshr_b32 {sr(sF1)}, {sr(sCB)}, 1
          s_and_b32 {sr(u)}, {sr(sRB)}, 3
          s_lshl2_add_u32 {sr(sF1)}, {sr(sF1)}, {sr(u)}
          s_lshl2_add_u32 {sr(sF1)}, {sr(sF1)}, {sr(sWQ)}
          s_lshl_b32 {sr(sF1)}, {sr(sF1)}, 8
          s_add_u32 {sr(sF1)}, {sr(sF1)}, {WS_FL}""")


def q_reads():
    a(f"""s_lshl_b32 {sr(sU)}, {sr(sW)}, 10
          s_add_u32 {sr(sU)}, {sr(sU)}, {L_QX}
          v_lshl_add_u32 {vr(vFP)}, {vr(vL)}, 4, {sr(sU)}""")
    for j in range(4):
        if j:
            a(f"v_xor_b32 {vr(vFP+j)}, {j*1024}, {vr(vFP)}")
        a(f"ds_read_b128 {vr(Q[j],4)}, {vr(vFP+j)}", lg="q")


def att_init():
    a.comment("rows 16 and 20 of the V operand are ones (row sums), the other spare rows are zero")
    a(f"""v_and_b32 {vr(VB[0])}, 27, {vr(vL)}
          v_cmp_eq_u32 vcc, 16, {vr(VB[0])}
          v_mov_b32 {vr(VB[0]+1)}, 0x3f803f80
          v_cndmask_b32 {vr(VB[0])}, 0, {vr(VB[0]+1)}, vcc
          v_cndmask_b32 {vr(VB[0]+1)}, 0, {vr(VB[0]+1)}, vcc""")
    for i in range(2, 24, 2):
        a(f"v_mov_b64 {vr(VB[0]+i,2)}, {vr(VB[0],2)}")


def o_zero():
    for j in range(4):
        for i in range(0, 16, 2):
            a(f"v_mov_b64 {vr(O[j]+i,2)}, 0")


XB = OPT.get("xb", 4)


def kbuf(i):
    if 3 <= i < 3 + XB:
        return HF + 32 + 4 * (i - 3)
    return KB[(i if i < 3 else i - XB) % 3]


def vbuf(i):
    if 3 <= i < 3 + XB:
        return HF + 8 * (i - 3)
    return VB[(i if i < 3 else i - XB) % 3]


def xb_init(src=vFP):
    for i in range(0, 8 * XB, 2):
        a(f"v_mov_b64 {vr(HF+i,2)}, {vr(src,2)}")


def kv_next():
    a(f"s_add_u32 {sr(sIT)}, {sr(sIT)}, 8192")


def kvload(i, step=True):
    if i >= 16:
        return
    a(f"buffer_load_dwordx4 {vr(kbuf(i),4)}, {vr(vL16)}, {sr(R_WS,4)}, {sr(sIT)} offen sc1", vm=("k", i))
    a(f"s_mov_b64 exec, {sr(sVM,2)}")
    a(f"buffer_load_dwordx4 {vr(vbuf(i),4)}, {vr(vVO)}, {sr(R_WS,4)}, {sr(sIT)} offen offset:1024 sc1", vm=("v", i))
    a(f"buffer_load_dwordx4 {vr(vbuf(i)+4,4)}, {vr(vVO)}, {sr(R_WS,4)}, {sr(sIT)} offen offset:1536 sc1", vm=("v", i))
    a("s_mov_b64 exec, -1")
    if step:
        kv_next()


def f1_load(d):
    return f"buffer_atomic_umax {vr(d)}, off, {sr(R_WS,4)}, {sr(sF1)} offset:48 sc0 sc1"


def f1_issue(d):
    a(f"""s_mov_b64 exec, 1
          v_mov_b32 {vr(d)}, 0""")
    a(f1_load(d), vm="f1")
    a("s_mov_b64 exec, -1")


def f1_check(d):
    a.comment("wait until the 32 producer waves of this head quad's key tiles 4*i + wq have arrived")
    a.wait(vm="all")
    a("s_mov_b64 exec, 1")
    poll(f1_load(d), 1, d, first_done=True, expect="32")
    a("s_mov_b64 exec, -1")


hVX, hVW, hVQ, hV1 = 172, 151, 153, 154
hGO, hF1 = 158, 159
hT = [162, 163, 164, 165]
hP = 168
sXB, sWB, sLX, sLW, sA, sB_ = sT[0], sT[1], sT[2], sT[3], sT[4], sT[5]
ROTS = {4: f"s_and_b32 {sr(sROT)}, s2, 7",
        5: f"s_and_b32 {sr(sROT)}, s2, 6",
        6: f"s_andn2_b32 {sr(sROT)}, 7, s2",
        7: f"s_lshl2_add_u32 {sr(sROT)}, {sr(sA)}, s2\ns_and_b32 {sr(sROT)}, {sr(sROT)}, 6"}
a.label(NAME + "_kernel")
a(f"""s_load_dwordx2 {sr(R_X,2)}, s[0:1], 0
      s_load_dwordx2 {sr(R_WQKV,2)}, s[0:1], 8
      v_readfirstlane_b32 {sr(sW)}, v0""")
stamp("start")
a(f"""s_lshr_b32 {sr(sRB)}, s2, 1
      s_and_b32 {sr(sRB)}, {sr(sRB)}, 15
      {f"s_andn2_b32 {sr(sA)}, 1, s2" if OPT.get("qf", 1) else f"s_and_b32 {sr(sA)}, s2, 1"}
      s_lshr_b32 {sr(sCB)}, s2, 5
      s_lshl1_add_u32 {sr(sCB)}, {sr(sCB)}, {sr(sA)}
      {ROTS[OPT["rot"]]}
      s_lshr_b32 {sr(sW)}, {sr(sW)}, 6
      s_mov_b32 {sr(R_X+3)}, 0x20000
      s_lshl_b32 {sr(R_X+2)}, 1, 21
      s_cmp_ge_u32 {sr(sW)}, 4
      s_cbranch_scc1 L_C""")


def common_setup():
    a(f"""s_load_dwordx16 s[4:19], s[0:1], 0
          s_load_dwordx4 s[20:23], s[0:1], 64
          s_load_dwordx2 s[24:25], s[0:1], 80
          v_and_b32 {vr(vL)}, 63, v0
          v_bfe_u32 {vr(vHH)}, v0, 5, 1
          v_and_b32 {vr(vL31)}, 31, v0
          v_bfe_u32 v1, v0, 4, 1
          v_and_b32 v2, 3, v0
          v_lshlrev_b32 v2, 3, v2
          v_lshl_add_u32 {vr(vTR)}, v1, 5, v2
          s_and_b32 {sr(sWQ)}, {sr(sW)}, 3
          s_lshr_b32 {sr(sT[6])}, {sr(sCB)}, 3
          s_and_b32 {sr(sCB)}, {sr(sCB)}, 7
          s_lshl1_add_u32 {sr(sCB)}, {sr(sCB)}, {sr(sT[6])}""")


role[0] = "H"
a(f"""s_movk_i32 {sr(sLX)}, 0x70
      v_lshlrev_b32 v4, 4, v0
      v_and_b32 v2, 56, v0
      v_xor_b32 v1, v4, v2
      v_and_b32 v1, {sr(sLX)}, v1
      v_lshl_add_u32 {vr(hVX)}, v2, 7, v1
      v_xor_b32 {vr(hVX+1)}, 64, {vr(hVX)}
      s_lshl2_add_u32 {sr(sA)}, {sr(sRB)}, {sr(sW)}
      s_lshl_b32 {sr(sA)}, {sr(sA)}, 8
      s_add_u32 {sr(sA)}, {sr(sA)}, {sr(sROT)}
      s_lshl_b32 {sr(sA)}, {sr(sA)}, 7
      s_lshl_b32 m0, {sr(sW)}, 12
      v_lshlrev_b32 v3, 2, v0
      v_and_b32 v3, 64, v3
      v_xor_b32 v3, v3, v4
      v_and_b32 v3, {sr(sLX)}, v3
      s_movk_i32 {sr(sLW)}, 384
      v_mad_u32_u24 {vr(hVW)}, v2, {sr(sLW)}, v3
      s_lshl2_add_u32 {sr(sB_)}, {sr(sROT)}, {sr(sW)}
      s_mulk_i32 {sr(sB_)}, 384
      s_add_u32 {sr(sB_)}, {sr(sB_)}, {sr(sCB)}
      s_lshl_b32 {sr(sB_)}, {sr(sB_)}, 7
      s_mov_b32 {sr(R_WQKV+3)}, {sr(R_X+3)}
      s_lshl1_add_u32 {sr(sLX)}, {sr(sW)}, 15
      s_waitcnt lgkmcnt(0)""")
for i in range(4):
    a(f"buffer_load_dwordx4 {vr(hVX+(i&1))}, {sr(R_X,4)}, {sr(sA)} offen offset:{i*1024} lds", vm=("c", 0))
    if i < 3:
        a(f"s_addk_i32 {sr(sA)}, 7168")
a(f"""s_lshl_b32 m0, {sr(sLX)}, 10
      s_lshl_b32 {sr(R_WQKV+2)}, 3, 19""")
a(f"buffer_load_dwordx4 {vr(hVW)}, {sr(R_WQKV,4)}, {sr(sB_)} offen offset:1024 lds", vm=("c", 0))
a(f"s_addk_i32 {sr(sB_)}, {8*3072-1024}")
a(f"buffer_load_dwordx4 {vr(hVW)}, {sr(R_WQKV,4)}, {sr(sB_)} offen offset:2048 lds", vm=("c", 0))
a("""s_cmpk_ge_u32 s2, 256
     s_cbranch_scc1 L_exit""")
stamp("hd0")
a(f"""s_lshl2_add_u32 {sr(sA)}, {sr(sRB)}, {sr(sW)}
      s_lshl_b32 {sr(sA)}, {sr(sA)}, 15
      v_add_u32 {vr(hVX)}, {sr(sA)}, {vr(hVX)}
      v_xor_b32 {vr(hVX+1)}, 64, {vr(hVX)}
      v_add_u32 {vr(hVX+2)}, {2*7168}, {vr(hVX)}
      v_add_u32 {vr(hVX+3)}, {3*7168}, {vr(hVX+1)}
      v_add_u32 {vr(hVX+1)}, 7168, {vr(hVX+1)}
      s_mul_i32 {sr(sB_)}, {sr(sW)}, 384
      s_add_u32 {sr(sB_)}, {sr(sB_)}, {sr(sCB)}
      s_add_u32 {sr(sB_)}, {sr(sB_)}, 8
      s_lshl_b32 {sr(sB_)}, {sr(sB_)}, 7
      v_add_u32 {vr(hVW)}, {sr(sB_)}, {vr(hVW)}
      v_add_u32 {vr(hVW+1)}, {8*3072-1024}, {vr(hVW)}
      s_lshl_b32 {sr(sLX)}, {sr(sW)}, 12
      s_lshl_b32 {sr(sLW)}, {sr(sW)}, 11
      s_add_u32 {sr(sXB)}, {sr(sROT)}, 1
      s_and_b32 {sr(sXB)}, {sr(sXB)}, 7
      s_lshl_b32 {sr(sXB)}, {sr(sXB)}, 7""")


def dmao(voff, r, soff, off, tag):
    a(f"buffer_load_dwordx4 {vr(voff)}, {sr(r,4)}, {sr(soff)} offen offset:{off} lds", vm=tag)
    for _ in range(fill[0]):
        if filler:
            a(filler.pop(0))


def next_chunk():
    a(f"""s_add_u32 {sr(sXB)}, {sr(sXB)}, 128
          s_and_b32 {sr(sXB)}, {sr(sXB)}, 0x3ff""")


def issue_chunk(c):
    base = (c % 6) * SLOT
    a(f"""s_add_u32 m0, {sr(sLX)}, {base}
          s_mul_i32 {sr(sA)}, {sr(sXB)}, 1536""")
    for i in range(4):
        dmao(hVX + i, R_X, sXB, i * 1024, ("c", c))
    a(f"s_add_u32 m0, {sr(sLW)}, {base + 16384}")
    next_chunk()
    for i in range(2):
        dmao(hVW + i, R_WQKV, sA, i * 1024, ("c", c))


sQB, s1B, sLQ, sL1 = 2, 11, 8, 9


def issue_wq(c):
    a(f"""s_add_u32 m0, {sr(sLQ)}, {L_WQ + c * 4096}
          s_mul_i32 {sr(sA)}, {sr(sXB)}, 1536""")
    dmao(hVQ, R_WQKV, sA, 0, ("wq", c))
    next_chunk()


def issue_w1(c):
    a(f"""s_add_u32 m0, {sr(sL1)}, {L_W1[c]}
          s_mul_i32 {sr(sA)}, {sr(sXB)}, 1376""")
    for p in range(3):
        dmao(hV1 + p, R_W1, sA, p * 1024, ("w1", c))
    if c < 7:
        next_chunk()


def h_setup2():
    att_addr_s(18, 19)
    a(f"s_mov_b32 {sr(sHS)}, {WS_SIZE}")
    a(f"s_mov_b32 {sr(sHS2)}, {WS_SIZE}")
    att_addr_v(hT[0])
    att_init()


def h_setup():
    u = sT[6]
    other_srds()
    a(f"""s_mul_i32 {sr(sQB)}, {sr(sWQ)}, {16*3072}
          s_lshl_b32 {sr(u)}, {sr(sCB)}, 6
          s_add_u32 {sr(sQB)}, {sr(sQB)}, {sr(u)}
          s_mul_i32 {sr(s1B)}, {sr(sWQ)}, {16*2752}
          s_lshl_b32 {sr(u)}, {sr(sT0)}, 6
          s_add_u32 {sr(s1B)}, {sr(s1B)}, {sr(u)}
          s_lshl_b32 {sr(sLQ)}, {sr(sWQ)}, 10
          s_mul_i32 {sr(sL1)}, {sr(sWQ)}, 3072
          v_lshrrev_b32 {vr(hT[0])}, 2, {vr(vL)}
          v_mul_u32_u24 {vr(hT[0])}, 3072, {vr(hT[0])}
          v_and_b32 {vr(hVQ)}, 3, {vr(vL)}
          v_lshl_add_u32 {vr(hVQ)}, {vr(hVQ)}, 4, {vr(hT[0])}
          v_add_u32 {vr(hVQ)}, {sr(sQB)}, {vr(hVQ)}
          s_sub_i32 {sr(u)}, 43, {sr(sT0)}
          s_lshl_b32 {sr(u)}, {sr(u)}, 2
          v_mov_b32 {vr(hT[3])}, 0x40000000""")
    for p in range(3):
        a(f"""v_add_u32 {vr(hT[0])}, {64*p}, {vr(vL)}
              v_mul_u32_u24 {vr(hT[1])}, 171, {vr(hT[0])}
              v_lshrrev_b32 {vr(hT[1])}, 11, {vr(hT[1])}
              v_mul_u32_u24 {vr(hT[2])}, {2752 - 192}, {vr(hT[1])}
              v_lshl_add_u32 {vr(hV1+p)}, {vr(vL)}, 4, {vr(hT[2])}
              v_mul_u32_u24 {vr(hT[1])}, 12, {vr(hT[1])}
              v_sub_u32 {vr(hT[1])}, {vr(hT[0])}, {vr(hT[1])}
              v_cmp_gt_i32 vcc, {sr(u)}, {vr(hT[1])}
              v_add_u32 {vr(hV1+p)}, {sr(s1B)}, {vr(hV1+p)}
              v_cndmask_b32 {vr(hV1+p)}, {vr(hT[3])}, {vr(hV1+p)}, vcc""")
    if not OPT.get("late", 1):
        h_setup2()
        o_zero()
    a(f"""v_and_b32 {vr(hGO)}, 15, {vr(vL)}
          v_lshlrev_b32 {vr(hGO)}, 2, {vr(hGO)}""")


UP = OPT["up"]
filler += record(common_setup) + ["s_waitcnt lgkmcnt(0)"] + (["s_memtime s[0:1]"] if OPT["stamps"] else []) + record(h_setup)
fill[0] = OPT.get("fill", 10)
for c in range(1, UP):
    issue_chunk(c)
emit(filler)
filler.clear()
stamp("hup")
jobs = [(max(0, c - 5), ("c", c), lambda c=c: issue_chunk(c)) for c in range(UP, 8)]


jobs += [(3 if c < 6 else 4, ("q", c), lambda c=c: issue_wq(c)) for c in range(8)]
jobs += [(g, ("w", c), lambda c=c: issue_w1(c)) for c, g in enumerate([4, 5, 5, 6, 6, 7, 7, 8])]


def run_jobs(upto):
    while any(j[1] == upto for j in jobs):
        jobs.pop(0)[2]()


QS = [int(c) for c in str(OPT.get("qs", 441))]
goload = f"buffer_load_dword {vr(hP)}, {vr(hGO)}, {sr(R_DBG,4)}, 0 offen sc1"
for n in range(8):
    stamp(f"hw{n}")
    a.wait(vm=("c", n))
    stamp(f"ha{n}")
    a("s_barrier")
    if n == 7:
        a("s_mov_b64 exec, 0xffff")
        a(goload, vm="go")
        a("s_mov_b64 exec, -1")
    for _ in range(1 if jobs[0][1][0] == "c" else QS.pop(0)):
        assert jobs[0][0] <= n
        jobs.pop(0)[2]()
    stamp(f"hi{n}")
assert ("wq", 3) in a.vm
a.wait(vm=("wq", 3))
a("s_barrier")
stamp("bar8")
run_jobs(("q", 7))
run_jobs(("w", OPT.get("j6", 1)))
a.wait(vm=("wq", 7))
stamp("h8b")
a("s_barrier")
run_jobs(("w", OPT.get("j7", 1)))
if OPT.get("late", 1):
    h_setup2()
a.wait(vm=["go", ("w1", 1)])
a("s_mov_b64 exec, 0xffff")
poll(goload, 1, hP, first_done=True)
a("s_mov_b64 exec, -1")
stamp("h9")
a("s_barrier")
run_jobs(("w", OPT["j8"]))
a("s_barrier")
run_jobs(("w", OPT["j9"]))
a.wait(vm=("w1", 3))
stamp("h10")
a("s_barrier")
run_jobs(("w", 7))
a.wait(vm=("w1", OPT.get("g11", 5)))
stamp("h11")
a("s_barrier")
stamp("bar11")
f1_issue(hP)
q_reads()
a.wait(vm=("w1", 7), lg="all")
a("s_barrier")
f1_check(hP)
stamp("f1seen")
a(f"v_mov_b64 {vr(vFP,2)}, {vr(VB[0],2)}")
kvload(0)
kvload(1)
kvload(2)
xb_init()
if OPT.get("late", 1):
    o_zero()
if OPT["prio"]:
    a("s_setprio 2")
att_vm = list(a.vm)
a("s_branch L_ATT")

if OPT.get("alc", 1):
    a.raw(".p2align 12")
a.label("L_C")
role[0] = "C"
a.reset_counts()
a("""s_cmpk_ge_u32 s2, 256
     s_cbranch_scc1 L_exit""")
XR = lambda s: 4 * s
cACC = [160, 176, 192]
cSET = [128 + 8 * j for j in range(4)]
cSUM, cSQ, cSEL = 208, [212, 216], 244
cXa, cWa, cQC = 224, [228, 232], 236
cXA, cWP, cVO, cR = 240, [224, 228], 251, 248
cKC = [192, 196]
cM, cCR, cCW, cQB, cRW, cRR, cMK = 200, 201, 202, 203, 204, 205, 206
cDUM = cR
cT = [249, 250]
if OPT.get("cprio", 0):
    a("s_setprio 1")
stamp("q1")
a("s_getpc_b64 s[74:75]")
a.label("L_pc")
a(f"""s_sub_u32 s74, s74, L_pc-{NAME}_kernel
      s_subb_u32 s75, s75, 0
      s_lshr_b32 {sr(sT[0])}, s2, 3
      s_lshl_b32 {sr(sT[0])}, {sr(sT[0])}, 7
      v_bfe_u32 v1, v0, 4, 4
      v_lshl_add_u32 v1, v1, 12, {sr(sT[0])}
      v_min_u32 v1, L_end-{NAME}_kernel, v1
      s_mov_b32 exec_lo, 0x10001
      s_mov_b32 exec_hi, 0x10001
      global_load_dword {vr(cDUM)}, v1, s[74:75]
      s_mov_b64 exec, -1""")
common_setup()
a(f"""v_bfe_u32 {vr(cT[0])}, {vr(vL)}, 1, 3
      v_xor_b32 {vr(cT[0])}, {vr(cT[0])}, {vr(vHH)}
      v_lshlrev_b32 {vr(cT[0])}, 4, {vr(cT[0])}
      v_lshl_add_u32 {vr(cXA)}, {vr(vL31)}, 7, {vr(cT[0])}
      s_mul_i32 {sr(sT[0])}, {sr(sWQ)}, {4096 + 32}
      v_xor_b32 {vr(cXA)}, {sr(sT[0])}, {vr(cXA)}
      v_xor_b32 {vr(cXA+1)}, 32, {vr(cXA)}
      v_xor_b32 {vr(cXA+2)}, 64, {vr(cXA)}
      v_xor_b32 {vr(cXA+3)}, 0x60, {vr(cXA)}""")
tr_addr128(cWP[0], cWP[1], 8, cT[0])
a(f"s_lshl_b32 {sr(sT[0])}, {sr(sWQ)}, 11")
for t in range(2):
    a(f"v_add_u32 {vr(cWP[t])}, {sr(sT[0])}, {vr(cWP[t])}")
    for j in range(1, 4):
        a(f"v_xor_b32 {vr(cWP[t]+j)}, {2048*j}, {vr(cWP[t])}")
make_sel(cSEL, cT[0])
tr_addr(cQB, 8, 64, cT[0])
a(f"""v_mov_b64 {vr(cWa[1]+2,2)}, 0
      s_lshl_b32 {sr(sT[0])}, {sr(sWQ)}, 10
      s_add_u32 {sr(sT[0])}, {sr(sT[0])}, {L_WQ}
      v_add_u32 {vr(cQB)}, {sr(sT[0])}, {vr(cQB)}
      s_lshl_b32 {sr(sT[0])}, {sr(sWQ)}, 7
      s_add_u32 {sr(sT[0])}, {sr(sT[0])}, {L_STATS}
      v_lshl_add_u32 {vr(cRW)}, {vr(vL31)}, 2, {sr(sT[0])}
      v_lshl_add_u32 {vr(cRR)}, {vr(vHH)}, 4, {sr(sT[0])}
      v_add_u32 {vr(cMK)}, -1, {vr(vHH)}
      v_and_b32 {vr(cT[0])}, 3, {vr(vL)}
      v_cmp_eq_u32 vcc, 1, {vr(cT[0])}
      v_cmp_eq_u32 s[76:77], 2, {vr(cT[0])}
      v_cmp_eq_u32 s[78:79], 3, {vr(cT[0])}
      v_lshlrev_b32 {vr(cCR)}, 4, {vr(vL31)}
      v_add_u32 {vr(cCR)}, {L_CSP}, {vr(cCR)}
      s_lshl_b32 {sr(sT[0])}, {sr(sWQ)}, 2
      v_add_u32 {vr(cCW)}, {sr(sT[0])}, {vr(cCR)}
      s_add_u32 {sr(sT[0])}, {sr(sT[0])}, {L_FLG}
      v_mov_b32 {vr(cT[0])}, {sr(sT[0])}
      ds_write_b32 {vr(cT[0])}, {vr(cWa[1]+2)}
      ds_write_b32 {vr(cT[0])}, {vr(cWa[1]+2)} offset:16
      s_waitcnt lgkmcnt(0)""")
if OPT["stamps"]:
    a("s_memtime s[0:1]")
stamp("q2")
other_srds()
a(f"""s_cmp_lg_u32 {sr(sWQ)}, 0
      s_cbranch_scc1 L_C1
      s_cmp_lg_u32 {sr(sRB)}, {sr(sCB)}
      s_cbranch_scc1 L_C1
      s_and_b32 {sr(sT[0])}, {sr(sLINE)}, 0xfffff800
      v_lshrrev_b32 v1, 2, {vr(vL)}
      v_and_b32 v3, 3, {vr(vL)}
      v_lshlrev_b32 v3, 4, v3
      v_lshl_add_u32 v1, v1, 7, v3
      v_mov_b32 v4, 0
      v_mov_b32 v5, 0
      v_mov_b32 v6, 0
      v_mov_b32 v7, 0
      buffer_store_dwordx4 v[4:7], v1, {sr(R_WS,4)}, {sr(sT[0])} offen sc1
      s_lshl_b32 {sr(sT[0])}, {sr(sRB)}, 2
      s_waitcnt vmcnt(0)
      s_mov_b64 exec, 1
      v_mov_b32 v3, 1
      buffer_store_dword v3, off, {sr(R_DBG,4)}, {sr(sT[0])} sc1
      s_mov_b64 exec, -1""")
a.label("L_C1")
stamp("q3")
PF = OPT.get("pf", 15)
if PF:
    a.comment("L2 prefetch of this workgroup's share of the lines its XCD neighbours also stream later")
    a(f"""s_mov_b32 {sr(R_WQKV+2)}, {512*1536*2}
          s_mov_b32 {sr(R_WQKV+3)}, 0x20000""")
    u, u2, u3 = sT[0], sT[1], sT[2]
    a(f"""s_lshr_b32 {sr(u3)}, {sr(sRB)}, 2
          s_cmp_eq_u32 {sr(sWQ)}, 1
          s_cbranch_scc1 L_pf1
          s_cmp_eq_u32 {sr(sWQ)}, 2
          s_cbranch_scc1 L_pf2
          s_cmp_eq_u32 {sr(sWQ)}, 3
          s_cbranch_scc1 L_pf3""")
    if PF & 16:
        a(f"""s_lshl_b32 {sr(u)}, s2, 13
              v_lshlrev_b32 v1, 7, {vr(vL)}
              buffer_load_dword {vr(cDUM)}, v1, {sr(R_X,4)}, {sr(u)} offen""")
    if PF & 1:
        a(f"""s_and_b32 {sr(u)}, {sr(sCB)}, 7
              s_lshl_b32 {sr(u2)}, {sr(sRB)}, 3
              s_add_u32 {sr(u)}, {sr(u)}, {sr(u2)}
              s_lshl_b32 {sr(u)}, {sr(u)}, 14
              s_add_u32 {sr(u2)}, {sr(sROT)}, 4
              v_lshrrev_b32 v1, 4, {vr(vL)}
              v_add_u32 v1, {sr(u2)}, v1
              v_and_b32 v1, 7, v1
              v_lshlrev_b32 v1, 7, v1
              v_and_b32 v2, 15, {vr(vL)}
              v_lshl_add_u32 v1, v2, 10, v1
              buffer_load_dword {vr(cDUM)}, v1, {sr(R_X,4)}, {sr(u)} offen""")
    a("s_branch L_pfd")
    a.label("L_pf1")
    if PF & 32:
        a(f"""s_mul_i32 {sr(u)}, s2, 6144
              v_lshlrev_b32 v1, 7, {vr(vL)}
              s_mov_b32 exec_hi, 0xffff
              buffer_load_dword {vr(cDUM)}, v1, {sr(R_WQKV,4)}, {sr(u)} offen
              s_mov_b64 exec, -1""")
    if PF & 2:
        a(f"""s_and_b32 {sr(u)}, {sr(sCB)}, 1
              s_add_u32 {sr(u)}, {sr(u)}, 1
              s_lshl_b32 {sr(u)}, {sr(u)}, 10
              s_lshr_b32 {sr(u2)}, {sr(sCB)}, 1
              s_lshl_b32 {sr(u2)}, {sr(u2)}, 7
              s_add_u32 {sr(u)}, {sr(u)}, {sr(u2)}
              s_mul_i32 {sr(u2)}, {sr(u3)}, {16*3072}
              s_add_u32 {sr(u)}, {sr(u)}, {sr(u2)}
              s_add_u32 {sr(u2)}, {sr(sROT)}, 4
              v_lshrrev_b32 v1, 4, {vr(vL)}
              v_add_u32 v1, {sr(u2)}, v1
              v_and_b32 v1, 7, v1
              v_and_b32 v2, 15, {vr(vL)}
              v_lshl_add_u32 v1, v1, 6, v2
              v_mul_u32_u24 v1, 3072, v1
              buffer_load_dword {vr(cDUM)}, v1, {sr(R_WQKV,4)}, {sr(u)} offen""")
    a("s_branch L_pfd")
    a.label("L_pf2")
    if PF & 4:
        a(f"""s_and_b32 {sr(u)}, {sr(sCB)}, 1
              s_lshl_b32 {sr(u2)}, {sr(u3)}, 1
              s_add_u32 {sr(u)}, {sr(u)}, {sr(u2)}
              s_mul_i32 {sr(u)}, {sr(u)}, {64*3072}
              s_lshl_b32 {sr(u2)}, {sr(sCB)}, 6
              s_add_u32 {sr(u)}, {sr(u)}, {sr(u2)}
              v_mul_u32_u24 v1, 3072, {vr(vL)}
              buffer_load_dword {vr(cDUM)}, v1, {sr(R_WQKV,4)}, {sr(u)} offen""")
    a("s_branch L_pfd")
    a.label("L_pf3")
    if PF & 64:
        a(f"""s_mul_i32 {sr(u)}, s2, 5504
              v_lshlrev_b32 v1, 7, {vr(vL)}
              s_mov_b32 exec_hi, 0x7ff
              buffer_load_dword {vr(cDUM)}, v1, {sr(R_W1,4)}, {sr(u)} offen
              s_mov_b64 exec, -1""")
    if PF & 8:
        a(f"""s_mul_i32 {sr(u)}, {sr(u3)}, {128*2752}
              s_lshl_b32 {sr(u2)}, {sr(sT0)}, 6
              s_add_u32 {sr(u)}, {sr(u)}, {sr(u2)}
              s_add_u32 {sr(u2)}, {sr(u)}, {64*2752}
              v_mul_u32_u24 v1, 2752, {vr(vL)}
              buffer_load_dword {vr(cDUM)}, v1, {sr(R_W1,4)}, {sr(u)} offen
              buffer_load_dword {vr(cDUM)}, v1, {sr(R_W1,4)}, {sr(u)} offen offset:128
              buffer_load_dword {vr(cDUM)}, v1, {sr(R_W1,4)}, {sr(u2)} offen
              buffer_load_dword {vr(cDUM)}, v1, {sr(R_W1,4)}, {sr(u2)} offen offset:128""")
    a.label("L_pfd")
    stamp("q4")
a.reset_counts()


def c_scalars():
    att_addr_s(sT[0], sT[1])
    a(f"""s_lshl_b32 {sr(sHS)}, {sr(sRB)}, 2
          s_add_u32 {sr(sHS)}, {sr(sHS)}, {sr(sWQ)}
          s_mul_i32 {sr(sHS)}, {sr(sHS)}, {86*1024}
          s_lshl_b32 {sr(sT[0])}, {sr(sT0)}, 11
          s_add_u32 {sr(sHS)}, {sr(sHS)}, {sr(sT[0])}
          s_add_u32 {sr(sHS)}, {sr(sHS)}, {WS_H}
          s_add_u32 {sr(sHS2)}, {sr(sHS)}, 2048""")
    a(f"""s_cmp_ge_u32 {sr(sT0)}, 43
          s_cselect_b32 {sr(sHS)}, {WS_SIZE}, {sr(sHS)}
          s_cmp_ge_u32 {sr(sT0)}, 42
          s_cselect_b32 {sr(sHS2)}, {WS_SIZE}, {sr(sHS2)}""")
    a(f"""s_lshr_b32 {sr(sT[0])}, {sr(sCB)}, 1
          s_lshl_b32 {sr(sT[0])}, {sr(sT[0])}, 19
          s_lshl_b32 {sr(sT[1])}, {sr(sRB)}, 2
          s_add_u32 {sr(sT[1])}, {sr(sT[1])}, {sr(sWQ)}
          s_lshl_b32 {sr(sT[1])}, {sr(sT[1])}, 11
          s_add_u32 {sr(sT[2])}, {sr(sT[0])}, {sr(sT[1])}
          s_bitcmp1_b32 {sr(sCB)}, 0
          s_cselect_b32 {sr(sT[0])}, 1024, 0
          s_add_u32 {sr(sT[2])}, {sr(sT[2])}, {sr(sT[0])}
          s_bitcmp1_b32 {sr(sCB)}, 0
          s_mov_b32 s8, 0x20000
          s_cselect_b32 s8, 512, s8
          s_sub_u32 s9, 0x40000, s8""")
    for j in range(4):
        a(f"""s_xor_b32 {sr(20+j)}, {sr(sWQ)}, {j}
              s_mul_i32 {sr(20+j)}, {sr(20+j)}, 3072
              s_add_u32 {sr(20+j)}, {sr(20+j)}, {L_W1[0]}""")


a(f"s_cmp_ge_u32 {sr(sWQ)}, 2")
WARM = OPT.get("warm", 0)
if WARM:
    a.comment("instruction-cache warm-up: with EXEC = 0 each wave hops over a few branch-only landing points and returns")
    a(f"""s_mov_b64 exec, 0
          s_cbranch_scc1 L_w23
          s_bitcmp1_b32 {sr(sWQ)}, 0
          s_cbranch_scc1 L_pad1
          s_branch L_pad0""")
    a.label("L_w23")
    a(f"""s_bitcmp1_b32 {sr(sWQ)}, 0
          s_cbranch_scc1 L_pad3
          s_branch L_pad2""")
    a.label("L_wret")
    a("s_mov_b64 exec, -1")
a(f"""s_bitcmp1_b32 {sr(sCB)}, 0
      s_cbranch_scc1 L_CV""")
ALIGN = OPT.get("align", 1)
if ALIGN:
    a("s_branch L_CK")
    a.raw(".p2align 12")
    a.label("L_CK")


cQA, RING = 208, 128
cWF = [208, 212, 216]
cPS, cPA = cWa[1], cVO
cFB, cFC = 250, [0, 4, 8]
cF1, cBI, cP3, cFL = 67, 64, 12, 80
FORD = [(k, t) for k in list(range(17)) + [20, 24, 28, 17, 18, 19] for t in range(3)]
FORD += [(k, t) for t in range(3) for k in (21, 22, 23, 25, 26, 27, 29, 30, 31)]
pq = [Ptr(cXA + j, L_WQ) for j in range(4)]
pf = [Ptr(cXA + j, L_W1[0]) for j in range(4)]
LA = 6


def t_read(i):
    if i >= 128:
        return
    for u in range(2):
        if i < 32:
            tr(RING + 4 * (i & 7) + 2 * u, pq[i & 3], L_WQ + (i >> 2) * 4096 + u * 256, ("tw", i))
        else:
            k, t = FORD[i - 32]
            tr(RING + 4 * (i & 7) + 2 * u, pf[k & 3], L_W1[k >> 2] + t * 64 + u * 768, ("tw", i))


def sum4(p):
    return [f"v_add_f32 {vr(p)}, {vr(p)}, {vr(p+1)}", f"v_add_f32 {vr(p+2)}, {vr(p+2)}, {vr(p+3)}", f"v_add_f32 {vr(p)}, {vr(p)}, {vr(p+2)}"]


side = []


def side_ops(n):
    for _ in range(n):
        if not side:
            return
        op = side.pop(0)
        if isinstance(op, tuple):
            a.wait(lg=op[1])
        elif callable(op):
            op()
        elif op:
            a(op)


def kv_aux():
    a(f"""s_bitcmp1_b32 {sr(sCB)}, 0
          s_cbranch_scc1 L_auxv""")
    for t in range(2):
        mfma32(cACC[t], cWa[t], cXa, cACC[t])
    keep = list(a.lg)
    a.wait(lg="dr")
    a.lg = keep
    a(f"""v_mov_b32 {vr(cACC[2])}, {vr(cR)}
          v_mov_b32 {vr(cACC[2]+1)}, {vr(cR)}""")
    for i in range(2, 16, 2):
        a(f"v_mov_b64 {vr(cACC[2]+i,2)}, {vr(cACC[2],2)}")
    a("s_branch L_auxd")
    a.label("L_auxv")
    for t in range(2):
        mfma32(cACC[t], cXa, cWa[t], cACC[t])
    a.label("L_auxd")


def kv_store(n):
    a(f"buffer_store_dwordx4 {vr(cACC[n>>1]+8*(n&1),4)}, {vr(cVO)}, {sr(R_WS,4)}, {sr(sT[2])} offen sc1", vm="kv")
    if n == 3:
        stamp("kvst")


def kv_epilogue():
    CS, (T0, T1) = cKC[0], cT
    ops = [f"v_add_f32 {vr(cSQ[0]+i)}, {vr(cSQ[0]+i)}, {vr(cSQ[1]+i)}" for i in range(4)]
    ops += [f"v_cndmask_b32 {vr(T0)}, {vr(cSQ[0])}, {vr(cSQ[0]+1)}, vcc",
            f"v_cndmask_b32 {vr(T0)}, {vr(T0)}, {vr(cSQ[0]+2)}, s[76:77]",
            f"v_cndmask_b32 {vr(T0)}, {vr(T0)}, {vr(cSQ[0]+3)}, s[78:79]",
            f"v_mov_b32 {vr(T1)}, {vr(T0)}",
            f"v_mul_f32 {vr(cM)}, {f32(1/512)}, {vr(cSUM)}",
            f"v_cvt_pk_bf16_f32 {vr(cXa)}, -{vr(cM)}, -{vr(cM)}",
            f"v_permlane32_swap_b32 {vr(T0)}, {vr(T1)}",
            f"v_add_f32 {vr(T0)}, {vr(T0)}, {vr(T1)}",
            f"v_mul_f32 {vr(T0)}, {f32(1/512)}, {vr(T0)}",
            f"v_fma_f32 {vr(T0)}, -{vr(cM)}, {vr(cM)}, {vr(T0)}",
            f"v_max_f32 {vr(T0)}, 0, {vr(T0)}",
            f"v_cvt_pk_bf16_f32 {vr(T0)}, {vr(T0)}, {vr(T0)}",
            f"v_lshlrev_b32 {vr(T0)}, 16, {vr(T0)}",
            f"v_add_f32 {vr(T0)}, {f32(1e-5)}, {vr(T0)}",
            f"v_cvt_pk_bf16_f32 {vr(T0)}, {vr(T0)}, {vr(T0)}",
            f"v_lshlrev_b32 {vr(T0)}, 16, {vr(T0)}",
            f"v_sqrt_f32 {vr(T0)}, {vr(T0)}",
            "s_waitcnt vmcnt(0)",
            f"v_cvt_pk_bf16_f32 {vr(cXa+1)}, -{vr(cM)}, {vr(T0)}",
            f"v_and_b32 {vr(T0)}, 0xffff0000, {vr(cXa+1)}",
            f"v_rcp_f32 {vr(cR)}, {vr(T0)}",
            f"v_and_b32 {vr(cXa)}, {vr(cXa)}, {vr(cMK)}",
            f"v_and_b32 {vr(cXa+1)}, {vr(cXa+1)}, {vr(cMK)}",
            lambda: a(f"ds_write_b32 {vr(cRW)}, {vr(cR)}", lg="st"),
            f"v_mov_b64 {vr(cXa+2,2)}, 0",
            f"v_mov_b64 {vr(cWa[0]+2,2)}, 0",
            ("W", "cs")]
    for t in range(2):
        ops += sum4(CS + 4 * t) + split3_ops(CS + 4 * t, "0", cWa[t], cWa[t] + 1, T0, T1, None)
    for g in range(4):
        ops += [lambda g=g: (a.room(1), a(f"ds_read_b128 {vr(cACC[2]+4*g,4)}, {vr(cRR)} offset:{32*g}", lg="dr"))]
    ops += [kv_aux] + record(lambda: tr_addr(cFB, 8, 192, T0)) + [("W", "dr")]
    for n in range(4):
        b = cACC[n >> 1] + 8 * (n & 1)
        ops += [f"v_mul_f32 {vr(b+i)}, {vr(b+i)}, {vr(cACC[2]+8*(n&1)+i)}" for i in range(8)]
        ops += [f"v_cvt_pk_bf16_f32 {vr(b+i)}, {vr(b+2*i)}, {vr(b+2*i+1)}" for i in range(4)]
        ops += [lambda n=n: kv_store(n)]
        if n < 3:
            ops += [f"s_add_u32 {sr(sT[2])}, {sr(sT[2])}, s{8 + (n & 1)}"]
    return ops


def kv_path(isV):
    cs_ops = record(c_scalars)
    assert len(cs_ops) <= 84
    px = [Ptr(cXA + j) for j in range(4)]
    pw = [[Ptr(cWP[t] + j) for j in range(4)] for t in range(2)]

    def rx(n, j):
        rd128(XR(4 * n + j), px[j], (n % 6) * SLOT, ("r", n, j))

    def rw(n, j, t):
        for u in range(0 if OPT.get("norw") and n > 0 else 2):
            tr(cSET[j] + 4 * t + 2 * u, pw[t][j], (n % 6) * SLOT + 16384 + u * 512, ("r", n, j))

    def main(n, j, t):
        if OPT.get("nomain") and n > 0:
            return
        c = "0" if (n == 0 and j == 0) else cACC[t]
        if isV:
            mfma32(cACC[t], XR(4 * n + j), cSET[j] + 4 * t, c)
        else:
            mfma32(cACC[t], cSET[j] + 4 * t, XR(4 * n + j), c)

    def s16(n, j):
        mfma16(cSUM, cSEL, XR(4 * n + j), "0" if (n == 0 and j == 0) else cSUM)

    def s4(n, j, h):
        mfma4(cSQ[h], XR(4 * n + j) + 2 * h, "0" if (n == 0 and j == 0) else cSQ[h])

    def small(n, j):
        if OPT.get("nosmall") and n > 0:
            return
        s16(n, j)
        s4(n, j, 0)
        s4(n, j, 1)

    if isV:
        a(f"""v_bfe_u32 {vr(cT[0])}, {vr(vL)}, 4, 1
              v_lshlrev_b32 {vr(cT[0])}, 17, {vr(cT[0])}
              v_lshl_add_u32 {vr(cT[0])}, {vr(vHH)}, 8, {vr(cT[0])}
              v_and_b32 {vr(cVO)}, 15, {vr(vL)}
              v_lshl_add_u32 {vr(cVO)}, {vr(cVO)}, 4, {vr(cT[0])}""")
    else:
        a.comment("key slot = lane with bits 2 and 3 swapped")
        a(f"""v_and_b32 {vr(cVO)}, 0x33, {vr(vL)}
              v_bfe_u32 {vr(cT[0])}, {vr(vL)}, 2, 1
              v_lshl_add_u32 {vr(cVO)}, {vr(cT[0])}, 3, {vr(cVO)}
              v_bfe_u32 {vr(cT[0])}, {vr(vL)}, 3, 1
              v_lshl_add_u32 {vr(cVO)}, {vr(cT[0])}, 2, {vr(cVO)}
              v_lshlrev_b32 {vr(cVO)}, 4, {vr(cVO)}""")
    def rd(n, j):
        rx(n, j)
        rw(n, j, 0)
        rw(n, j, 1)

    for n in range(8):
        stamp(f"ca{n}")
        a("s_barrier")
        stamp(f"cp{n}")
        if n == 0:
            stamp("c0")
        if n == 7:
            stamp("c7")
        if n == 0:
            rd(0, 0)
            rd(0, 1)
            rd(0, 2)
        else:
            main(n - 1, 2, 0)
            rx(n, 0)
            rw(n, 0, 0)
            main(n - 1, 2, 1)
            rw(n, 0, 1)
            main(n - 1, 3, 0)
            rx(n, 1)
            rw(n, 1, 0)
            main(n - 1, 3, 1)
            rw(n, 1, 1)
            for j in range(4):
                s16(n - 1, j)
                if j == 0:
                    rx(n, 2)
                elif j < 3:
                    rw(n, 2, j - 1)
                s4(n - 1, j, 0)
                s4(n - 1, j, 1)
        a.wait(lg=("r", n, 0))
        main(n, 0, 0)
        rx(n, 3)
        rw(n, 3, 0)
        main(n, 0, 1)
        rw(n, 3, 1)
        for t in range(2):
            mfma16(cKC[t], cSEL, cSET[0] + 4 * t, "0" if n == 0 else cKC[t])
        a.wait(lg=("r", n, 1))
        if n < 7:
            main(n, 1, 0)
            emit(cs_ops[12 * n:12 * n + 6])
            main(n, 1, 1)
            emit(cs_ops[12 * n + 6:12 * n + 12])
            a.wait(lg=("r", n, 3))
    small(7, 0)
    small(7, 1)
    a.wait(lg=("r", 7, 3))
    s16(7, 2)
    a(f"ds_write_b32 {vr(cCW)}, {vr(cKC[0])}", lg="k")
    a(f"ds_write_b32 {vr(cCW)}, {vr(cKC[1])} offset:512", lg="k")
    s4(7, 2, 0)
    s4(7, 2, 1)
    small(7, 3)
    main(7, 1, 0)
    a(f"v_mov_b32 {vr(cXA)}, {vr(cQB)}")
    for j in range(1, 4):
        a(f"v_xor_b32 {vr(cXA+j)}, {1024*j}, {vr(cQB)}")
    a.wait(lg="all")
    a("s_barrier")
    side[:] = kv_epilogue()
    main(7, 1, 1)
    a(f"ds_read_b128 {vr(cKC[0],4)}, {vr(cCR)}", lg="cs")
    a(f"ds_read_b128 {vr(cKC[1],4)}, {vr(cCR)} offset:512", lg="cs")
    t_read(0)
    side_ops(2)
    for n, (j, t) in enumerate([(2, 0), (2, 1), (3, 0), (3, 1)]):
        main(7, j, t)
        t_read(n + 1)
        side_ops(4)
    t_read(5)


kv_path(False)
a("s_branch L_C2")
if ALIGN:
    a.raw(".p2align 12")
a.label("L_CV")
a.reset_counts()
kv_path(True)
if ALIGN:
    a("s_branch L_C2")
    a.raw(".p2align 12")
a.label("L_C2")
F1S, B11 = OPT.get("f1s", 49), OPT.get("b11", 68)
at = {}


def sched(i, ops):
    at.setdefault(i, []).extend(ops)


sched(27, [f"v_lshlrev_b32 {vr(cPA)}, 4, {vr(vL31)}", f"v_add_u32 {vr(cPA)}, {L_CSP + 1024}, {vr(cPA)}",
           f"s_lshl_b32 {sr(sT[0])}, {sr(sWQ)}, 2", f"v_add_u32 {vr(cT[0])}, {sr(sT[0])}, {vr(cPA)}"])
sched(30, [lambda: a(f"ds_write_b32 {vr(cT[0])}, {vr(cQC)}", lg="qc")])
q2 = [lambda: a(f"ds_read_b128 {vr(cPS,4)}, {vr(cPA)}", lg="ps"),
      f"s_lshl_b32 {sr(sT[0])}, {sr(sWQ)}, 10", f"s_add_u32 {sr(sT[0])}, {sr(sT[0])}, {L_QX}", "", "", "", ("W", "ps")]
q2 += sum4(cPS) + split3_ops(cPS, "0", cWa[0], cWa[0] + 1, cT[0], cT[1], None)
q2 += [f"v_lshl_add_u32 {vr(cT[1])}, {vr(vL)}, 4, {sr(sT[0])}",
       lambda: mfma32(cQA, cWa[0], cXa, cQA),
       f"v_mul_f32 {vr(cT[0])}, {f32(0.25*math.log2(math.e))}, {vr(cR)}",
       "", "", "", ""]
q2 += [f"v_mul_f32 {vr(cQA+i)}, {vr(cQA+i)}, {vr(cT[0])}" for i in range(16)]
for u in range(2):
    q2 += [f"v_cvt_pk_bf16_f32 {vr(cQA+4*u+i)}, {vr(cQA+8*u+2*i)}, {vr(cQA+8*u+2*i+1)}" for i in range(4)]
    q2 += [lambda u=u: a(f"ds_write_b128 {vr(cT[1])}, {vr(cQA+4*u,4)} offset:{u*4096}", lg="qx")]
sched(33, q2)
sched(58, record(lambda: att_addr_v(cT[0])))
sched(B11 + 1, [f"v_mov_b64 {vr(cWF[k]+2,2)}, 0" for k in range(3)]
      + [f"s_lshl_b32 {sr(sT[0])}, {sr(sWQ)}, 2", f"v_add_u32 {vr(cPS+1)}, {sr(sT[0])}, {vr(cPA)}",
         f"s_add_u32 {sr(sT[0])}, {sr(sT[0])}, {L_FLG}", f"v_mov_b32 {vr(cPS+2)}, {sr(sT[0])}", f"v_mov_b32 {vr(cPS)}, {L_FLG}",
         f"s_lshl_b32 {sr(sT[0])}, {sr(sT0)}, 6", f"v_lshlrev_b32 {vr(cT[0])}, 1, {vr(vL31)}"])
oz = record(o_zero)


def late_loads():
    for t in range(3):
        a(f"buffer_load_ushort {vr(cBI+t)}, {vr(cT[0])}, {sr(R_B1,4)}, {sr(sT[0])} offen offset:{64*t}", vm="bias")


def dsw(text):
    a.room(1)
    a(text, lg="fc")


def part_reads():
    a.room(4)
    a(f"ds_read_b128 {vr(cFL,4)}, {vr(cPS)}", lg="p3")
    for t in range(3):
        a(f"ds_read_b128 {vr(cP3+4*t,4)}, {vr(cPA)} offset:{512*(t+1)}", lg="p3")


def part_check():
    a.comment("column-sum partials of the other three waves are complete once their marker words are set")
    a(f"s_mov_b32 {sr(sT[6])}, {OPT['spin']}")
    a.wait(vm="bias", lg="p3")
    keep = list(a.lg)
    a.label("L_p3")
    a(f"""v_min_u32 {vr(cFL)}, {vr(cFL)}, {vr(cFL+1)}
          v_min3_u32 {vr(cFL)}, {vr(cFL)}, {vr(cFL+2)}, {vr(cFL+3)}
          v_cmp_eq_u32 vcc, 0, {vr(cFL)}
          s_sub_u32 {sr(sT[6])}, {sr(sT[6])}, 1
          s_cmp_eq_u64 vcc, 0
          s_cbranch_scc1 L_p3d""")
    part_reads()
    a.wait(lg="all")
    a(f"""s_cmp_lg_u32 {sr(sT[6])}, 0
          s_cbranch_scc1 L_p3""")
    a.label("L_p3d")
    a.lg = keep


def h_epi(t):
    ops = []
    for u in range(2):
        b = cACC[t] + 8 * u
        ops += [f"v_max_f32 {vr(b+i)}, 0, {vr(b+i)}" for i in range(8)]
        if t == 2 and OPT.get("pk"):
            ops += [f"v_pk_mul_f32 {vr(b+i,2)}, {vr(b+i,2)}, {vr(b+i,2)}" for i in range(0, 8, 2)]
        else:
            ops += [f"v_mul_f32 {vr(b+i)}, {vr(b+i)}, {vr(b+i)}" for i in range(8)]
        ops += [f"v_cvt_pk_bf16_f32 {vr(208+8*t+4*u+i)}, {vr(b+2*i)}, {vr(b+2*i+1)}" for i in range(4)]
    return ops


sched(80, oz[12:18])
sched(83, [late_loads] + oz[18:])
sched(93, [lambda t=t: dsw(f"ds_write_b32 {vr(cPS+1)}, {vr(cFC[t])} offset:{512*(t+1)}") for t in range(3)]
      + [lambda: dsw(f"ds_write_b32 {vr(cPS+2)}, {vr(cPS+2)}")] + oz[:5])
sched(96, [part_reads, oz[5]])
w3 = [part_check, "", ""]
for t in range(3):
    w3 += [f"v_lshlrev_b32 {vr(cBI+t)}, 16, {vr(cBI+t)}"] + sum4(cP3 + 4 * t)
    w3 += split3_ops(cP3 + 4 * t, vr(cBI + t), cWF[t], cWF[t] + 1, cT[0], cT[1], None)
    w3 += [oz[6 + 2 * t], oz[7 + 2 * t], lambda t=t: mfma32(cACC[t], cWF[t], cXa, cACC[t])]
w3.insert(3 + 2 * 14, lambda: f1_issue(cF1))
sched(99, w3)
sched(112, h_epi(0) + h_epi(1))
ER = OPT.get("er", 4)
for i in range(128):
    a.wait(lg=("tw", i))
    fr = RING + 4 * (i & 7)
    if i < 32:
        mfma32(cQA, fr, XR(i), "0" if i == 0 else cQA)
        cs = (cQC, i == 0) if i % 4 == 0 else None
    else:
        k, t = FORD[i - 32]
        mfma32(cACC[t], fr, XR(k), "0" if k == 0 else cACC[t])
        cs = (cFC[t], k == 3) if (k == 3 or (k >= 4 and k % 4 == 0)) else None
    if i + LA == 16:
        a("s_barrier")
    if i + LA == 32:
        a("s_barrier")
        stamp("c9")
    if i == 33:
        a.wait(lg="qc")
        a("s_barrier")
    if i + LA == 56:
        a("s_barrier")
        stamp("c10")
    if i == B11:
        assert not side and 56 - LA < B11 <= 80 - LA
        a.wait(lg="qx")
        a("s_barrier")
        stamp("c11")
    if i == B11 + OPT.get('b11d', 5):
        assert i <= 80
        a("s_barrier")
        a(f"s_setprio {OPT.get('cp3', 3)}")
    stamp(f"i{i}")
    a.room(2)
    t_read(i + LA)
    if 22 <= i < 26:
        a(f"v_add_u32 {vr(cXA+i-22)}, {sr(20+i-22)}, {vr(cFB)}")
    if i == 27:
        assert not side
    side += at.get(i, [])
    if i == OPT.get("cp4", -1):
        a("s_setprio 3")
    if i in (93, 96, 99):
        assert len(side) == len(at[i])
    side_ops(ER if i < 27 else 2 if i < 92 else OPT.get("er2", 4) if i < 122 else 5)
    if i <= 121:
        assert len(side) >= 40 or i < 112
    if cs:
        mfma16(cs[0], cSEL, fr, "0" if cs[1] else cs[0])
    if i == F1S:
        assert F1S >= 31 and WS_FL % 4096 == 0
        a(f"""s_and_b32 {sr(sT[3])}, {sr(sF1)}, 0xfffff3ff
              v_mov_b32 {vr(cQC)}, 1
              v_lshlrev_b32 {vr(cQC+1)}, 10, {vr(vL)}""")
        a.wait(vm="all")
        a(f"""s_mov_b64 exec, 15
              buffer_atomic_add {vr(cQC)}, {vr(cQC+1)}, {sr(R_WS,4)}, {sr(sT[3])} offen offset:48 sc1
              s_mov_b64 exec, -1""")
        stamp("f1sent")
stamp("ffnend")
a("s_setprio 3")
f1_check(cF1)
att_init()
a(f"v_mov_b64 {vr(cPS,2)}, {vr(VB[0],2)}")
kvload(0)
kvload(1)
kvload(2)
stamp("kvl")
q_reads()
dsw(f"ds_write_b32 {vr(cPS+2)}, {vr(cPS+2)} offset:16")
HSP = OPT.get("hsp", 1)


def hstore(n):
    a(f"buffer_store_dwordx4 {vr(208+4*n,4)}, {vr(vL16)}, {sr(R_WS,4)}, {sr(sHS if n < 2 else sHS2)} offen offset:{1024*(n if n < 2 else n-2)} sc1", vm="h")


side += h_epi(2)
side_ops(len(side))
xb_init(cPS)
a.wait(lg="all")
assert a.vm == att_vm

a.label("L_ATT")
role[0] = "HC"
a.wait(vm=("v", 0))
stamp("attst")


def hload(i):
    a(f"buffer_load_dwordx4 {vr(HF+4*(i%12),4)}, {vr(vL16)}, {sr(R_WS,4)}, {sr(sH0)} offen offset:{(i%4)*1024} sc1", vm=("hf", i))


def h_next(i):
    a(f"s_add_u32 {sr(sH0)}, {sr(sH0)}, 4096")
    if i == 20:
        a(f"s_min_u32 {sr(sH0)}, {sr(sH0)}, {sr(sKS)}")


f2load = f"buffer_atomic_umax {vr(vFP)}, off, {sr(R_WS,4)}, {sr(sT[4])} offset:52 sc0 sc1"


def f2_addr():
    a(f"""s_lshr_b32 {sr(sT[4])}, {sr(sOUT)}, 16
          s_and_b32 {sr(sU2)}, {sr(sW)}, 1
          s_lshl1_add_u32 {sr(sT[4])}, {sr(sT[4])}, {sr(sU2)}
          s_bfe_u32 {sr(sU2)}, {sr(sCB)}, 0x20001
          s_lshl2_add_u32 {sr(sT[4])}, {sr(sT[4])}, {sr(sU2)}
          s_lshl_b32 {sr(sT[4])}, {sr(sT[4])}, 7
          s_add_u32 {sr(sT[4])}, {sr(sT[4])}, {WS_FL}
          v_mov_b32 {vr(vFP)}, 0""")


def f2_issue():
    a("s_mov_b64 exec, 1")
    a(f2load, vm="f2")
    a("s_mov_b64 exec, -1")


def f2_check():
    a.comment("wait until the 16 producers of this wave's h row tile have arrived")
    a.wait(vm="f2")
    a("s_mov_b64 exec, 1")
    poll(f2load, 1, vFP, first_done=True, expect="16")
    a("s_mov_b64 exec, -1")


def touch_idx():
    a(f"""s_lshr_b32 {sr(sU)}, {sr(sRB)}, 2
          s_lshl_b32 {sr(sU)}, {sr(sU)}, 1
          s_and_b32 {sr(sU2)}, {sr(sCB)}, 1
          s_add_u32 {sr(sU)}, {sr(sU)}, {sr(sU2)}
          s_lshl_b32 {sr(sU)}, {sr(sU)}, 3
          s_add_u32 {sr(sU)}, {sr(sU)}, {sr(sW)}
          s_and_b32 {sr(sU2)}, {sr(sOUT)}, 0x3ff
          v_lshlrev_b32 {vr(vFL)}, 10, {vr(vL)}""")


def touch_w2_old():
    a.comment("pull a share of the W2 rows streamed inside the attention loop into L2")
    touch_idx()
    a(f"""s_lshr_b32 {sr(sT[3])}, {sr(sU)}, 4
          s_mul_i32 {sr(sT[3])}, {sr(sT[3])}, {(352-160)*1024}
          s_mul_i32 {sr(sU)}, {sr(sU)}, {10*1024}
          s_add_u32 {sr(sU)}, {sr(sU)}, {sr(sT[3])}
          s_add_u32 {sr(sU)}, {sr(sU)}, {sr(sU2)}
          s_mov_b64 exec, 0x3ff""")
    a(f"buffer_load_dword {vr(vDUM)}, {vr(vFL)}, {sr(R_W2,4)}, {sr(sU)} offen", vm="t")
    a("s_mov_b64 exec, -1")


def touch_w2():
    if not OPT.get("tq", 1):
        return touch_w2_old()
    n = 22 if OPT.get("tq", 1) == 1 else 10
    a(f"""s_lshr_b32 {sr(sU)}, {sr(sRB)}, 2
          s_and_b32 {sr(sU2)}, {sr(sCB)}, 1
          s_lshl1_add_u32 {sr(sU)}, {sr(sU)}, {sr(sU2)}
          s_and_b32 {sr(sU2)}, {sr(sW)}, 1
          s_lshl1_add_u32 {sr(sU)}, {sr(sU)}, {sr(sU2)}
          s_mul_i32 {sr(sU)}, {sr(sU)}, {n}
          s_lshl4_add_u32 {sr(sU)}, {sr(sKS)}, {sr(sU)}
          s_lshl_b32 {sr(sU)}, {sr(sU)}, 10
          s_and_b32 {sr(sU2)}, {sr(sOUT)}, 0x3ff
          s_add_u32 {sr(sU)}, {sr(sU)}, {sr(sU2)}
          v_lshlrev_b32 {vr(vFL)}, 10, {vr(vL)}
          s_mov_b64 exec, {(1 << n) - 1}""")
    a(f"buffer_load_dword {vr(vDUM)}, {vr(vFL)}, {sr(R_W2,4)}, {sr(sU)} offen", vm="t")
    a("s_mov_b64 exec, -1")


def touch_wo():
    a.comment("pull a share of the Wo column block into L2")
    touch_idx()
    a(f"""s_lshl_b32 {sr(sU)}, {sr(sU)}, 13
          s_add_u32 {sr(sU)}, {sr(sU)}, {sr(sU2)}
          s_mov_b64 exec, 0xff""")
    a(f"buffer_load_dword {vr(vDUM)}, {vr(vFL)}, {sr(R_WO,4)}, {sr(sU)} offen", vm="t")
    a("s_mov_b64 exec, -1")


extras = {}


def put(it, tile, slot, fn):
    extras.setdefault((it, tile, slot), []).append(fn)


for i in range(3, 16):
    if i < 3 + XB:
        put(0, i - 3, 2, lambda i=i: kvload(i))
    else:
        it = min(i - XB - 2 + OPT.get("kd", 0), i - 2) if i < XB + 6 else i - 2
        put(it, 0, 0, lambda i=i: kvload(i, False))
        put(it, 0, 1, kv_next)


def f2_signal():
    a.comment("waves 4-7 count themselves in the four replicas of their row tile's h counter")
    a(f"""s_cmp_lt_u32 {sr(sW)}, 4
          s_cbranch_scc1 L_nof2
          s_lshl2_add_u32 {sr(sU)}, {sr(sRB)}, {sr(sWQ)}
          s_lshl_b32 {sr(sU)}, {sr(sU)}, 9
          s_add_u32 {sr(sU)}, {sr(sU)}, {WS_FL}
          v_mov_b32 {vr(vFP)}, 1
          v_lshlrev_b32 {vr(vFL)}, 7, {vr(vL)}""")
    keep = list(a.vm)
    a.wait(vm="h")
    a(f"""s_mov_b64 exec, 15
          buffer_atomic_add {vr(vFP)}, {vr(vFL)}, {sr(R_WS,4)}, {sr(sU)} offen offset:52 sc1
          s_mov_b64 exec, -1""")
    a.vm = keep
    a(f"s_setprio {2 if OPT['prio'] else 0}")
    a.label("L_nof2")


if HSP:
    a.comment("waves 4-7 publish h one fragment at a time; waves 0-3 run the same stores out of range (dropped)")
    for n in range(6):
        HS0 = OPT.get("hs0", XB)
        put((HS0 + n * HSP) // 4, (HS0 + n * HSP) % 4, 2, lambda n=n: hstore(n))
    F2S = HS0 + 5 * HSP + OPT.get("f2d", 10)
    put(F2S // 4, F2S % 4, 1, f2_signal)
else:
    put(2, 3, 1, f2_signal)
put(OPT.get("tw2", 3), 2, 1, touch_w2)
put(OPT["tit"], 2, 1, touch_wo)
F2IT = OPT["f2it"]
F2I = 4 * F2IT - OPT.get("f2i", 4)
assert F2I - 1 > F2S
put((F2I - 1) // 4, (F2I - 1) % 4, 1, f2_addr)
put(F2I // 4, F2I % 4, 2, f2_issue)
put(F2IT, 0, 2, f2_check)


def marker_check():
    a.comment("the W1 image may be overwritten once all four compute waves have set their marker words")
    a(f"""v_mov_b32 {vr(vFL)}, {L_FLG}
          s_mov_b32 {sr(sT[6])}, {OPT['spin']}""")
    a.label("L_mk")
    a(f"ds_read_b128 {vr(vFP,4)}, {vr(vFL)} offset:16", lg="mk")
    a.wait(lg="all")
    a(f"""v_min_u32 {vr(vFP)}, {vr(vFP)}, {vr(vFP+1)}
          v_min3_u32 {vr(vFP)}, {vr(vFP)}, {vr(vFP+2)}, {vr(vFP+3)}
          v_cmp_eq_u32 vcc, 0, {vr(vFP)}
          s_sub_u32 {sr(sT[6])}, {sr(sT[6])}, 1
          s_cmp_eq_u64 vcc, 0
          s_cbranch_scc1 L_mkd
          s_cmp_lg_u32 {sr(sT[6])}, 0
          s_cbranch_scc1 L_mk""")
    a.label("L_mkd")


WIT = OPT.get("wit", 4)
put(WIT, 0, 2, marker_check)
for i in range(12):
    put(WIT + i // 3, 1 + i % 3, 2, lambda i=i: dma(vWD, R_W2, sW2, (sLA, i * 8192), "w2a", f"s_add_u32 {sr(sW2)}, {sr(sW2)}, 16384"))
FA, WF, vSDV, vWD2 = [196, 212], 228, 249, 247
vB0, vB1, vC0, vC1 = 241, 242, 243, 248
sWR, sRG = 18, 19


def ring_addr():
    tr_addr128(vB0, vB1, 4, vFL)
    a(f"""s_mul_i32 {sr(sRG)}, {sr(sW)}, 7168
          s_add_u32 {sr(sRG)}, {sr(sRG)}, {L_CMB}
          v_add_u32 {vr(vC0)}, {sr(sRG)}, {vr(vB0)}
          v_add_u32 {vr(vC1)}, {sr(sRG)}, {vr(vB1)}
          s_lshl_b32 {sr(sWR)}, {sr(sKS)}, 14
          s_and_b32 {sr(sU2)}, {sr(sOUT)}, 0x3ff
          s_add_u32 {sr(sWR)}, {sr(sWR)}, {sr(sU2)}
          s_sub_u32 {sr(sWR)}, {sr(sWR)}, 16384
          s_lshl_b32 {sr(sU2)}, {sr(sKS)}, 10
          s_add_u32 {sr(sKS)}, {sr(sH0)}, {84*1024}
          s_add_u32 {sr(sH0)}, {sr(sH0)}, {sr(sU2)}""")


def ring_m0(k):
    if k < NI:
        a(f"s_add_u32 m0, {sr(sRG)}, {(k % 3) * 2048}")


def ring_so(k):
    if k < NI:
        a(f"s_add_u32 {sr(sWR)}, {sr(sWR)}, 16384")


def ring_dma(k):
    if k < NI:
        a(f"buffer_load_dwordx4 {vr(vWD)}, {sr(R_W2,4)}, {sr(sWR)} offen lds", vm=("rg", k))
        a(f"buffer_load_dwordx4 {vr(vWD2)}, {sr(R_W2,4)}, {sr(sWR)} offen offset:1024 lds", vm=("rg", k))


def ring_read(k, ct):
    for u in range(2):
        a(f"ds_read_b64_tr_b16 {vr(WF+4*ct+2*u,2)}, {vr((vC0, vC1)[ct])} offset:{(k%3)*2048+u*1024}", lg=("wf", k, ct))


def sd_read():
    a(f"""s_and_b32 {sr(sU2)}, {sr(sCB)}, 1
          s_lshl3_add_u32 {sr(sU2)}, {sr(sU2)}, {sr(sWQ)}
          s_lshl_b32 {sr(sU2)}, {sr(sU2)}, 5
          s_add_u32 {sr(sU2)}, {sr(sU2)}, {L_STATS}
          v_lshrrev_b32 {vr(vFL)}, 3, {vr(vL)}
          v_lshl_add_u32 {vr(vFL)}, {vr(vFL)}, 2, {sr(sU2)}""")
    a(f"ds_read_b32 {vr(vSDV)}, {vr(vFL)}", lg="sd")
    a(f"ds_read_b32 {vr(vSDV+1)}, {vr(vFL)} offset:128", lg="sd")


def putt(t, slot, fn):
    put(t // 4, t % 4, slot, fn)


put(F2IT - 1, 1, 0, ring_addr)
put(F2IT - 1, 2, 0, sd_read)
FT0 = 4 * (15 - NI // 2)
T2 = 4 * F2IT
assert FT0 - T2 >= 8 and WIT + 4 <= F2IT
putt(T2, 2, lambda: a(f"v_add_u32 {vr(vWD2)}, {8192-1024}, {vr(vWD)}"))
for k in range(3):
    putt(T2 + 1 + 2 * k, 0, lambda k=k: (ring_m0(k), ring_so(k)))
    putt(T2 + 1 + 2 * k, 2, lambda k=k: (ring_dma(k), hload(4 * k)))
    putt(T2 + 2 + 2 * k, 2, lambda k=k: (hload(4 * k + 1), hload(4 * k + 2), hload(4 * k + 3)))
    putt(T2 + 3 + 2 * k, 1, lambda k=k: h_next(4 * k + 4))
for k in range(NI):
    t = FT0 + 2 * k
    putt(t - 1, 3 if k else 2, lambda k=k: (a.wait(vm=("rg", k)), ring_read(k, 0)))
    putt(t, 3, lambda k=k: ring_read(k, 1))
    putt(t, 2, lambda k=k: ring_m0(k + 3))
    putt(t + 1, 1, lambda k=k: ring_so(k + 3))
    putt(t + 1, 2, lambda k=k: ring_dma(k + 3))
for k in range(NI):
    t = FT0 + 2 * k
    putt(t + 3, 2, lambda k=k: hload(k + 12))
    if (k + 13) % 4 == 0:
        putt(t + 5, 0, lambda k=k: h_next(k + 13))
if OPT["prio"]:
    P1, P0 = OPT.get("p1", 46), OPT.get("p0", 60)
    put(P1 // 4, P1 % 4, 1, lambda: a("s_setprio 1"))
    put(P0 // 4, P0 % 4, 1, lambda: a("s_setprio 0"))


def run_extras(it, tile, slot):
    for fn in extras.get((it, tile, slot), []):
        fn()


def exps(b, lo, hi):
    for i in range(lo, hi):
        a(f"v_exp_f32 {vr(b+i)}, {vr(b+i)}")


ORD = [1, 2, 3, 0]
T = [64 + i for i in range(32)]
CA = vbuf(13)
VS = vbuf(15)
assert 3 + XB <= F2IT


def cmb_addr(j):
    a(f"""s_xor_b32 {sr(sU)}, {sr(sW)}, {j}
          s_mul_i32 {sr(sU)}, {sr(sU)}, 7168""")


def cmb_addr2(j):
    a(f"""s_add_u32 {sr(sU)}, {sr(sU)}, {L_CMB}
          v_add_u32 {vr(CA+j)}, {sr(sU)}, {vr(vL16)}""")


def cmb_write(j):
    o = (j - 1) * 2048
    a(f"ds_write_b128 {vr(CA)}, {vr(O[j],4)} offset:{o}", lg="c")
    a(f"ds_write_b128 {vr(CA)}, {vr(O[j]+4,4)} offset:{o+1024}", lg="c")
    a(f"ds_write_b32 {vr(CA)}, {vr(O[j]+8)} offset:{6144+4*j}", lg="c")


def w_addr():
    a(f"""s_and_b32 {sr(sU)}, {sr(sLA)}, 0xfffff800
          v_add_u32 {vr(vC0)}, {sr(sU)}, {vr(vB0)}
          v_add_u32 {vr(vC1)}, {sr(sU)}, {vr(vB1)}""")


vOUT, vX, vB2 = vFP + 1, vbuf(14), kbuf(14)
assert vB2 != KB[0] and vX not in (CA, VS)


def fin_addr():
    a(f"""v_and_b32 {vr(vFL)}, 0x70, {vr(vL16)}
          v_lshrrev_b32 {vr(vOUT)}, 3, {vr(vL)}
          v_lshl_add_u32 {vr(vOUT)}, {vr(vOUT)}, 10, {vr(vFL)}""")


def fin_loads():
    a(f"buffer_load_dwordx4 {vr(vX,4)}, {vr(vOUT)}, {sr(R_X,4)}, {sr(sOUT)} offen", vm="fin")
    a(f"buffer_load_dwordx4 {vr(vX+4,4)}, {vr(vOUT)}, {sr(R_X,4)}, s22 offen", vm="fin")
    a(f"buffer_load_dwordx4 {vr(vB2,4)}, {vr(vFL)}, {sr(R_B2,4)}, s23 offen", vm="fin")


put(14, 1, 0, lambda: a(f"""s_add_u32 s22, {sr(sOUT)}, 0x8000
                            s_and_b32 s23, {sr(sOUT)}, 0x3ff"""))
put(14, 2, 0, fin_addr)
put(15, 0, 0, fin_loads)
put(15, 0, 0, w_addr)
put(15, 0, 1, lambda: a(f"v_add_u32 {vr(CA)}, {sr(sRG)}, {vr(vL16)}"))
for j, (p, q) in enumerate([((0, 2), (1, 0)), ((1, 2), (2, 1)), ((2, 2), (3, 1))]):
    put(15, *p, lambda j=j: cmb_addr(j + 1))
    put(15, *q, lambda j=j: cmb_addr2(j + 1))
put(15, 2, 0, lambda: cmb_write(1))
put(15, 3, 0, lambda: cmb_write(2))
mfma32(S[0], KB[0], Q[ORD[0]], "0")
for t in range(64):
    it, j = t // 4, t % 4
    X, Y = S[t & 1], S[(t + 1) & 1]
    stamp(f"t{t}")
    exps(X, 0, 2)
    if t > 0:
        pit, pj = (t - 1) // 4, (t - 1) % 4
        smf(O[ORD[pj]], vbuf(pit) + 4, Y + 8, vIDX)
    if j == 3:
        a.wait(vm=("v", it + 1))
    run_extras(it, j, 0)
    exps(X, 2, 5)
    if t < 63:
        nit, nj = (t + 1) // 4, (t + 1) % 4
        mfma32(Y, kbuf(nit), Q[ORD[nj]], "0")
    run_extras(it, j, 1)
    ff = FT0 <= t < FT0 + 2 * NI
    exps(X, 5, 10 if ff else 11)
    smf(O[ORD[j]], vbuf(it), X, vIDX)
    if ff:
        k, ct = divmod(t - FT0, 2)
        a.wait(vm=("hf", k), lg=("wf", k, ct))
    run_extras(it, j, 2)
    if t == 63:
        cmb_write(3)
    if ff:
        exps(X, 10, 14)
        mfma32(FA[ct], WF + 4 * ct, HF + 4 * k, "0" if k == 0 else FA[ct])
        run_extras(it, j, 3)
        exps(X, 14, 16)
    else:
        assert (it, j, 3) not in extras
        exps(X, 11, 16)
a.wait(vm="w2a", lg="all")
smf(O[0], vbuf(15) + 4, S[1] + 8, vIDX)
stamp("attend")

a("s_barrier")
stamp("barc")
for j in range(1, 4):
    a(f"ds_read_b32 {vr(O[j]+8)}, {vr(CA+j)} offset:{6144+4*j}", lg="cl")
for j in range(1, 4):
    a(f"ds_read_b128 {vr(O[j],4)}, {vr(CA+j)} offset:{(j-1)*2048}", lg=("c", j))
    a(f"ds_read_b128 {vr(O[j]+4,4)}, {vr(CA+j)} offset:{(j-1)*2048+1024}", lg=("c", j))
a.wait(lg="cl")
a(f"""v_add_f32 {vr(O[1]+8)}, {vr(O[1]+8)}, {vr(O[2]+8)}
      v_add_f32 {vr(O[0]+8)}, {vr(O[0]+8)}, {vr(O[3]+8)}
      v_add_f32 {vr(O[0]+8)}, {vr(O[0]+8)}, {vr(O[1]+8)}
      v_rcp_f32 {vr(T[2])}, {vr(O[0]+8)}
      v_cmp_nle_f32 vcc, {f32(2.0**-40)}, {vr(O[0]+8)}""")
for j in range(1, 4):
    a.wait(lg=("c", j))
    if j == 1:
        a(f"""s_mov_b64 s[76:77], vcc
              v_cmp_nge_f32 vcc, {f32(2.0**64)}, {vr(O[0]+8)}""")
    if j == 2:
        a("s_or_b64 s[76:77], s[76:77], vcc")
    for i in range(8):
        a(f"v_add_f32 {vr(O[0]+i)}, {vr(O[0]+i)}, {vr(O[j]+i)}")


def norm_store():
    for i in range(8):
        a(f"v_mul_f32 {vr(O[0]+i)}, {vr(O[0]+i)}, {vr(T[2])}")
    for i in range(4):
        a(f"v_cvt_pk_bf16_f32 {vr(T[4]+i)}, {vr(O[0]+2*i)}, {vr(O[0]+2*i+1)}")
    a(f"buffer_store_dwordx4 {vr(T[4],4)}, {vr(vL16)}, {sr(R_WS,4)}, {sr(sO)} offen sc1", vm="o")


WR = 32
pC = [Ptr(vC0), Ptr(vC1)]


def w_read(i, addr, tag):
    for ct in range(2):
        for u in range(2):
            tr(WR + 8 * (i & 3) + 4 * ct + 2 * u, pC[ct], addr + u * 1024, (tag, i))


norm_store()
stamp("ost")
w_read(0, 0, "f")
w_read(1, 8192, "f")
a(f"""v_add_f32 {vr(T[2])}, |{vr(O[0])}|, |{vr(O[0]+1)}|
      v_add_f32 {vr(T[3])}, |{vr(O[0]+2)}|, |{vr(O[0]+3)}|
      v_add_f32 {vr(T[2])}, |{vr(O[0]+4)}|, {vr(T[2])}
      v_add_f32 {vr(T[3])}, |{vr(O[0]+5)}|, {vr(T[3])}
      v_add_f32 {vr(T[2])}, |{vr(O[0]+6)}|, {vr(T[2])}
      v_add_f32 {vr(T[3])}, |{vr(O[0]+7)}|, {vr(T[3])}
      v_add_f32 {vr(T[2])}, {vr(T[2])}, {vr(T[3])}
      v_cmp_nge_f32 vcc, {f32(2.0**126)}, {vr(T[2])}
      s_or_b64 s[76:77], s[76:77], vcc""")
a("s_branch L_SLOW" if OPT["force_slow"] else "s_cbranch_scc1 L_SLOW")
a.label("L_NORM")
sWoS = sT[3]
a(f"""s_lshl_b32 {sr(sWoS)}, {sr(sW)}, 13
      s_and_b32 {sr(sU2)}, {sr(sOUT)}, 0x3ff
      s_add_u32 {sr(sWoS)}, {sr(sWoS)}, {sr(sU2)}
      s_sub_u32 {sr(sWoS)}, {sr(sWoS)}, 0x10000
      s_cmp_ge_u32 {sr(sW)}, 4
      s_barrier
      s_cbranch_scc1 L_TC""")

vPW, vPR = T[10], T[14]
AF, PF3 = OPT.get("af", 4), OPT.get("pf3", 10)
pw_addr = [f"v_and_b32 {vr(vFL)}, 7, {vr(vL)}",
           f"v_xor_b32 {vr(vPW)}, {vr(vFL)}, {vr(vHH)}",
           f"v_lshlrev_b32 {vr(vPW)}, 4, {vr(vPW)}",
           f"v_lshl_add_u32 {vr(vPW)}, {vr(vL31)}, 8, {vr(vPW)}",
           f"s_lshl_b32 {sr(sU2)}, {sr(sW)}, 13",
           f"v_add_u32 {vr(vPW)}, {sr(sU2)}, {vr(vPW)}",
           f"v_xor_b32 {vr(vPW+1)}, 32, {vr(vPW)}",
           f"v_xor_b32 {vr(vPW+2)}, 64, {vr(vPW)}",
           f"v_xor_b32 {vr(vPW+3)}, 0x60, {vr(vPW)}"]
assert L_PART == 0


def stage(ops, hook, flag):
    global side
    side = list(ops)
    wq_ = list(range(8))
    for p in pC:
        p.base = 0
    for i in range(12):
        k = NI + i
        a.wait(vm=("hf", k), lg=("f", i))
        mfma32(FA[0], WR + 8 * (i & 3), HF + 4 * (k % 12), FA[0])
        if i + 2 < 12:
            w_read(i + 2, (i + 2) * 8192, "f")
        hook(i, 0)
        if wq_ and i > AF:
            dma(vWD, R_WO, sWoS, (sLA, L_WO + wq_.pop(0) * 8192), "wo", f"s_add_u32 {sr(sWoS)}, {sr(sWoS)}, 0x10000")
        mfma32(FA[1], WR + 8 * (i & 3) + 4, HF + 4 * (k % 12), FA[1])
        if wq_ and i >= OPT.get('wo0', 0):
            dma(vWD, R_WO, sWoS, (sLA, L_WO + wq_.pop(0) * 8192), "wo", f"s_add_u32 {sr(sWoS)}, {sr(sWoS)}, 0x10000")
        side_ops(5)
        if i == AF:
            a.wait(vm="o")
            a("s_barrier")
            flag()
            stamp("a6")
        elif i == 7 and AF < 7:
            a("s_barrier")
        hook(i, 1)
    assert not side


def pw1(acc, n):
    ct, g = n >> 2, n & 3
    a(f"ds_write_b128 {vr(vPW+g)}, {vr(acc[ct]+4*g,4)} offset:{ct*128}", lg="p")


sv = (list(a.vm), list(a.lg))
role[0] = "H"
f3load = f"v_mov_b32 {vr(vFP)}, 0\nbuffer_atomic_add {vr(vFP)}, off, {sr(R_WS,4)}, {sr(sT[5])} offset:32 sc0 sc1"
OF = [96 + 4 * i for i in range(13)] + [0, 4, 8]
oq = list(range(16))
h_ops = pw_addr + [
    f"s_lshr_b32 {sr(sU)}, {sr(sW)}, 1",
    f"s_lshl_b32 {sr(sU2)}, {sr(sU)}, 2",
    f"s_add_u32 {sr(sT[5])}, {sr(sLINE)}, {sr(sU2)}",
    f"s_lshr_b32 {sr(sU2)}, {sr(sCB)}, 3",
    f"s_xor_b32 {sr(sU2)}, {sr(sU2)}, {sr(sU)}",
    f"s_add_u32 s20, {sr(sU2)}, 7",
    f"s_lshr_b32 {sr(sT[2])}, {sr(sOUT)}, 16",
    f"s_lshl_b32 {sr(sT[2])}, {sr(sT[2])}, 1",
    f"s_and_b32 {sr(sU2)}, {sr(sW)}, 1",
    f"s_add_u32 {sr(sT[2])}, {sr(sT[2])}, {sr(sU2)}",
    f"s_lshl_b32 {sr(sT[2])}, {sr(sT[2])}, 1",
    f"s_add_u32 {sr(sT[2])}, {sr(sT[2])}, {sr(sU)}",
    f"s_lshl_b32 {sr(sT[2])}, {sr(sT[2])}, 14",
    f"s_add_u32 {sr(sT[2])}, {sr(sT[2])}, {WS_O}"]


def oload():
    if not oq:
        return
    i = oq.pop(0)
    a(f"buffer_load_dwordx4 {vr(OF[i],4)}, {vr(vL16)}, {sr(R_WS,4)}, {sr(sT[2])} offen offset:{(i&3)*1024} sc1", vm=("of", i))
    if i & 3 == 3 and i < 15:
        a(f"s_add_u32 {sr(sT[2])}, {sr(sT[2])}, 4096")


def h_flag():
    pass


PIS = [int(c) for c in str(OPT.get("pis", 579))]


def f3_read(n, tag=None):
    if tag:
        a(f"v_mov_b32 {vr(vFP+n)}, 0")
    a(f"buffer_atomic_umax {vr(vFP+n)}, off, {sr(R_WS,4)}, {sr(sT[5])} offset:32 sc0 sc1", vm=tag)


def h_hook(i, h):
    if h == 1 and i in PIS:
        if i == PIS[0]:
            a.comment("staggered reads of the arrival counter of this wave's other producers (own stores were drained at a barrier)")
        a("s_mov_b64 exec, 1")
        f3_read(PIS.index(i), ("f3", PIS.index(i)))
        a("s_mov_b64 exec, -1")
    if (i, h) == (PF3, 1):
        N = len(PIS)
        a.wait(vm="wo")
        a(f"""s_mov_b64 exec, 1
              s_mov_b32 {sr(sT[6])}, {OPT['spin']}""")
        a.label("L_f3")
        for n in range(N):
            a(f"""s_waitcnt vmcnt({N-1})
                  v_cmp_gt_u32 vcc, s20, {vr(vFP+n)}
                  s_nop 1
                  s_cmp_eq_u64 vcc, 0
                  s_cbranch_scc1 L_f3d""")
            f3_read(n)
        a(f"""s_sub_u32 {sr(sT[6])}, {sr(sT[6])}, 1
              s_cmp_lg_u32 {sr(sT[6])}, 0
              s_cbranch_scc1 L_f3""")
        a.label("L_f3d")
        a.vm = []
        a("s_mov_b64 exec, -1")
        stamp("f3seen")
        oload()
    if i > PF3 or (i, h) == (PF3, 1):
        oload()


assert max(PIS) <= PF3 and min(PIS) >= 4
assert PF3 >= max(AF, 7)
stage(h_ops, h_hook, h_flag)
stamp("g1")
a(f"""s_lshl_b32 {sr(sU2)}, {sr(sU)}, 15
      s_add_u32 {sr(sU2)}, {sr(sU2)}, {L_WO}
      v_add_u32 {vr(vC0)}, {sr(sU2)}, {vr(vB0)}
      v_add_u32 {vr(vC1)}, {sr(sU2)}, {vr(vB1)}""")
while len(oq) > 8:
    oload()
for n in range(8):
    pw1(FA, n)
    oload()
a.wait(vm="wo", lg="all")
a("s_barrier")
stamp("g3")
pC = [Ptr(vC0), Ptr(vC1)]
for i in range(3):
    w_read(i, i * 2048, "wo")
for g in range(4):
    a(f"v_add_u32 {vr(vPW+g)}, {L_PB - L_PART}, {vr(vPW+g)}")
for i in range(16):
    a.wait(vm=("of", i), lg=("wo", i))
    if i == 0:
        stamp("wost")
    mfma32(FA[0], WR + 8 * (i & 3), OF[i], "0" if i == 0 else FA[0])
    if i + 3 < 16:
        w_read(i + 3, (i + 3) * 2048, "wo")
    if i < 12:
        mfma32(FA[1], WR + 8 * (i & 3) + 4, OF[i], "0" if i == 0 else FA[1])
for i in range(12, 16):
    mfma32(FA[1], WR + 8 * (i & 3) + 4, OF[i], FA[1])
    if i == 12:
        a("s_nop 4")
    if i == 13:
        a("s_nop 4")
        pw1(FA, 0)
    if i == 14:
        pw1(FA, 1)
for n in range(2, 8):
    pw1(FA, n)
a.wait(lg="all")
a("s_barrier")
a("s_branch L_DONE" if OPT["stamps"] else "s_endpgm")

a.label("L_TC")
role[0] = "C"
a.vm, a.lg = list(sv[0]), list(sv[1])
vR2 = vSDV
G, XU, PR, BU, TE = 0, 16, 148, T[16], 32
c_ops = pw_addr[:1] + [
    f"v_lshrrev_b32 {vr(T[2])}, 3, {vr(vL)}",
    f"v_mov_b32 {vr(T[3])}, 1",
    f"v_lshlrev_b32 {vr(T[1])}, 7, {vr(vL)}",
    f"s_and_b32 {sr(sT[5])}, {sr(sLINE)}, 0xfffff800",
    f"s_lshr_b32 {sr(sU2)}, {sr(sCB)}, 3",
    f"s_lshl2_add_u32 {sr(sT[5])}, {sr(sU2)}, {sr(sT[5])}",
    f"s_lshl_b32 {sr(sU2)}, {sr(sWQ)}, 2",
    "s_mov_b32 s21, 0",
    f"s_lshl_b32 s20, 15, {sr(sU2)}",
    f"s_bitset0_b32 s20, {sr(sCB)}"] + pw_addr[1:] + [
    f"v_lshlrev_b32 {vr(vPR)}, 1, {vr(vFL)}",
    f"v_xor_b32 {vr(vPR)}, {vr(vPR)}, {vr(T[2])}",
    f"v_lshlrev_b32 {vr(vPR)}, 4, {vr(vPR)}",
    f"v_lshl_add_u32 {vr(vPR)}, {vr(T[2])}, 8, {vr(vPR)}",
    f"s_lshl_b32 {sr(sU2)}, {sr(sWQ)}, 11",
    f"v_add_u32 {vr(vPR)}, {sr(sU2)}, {vr(vPR)}",
    f"v_xor_b32 {vr(vPR+1)}, 16, {vr(vPR)}"]
c_ops += [f"v_mul_f32 {vr(vR2+r)}, {vr(vR2+r)}, {vr(vR2+r)}" for r in range(2)]
c_ops += [lambda: a.wait(vm="fin")]
for i in range(4):
    c_ops += [f"v_lshlrev_b32 {vr(BU+2*i)}, 16, {vr(vB2+i)}", f"v_and_b32 {vr(BU+2*i+1)}, 0xffff0000, {vr(vB2+i)}"]
for n in range(8):
    c_ops += [f"v_lshlrev_b32 {vr(XU+2*n)}, 16, {vr(vX+n)}", f"v_and_b32 {vr(XU+2*n+1)}, 0xffff0000, {vr(vX+n)}"]
assert AF >= 2


def c_flag():
    a.comment("add one to this half's arrival counter in the line of every other workgroup of the row block (4 per wave)")
    a("s_mov_b64 exec, s[20:21]")
    a(f"buffer_atomic_add {vr(T[3])}, {vr(T[1])}, {sr(R_WS,4)}, {sr(sT[5])} offen offset:32 sc1", vm="f3s")
    a("s_mov_b64 exec, -1")


stage(c_ops, lambda i, h: None, c_flag)
stamp("g1")
for n in range(8):
    pw1(FA, n)
stamp("pw")
a.wait(vm="wo", lg="all")
a("s_barrier")
stamp("g3")


def p_read(r, kq):
    for h in range(2):
        d = G + 8 * r + 4 * h if kq == 0 else PR + 24 * r + 8 * (kq - 1) + 4 * h
        a(f"ds_read_b128 {vr(d,4)}, {vr(vPR+h)} offset:{r*8192+kq*16384}", lg=("p", r, kq))


for kq in range(4):
    p_read(0, kq)
for kq in range(3):
    p_read(1, kq)
a.wait(lg=("p", 0, 0))
p_read(1, 3)
for r in range(2):
    for kq in range(1, 4):
        a.wait(lg=("p", r, kq))
        for i in range(8):
            a(f"v_add_f32 {vr(G+8*r+i)}, {vr(G+8*r+i)}, {vr(PR+24*r+8*(kq-1)+i)}")
for i in range(16):
    a(f"v_fma_f32 {vr(G+i)}, {vr(G+i)}, {vr(vR2+i//8)}, {vr(BU+i%8)}")
for i in range(16):
    a(f"v_mul_f32 {vr(TE+i)}, {f32(-math.log2(math.e))}, {vr(G+i)}")
for i in range(16):
    a(f"v_exp_f32 {vr(TE+i)}, {vr(TE+i)}")
for i in range(16):
    a(f"v_add_f32 {vr(TE+i)}, 1.0, {vr(TE+i)}")
for i in range(16):
    a(f"v_rcp_f32 {vr(TE+i)}, {vr(TE+i)}")
for h in range(2):
    a(f"v_add_u32 {vr(vPR+h)}, {L_PB - L_PART}, {vr(vPR+h)}")
for i in range(16):
    a(f"v_mul_f32 {vr(G+i)}, {vr(G+i)}, {vr(TE+i)}")
stamp("gate")
a("s_barrier")
stamp("fin")
for r in range(2):
    for kh in range(2):
        for h in range(2):
            a(f"ds_read_b128 {vr(PR+16*r+8*kh+4*h,4)}, {vr(vPR+h)} offset:{r*8192+kh*16384}", lg=("p", r))
for r in range(2):
    a.wait(lg=("p", r))
    b = PR + 16 * r
    for i in range(8):
        a(f"v_add_f32 {vr(b+i)}, {vr(b+i)}, {vr(b+8+i)}")
    for i in range(8):
        a(f"v_fma_f32 {vr(b+i)}, {vr(b+i)}, {vr(G+8*r+i)}, {vr(XU+8*r+i)}")
    for i in range(4):
        a(f"v_cvt_pk_bf16_f32 {vr(TE+4*r+i)}, {vr(b+2*i)}, {vr(b+2*i+1)}")
    a(f"buffer_store_dwordx4 {vr(TE+4*r,4)}, {vr(vOUT)}, {sr(R_OUT,4)}, {sr(22 if r else sOUT)} offen sc1 nt")
a.label("L_DONE")
role[0] = "HC"
if OPT["stamps"]:
    stamp("end")
    a("s_memtime s[8:9]")
    a(f"""s_waitcnt lgkmcnt(0)
          s_sub_u32 s0, s8, s0
          s_sub_u32 {sr(sU)}, {sr(sLINE)}, {WS_FL}
          s_lshl_b32 {sr(sU)}, {sr(sU)}, 3
          s_lshl_b32 {sr(sU2)}, {sr(sW)}, 7
          s_add_u32 {sr(sU)}, {sr(sU)}, {sr(sU2)}
          s_add_u32 {sr(sU)}, {sr(sU)}, {WS_TS}
          s_mov_b64 exec, 1""")
    for i in range(11):
        a(f"v_mov_b32 {vr(i)}, {sr(sSTAMP+2*i)}")
    a("v_mov_b32 v11, s0")
    for i in range(3):
        a(f"buffer_store_dwordx4 {vr(4*i,4)}, off, {sr(R_WS,4)}, {sr(sU)} offset:{16*i}")
if OPT.get("amp") is not None:
    i = OPT["amp"]
    a(f"""s_cmp_lg_u32 {sr(sW)}, {OPT.get('ampw', 0)}
          s_cbranch_scc1 L_end
          s_sub_u32 s4, {sr(sSTAMP+2*i)}, {sr(sSTAMP)}
          s_lshl_b32 s4, s4, 2
          s_min_u32 s4, s4, 100000""")
    a.label("L_amp")
    a(f"""s_memrealtime s[6:7]
          s_waitcnt lgkmcnt(0)
          s_sub_u32 s6, s6, {sr(sSTAMP+20)}
          s_cmp_lt_u32 s6, s4
          s_cbranch_scc1 L_amp""")
a("s_endpgm")

a.label("L_SLOW")
a.reset_counts()
C = 16
M = T[2]
a(f"""s_nop 7
      s_lshr_b32 {sr(sU)}, {sr(sKV)}, 17
      s_lshl_b32 {sr(sU)}, {sr(sU)}, 17
      s_mov_b32 {sr(sU2)}, 64
      v_mov_b32 {vr(M)}, 0xff800000""")
a.label("L_S1")
a(f"""buffer_load_dwordx4 {vr(KB[0],4)}, {vr(vL16)}, {sr(R_WS,4)}, {sr(sU)} offen sc1
      s_waitcnt vmcnt(0)""")
mfma32(S[1], KB[0], Q[0], "0")
for i in range(8):
    a(f"v_max3_f32 {vr(M)}, {vr(M)}, {vr(S[1]+2*i)}, {vr(S[1]+2*i+1)}")
a(f"""s_add_u32 {sr(sU)}, {sr(sU)}, 2048
      s_sub_u32 {sr(sU2)}, {sr(sU2)}, 1
      s_cmp_lg_u32 {sr(sU2)}, 0
      s_cbranch_scc1 L_S1
      v_mov_b32 {vr(T[3])}, {vr(M)}
      s_nop 1
      v_permlane32_swap_b32 {vr(M)}, {vr(T[3])}
      v_max_f32 {vr(M)}, {vr(M)}, {vr(T[3])}
      s_sub_u32 {sr(sU)}, {sr(sU)}, 0x20000
      s_mov_b32 {sr(sU2)}, 64""")
for i in range(16):
    a(f"v_sub_f32 {vr(C+i)}, 0, {vr(M)}")
    a(f"v_mov_b32 {vr(O[0]+i)}, 0")
a.label("L_S2")
a(f"""buffer_load_dwordx4 {vr(KB[0],4)}, {vr(vL16)}, {sr(R_WS,4)}, {sr(sU)} offen sc1
      s_mov_b64 exec, {sr(sVM,2)}
      buffer_load_dwordx4 {vr(VS,4)}, {vr(vVO)}, {sr(R_WS,4)}, {sr(sU)} offen offset:1024 sc1
      buffer_load_dwordx4 {vr(VS+4,4)}, {vr(vVO)}, {sr(R_WS,4)}, {sr(sU)} offen offset:1536 sc1
      s_mov_b64 exec, -1
      s_waitcnt vmcnt(0)""")
mfma32(S[1], KB[0], Q[0], C)
exps(S[1], 0, 16)
smf(O[0], VS, S[1], vIDX)
smf(O[0], VS + 4, S[1] + 8, vIDX)
a(f"""s_add_u32 {sr(sU)}, {sr(sU)}, 2048
      s_sub_u32 {sr(sU2)}, {sr(sU2)}, 1
      s_cmp_lg_u32 {sr(sU2)}, 0
      s_cbranch_scc1 L_S2
      s_nop 15
      v_rcp_f32 {vr(T[2])}, {vr(O[0]+8)}""")
norm_store()
a("s_branch L_NORM")
a.label("L_exit")
a("s_waitcnt vmcnt(0) lgkmcnt(0)")
a.label("L_end")
a("s_endpgm")


def add_pads():
    import subprocess, tempfile, os, re
    from asmlib import Ins
    items = a.items
    start = next(i for i, x in enumerate(items) if x.text == "L_C2:")
    stop = next(i for i, x in enumerate(items) if x.text == "L_SLOW:")
    body = [x for x in items[start:stop] if x.is_ins]
    src = '.amdgcn_target "amdgcn-amd-amdhsa--gfx950"\n.text\n' + "\n".join(
        re.sub(r"\bL_\w+", "0", x.text) if x.op.startswith(("s_cbranch", "s_branch")) else x.text for x in body) + "\n"
    with tempfile.TemporaryDirectory() as d:
        open(d + "/t.s", "w").write(src)
        subprocess.run(["clang", "-x", "assembler", "-target", "amdgcn-amd-amdhsa", "-mcpu=gfx950", "-c", d + "/t.s", "-o", d + "/t.o"], check=True)
        dis = subprocess.run(["llvm-objdump", "-d", "--mcpu=gfx950", d + "/t.o"], capture_output=True, text=True, check=True).stdout
    sizes = [4 * len(m.group(1).split()) for m in re.finditer(r"// [0-9A-F]{12}: ([0-9A-F ]+)", dis)]
    assert len(sizes) == len(body)
    out, off, page, k, where, force = [], 0, 0, 0, [], False
    for x in items[start:stop]:
        if x.is_ins:
            if off >= page * 4096 or force:
                if off >= page * 4096:
                    page += 1
                force = False
                where.append(len(out))
                out += [None, None]
                off += 4
            off += sizes[k]
            k += 1
        elif x.text == "L_TC:":
            force = True
        out.append(x)
    n = len(where)
    assert n >= 4
    for j, w in enumerate(where):
        out[w] = Ins(f"L_pad{j}:")
        out[w + 1] = Ins(f"s_cbranch_execz {'L_pad%d' % (j + 4) if j + 4 < n else 'L_wret'}")
    a.items = items[:start] + out + items[stop:]


if WARM:
    assert ALIGN
    add_pads()
ref = open(__file__.rsplit("/", 1)[0] + "/../cdna_kernels/" + NAME + ".s.ref").read().split("\n")
head = [l for l in ref if l.startswith(";") and "@launch" not in l]
if OPT["stamps"]:
    st = STSETS[OPT.get("st", 0)]
    head.append("; stamps H " + " ".join(st["H"]))
    head.append("; stamps C " + " ".join(st["C"]))
out = "\n".join(head) + f"""
; @launch grid=(256,1,1) block=(512,1,1) lds=163840
.amdgcn_target "amdgcn-amd-amdhsa--gfx950"
.text
.globl {NAME}_kernel
.p2align 8
.type {NAME}_kernel,@function
""" + a.text() + f""".section .rodata,"a"
.p2align 6
.amdhsa_kernel {NAME}_kernel
  .amdhsa_next_free_vgpr 256
  .amdhsa_next_free_sgpr 102
  .amdhsa_accum_offset 256
  .amdhsa_group_segment_fixed_size 0
  .amdhsa_kernarg_size 88
  .amdhsa_user_sgpr_count 2
  .amdhsa_user_sgpr_kernarg_segment_ptr 1
  .amdhsa_system_sgpr_workgroup_id_x 1
  .amdhsa_float_denorm_mode_32 3
.end_amdhsa_kernel
"""
open(sys.argv[1], "w").write(out)
if OPT.get("pads"):
    for p in a.pads:
        print("pad", p)
```
